```python
import torch

def _softmax(x, axis=-1):
    return torch.softmax(x, dim=axis)
def _gelu(x):
    return torch.nn.functional.gelu(x, approximate="tanh")
def _silu(x):
    return torch.nn.functional.silu(x)
def _sigmoid(x):
    return torch.sigmoid(x)
def _layernorm(x, axis=-1, eps=1e-5):
    m = x.mean(dim=axis, keepdim=True)
    v = x.var(dim=axis, keepdim=True, unbiased=False)
    return (x - m) / torch.sqrt(v + eps)
def _scatter_add(tgt, idx, src, axis=0):
    return tgt.clone().index_add_(axis, idx, src)
def _segment_sum(src, seg, n):
    out = torch.zeros((n,) + src.shape[1:], dtype=src.dtype)
    return out.index_add_(0, seg, src)
def _pad(x, pw):
    flat = tuple(v for pair in reversed(pw) for v in pair)
    return torch.nn.functional.pad(x, flat)

kernel_name = 'interleave_layers__linear_kernel_hedgehog__ssm_conv_s4d__prompt'

def setup_inputs():

    _w = (lambda a: (lambda t: t.to(torch.bfloat16) if t.is_floating_point() else t)(torch.as_tensor(a)))
    def _A_setup():
        B, S, D, H = 1, 2048, 512, 32
        Dh = D // H
        return {
            "x": _w((lambda *s: torch.randn(*s, dtype=torch.bfloat16) * 0.05)(B, S, D)),
            "wqkv": _w((lambda *s: torch.randn(*s, dtype=torch.bfloat16) * 0.4)(D, 3 * D)),
            "w_phi": _w((lambda *s: torch.randn(*s, dtype=torch.bfloat16) * 0.4)(H, Dh, Dh) * (Dh ** -0.5)),
            "wo": _w((lambda *s: torch.randn(*s, dtype=torch.bfloat16) * 0.05)(D, D)),
        }
    _A_in = _A_setup()

    def _B_setup():
        Bsz, L, D, N = 1, 2048, 512, 128
        return {
            "u": _w((lambda *s: torch.randn(*s, dtype=torch.bfloat16) * 0.05)(Bsz, L, D)),
            "log_A_real": _w((lambda *s: torch.randn(*s, dtype=torch.bfloat16) * 6.4)(D, N) * 0.5),
            "A_imag": _w((lambda *s: torch.randn(*s, dtype=torch.bfloat16) * 0.4)(D, N) * 3.14),
            "C_real": _w((lambda *s: torch.randn(*s, dtype=torch.bfloat16) * 0.4)(D, N) / N ** 0.5),
            "C_imag": _w((lambda *s: torch.randn(*s, dtype=torch.bfloat16) * 0.4)(D, N) / N ** 0.5),
            "log_dt": _w((lambda *s: torch.randn(*s, dtype=torch.bfloat16) * 0.4)(D) * 0.5 - 4.0),
            "D_skip": _w((lambda *s: torch.randn(*s, dtype=torch.bfloat16) * 0.4)(D)),
        }
    _B_in = _B_setup()

    return {
        "A_x": _A_in["x"],
        "A_wqkv": _A_in["wqkv"],
        "A_w_phi": _A_in["w_phi"],
        "A_wo": _A_in["wo"],
        "B_u": _B_in["u"],
        "B_log_A_real": _B_in["log_A_real"],
        "B_A_imag": _B_in["A_imag"],
        "B_C_real": _B_in["C_real"],
        "B_C_imag": _B_in["C_imag"],
        "B_log_dt": _B_in["log_dt"],
        "B_D_skip": _B_in["D_skip"],
    }

def reference(A_x, A_wqkv, A_w_phi, A_wo, B_u, B_log_A_real, B_A_imag, B_C_real, B_C_imag, B_log_dt, B_D_skip):
    def _A_ref(x, wqkv, w_phi, wo):
        B, S, D = x.shape
        H = 32; Dh = D // H
        qkv = (lambda x, *d: x.permute(*d))((x @ wqkv).reshape(B, S, 3, H, Dh), 2, 0, 3, 1, 4)
        q, k, v = qkv[0], qkv[1], qkv[2]
        pq = torch.einsum("bhsd,hdf->bhsf", q, w_phi)
        pk = torch.einsum("bhsd,hdf->bhsf", k, w_phi)
        phi_q = torch.concatenate([_softmax(pq, axis=-1), _softmax(-pq, axis=-1)], axis=-1)
        phi_k = torch.concatenate([_softmax(pk, axis=-1), _softmax(-pk, axis=-1)], axis=-1)
        kv = torch.einsum("bhsf,bhsd->bhfd", phi_k, v)
        z  = torch.einsum("bhsf->bhf", phi_k)
        num = torch.einsum("bhqf,bhfd->bhqd", phi_q, kv)
        den = torch.einsum("bhqf,bhf->bhq", phi_q, z)[..., None] + 1e-6
        o = num / den
        return (lambda x, *d: x.permute(*d))(o, 0, 2, 1, 3).reshape(B, S, D) @ wo

    def _B_ref(u, log_A_real, A_imag, C_real, C_imag, log_dt, D_skip):
        L = u.shape[1]
        dt = torch.exp(log_dt)
        A = -torch.exp(log_A_real) + 1j * A_imag
        C = (C_real + 1j * C_imag) * dt[:, None]
        pos = (lambda x, dt: x.to(dt))(torch.arange(L), log_dt.dtype)
        P = torch.exp((A * dt[:, None])[:, :, None] * pos[None, None, :])
        K = 2.0 * torch.einsum("dn,dnl->dl", C, P).real
        L2 = 2 * L
        u_t = (lambda x, *d: x.permute(*d))(u, 0, 2, 1)
        Kf = (lambda x, *a, **k: torch.fft.rfft(x.float(), *a, **k))(K, L2)
        Uf = (lambda x, *a, **k: torch.fft.rfft(x.float(), *a, **k))(u_t, L2)
        y = (lambda x, *a, **k: torch.fft.irfft(x, *a, **k).to(torch.bfloat16))(Uf * Kf[None, :, :], L2)[:, :, :L]
        y = (lambda x, *d: x.permute(*d))(y, 0, 2, 1)
        return y + u * D_skip[None, None, :]

    x = A_x
    x = x + _A_ref(_layernorm(x, axis=-1), A_wqkv, A_w_phi, A_wo)
    x = x + _B_ref(_layernorm(x, axis=-1), B_log_A_real, B_A_imag, B_C_real, B_C_imag, B_log_dt, B_D_skip)
    x = x + _A_ref(_layernorm(x, axis=-1), A_wqkv, A_w_phi, A_wo)
    x = x + _B_ref(_layernorm(x, axis=-1), B_log_A_real, B_A_imag, B_C_real, B_C_imag, B_log_dt, B_D_skip)
    return x
```

```python
import re

REG_RE = re.compile(r'^(-|\|)?(abs\()?([vas])(\d+|\[(\d+):(\d+)\])\)?\|?$')

def parse_reg(tok):
    t = tok.strip()
    if t in ('vcc', 'exec', 'm0', 'scc', 'vcc_lo', 'vcc_hi', 'exec_lo', 'exec_hi'):
        base = t.split('_')[0]
        return [(base, 0)]
    m = REG_RE.match(t)
    if not m:
        return []
    kind = m.group(3)
    if m.group(5) is not None:
        return [(kind, i) for i in range(int(m.group(5)), int(m.group(6)) + 1)]
    return [(kind, int(m.group(4)))]

def split_ops(s):
    out, depth, cur = [], 0, ''
    for ch in s:
        if ch in '[(': depth += 1
        if ch in '])': depth -= 1
        if ch == ',' and depth == 0:
            out.append(cur.strip()); cur = ''
        else:
            cur += ch
    if cur.strip(): out.append(cur.strip())
    return out

TRANS = ('v_exp_f32', 'v_log_f32', 'v_rcp_f32', 'v_rsq_f32', 'v_sqrt_f32', 'v_sin_f32', 'v_cos_f32', 'v_rcp_iflag_f32',
         'v_exp_f16', 'v_rcp_f16', 'v_sqrt_f16', 'v_rsq_f16')

class Ins:
    def __init__(self, text):
        self.text = text
        t = text.split(';')[0].split('//')[0].strip()
        self.is_label = t.endswith(':')
        self.is_dir = t.startswith('.')
        self.defs = set(); self.uses = set()
        self.kind = 'other'
        self.mn = ''
        if self.is_label or self.is_dir or not t:
            self.kind = 'meta'; return
        parts = t.split(None, 1)
        mn = parts[0]; self.mn = mn
        rest = parts[1] if len(parts) > 1 else ''
        ops = split_ops(rest)
        clean = []
        for o in ops:
            toks = o.split()
            clean.append(toks[0] if toks else '')
        self.ops = clean
        R = [parse_reg(o) for o in clean]
        base = re.sub(r'_(e32|e64|dpp|sdwa)$', '', mn)
        self.base = base
        self.dpp = ('row_' in t or 'quad_perm' in t or 'wave_' in t or mn.endswith('_dpp') or 'row_bcast' in t)
        self.sdwa = mn.endswith('_sdwa')
        def U(*idx):
            for i in idx:
                if i < len(R): self.uses.update(R[i])
        def D(*idx):
            for i in idx:
                if i < len(R): self.defs.update(R[i])
        n = len(R)
        if base.startswith('v_mfma') or base.startswith('v_smfma'):
            self.kind = 'mfma'
            D(0); U(1, 2, 3)
            self.srcc = set(R[3]) if n > 3 else set()
            self.srca = set(R[1]); self.srcb = set(R[2])
            self.dst = R[0]
            if '32x32x16' in base or '32x32x8' in base: self.passes = 8
            elif '16x16x32' in base or '16x16x16' in base: self.passes = 4
            elif '32x32x2_f32' in base: self.passes = 16
            elif '16x16x4_f32' in base: self.passes = 8
            else: raise ValueError('unknown mfma ' + text)
        elif base.startswith('ds_'):
            self.kind = 'ds'
            if base.startswith('ds_read') or base.startswith('ds_bpermute') or base.startswith('ds_permute') or base.startswith('ds_swizzle'):
                D(0); U(*range(1, n))
                if 'd16' in base: U(0)
            else:
                U(*range(n))
        elif base.startswith('global_') or base.startswith('buffer_') or base.startswith('flat_'):
            self.kind = 'vmem'
            if base.startswith('buffer_inv') or base.startswith('buffer_wbl2'):
                pass
            elif '_lds_' in base or ' lds' in t:
                U(*range(n)); self.uses.add(('m0', 0)); self.ldsdma = True
            elif 'load' in base:
                D(0); U(*range(1, n))
            elif 'atomic' in base and ' sc0' in t:
                D(0); U(*range(1, n))
            else:
                U(*range(n))
                self.widestore = ('x4' in base or 'x3' in base)
                if self.widestore:
                    self.stdata = set(R[1]) if base.startswith('global_') else set(R[0])
        elif base.startswith('s_'):
            self.kind = 'salu'
            if base in ('s_waitcnt', 's_barrier', 's_nop', 's_sleep', 's_endpgm', 's_setprio', 's_branch') or base.startswith('s_cbranch'):
                if base == 's_cbranch_vccnz' or base == 's_cbranch_vccz': self.uses.add(('vcc', 0))
                if base.startswith('s_cbranch_exec'): self.uses.add(('exec', 0))
            elif base.startswith('s_cmp') or base.startswith('s_bitcmp'):
                U(*range(n))
            elif base.startswith('s_load') or base.startswith('s_memtime') or base.startswith('s_memrealtime'):
                self.kind = 'smem'; D(0); U(*range(1, n))
            elif 'saveexec' in base:
                D(0); U(*range(1, n)); self.defs.add(('exec', 0)); self.uses.add(('exec', 0))
            else:
                D(0); U(*range(1, n))
                if base in ('s_addc_u32', 's_subb_u32', 's_cselect_b32', 's_cselect_b64'): pass
        elif base.startswith('v_'):
            self.kind = 'valu'
            if base.startswith('v_cmpx'):
                D(0); U(*range(1, n)); self.defs.add(('exec', 0))
            elif base.startswith('v_cmp'):
                D(0); U(*range(1, n))
            elif base in ('v_permlane32_swap_b32', 'v_permlane16_swap_b32', 'v_swap_b32'):
                D(0, 1); U(0, 1)
            elif base in ('v_add_co_u32', 'v_sub_co_u32', 'v_subrev_co_u32', 'v_addc_co_u32', 'v_subb_co_u32'):
                D(0, 1); U(*range(2, n))
            elif base in ('v_fmac_f32', 'v_dot2c_f32_bf16', 'v_dot2c_f32_f16', 'v_pk_fmac_f16', 'v_writelane_b32', 'v_mac_f32'):
                D(0); U(*range(0, n))
            elif base == 'v_cvt_f16_f32' or base == 'v_cvt_f32_f16':
                D(0); U(*range(1, n))
            else:
                D(0); U(*range(1, n))
            if base == 'v_cndmask_b32' and n == 3: self.uses.add(('vcc', 0))
            if self.dpp or 'op_sel' in t and base.startswith('v_cvt') or self.sdwa:
                pass
            self.trans = base in TRANS
            self.dot = base.startswith('v_dot')
        else:
            raise ValueError('cannot parse: ' + text)

def isv(r): return r[0] in ('v', 'a')

def fix_hazards(lines, verbose=False):
    ins = [Ins(l) for l in lines]
    out = []
    hist = []
    pos = 0
    def need(cur):
        req = 0
        for (p, ppos) in reversed(hist):
            dist = pos - ppos - 1
            if dist >= 20: break
            w = hazard(p, cur)
            if w > dist: req = max(req, w - dist)
        return req
    for I in ins:
        if I.kind == 'meta':
            out.append(I.text); continue
        r = need(I)
        if I.kind == 'salu' and (I.base.startswith('s_cbranch') or I.base == 's_branch') and getattr(I, 'flush', True):
            if 'FENCE' in I.text:
                for (p, ppos) in hist:
                    dist = pos - ppos - 1
                    w = 12 if p.kind == 'mfma' else (5 if p.kind == 'valu' else 0)
                    if p.kind == 'mfma': w = {2:5,4:8,8:12,16:20}[p.passes]
                    if w > dist: r = max(r, w - dist)
        while r > 0:
            k = min(r, 16)
            out.append(f'  s_nop {k-1}')
            pos += k
            r -= k
        out.append(I.text)
        if I.base == 's_nop':
            pos += int(I.ops[0], 0) + 1
        else:
            pos += 1
        hist.append((I, pos - 1))
        if len(hist) > 24: hist.pop(0)
    return out

def hazard(p, c):
    w = 0
    pv = {r for r in p.defs if isv(r)}
    psg = {r for r in p.defs if r[0] in ('s', 'vcc')}
    if p.kind == 'valu':
        if c.kind == 'mfma' and pv & c.uses: w = max(w, 2)
        if c.kind == 'mfma' and ('exec', 0) in p.defs: w = max(w, 4)
        if c.kind == 'valu':
            if c.dpp and pv & c.uses: w = max(w, 2)
            if c.dpp and ('exec', 0) in p.defs: w = max(w, 5)
            if c.base.startswith('v_permlane') and pv & c.uses: w = max(w, 2)
            if c.base.startswith('v_permlane') and ('exec', 0) in p.defs: w = max(w, 4)
            if c.base in ('v_readlane_b32', 'v_readfirstlane_b32') and pv & c.uses: w = max(w, 1)
            if c.base in ('v_readlane_b32', 'v_readfirstlane_b32', 'v_writelane_b32') and ('exec', 0) in p.defs: w = max(w, 4)
            if psg & c.uses:
                w = max(w, 4 if c.base in ('v_readlane_b32', 'v_writelane_b32', 'v_div_fmas_f32') else 2)
            if getattr(p, 'trans', False) and not getattr(c, 'trans', False) and pv & (c.uses | c.defs): w = max(w, 1)
            if getattr(p, 'dot', False) and pv & (c.uses | c.defs):
                if p.base == c.base:
                    ab = set()
                    for o in c.ops[1:3]: ab.update(parse_reg(o))
                    if pv & ab: w = max(w, 3)
                else:
                    w = max(w, 3)
            if (p.sdwa or ('op_sel' in p.text and p.base.startswith('v_cvt'))) and pv & (c.uses | c.defs): w = max(w, 1)
            if ('exec', 0) in p.defs and ('exec', 0) in c.uses: w = max(w, 2)
        if getattr(p, 'dot', False) and c.kind in ('mfma', 'ds', 'vmem') and pv & (c.uses | c.defs): w = max(w, 3)
        if getattr(p, 'trans', False) and c.kind in ('mfma',) and pv & c.uses: w = max(w, 2)
        if c.kind == 'vmem' and psg & c.uses: w = max(w, 5)
        if c.kind == 'salu' and psg & c.uses: w = max(w, 3)
        if c.kind == 'smem' and psg & c.uses: w = max(w, 5)
        if c.kind == 'salu' and c.base.startswith('s_cbranch_vcc') and ('vcc', 0) in p.defs: w = max(w, 5)
        if c.kind == 'salu' and c.base.startswith('s_cbranch_exec') and ('exec', 0) in p.defs: w = max(w, 5)
    if p.kind == 'mfma':
        D = set(p.dst)
        full = {2: 5, 4: 8, 8: 12, 16: 20}[p.passes]
        if c.kind == 'mfma':
            if D & (c.srca | c.srcb): w = max(w, full)
            if D & c.srcc:
                exact = (set(c.srcc) == D and c.passes == p.passes)
                if exact: w = max(w, 2 if p.passes == 2 else 0)
                else: w = max(w, {2: 4, 4: 6, 8: 10, 16: 18}[p.passes])
            if D & set(c.dst) and not (D & c.srcc): w = max(w, full)
        elif c.kind in ('valu', 'ds', 'vmem'):
            if D & (c.uses | c.defs): w = max(w, full)
        if c.kind == 'valu' and p.srcc & c.defs:
            w = max(w, {2: 1, 4: 3, 8: 7, 16: 15}[p.passes])
        if c.kind in ('ds', 'vmem') and p.srcc & c.defs:
            w = max(w, {2: 1, 4: 3, 8: 7, 16: 15}[p.passes])
    if p.kind == 'vmem' and getattr(p, 'widestore', False):
        if c.kind == 'valu' and p.stdata & c.defs: w = max(w, 2)
        elif c.kind in ('ds', 'vmem', 'mfma') and p.stdata & c.defs: w = max(w, 1)
    if p.kind == 'ds' and p.base in ('ds_write_b128', 'ds_write_b96', 'ds_write_b64', 'ds_write2_b64', 'ds_write2_b32'):
        data = set()
        for o in p.ops[1:]: data.update(parse_reg(o))
        if c.kind == 'valu' and data & c.defs: w = max(w, 1)
    if p.kind == 'salu' and ('m0', 0) in p.defs and ('m0', 0) in c.uses: w = max(w, 1)
    if p.kind == 'salu' and ('exec', 0) in p.defs:
        if c.kind == 'valu' and (c.dpp or c.base.startswith('v_permlane') or c.base.startswith('v_readlane') or c.base.startswith('v_readfirstlane')): w = max(w, 1)
    return w

class Asm:
    def __init__(self):
        self.lines = []
    def __call__(self, s, *a):
        for l in s.strip('\n').split('\n'):
            l = l.rstrip()
            if not l.strip(): continue
            self.lines.append('  ' + l.strip() if not (l.strip().endswith(':') or l.strip().startswith('.')) else l.strip())
    def c(self, s):
        self.lines.append('  ; ' + s)
    def label(self, s):
        self.lines.append(s + ':')
    def text(self):
        real = []
        for l in self.lines:
            real.append(l)
        fixed = fix_hazards_keep_comments(real)
        return '\n'.join(fixed) + '\n'

def fix_hazards_keep_comments(lines):
    res = []
    ins_lines = []
    for l in lines:
        ins_lines.append(l)
    class Dummy: pass
    return fix_hazards(ins_lines)

def vr(a, n=1):
    return f'v{a}' if n == 1 else f'v[{a}:{a+n-1}]'
def ar(a, n=1):
    return f'a{a}' if n == 1 else f'a[{a}:{a+n-1}]'
def sr(a, n=1):
    return f's{a}' if n == 1 else f's[{a}:{a+n-1}]'
```

```python
import sys, argparse
sys.path.insert(0, 'gen')
from asmlib import Asm, vr, ar, sr

KNAME = 'interleave_layers__linear_kernel_hedgehog__ssm_conv_s4d__prompt'

WS_NONCE = 0
WS_FLAGS = 0x10000
WS_STATS = 0x40000
WS_ZP    = 0x50000
WS_KVP   = 0x100000
WS_O     = 0x200000
WS_X1T   = 0x600000
WS_X2T   = 0xA00000
WS_DBG   = 0x1000000

LDS_X    = 0
LDS_WST  = 65536
LDS_SC   = 131072
SC_PHI   = LDS_SC
PHI_HEAD = 8704
SC_V     = SC_PHI + 2 * PHI_HEAD
SC_ST    = SC_V + 8192
SC_KVT   = SC_ST + 1024
KVT_ROW  = 80
KVT_HEAD = 32 * KVT_ROW
SC_CS    = SC_KVT + 2 * KVT_HEAD
SC_END   = SC_CS + 1024
assert SC_END <= 163840, SC_END

S_X, S_WQKV, S_WPHI, S_WO = 4, 6, 8, 10
S_LOGA, S_AIM, S_CRE, S_CIM = 12, 14, 16, 18
S_LOGDT, S_DSK, S_OUT, S_WS, S_DBG = 20, 22, 24, 26, 28
S_W, S_XCD, S_JL, S_RB, S_HB, S_T, S_CB, S_C0, S_NONCE = 30, 31, 32, 33, 34, 35, 36, 37, 38
S_W1024, S_HSEL, S_RHALF = 39, 40, 41
S_T0 = 44
S_WG = 42

V_TID, V_LANE = 0, 1
V_HH, V_J = 2, 3
V_WPHI = 4
V_RESID = 12
V_PHIQ = 20
V_K = 36
V_WPHK = 48
V_P = 52

LOG2E = 0x3fb8aa3b

class Gen:
    def __init__(self, opts):
        self.a = Asm()
        self.o = opts
        self.ndump = 0
        self.uid = 0

    def lab(self, s):
        self.uid += 1
        return f'L_{s}_{self.uid}'

    def dump(self, reg, n, slot, tmp=126):
        a = self.a
        a.c(f'DEBUG dump v{reg}..+{n} -> slot {slot}')
        a(f's_lshl_b32 s60, s{S_WG}, 10')
        a(f'v_lshlrev_b32 v{tmp}, 2, v{V_TID}')
        a(f'v_add_u32 v{tmp}, s60, v{tmp}')
        for i in range(n):
            a(f'v_add_u32 v{tmp+1}, {WS_DBG + (slot + i) * 256 * 256 * 4}, v{tmp}')
            a(f'global_store_dword v{tmp+1}, v{reg+i}, s[{S_WS}:{S_WS+1}]')
        a('s_waitcnt vmcnt(0)')

    def stamp(self, idx):
        if not self.o.stamps: return
        a = self.a
        a(f's_memrealtime s[60:61]')
        a(f's_waitcnt lgkmcnt(0)')
        a(f'v_mov_b32 v124, s60')
        a(f'v_mov_b32 v125, s61')
        a(f's_lshl_b32 s62, s{S_WG}, 10')
        a(f's_lshl_b32 s63, s{S_W}, 8')
        a(f's_add_u32 s62, s62, s63')
        a(f's_add_u32 s62, s62, {WS_DBG + 0x4000000 + idx * 8}')
        a(f'v_mov_b32 v126, s62')
        a(f'global_store_dwordx2 v126, v[124:125], s[{S_WS}:{S_WS+1}]')

    def prologue(self):
        a = self.a
        a(f's_cmp_ge_u32 s2, 256')
        a(f's_cbranch_scc1 L_end')
        a(f's_load_dwordx8 s[4:11], s[0:1], 0')
        a(f's_load_dwordx8 s[12:19], s[0:1], 40')
        a(f's_load_dwordx4 s[20:23], s[0:1], 72')
        a(f's_load_dwordx2 s[24:25], s[0:1], 88')
        a(f's_load_dwordx2 s[28:29], s[0:1], 96')
        a(f's_load_dwordx2 s[26:27], s[0:1], 104')
        a(f's_mov_b32 s{S_WG}, s2')
        a(f'v_and_b32 v{V_LANE}, 63, v0')
        a(f'v_lshrrev_b32 v{V_HH}, 6, v0')
        a(f's_nop 0')
        a(f'v_readfirstlane_b32 s{S_W}, v{V_HH}')
        a(f'v_lshrrev_b32 v{V_HH}, 5, v{V_LANE}')
        a(f'v_and_b32 v{V_J}, 31, v{V_LANE}')
        a(f's_and_b32 s{S_XCD}, s2, 7')
        a(f's_lshr_b32 s{S_JL}, s2, 3')
        a(f's_and_b32 s{S_T0}, s{S_JL}, 1')
        a(f's_lshl_b32 s{S_RB}, s{S_XCD}, 1')
        a(f's_add_u32 s{S_RB}, s{S_RB}, s{S_T0}')
        a(f's_lshr_b32 s{S_HB}, s{S_JL}, 1')
        a(f's_and_b32 s{S_T0}, s{S_HB}, 3')
        a(f's_lshl_b32 s{S_T}, s{S_RB}, 2')
        a(f's_add_u32 s{S_T}, s{S_T}, s{S_T0}')
        a(f's_lshr_b32 s{S_CB}, s{S_HB}, 2')
        a(f's_lshl_b32 s{S_C0}, s{S_XCD}, 6')
        a(f's_lshl_b32 s{S_T0}, s{S_JL}, 1')
        a(f's_add_u32 s{S_C0}, s{S_C0}, s{S_T0}')
        a(f's_lshl_b32 s{S_W1024}, s{S_W}, 10')
        a(f's_and_b32 s{S_HSEL}, s{S_W}, 1')
        a(f's_lshr_b32 s{S_RHALF}, s{S_W}, 1')
        a(f's_waitcnt lgkmcnt(0)')
        a(f's_load_dword s{S_NONCE}, s[{S_WS}:{S_WS+1}], {WS_NONCE}')

    def w_dma(self):
        a = self.a
        t, b = V_P, V_P + 1
        a.c('W staging DMA')
        a(f'v_lshrrev_b32 v{b}, 2, v{V_LANE}')
        a(f's_lshl_b32 s{S_T0}, s{S_W}, 4')
        a(f'v_add_u32 v{b}, s{S_T0}, v{b}')
        a(f'v_mul_u32_u24 v{b}, 3072, v{b}')
        a(f'v_and_b32 v{t}, 3, v{V_LANE}')
        a(f'v_lshlrev_b32 v{t}, 4, v{t}')
        a(f'v_add_u32 v{b}, v{b}, v{t}')
        a(f's_lshl_b32 s{S_T0}, s{S_HB}, 6')
        a(f'v_add_u32 v{b}, s{S_T0}, v{b}')
        for p in (1, 2, 0):
            for i in range(8):
                a(f'v_add_u32 v{t}, {p * 1024 + i * 196608}, v{b}')
                a(f's_add_u32 m0, s{S_W1024}, {LDS_WST + p * 32768 + i * 4096}')
                a(f'global_load_lds_dwordx4 v{t}, s[{S_WQKV}:{S_WQKV+1}]')

    def x_dma_setup(self, L, b):
        a = self.a
        t = b + 1
        if L == 0:
            a(f'v_lshrrev_b32 v{b}, 3, v{V_LANE}')
            a(f'v_lshrrev_b32 v{t}, 1, v{b}')
            a(f's_lshl_b32 s{S_T0}, s{S_HSEL}, 2')
            a(f'v_add_u32 v{t}, s{S_T0}, v{t}')
            a(f'v_and_b32 v{t+1}, 7, v{V_LANE}')
            a(f'v_xor_b32 v{t}, v{t}, v{t+1}')
            a(f'v_lshlrev_b32 v{t}, 4, v{t}')
            a(f's_lshl_b32 s{S_T0}, s{S_RB}, 7')
            a(f's_lshl_b32 s{S_T0+1}, s{S_W}, 3')
            a(f's_add_u32 s{S_T0}, s{S_T0}, s{S_T0+1}')
            a(f'v_add_u32 v{b}, s{S_T0}, v{b}')
            a(f'v_lshlrev_b32 v{b}, 10, v{b}')
            a(f'v_add_u32 v{b}, v{b}, v{t}')
        else:
            a(f'v_bfe_u32 v{b}, v{V_LANE}, 2, 2')
            a(f's_lshl_b32 s{S_T0}, s{S_W}, 2')
            a(f'v_add_u32 v{b}, s{S_T0}, v{b}')
            a(f'v_lshlrev_b32 v{b}, 12, v{b}')
            a(f'v_lshrrev_b32 v{t}, 4, v{V_LANE}')
            a(f'v_lshlrev_b32 v{t}, 6, v{t}')
            a(f'v_and_b32 v{t+1}, 3, v{V_LANE}')
            a(f'v_lshlrev_b32 v{t+1}, 4, v{t+1}')
            a(f'v_add3_u32 v{b}, v{b}, v{t}, v{t+1}')
            a(f's_lshl_b32 s{S_T0}, s{S_RB}, 8')
            a(f's_add_u32 s{S_T0}, s{S_T0}, {WS_X2T}')
            a(f'v_add_u32 v{b}, s{S_T0}, v{b}')

    def x_dma_chunk(self, L, c, b, t):
        a = self.a
        for i in range(4):
            if L == 0:
                off = i * 32 * 1024 + c * 128
                base = S_X; sc = ''
            else:
                off = (64 * c + 16 * i) * 4096
                base = S_WS; sc = ' sc1'
            a(f'v_add_u32 v{t}, {off}, v{b}')
            a(f's_add_u32 m0, s{S_W1024}, {LDS_X + c * 16384 + i * 4096}')
            a(f'global_load_lds_dwordx4 v{t}, s[{base}:{base+1}]{sc}')

    def w_frags(self):
        a = self.a
        b, t = V_P, V_P + 1
        a.c('W fragments -> AGPR via transposing reads')
        a(f'v_bfe_u32 v{t}, v{V_LANE}, 2, 2')
        a(f'v_lshl_add_u32 v{t}, v{V_HH}, 3, v{t}')
        a(f'v_lshlrev_b32 v{t}, 6, v{t}')
        a(f'v_and_b32 v{t+1}, 3, v{V_LANE}')
        a(f'v_lshl_add_u32 v{t}, v{t+1}, 3, v{t}')
        a(f'v_bfe_u32 v{t+1}, v{V_LANE}, 4, 1')
        a(f'v_lshlrev_b32 v{t+2}, 15, v{t+1}')
        a(f's_lshl_b32 s{S_T0}, s{S_HSEL}, 5')
        a(f's_add_u32 s{S_T0}, s{S_T0}, {LDS_WST + 32768}')
        a(f'v_add3_u32 v{b}, v{t}, v{t+2}, s{S_T0}')
        a(f'v_lshl_add_u32 v{t}, v{t+1}, 5, v{t}')
        a(f'v_add_u32 v{t}, {LDS_WST}, v{t}')
        for ks in range(32):
            for x in range(2):
                a(f'ds_read_b64_tr_b16 a[{4*ks+2*x}:{4*ks+2*x+1}], v{b} offset:{ks*1024 + x*256}')
            if ks % 4 == 3: a('s_waitcnt lgkmcnt(4)')
        for ks in range(32):
            for x in range(2):
                a(f'ds_read_b64_tr_b16 a[{128+4*ks+2*x}:{128+4*ks+2*x+1}], v{t} offset:{ks*1024 + x*256}')
            if ks % 4 == 3: a('s_waitcnt lgkmcnt(4)')
        a('s_waitcnt lgkmcnt(0)')
        ones = V_P + 4
        acc1, acc2 = V_P + 8, V_P + 24
        for i in range(4): a(f'v_mov_b32 v{ones+i}, 0x3f803f80')
        for ks in range(32):
            c1 = '0' if ks == 0 else f'v[{acc1}:{acc1+15}]'
            c2 = '0' if ks == 0 else f'v[{acc2}:{acc2+15}]'
            a(f'v_mfma_f32_32x32x16_bf16 v[{acc1}:{acc1+15}], a[{4*ks}:{4*ks+3}], v[{ones}:{ones+3}], {c1}')
            a(f'v_mfma_f32_32x32x16_bf16 v[{acc2}:{acc2+15}], a[{128+4*ks}:{128+4*ks+3}], v[{ones}:{ones+3}], {c2}')
        return acc1, acc2

    def cs_store(self, acc1, acc2):
        a = self.a
        t = V_P
        a(f'v_lshlrev_b32 v{t}, 6, v{V_HH}')
        a(f's_lshl_b32 s{S_T0}, s{S_W}, 8')
        a(f's_add_u32 s{S_T0}, s{S_T0}, {SC_CS}')
        a(f'v_add_u32 v{t}, s{S_T0}, v{t}')
        a(f'v_cmp_eq_u32 vcc, 0, v{V_J}')
        a(f's_and_saveexec_b64 s[{S_T0+2}:{S_T0+3}], vcc')
        for g in range(4):
            a(f'ds_write_b128 v{t}, v[{acc1+4*g}:{acc1+4*g+3}] offset:{16*g}')
            a(f'ds_write_b128 v{t}, v[{acc2+4*g}:{acc2+4*g+3}] offset:{128+16*g}')
        a(f's_mov_b64 exec, s[{S_T0+2}:{S_T0+3}]')

    def wphi_load(self):
        a = self.a
        b, t = V_P, V_P + 1
        a(f'v_lshrrev_b32 v{b}, 3, v{V_J}')
        a(f'v_lshlrev_b32 v{b}, 2, v{b}')
        a(f'v_and_b32 v{t}, 3, v{V_J}')
        a(f'v_add_u32 v{b}, v{b}, v{t}')
        a(f'v_lshlrev_b32 v{b}, 1, v{b}')
        a(f'v_lshl_add_u32 v{b}, v{V_HH}, 7, v{b}')
        a(f's_lshl_b32 s{S_T0}, s{S_HB}, 10')
        a(f'v_add_u32 v{b}, s{S_T0}, v{b}')
        for hd in range(2):
            for jj in range(8):
                d = 8 * (jj >> 2) + (jj & 3)
                off = hd * 512 + d * 32
                a(f'global_load_ushort v{self.WPT + 8*hd + jj}, v{b}, s[{S_WPHI}:{S_WPHI+1}] offset:{off}')
    WPT = 96
    def wphi_sign(self):
        a = self.a
        t = V_P
        for i in range(8):
            a(f'v_lshl_or_b32 v{V_WPHI+i}, v{self.WPT+2*i+1}, 16, v{self.WPT+2*i}')
        a(f'v_bfe_u32 v{t}, v{V_J}, 2, 1')
        a(f'v_mul_u32_u24 v{t}, 0x8000, v{t}')
        a(f'v_lshl_or_b32 v{t}, v{t}, 16, v{t}')
        for i in range(8):
            a(f'v_xor_b32 v{V_WPHI+i}, v{V_WPHI+i}, v{t}')

    def rbf(self, dst, src):
        a = self.a
        a(f'v_cvt_pk_bf16_f32 v{dst}, v{src}, v{src}')
        a(f'v_lshlrev_b32 v{dst}, 16, v{dst}')

    def ln_finalize(self, S, Q, m, rs, t):
        a = self.a
        a(f'v_mul_f32 v{m}, 0x3b000000, v{S}')
        a(f'v_mul_f32 v{t}, 0x3b000000, v{Q}')
        a(f'v_fma_f32 v{t}, -v{m}, v{m}, v{t}')
        a(f'v_max_f32 v{t}, 0, v{t}')
        self.rbf(m, m)
        self.rbf(t, t)
        a(f'v_add_f32 v{t}, 0x3727c5ac, v{t}')
        self.rbf(t, t)
        a(f'v_sqrt_f32 v{t}, v{t}')
        self.rbf(t, t)
        a(f'v_rcp_f32 v{rs}, v{t}')

    def softmax16(self, D, out, t):
        a = self.a
        mx = t
        a(f'v_max3_f32 v{mx}, v{D}, v{D+1}, v{D+2}')
        a(f'v_max3_f32 v{mx+1}, v{D+3}, v{D+4}, v{D+5}')
        a(f'v_max3_f32 v{mx}, v{mx}, v{D+6}, v{D+7}')
        a(f'v_max3_f32 v{mx+1}, v{mx+1}, v{D+8}, v{D+9}')
        a(f'v_max3_f32 v{mx}, v{mx}, v{D+10}, v{D+11}')
        a(f'v_max3_f32 v{mx+1}, v{mx+1}, v{D+12}, v{D+13}')
        a(f'v_max3_f32 v{mx}, v{mx}, v{D+14}, v{D+15}')
        a(f'v_max_f32 v{mx}, v{mx}, v{mx+1}')
        a(f'v_mov_b32 v{t+2}, {hex(LOG2E)}')
        a(f'v_mul_f32 v{mx}, v{t+2}, v{mx}')
        for r in range(0, 16, 2):
            a(f'v_pk_fma_f32 v[{D+r}:{D+r+1}], v[{D+r}:{D+r+1}], v[{t+2}:{t+3}], v[{mx}:{mx+1}] op_sel_hi:[1,0,0] neg_lo:[0,0,1] neg_hi:[0,0,1]')
        for r in range(16):
            a(f'v_exp_f32 v{D+r}, v{D+r}')
        s = t + 2
        a(f'v_pk_add_f32 v[{s}:{s+1}], v[{D}:{D+1}], v[{D+2}:{D+3}]')
        for r in range(4, 16, 2):
            a(f'v_pk_add_f32 v[{s}:{s+1}], v[{s}:{s+1}], v[{D+r}:{D+r+1}]')
        a(f'v_add_f32 v{s}, v{s}, v{s+1}')
        a(f'v_rcp_f32 v{s}, v{s}')
        for r in range(0, 16, 2):
            a(f'v_pk_mul_f32 v[{D+r}:{D+r+1}], v[{D+r}:{D+r+1}], v[{s}:{s+1}] op_sel_hi:[1,0]')
        for r in range(0, 16, 2):
            a(f'v_cvt_pk_bf16_f32 v{out + r//2}, v{D+r}, v{D+r+1}')

    def ln_apply16(self, A, cs, m, rs, out):
        a = self.a
        for r in range(0, 16, 2):
            a(f'v_pk_fma_f32 v[{A+r}:{A+r+1}], v[{cs+r}:{cs+r+1}], v[{m}:{m+1}], v[{A+r}:{A+r+1}] op_sel_hi:[1,0,1] neg_lo:[0,1,0] neg_hi:[0,1,0]')
        for r in range(0, 16, 2):
            a(f'v_pk_mul_f32 v[{A+r}:{A+r+1}], v[{A+r}:{A+r+1}], v[{m}:{m+1}] op_sel:[0,1] op_sel_hi:[1,1]')
        for r in range(0, 16, 2):
            a(f'v_cvt_pk_bf16_f32 v{out + r//2}, v{A+r}, v{A+r+1}')

    def signal(self, sync, slot_sgpr):
        a = self.a
        a.c(f'signal sync {sync}')
        a('s_waitcnt vmcnt(0) lgkmcnt(0)')
        a('s_barrier')
        l = self.lab('sig')
        a(f's_cmp_lg_u32 s{S_W}, 0')
        a(f's_cbranch_scc1 {l}')
        a(f's_lshl_b32 s{S_T0}, s{slot_sgpr}, 6')
        a(f's_add_u32 s{S_T0}, s{S_T0}, {WS_FLAGS + sync * 0x4000}')
        a(f'v_mov_b32 v126, s{S_T0}')
        a(f'v_mov_b32 v127, s{S_NONCE}')
        a(f's_mov_b64 s[{S_T0+2}:{S_T0+3}], exec')
        a(f's_mov_b64 exec, 1')
        a(f'global_store_dword v126, v127, s[{S_WS}:{S_WS+1}] sc1')
        a(f's_mov_b64 exec, s[{S_T0+2}:{S_T0+3}]')
        a.label(l)

    def wait(self, sync, group_sgpr, nflags):
        a = self.a
        a.c(f'wait sync {sync}')
        l, lp, ld = self.lab('wait'), self.lab('poll'), self.lab('pdone')
        a(f's_cmp_lg_u32 s{S_W}, 0')
        a(f's_cbranch_scc1 {l}')
        if nflags == 16:
            a(f'v_and_b32 v126, 15, v{V_LANE}')
            a(f'v_lshlrev_b32 v126, 6, v126')
            a(f's_lshl_b32 s{S_T0}, s{group_sgpr}, 10')
            a(f's_add_u32 s{S_T0}, s{S_T0}, {WS_FLAGS + sync * 0x4000}')
            a(f'v_add_u32 v126, s{S_T0}, v126')
        else:
            a(f'v_lshlrev_b32 v126, 6, v{V_LANE}')
            a(f'v_add_u32 v126, {WS_FLAGS + sync * 0x4000}, v126')
            a(f'v_add_u32 v125, 4096, v126')
            a(f'v_add_u32 v124, 8192, v126')
            a(f'v_add_u32 v123, 12288, v126')
        a(f's_mov_b32 s{S_T0+1}, 0')
        a.label(lp)
        a(f'global_load_dword v127, v126, s[{S_WS}:{S_WS+1}] sc1')
        if nflags != 16:
            a(f'global_load_dword v122, v125, s[{S_WS}:{S_WS+1}] sc1')
            a(f'global_load_dword v121, v124, s[{S_WS}:{S_WS+1}] sc1')
            a(f'global_load_dword v120, v123, s[{S_WS}:{S_WS+1}] sc1')
        a(f's_add_u32 s{S_T0+1}, s{S_T0+1}, 1')
        a(f's_cmp_gt_u32 s{S_T0+1}, {self.o.spin}')
        a(f's_cbranch_scc1 {ld}')
        a('s_waitcnt vmcnt(0)')
        if nflags != 16:
            a(f'v_xor_b32 v122, v122, v127')
            a(f'v_xor_b32 v121, v121, v127')
            a(f'v_xor_b32 v120, v120, v127')
            a(f'v_xor_b32 v127, s{S_NONCE}, v127')
            a(f'v_or3_b32 v122, v122, v121, v120')
            a(f'v_or_b32 v127, v127, v122')
            a(f'v_cmp_ne_u32 vcc, 0, v127')
        else:
            a(f'v_cmp_ne_u32 vcc, s{S_NONCE}, v127')
        a(f's_cbranch_vccnz {lp}')
        a.label(ld)
        a('s_waitcnt vmcnt(0)')
        a.label(l)
        a('s_barrier')

    def bfrag_setup(self, L, base):
        a = self.a
        t = base + 8
        a(f's_xor_b32 s{S_T0+1}, s{S_W}, 1')
        if L == 0:
            a(f'v_bfe_u32 v{t}, v{V_J}, 1, 3')
            a(f'v_lshlrev_b32 v{t+1}, 7, v{V_J}')
            a(f's_lshl_b32 s{S_T0}, s{S_W}, 12')
            a(f's_lshl_b32 s{S_T0+1}, s{S_T0+1}, 12')
            for k in range(4):
                a(f'v_add_u32 v{t+2}, {2*k}, v{V_HH}')
                a(f'v_xor_b32 v{t+2}, v{t+2}, v{t}')
                a(f'v_lshl_add_u32 v{t+2}, v{t+2}, 4, v{t+1}')
                a(f'v_add_u32 v{base+k}, s{S_T0}, v{t+2}')
                a(f'v_add_u32 v{base+4+k}, s{S_T0+1}, v{t+2}')
        else:
            a(f'v_bfe_u32 v{t}, v{V_LANE}, 2, 2')
            a(f'v_lshlrev_b32 v{t}, 6, v{t}')
            a(f'v_lshl_add_u32 v{t}, v{V_HH}, 11, v{t}')
            a(f'v_bfe_u32 v{t+1}, v{V_LANE}, 4, 1')
            a(f'v_lshl_add_u32 v{t}, v{t+1}, 5, v{t}')
            a(f'v_and_b32 v{t+1}, 3, v{V_LANE}')
            a(f'v_lshl_add_u32 v{t}, v{t+1}, 3, v{t}')
            a(f's_lshl_b32 s{S_T0}, s{S_W}, 8')
            a(f's_lshl_b32 s{S_T0+1}, s{S_T0+1}, 8')
            a(f'v_add_u32 v{base}, s{S_T0}, v{t}')
            a(f'v_add_u32 v{base+4}, s{S_T0+1}, v{t}')

    def bfrag_read(self, L, base, ks, dst):
        a = self.a
        if L == 0:
            c, k = ks >> 2, ks & 3
            a(f'ds_read_b128 v[{dst}:{dst+3}], v{base+k} offset:{(c & 3) * 16384}')
        else:
            for x in range(2):
                off = (ks & 15) * 4096 + x * 1024
                a(f'ds_read_b64_tr_b16 v[{dst+2*x}:{dst+2*x+1}], v{base} offset:{off}')

    def bfrag_bump(self, L, base, both=True):
        a = self.a
        bs = (base, base + 4) if both else (base,)
        for b in bs:
            for k in range(4 if L == 0 else 1): a(f'v_add_u32 v{b+k}, 65536, v{b+k}')

    def p1(self, L):
        a = self.a
        o = self.o
        a.c(f'================ P1 layer {L} ================')
        XB = V_P
        SS, SQ, ONES = 64, 65, 66
        ACC0, ACC1 = 72, 88
        FR = 104
        self.bfrag_setup(L, XB)
        a(f'v_mov_b32 v{SS}, 0')
        a(f'v_mov_b32 v{SQ}, 0')
        a(f'v_mov_b32 v{ONES}, 0x3f803f80')
        a('s_waitcnt vmcnt(0)')
        a('s_barrier')
        self.stamp(2 + 16 * L)
        nrd = 1 if L == 0 else 2
        self.bfrag_read(L, XB, 0, FR); self.bfrag_read(L, XB + 4, 0, FR + 4)
        for ks in range(32):
            cur = FR + 8 * (ks & 1); nxt = FR + 8 * ((ks + 1) & 1)
            if ks + 1 < 32:
                if ks + 1 == 16: self.bfrag_bump(L, XB)
                self.bfrag_read(L, XB, ks + 1, nxt); self.bfrag_read(L, XB + 4, ks + 1, nxt + 4)
                a(f's_waitcnt lgkmcnt({2*nrd})')
            else:
                a('s_waitcnt lgkmcnt(0)')
            c0 = '0' if ks == 0 else f'v[{ACC0}:{ACC0+15}]'
            c1 = '0' if ks == 0 else f'v[{ACC1}:{ACC1+15}]'
            a(f'v_mfma_f32_32x32x16_bf16 v[{ACC0}:{ACC0+15}], a[{4*ks}:{4*ks+3}], v[{cur}:{cur+3}], {c0}')
            a(f'v_mfma_f32_32x32x16_bf16 v[{ACC1}:{ACC1+15}], a[{4*ks}:{4*ks+3}], v[{cur+4}:{cur+7}], {c1}')
            for i in range(4):
                a(f'v_dot2c_f32_bf16 v{SS}, v{cur+i}, v{ONES}')
                a(f'v_dot2c_f32_bf16 v{SQ}, v{cur+i}, v{cur+i}')
        T = V_P + 8
        a(f'v_mov_b32 v{T}, v{SS}')
        a(f'v_mov_b32 v{T+1}, v{SQ}')
        a(f'v_permlane32_swap_b32 v{SS}, v{T}')
        a(f'v_permlane32_swap_b32 v{SQ}, v{T+1}')
        a(f'v_add_f32 v{SS}, v{SS}, v{T}')
        a(f'v_add_f32 v{SQ}, v{SQ}, v{T+1}')
        M = 68
        self.ln_finalize(SS, SQ, M, M + 1, T)
        a(f'v_lshlrev_b32 v{T}, 3, v{V_J}')
        a(f's_lshl_b32 s{S_T0}, s{S_W}, 8')
        a(f's_add_u32 s{S_T0}, s{S_T0}, {SC_ST}')
        a(f'v_add_u32 v{T}, s{S_T0}, v{T}')
        a(f'ds_write_b64 v{T}, v[{M}:{M+1}]')
        self.resid_read(L)
        a('s_waitcnt lgkmcnt(0)')
        a('s_barrier')
        self.stamp(3 + 16 * L)
        if o.dump == f'acc{L}':
            self.dump(ACC0, 16, 0); self.dump(M, 2, 16)
        CS = 128
        a(f'v_lshlrev_b32 v{T}, 6, v{V_HH}')
        a(f's_lshl_b32 s{S_T0}, s{S_W}, 8')
        a(f's_add_u32 s{S_T0}, s{S_T0}, {SC_CS}')
        a(f'v_add_u32 v{T}, s{S_T0}, v{T}')
        for g in range(4):
            a(f'ds_read_b128 v[{CS+4*g}:{CS+4*g+3}], v{T} offset:{16*g}')
        M1 = 70
        a(f'v_lshlrev_b32 v{T}, 3, v{V_J}')
        a(f's_xor_b32 s{S_T0}, s{S_W}, 1')
        a(f's_lshl_b32 s{S_T0}, s{S_T0}, 8')
        a(f's_add_u32 s{S_T0}, s{S_T0}, {SC_ST}')
        a(f'v_add_u32 v{T}, s{S_T0}, v{T}')
        a(f'ds_read_b64 v[{M1}:{M1+1}], v{T}')
        PA, VA = V_P, V_P + 2
        a(f'v_lshrrev_b32 v{T+1}, 3, v{V_J}')
        a(f'v_add_u32 v{T+1}, v{T+1}, v{V_HH}')
        a(f'v_lshlrev_b32 v{T+1}, 5, v{T+1}')
        a(f'v_lshl_add_u32 v{T+1}, v{V_J}, 6, v{T+1}')
        a(f's_mul_i32 s{S_T0}, s{S_HSEL}, {PHI_HEAD}')
        a(f's_add_u32 s{S_T0}, s{S_T0}, {SC_PHI}')
        a(f's_mul_i32 s{S_T0+1}, s{S_W}, 2176')
        a(f's_xor_b32 s{S_T0+2}, s{S_W}, 1')
        a(f's_mul_i32 s{S_T0+3}, s{S_T0+2}, 2176')
        a(f's_add_u32 s{S_T0+1}, s{S_T0+1}, s{S_T0}')
        a(f's_add_u32 s{S_T0+3}, s{S_T0+3}, s{S_T0}')
        a(f'v_add_u32 v{PA}, s{S_T0+1}, v{T+1}')
        a(f'v_add_u32 v{PA+1}, s{S_T0+3}, v{T+1}')
        a(f'v_bfe_u32 v{T+1}, v{V_J}, 3, 1')
        a(f'v_lshlrev_b32 v{T+1}, 2, v{T+1}')
        a(f'v_xor_b32 v{T}, v{V_J}, v{T+1}')
        a(f'v_lshlrev_b32 v{T}, 5, v{T}')
        a(f'v_lshl_add_u32 v{T}, v{V_HH}, 3, v{T}')
        a(f's_lshl_b32 s{S_T0}, s{S_HSEL}, 12')
        a(f's_add_u32 s{S_T0}, s{S_T0}, {SC_V}')
        a(f's_lshl_b32 s{S_T0+1}, s{S_W}, 10')
        a(f's_lshl_b32 s{S_T0+2}, s{S_T0+2}, 10')
        a(f's_add_u32 s{S_T0+1}, s{S_T0+1}, s{S_T0}')
        a(f's_add_u32 s{S_T0+2}, s{S_T0+2}, s{S_T0}')
        a(f'v_add_u32 v{VA}, s{S_T0+1}, v{T}')
        a(f'v_add_u32 v{VA+1}, s{S_T0+2}, v{T}')
        a('s_waitcnt lgkmcnt(0)')
        KB = FR
        PH = FR + 8
        D2 = 144
        TT = 160
        for tt, (ACC, MM) in enumerate(((ACC0, M), (ACC1, M1))):
            self.ln_apply16(ACC, CS, MM, MM + 1, KB)
            a(f'v_mfma_f32_32x32x16_bf16 v[{D2}:{D2+15}], v[{V_WPHK}:{V_WPHK+3}], v[{KB}:{KB+3}], 0')
            a(f'ds_write_b64 v{VA+tt}, v[{KB+4}:{KB+5}]')
            a(f'ds_write_b64 v{VA+tt}, v[{KB+6}:{KB+7}] offset:16')
            if o.dump == f'pk{L}' and tt == 0: self.dump(D2, 16, 0); self.dump(KB, 8, 16)
            self.softmax16(D2, PH, TT)
            a(f'ds_write_b128 v{PA+tt}, v[{PH}:{PH+3}]')
            a(f'ds_write_b128 v{PA+tt}, v[{PH+4}:{PH+7}] offset:16')
        a('s_waitcnt lgkmcnt(0)')
        a('s_barrier')
        AA, BA = V_P, V_P + 1
        a(f'v_lshrrev_b32 v{T}, 4, v{V_LANE}')
        a(f'v_bfe_u32 v{T+1}, v{V_LANE}, 2, 2')
        a(f'v_lshl_add_u32 v{T+2}, v{T}, 3, v{T+1}')
        a(f'v_lshlrev_b32 v{AA}, 6, v{T+2}')
        a(f'v_lshl_add_u32 v{AA}, v{T}, 5, v{AA}')
        a(f'v_and_b32 v{T+3}, 3, v{V_LANE}')
        a(f'v_lshl_add_u32 v{AA}, v{T+3}, 3, v{AA}')
        a(f's_mul_i32 s{S_T0}, s{S_HSEL}, {PHI_HEAD}')
        a(f's_lshl_b32 s{S_T0+1}, s{S_RHALF}, 5')
        a(f's_add_u32 s{S_T0}, s{S_T0}, s{S_T0+1}')
        a(f's_add_u32 s{S_T0}, s{S_T0}, {SC_PHI}')
        a(f'v_add_u32 v{AA}, s{S_T0}, v{AA}')
        a(f'v_and_b32 v{T}, 1, v{T}')
        a(f'v_lshlrev_b32 v{T}, 2, v{T}')
        a(f'v_xor_b32 v{T+1}, v{T+2}, v{T}')
        a(f'v_xor_b32 v{T+2}, 4, v{T+1}')
        a(f'v_lshlrev_b32 v{T+1}, 5, v{T+1}')
        a(f'v_lshlrev_b32 v{T+2}, 5, v{T+2}')
        a(f'v_lshl_add_u32 v{T+1}, v{T+3}, 3, v{T+1}')
        a(f'v_lshl_add_u32 v{T+2}, v{T+3}, 3, v{T+2}')
        a(f's_lshl_b32 s{S_T0}, s{S_HSEL}, 12')
        a(f's_add_u32 s{S_T0}, s{S_T0}, {SC_V}')
        a(f'v_add_u32 v{BA}, s{S_T0}, v{T+1}')
        a(f'v_add_u32 v{BA+1}, s{S_T0}, v{T+2}')
        FA, FB = 164, 180
        for kk in range(4):
            for x in range(2):
                a(f'ds_read_b64_tr_b16 v[{FA+4*kk+2*x}:{FA+4*kk+2*x+1}], v{AA} offset:{kk*2176 + x*256}')
                a(f'ds_read_b64_tr_b16 v[{FB+4*kk+2*x}:{FB+4*kk+2*x+1}], v{BA+x} offset:{kk*1024}')
        KV = 196
        ZS = 200
        a(f'v_mov_b32 v{ZS}, 0')
        a('s_waitcnt lgkmcnt(0)')
        for kk in range(4):
            c = '0' if kk == 0 else f'v[{KV}:{KV+3}]'
            a(f'v_mfma_f32_16x16x32_bf16 v[{KV}:{KV+3}], v[{FA+4*kk}:{FA+4*kk+3}], v[{FB+4*kk}:{FB+4*kk+3}], {c}')
        for i in range(16):
            a(f'v_dot2c_f32_bf16 v{ZS}, v{FA+i}, v{ONES}')
        a(f'v_mov_b32 v{ZS+1}, v{ZS}')
        a(f'v_permlane32_swap_b32 v{ZS}, v{ZS+1}')
        a(f'v_add_f32 v{ZS}, v{ZS}, v{ZS+1}')
        a(f'v_mov_b32 v{ZS+1}, v{ZS}')
        a(f'v_permlane16_swap_b32 v{ZS}, v{ZS+1}')
        a(f'v_add_f32 v{ZS}, v{ZS}, v{ZS+1}')
        a(f'v_cvt_pk_bf16_f32 v{KV}, v{KV}, v{KV+1}')
        a(f'v_cvt_pk_bf16_f32 v{KV+1}, v{KV+2}, v{KV+3}')
        a(f'v_and_b32 v{T}, 15, v{V_LANE}')
        a(f'v_lshlrev_b32 v{T}, 6, v{T}')
        a(f'v_lshrrev_b32 v{T+1}, 4, v{V_LANE}')
        a(f'v_lshl_add_u32 v{T}, v{T+1}, 3, v{T}')
        a(f's_lshl_b32 s{S_T0}, s{S_HB}, 4')
        a(f's_add_u32 s{S_T0}, s{S_T0}, s{S_RB}')
        a(f's_mov_b32 s{S_T0+8}, s{S_T0}')
        a(f's_lshl_b32 s{S_T0+1}, s{S_T0}, 11')
        a(f's_lshl_b32 s{S_T0+2}, s{S_HSEL}, 10')
        a(f's_add_u32 s{S_T0+1}, s{S_T0+1}, s{S_T0+2}')
        a(f's_lshl_b32 s{S_T0+2}, s{S_RHALF}, 5')
        a(f's_add_u32 s{S_T0+1}, s{S_T0+1}, s{S_T0+2}')
        a(f's_add_u32 s{S_T0+1}, s{S_T0+1}, {WS_KVP + L * 0x80000}')
        a(f'v_add_u32 v{T}, s{S_T0+1}, v{T}')
        a(f'global_store_dwordx2 v{T}, v[{KV}:{KV+1}], s[{S_WS}:{S_WS+1}] sc1')
        a(f's_lshl_b32 s{S_T0+1}, s{S_T0}, 8')
        a(f's_lshl_b32 s{S_T0+2}, s{S_HSEL}, 7')
        a(f's_add_u32 s{S_T0+1}, s{S_T0+1}, s{S_T0+2}')
        a(f's_lshl_b32 s{S_T0+2}, s{S_RHALF}, 6')
        a(f's_add_u32 s{S_T0+1}, s{S_T0+1}, s{S_T0+2}')
        a(f's_add_u32 s{S_T0+1}, s{S_T0+1}, {WS_ZP + L * 0x10000}')
        a(f'v_lshlrev_b32 v{T}, 2, v{V_LANE}')
        a(f'v_add_u32 v{T}, s{S_T0+1}, v{T}')
        a(f's_mov_b64 s[{S_T0+2}:{S_T0+3}], exec')
        a(f's_mov_b64 exec, 0xffff')
        a(f'global_store_dword v{T}, v{ZS}, s[{S_WS}:{S_WS+1}] sc1')
        a(f's_mov_b64 exec, s[{S_T0+2}:{S_T0+3}]')
        self.signal(4 * L + 0, S_T0 + 8)
        self.stamp(4 + 16 * L)
        self.bfrag_setup(L, XB)
        self.bfrag_read(L, XB, 0, FR)
        for ks in range(32):
            cur = FR + 4 * (ks & 1); nxt = FR + 4 * ((ks + 1) & 1)
            if ks + 1 < 32:
                if ks + 1 == 16: self.bfrag_bump(L, XB, both=False)
                self.bfrag_read(L, XB, ks + 1, nxt)
                a(f's_waitcnt lgkmcnt({nrd})')
            else:
                a('s_waitcnt lgkmcnt(0)')
            c0 = '0' if ks == 0 else f'v[{ACC0}:{ACC0+15}]'
            a(f'v_mfma_f32_32x32x16_bf16 v[{ACC0}:{ACC0+15}], a[{128+4*ks}:{128+4*ks+3}], v[{cur}:{cur+3}], {c0}')
        a(f'v_lshlrev_b32 v{T}, 6, v{V_HH}')
        a(f's_lshl_b32 s{S_T0}, s{S_W}, 8')
        a(f's_add_u32 s{S_T0}, s{S_T0}, {SC_CS + 128}')
        a(f'v_add_u32 v{T}, s{S_T0}, v{T}')
        for g in range(4):
            a(f'ds_read_b128 v[{CS+4*g}:{CS+4*g+3}], v{T} offset:{16*g}')
        a('s_waitcnt lgkmcnt(0)')
        self.ln_apply16(ACC0, CS, M, M + 1, KB)
        TT = 160
        for hd in range(2):
            a(f'v_mfma_f32_32x32x16_bf16 v[{D2}:{D2+15}], v[{V_WPHI+4*hd}:{V_WPHI+4*hd+3}], v[{KB+4*hd}:{KB+4*hd+3}], 0')
            self.softmax16(D2, V_PHIQ + 8 * hd, TT)
        self.stamp(5 + 16 * L)
        if o.dump == f'phiq{L}': self.dump(V_PHIQ, 16, 0)

    def resid_read(self, L):
        a = self.a
        T = V_P + 8
        a(f's_and_b32 s{S_T0}, s{S_HB}, 3')
        if L == 0:
            a(f's_lshl_b32 s{S_T0+1}, s{S_CB}, 1')
            a(f's_add_u32 s{S_T0+1}, s{S_T0+1}, s{S_RHALF}')
            a(f's_lshl_b32 s{S_T0+1}, s{S_T0+1}, 14')
            a(f's_lshl_b32 s{S_T0}, s{S_T0}, 12')
            a(f's_add_u32 s{S_T0}, s{S_T0}, s{S_T0+1}')
            a(f'v_lshlrev_b32 v{T}, 7, v{V_J}')
            a(f'v_lshl_add_u32 v{T}, v{V_HH}, 3, v{T}')
            a(f'v_add_u32 v{T}, s{S_T0}, v{T}')
            a(f'v_bfe_u32 v{T+1}, v{V_J}, 1, 3')
            a(f's_lshl_b32 s{S_T0+1}, s{S_HSEL}, 2')
            for g in range(4):
                a(f's_add_u32 s{S_T0+2}, s{S_T0+1}, {g}')
                a(f'v_xor_b32 v{T+2}, s{S_T0+2}, v{T+1}')
                a(f'v_lshl_add_u32 v{T+2}, v{T+2}, 4, v{T}')
                a(f'ds_read_b64 v[{V_RESID+2*g}:{V_RESID+2*g+1}], v{T+2}')
        else:
            a(f's_lshl_b32 s{S_T0+1}, s{S_CB}, 5')
            a(f's_lshl_b32 s{S_T0+2}, s{S_W}, 3')
            a(f's_add_u32 s{S_T0+1}, s{S_T0+1}, s{S_T0+2}')
            a(f's_lshl_b32 s{S_T0+1}, s{S_T0+1}, 10')
            a(f's_lshl_b32 s{S_T0}, s{S_T0}, 8')
            a(f's_add_u32 s{S_T0}, s{S_T0}, s{S_T0+1}')
            a(f'v_bfe_u32 v{T}, v{V_LANE}, 2, 2')
            a(f'v_lshlrev_b32 v{T}, 6, v{T}')
            a(f'v_lshl_add_u32 v{T}, v{V_HH}, 10, v{T}')
            a(f'v_bfe_u32 v{T+1}, v{V_LANE}, 4, 1')
            a(f'v_lshl_add_u32 v{T}, v{T+1}, 5, v{T}')
            a(f'v_and_b32 v{T+1}, 3, v{V_LANE}')
            a(f'v_lshl_add_u32 v{T}, v{T+1}, 3, v{T}')
            a(f'v_add_u32 v{T}, s{S_T0}, v{T}')
            for g in range(4):
                a(f'ds_read_b64_tr_b16 v[{V_RESID+2*g}:{V_RESID+2*g+1}], v{T} offset:{g*2048}')


    def o_stage(self, L):
        a = self.a; o = self.o
        a.c(f'================ o stage layer {L} ================')
        self.wait(4 * L + 0, S_HB, 16)
        self.stamp(6 + 16 * L)
        T = V_P
        PB = 56
        ZB = 88
        a(f's_lshl_b32 s{S_T0}, s{S_HB}, 15')
        a(f's_add_u32 s{S_T0}, s{S_T0}, {WS_KVP + L * 0x80000}')
        a(f'v_lshlrev_b32 v{T}, 3, v{V_TID}')
        a(f'v_add_u32 v{T}, s{S_T0}, v{T}')
        for p in range(16):
            if p % 2 == 0 and p > 0: a(f'v_add_u32 v{T}, 4096, v{T}')
            a(f'global_load_dwordx2 v[{PB+2*p}:{PB+2*p+1}], v{T}, s[{S_WS}:{S_WS+1}] offset:{(p % 2) * 2048} sc1')
        lz = self.lab('z')
        a(f's_cmp_lg_u32 s{S_W}, 3')
        a(f's_cbranch_scc1 {lz}')
        a(f's_lshl_b32 s{S_T0}, s{S_HB}, 12')
        a(f's_add_u32 s{S_T0}, s{S_T0}, {WS_ZP + L * 0x10000}')
        a(f'v_lshlrev_b32 v{T+1}, 2, v{V_LANE}')
        a(f'v_add_u32 v{T+1}, s{S_T0}, v{T+1}')
        for p in range(16):
            a(f'global_load_dword v{ZB+p}, v{T+1}, s[{S_WS}:{S_WS+1}] offset:{p * 256} sc1')
        a.label(lz)
        self.wo_dma()
        a('s_waitcnt vmcnt(32)')
        AC = 104
        CL, CH = 108, 109
        a(f'v_mov_b32 v{CL}, 0x00003f80')
        a(f'v_mov_b32 v{CH}, 0x3f800000')
        for i in range(4): a(f'v_mov_b32 v{AC+i}, 0')
        for p in range(16):
            a(f'v_dot2c_f32_bf16 v{AC}, v{PB+2*p}, v{CL}')
            a(f'v_dot2c_f32_bf16 v{AC+1}, v{PB+2*p}, v{CH}')
            a(f'v_dot2c_f32_bf16 v{AC+2}, v{PB+2*p+1}, v{CL}')
            a(f'v_dot2c_f32_bf16 v{AC+3}, v{PB+2*p+1}, v{CH}')
        a(f'v_cvt_pk_bf16_f32 v{AC}, v{AC}, v{AC+1}')
        a(f'v_cvt_pk_bf16_f32 v{AC+1}, v{AC+2}, v{AC+3}')
        a(f'v_lshrrev_b32 v{T}, 7, v{V_TID}')
        a(f'v_mul_u32_u24 v{T}, {KVT_HEAD}, v{T}')
        a(f'v_bfe_u32 v{T+1}, v{V_TID}, 3, 4')
        a(f'v_mul_u32_u24 v{T+1}, {KVT_ROW}, v{T+1}')
        a(f'v_and_b32 v{T+2}, 7, v{V_TID}')
        a(f'v_lshlrev_b32 v{T+2}, 3, v{T+2}')
        a(f'v_add3_u32 v{T}, v{T}, v{T+1}, v{T+2}')
        a(f'v_add_u32 v{T}, {SC_KVT}, v{T}')
        a(f'ds_write_b64 v{T}, v[{AC}:{AC+1}]')
        lz = self.lab('z')
        a(f's_cmp_lg_u32 s{S_W}, 3')
        a(f's_cbranch_scc1 {lz}')
        for p in range(1, 16):
            a(f'v_add_f32 v{ZB}, v{ZB}, v{ZB+p}')
        a(f'v_cvt_pk_bf16_f32 v{ZB}, v{ZB}, v{ZB}')
        a(f'v_mul_u32_u24 v{T}, {KVT_HEAD}, v{V_HH}')
        a(f'v_lshl_add_u32 v{T}, v{V_J}, 1, v{T}')
        a(f'v_add_u32 v{T}, {SC_KVT + 16 * KVT_ROW}, v{T}')
        a(f'ds_write_b16 v{T}, v{ZB}')
        a(f'ds_write_b16 v{T}, v{ZB} offset:{4 * KVT_ROW}')
        a.label(lz)
        a('s_waitcnt lgkmcnt(0)')
        a('s_barrier')
        AF = 56
        a(f'v_mul_u32_u24 v{T}, {KVT_ROW}, v{V_J}')
        a(f'v_lshl_add_u32 v{T}, v{V_HH}, 5, v{T}')
        a(f'v_add_u32 v{T}, {SC_KVT}, v{T}')
        for hd in range(2):
            for m in range(2):
                a(f'ds_read_b128 v[{AF+8*hd+4*m}:{AF+8*hd+4*m+3}], v{T} offset:{hd * KVT_HEAD + 16 * m}')
        a('s_waitcnt lgkmcnt(0)')
        D = [72, 88]
        for hd in range(2):
            a(f'v_mfma_f32_32x32x16_bf16 v[{D[hd]}:{D[hd]+15}], v[{AF+8*hd}:{AF+8*hd+3}], v[{V_PHIQ+8*hd}:{V_PHIQ+8*hd+3}], 0')
            a(f'v_mfma_f32_32x32x16_bf16 v[{D[hd]}:{D[hd]+15}], v[{AF+8*hd+4}:{AF+8*hd+7}], v[{V_PHIQ+8*hd+4}:{V_PHIQ+8*hd+7}], v[{D[hd]}:{D[hd]+15}]')
        a(f's_lshl_b32 s{S_T0}, s{S_RB}, 2')
        a(f's_add_u32 s{S_T0}, s{S_T0}, s{S_W}')
        a(f's_lshl_b32 s{S_T0}, s{S_T0}, 15')
        a(f's_lshl_b32 s{S_T0+1}, s{S_HB}, 11')
        a(f's_add_u32 s{S_T0}, s{S_T0}, s{S_T0+1}')
        a(f's_add_u32 s{S_T0}, s{S_T0}, {WS_O + L * 0x200000}')
        a(f'v_lshlrev_b32 v{T}, 4, v{V_LANE}')
        a(f'v_add_u32 v{T}, s{S_T0}, v{T}')
        OB = 104
        for hd in range(2):
            d = D[hd]
            a(f'v_add_f32 v{d+8}, 0x358637bd, v{d+8}')
            a(f'v_rcp_f32 v{d+8}, v{d+8}')
            for r in range(0, 8, 2):
                a(f'v_pk_mul_f32 v[{d+r}:{d+r+1}], v[{d+r}:{d+r+1}], v[{d+8}:{d+9}] op_sel_hi:[1,0]')
            for r in range(0, 8, 2):
                a(f'v_cvt_pk_bf16_f32 v{OB+4*hd+r//2}, v{d+r}, v{d+r+1}')
            a(f'global_store_dwordx4 v{T}, v[{OB+4*hd}:{OB+4*hd+3}], s[{S_WS}:{S_WS+1}] offset:{hd*1024} sc1')
        a(f's_lshl_b32 s{S_T0+8}, s{S_RB}, 4')
        a(f's_add_u32 s{S_T0+8}, s{S_T0+8}, s{S_HB}')
        self.signal(4 * L + 1, S_T0 + 8)
        self.stamp(7 + 16 * L)
        self.wo_frags()

    def wo_dma(self):
        a = self.a
        b, t = 110, 111
        a(f'v_lshrrev_b32 v{b}, 4, v{V_LANE}')
        a(f'v_lshlrev_b32 v{t}, 2, v{b}')
        a(f'v_and_b32 v{t+1}, 15, v{V_LANE}')
        a(f'v_xor_b32 v{t}, v{t}, v{t+1}')
        a(f'v_lshlrev_b32 v{t}, 4, v{t}')
        a(f's_lshl_b32 s{S_T0}, s{S_W}, 2')
        a(f'v_add_u32 v{b}, s{S_T0}, v{b}')
        a(f'v_lshl_add_u32 v{b}, v{b}, 10, v{t}')
        a(f's_lshl_b32 s{S_T0}, s{S_CB}, 8')
        a(f'v_add_u32 v{b}, s{S_T0}, v{b}')
        for i in range(32):
            a(f'v_add_u32 v{t}, {i * 16 * 1024}, v{b}')
            a(f's_add_u32 m0, s{S_W1024}, {i * 4096}')
            a(f'global_load_lds_dwordx4 v{t}, s[{S_WO}:{S_WO+1}]')

    def wo_frags(self):
        a = self.a
        b, t = V_P, V_P + 1
        a(f'v_bfe_u32 v{t}, v{V_LANE}, 2, 2')
        a(f'v_lshl_add_u32 v{b}, v{V_HH}, 2, v{t}')
        a(f'v_lshlrev_b32 v{b}, 8, v{b}')
        a(f'v_lshlrev_b32 v{t}, 2, v{t}')
        a(f'v_bfe_u32 v{t+1}, v{V_LANE}, 4, 1')
        a(f'v_lshlrev_b32 v{t+1}, 1, v{t+1}')
        a(f'v_bfe_u32 v{t+2}, v{V_LANE}, 1, 1')
        a(f's_lshl_b32 s{S_T0}, s{S_W}, 2')
        a(f'v_add3_u32 v{t+1}, v{t+1}, v{t+2}, s{S_T0}')
        a(f'v_xor_b32 v{t+1}, v{t+1}, v{t}')
        a(f'v_lshl_add_u32 v{b}, v{t+1}, 4, v{b}')
        a(f'v_and_b32 v{t+1}, 1, v{V_LANE}')
        a(f'v_lshl_add_u32 v{b}, v{t+1}, 3, v{b}')
        for hg in range(32):
            if hg == 16: a(f'v_add_u32 v{b}, 65536, v{b}')
            for x in range(2):
                a(f'ds_read_b64_tr_b16 v[{128+4*hg+2*x}:{128+4*hg+2*x+1}], v{b} offset:{(hg & 15) * 4096 + x * 2048}')
            if hg % 4 == 3: a('s_waitcnt lgkmcnt(4)')
        a('s_waitcnt lgkmcnt(0)')

    def p2b(self, L):
        a = self.a; o = self.o
        a.c(f'================ P2b layer {L} ================')
        self.wait(4 * L + 1, S_RB, 16)
        self.stamp(8 + 16 * L)
        T = V_P
        a(f's_lshl_b32 s{S_T0}, s{S_T}, 15')
        a(f's_add_u32 s{S_T0}, s{S_T0}, s{S_W1024}')
        a(f's_add_u32 s{S_T0}, s{S_T0}, {WS_O + L * 0x200000}')
        a(f'v_lshlrev_b32 v{T}, 4, v{V_LANE}')
        a(f'v_add_u32 v{T}, s{S_T0}, v{T}')
        for i in range(8):
            a(f'v_add_u32 v{T+1}, {i * 4096}, v{T}')
            a(f's_add_u32 m0, s{S_W1024}, {i * 4096}')
            a(f'global_load_lds_dwordx4 v{T+1}, s[{S_WS}:{S_WS+1}] sc1')
        a(f'v_lshlrev_b32 v{T}, 4, v{V_LANE}')
        a('s_waitcnt vmcnt(0)')
        a('s_barrier')
        FR = 56; ACC = 72
        NB = 3
        for hg in range(min(NB - 1, 32)):
            a(f'ds_read_b128 v[{FR+4*(hg%NB)}:{FR+4*(hg%NB)+3}], v{T} offset:{hg*1024}')
        for hg in range(32):
            nx = hg + NB - 1
            if nx < 32:
                a(f'ds_read_b128 v[{FR+4*(nx%NB)}:{FR+4*(nx%NB)+3}], v{T} offset:{nx*1024}')
                a(f's_waitcnt lgkmcnt({NB-1})')
            else:
                a(f's_waitcnt lgkmcnt({31-hg})')
            c = '0' if hg == 0 else f'v[{ACC}:{ACC+15}]'
            a(f'v_mfma_f32_32x32x16_bf16 v[{ACC}:{ACC+15}], v[{128+4*hg}:{128+4*hg+3}], v[{FR+4*(hg%NB)}:{FR+4*(hg%NB)+3}], {c}')
        self.stamp(9 + 16 * L)
        X = 88
        U = 96
        for g in range(8):
            a(f'v_lshlrev_b32 v{U}, 16, v{V_RESID+g}')
            a(f'v_and_b32 v{U+1}, 0xffff0000, v{V_RESID+g}')
            a(f'v_pk_add_f32 v[{ACC+2*g}:{ACC+2*g+1}], v[{ACC+2*g}:{ACC+2*g+1}], v[{U}:{U+1}]')
            a(f'v_cvt_pk_bf16_f32 v{X+g}, v{ACC+2*g}, v{ACC+2*g+1}')
        SS, SQ, ONES = 98, 99, 100
        a(f'v_mov_b32 v{SS}, 0'); a(f'v_mov_b32 v{SQ}, 0'); a(f'v_mov_b32 v{ONES}, 0x3f803f80')
        for g in range(8):
            a(f'v_dot2c_f32_bf16 v{SS}, v{X+g}, v{ONES}')
            a(f'v_dot2c_f32_bf16 v{SQ}, v{X+g}, v{X+g}')
        TR = 32768
        a(f'v_lshlrev_b32 v{T}, 6, v{V_J}')
        a(f'v_lshl_add_u32 v{T}, v{V_HH}, 3, v{T}')
        a(f's_lshl_b32 s{S_T0}, s{S_W}, 11')
        a(f's_add_u32 s{S_T0}, s{S_T0}, {TR}')
        a(f'v_add_u32 v{T}, s{S_T0}, v{T}')
        for g in range(4):
            a(f'ds_write_b64 v{T}, v[{X+2*g}:{X+2*g+1}] offset:{16*g}')
        a(f'v_mov_b32 v{U}, v{SS}')
        a(f'v_mov_b32 v{U+1}, v{SQ}')
        a(f'v_permlane32_swap_b32 v{SS}, v{U}')
        a(f'v_permlane32_swap_b32 v{SQ}, v{U+1}')
        a(f'v_add_f32 v{SS}, v{SS}, v{U}')
        a(f'v_add_f32 v{SQ}, v{SQ}, v{U+1}')
        a(f'v_cmp_eq_u32 vcc, 0, v{V_HH}')
        a(f'v_cndmask_b32 v{SS}, v{SQ}, v{SS}, vcc')
        a(f's_lshl_b32 s{S_T0}, s{S_T}, 7')
        a(f's_add_u32 s{S_T0}, s{S_T0}, {WS_STATS + L * 0x4000}')
        a(f'v_lshlrev_b32 v{U}, 2, v{V_J}')
        a(f'v_lshl_add_u32 v{U}, v{V_HH}, 13, v{U}')
        a(f'v_add_u32 v{U}, s{S_T0}, v{U}')
        a(f'global_atomic_add_f32 v{U}, v{SS}, s[{S_WS}:{S_WS+1}]')
        a(f'v_lshrrev_b32 v{T}, 4, v{V_LANE}')
        a(f'v_bfe_u32 v{T+1}, v{V_LANE}, 2, 2')
        a(f'v_lshl_add_u32 v{T+1}, v{T}, 3, v{T+1}')
        a(f'v_lshlrev_b32 v{T+1}, 6, v{T+1}')
        a(f'v_and_b32 v{T+2}, 3, v{V_LANE}')
        a(f'v_lshl_add_u32 v{T+1}, v{T+2}, 3, v{T+1}')
        a(f's_lshl_b32 s{S_T0}, s{S_W}, 11')
        a(f's_add_u32 s{S_T0}, s{S_T0}, {TR}')
        a(f'v_add_u32 v{T+1}, s{S_T0}, v{T+1}')
        a('s_waitcnt lgkmcnt(0)')
        Y = 104
        for m in range(2):
            for x in range(2):
                a(f'ds_read_b64_tr_b16 v[{Y+4*m+2*x}:{Y+4*m+2*x+1}], v{T+1} offset:{m*32 + x*256}')
        a(f's_lshl_b32 s{S_T0}, s{S_CB}, 7')
        a(f's_lshl_b32 s{S_T0+1}, s{S_W}, 5')
        a(f's_add_u32 s{S_T0}, s{S_T0}, s{S_T0+1}')
        a(f's_lshl_b32 s{S_T0}, s{S_T0}, 12')
        a(f's_lshl_b32 s{S_T0+1}, s{S_T}, 6')
        a(f's_add_u32 s{S_T0}, s{S_T0}, s{S_T0+1}')
        a(f's_add_u32 s{S_T0}, s{S_T0}, {WS_X1T + L * 0x200000}')
        a(f'v_and_b32 v{T+2}, 15, v{V_LANE}')
        a(f'v_lshlrev_b32 v{T+2}, 12, v{T+2}')
        a(f'v_lshl_add_u32 v{T+2}, v{T}, 4, v{T+2}')
        a(f'v_add_u32 v{T+2}, s{S_T0}, v{T+2}')
        a(f'v_add_u32 v{T+3}, {16 * 4096}, v{T+2}')
        a('s_waitcnt lgkmcnt(0)')
        a(f'global_store_dwordx4 v{T+2}, v[{Y}:{Y+3}], s[{S_WS}:{S_WS+1}] sc1')
        a(f'global_store_dwordx4 v{T+3}, v[{Y+4}:{Y+7}], s[{S_WS}:{S_WS+1}] sc1')
        self.signal(4 * L + 2, S_WG)
        self.stamp(10 + 16 * L)

    def exp_acc(self, dst, src, t):
        a = self.a
        a(f'v_mul_f32 v{t}, {hex(LOG2E)}, v{src}')
        a(f'v_mov_b32 v{t+1}, {hex(LOG2E)}')
        a(f'v_fma_f32 v{t+1}, v{src}, v{t+1}, -v{t}')
        a(f'v_fmac_f32 v{t+1}, 0x32a57060, v{src}')
        a(f'v_exp_f32 v{dst}, v{t}')
        a(f'v_mul_f32 v{t+1}, 0x3f317218, v{t+1}')
        a(f'v_fmac_f32 v{dst}, v{dst}, v{t+1}')

    def cis_pow(self, dst, ar2, rev, p, t):
        a = self.a
        import struct
        pf = hex(struct.unpack('<I', struct.pack('<f', float(p)))[0])
        a(f'v_mul_f32 v{t}, {pf}, v{ar2}')
        a(f'v_exp_f32 v{t}, v{t}')
        a(f'v_mul_f32 v{t+1}, {pf}, v{rev}')
        a(f'v_fract_f32 v{t+1}, v{t+1}')
        a(f'v_cos_f32 v{dst}, v{t+1}')
        a(f'v_sin_f32 v{dst+1}, v{t+1}')
        a(f'v_mul_f32 v{dst}, v{dst}, v{t}')
        a(f'v_mul_f32 v{dst+1}, v{dst+1}, v{t}')

    def cmul(self, d, x, y):
        a = self.a
        a(f'v_pk_mul_f32 v[{d}:{d+1}], v[{x}:{x+1}], v[{y}:{y+1}] op_sel_hi:[0,1]')
        a(f'v_pk_fma_f32 v[{d}:{d+1}], v[{x}:{x+1}], v[{y}:{y+1}], v[{d}:{d+1}] op_sel:[1,1,0] op_sel_hi:[1,0,1] neg_lo:[0,1,0]')

    KG_A = 0
    KG_B = 33792
    KG_D = 67584
    KG_MX = 76032
    def kgen(self):
        a = self.a; o = self.o
        a.c('================ K generation ================')
        T = V_P
        LA, AI, CR, CI, LD, DS = 56, 57, 58, 59, 60, 61
        a(f's_lshl_b32 s{S_T0}, s{S_C0}, 8')
        a(f'v_lshlrev_b32 v{T}, 1, v{V_TID}')
        a(f'v_add_u32 v{T}, s{S_T0}, v{T}')
        a(f'global_load_ushort v{LA}, v{T}, s[{S_LOGA}:{S_LOGA+1}]')
        a(f'global_load_ushort v{AI}, v{T}, s[{S_AIM}:{S_AIM+1}]')
        a(f'global_load_ushort v{CR}, v{T}, s[{S_CRE}:{S_CRE+1}]')
        a(f'global_load_ushort v{CI}, v{T}, s[{S_CIM}:{S_CIM+1}]')
        a(f'v_lshrrev_b32 v{T+1}, 7, v{V_TID}')
        a(f'v_add_u32 v{T+1}, s{S_C0}, v{T+1}')
        a(f'v_lshlrev_b32 v{T+1}, 1, v{T+1}')
        a(f'global_load_ushort v{LD}, v{T+1}, s[{S_LOGDT}:{S_LOGDT+1}]')
        a('s_waitcnt vmcnt(0)')
        for r in (LA, AI, CR, CI, LD): a(f'v_lshlrev_b32 v{r}, 16, v{r}')
        DT, EA = 62, 63
        self.exp_acc(DT, LD, T); self.rbf(DT, DT)
        self.exp_acc(EA, LA, T); self.rbf(EA, EA)
        AR2, REV = 64, 65
        a(f'v_mul_f32 v{AR2}, v{EA}, v{DT}')
        a(f'v_mul_f32 v{AR2}, {hex(LOG2E ^ 0x80000000)}, v{AR2}')
        a(f'v_mul_f32 v{REV}, v{AI}, v{DT}')
        a(f'v_mul_f32 v{REV}, 0.15915494, v{REV}')
        MX = 66
        a(f'v_max_f32 v{MX}, |v{CR}|, |v{CI}|')
        for ctrl in ('row_ror:1', 'row_ror:2', 'row_ror:4', 'row_ror:8'):
            a(f'v_mov_b32_dpp v{T}, v{MX} {ctrl} row_mask:0xf bank_mask:0xf')
            a(f'v_max_f32 v{MX}, v{MX}, v{T}')
        a(f'v_mov_b32 v{T}, v{MX}')
        a(f'v_permlane16_swap_b32 v{MX}, v{T}')
        a(f'v_max_f32 v{MX}, v{MX}, v{T}')
        a(f'v_mov_b32 v{T}, v{MX}')
        a(f'v_permlane32_swap_b32 v{MX}, v{T}')
        a(f'v_max_f32 v{MX}, v{MX}, v{T}')
        a(f's_lshl_b32 s{S_T0}, s{S_W}, 2')
        a(f's_add_u32 s{S_T0}, s{S_T0}, {self.KG_MX}')
        a(f'v_mov_b32 v{T}, s{S_T0}')
        a(f'ds_write_b32 v{T}, v{MX}')
        a('s_waitcnt lgkmcnt(0)')
        a('s_barrier')
        a(f's_lshl_b32 s{S_T0}, s{S_RHALF}, 3')
        a(f's_add_u32 s{S_T0}, s{S_T0}, {self.KG_MX}')
        a(f'v_mov_b32 v{T}, s{S_T0}')
        a(f'ds_read_b64 v[{T+2}:{T+3}], v{T}')
        a('s_waitcnt lgkmcnt(0)')
        a(f'v_max_f32 v{MX}, v{T+2}, v{T+3}')
        a(f'v_lshrrev_b32 v{MX}, 23, v{MX}')
        a(f'v_max_u32 v{MX}, 1, v{MX}')
        a(f'v_min_u32 v{MX}, 253, v{MX}')
        SCL = 67
        a(f'v_sub_u32 v{SCL}, 254, v{MX}')
        a(f'v_lshlrev_b32 v{SCL}, 23, v{SCL}')
        a(f'v_lshlrev_b32 v{T}, 23, v{MX}')
        a(f'v_mul_f32 v{T}, v{T}, v{DT}')
        a(f'v_mul_f32 v{T}, 0x3d000000, v{T}')
        a(f's_lshl_b32 s{S_T0}, s{S_RHALF}, 2')
        a(f's_add_u32 s{S_T0}, s{S_T0}, {self.KG_MX + 32}')
        a(f'v_mov_b32 v{T+1}, s{S_T0}')
        a(f'ds_write_b32 v{T+1}, v{T}')
        C = 58
        a(f'v_pk_mul_f32 v[{C}:{C+1}], v[{C}:{C+1}], v[{SCL-1}:{SCL}] op_sel:[0,1] op_sel_hi:[1,1]')
        Z1, Z8, Z256 = 68, 70, 72
        self.cis_pow(Z1, AR2, REV, 1, T)
        self.cis_pow(Z8, AR2, REV, 8, T)
        self.cis_pow(Z256, AR2, REV, 256, T)
        TA = 74
        a(f'v_lshrrev_b32 v{T}, 7, v{V_TID}')
        a(f'v_mul_u32_u24 v{T}, 16896, v{T}')
        a(f'v_and_b32 v{T+1}, 127, v{V_TID}')
        a(f'v_lshl_add_u32 v{TA}, v{T+1}, 2, v{T}')
        P0, P1 = 76, 78
        H = 80
        a(f'v_mov_b32 v{P0}, 1.0'); a(f'v_mov_b32 v{P0+1}, 0')
        cur, nxt = P0, P1
        for b in range(32):
            a(f'v_cvt_pkrtz_f16_f32 v{H + (b & 1)}, v{cur}, -v{cur+1}')
            a(f'ds_write_b32 v{TA}, v{H + (b & 1)} offset:{self.KG_A + b * 528}')
            if b < 31:
                self.cmul(nxt, cur, Z8); cur, nxt = nxt, cur
        def putB(col, r):
            a(f'v_cvt_pkrtz_f16_f32 v{H + (col & 1)}, v{r}, v{r+1}')
            a(f'ds_write_b32 v{TA}, v{H + (col & 1)} offset:{self.KG_B + col * 528}')
        Z2, Z4, Z6 = 82, 84, 86
        self.cmul(Z2, Z1, Z1); self.cmul(Z4, Z2, Z2); self.cmul(Z6, Z4, Z2)
        putB(0, C)
        cur, nxt = P0, P1
        self.cmul(cur, C, Z1); putB(1, cur)
        for k in range(2, 8):
            self.cmul(nxt, cur, Z1); cur, nxt = nxt, cur; putB(k, cur)
        G, G2, W1 = 88, 90, 92
        self.cmul(G, C, Z256)
        putB(8, G)
        for k, zz in ((9, Z2), (10, Z4), (11, Z6)):
            self.cmul(W1, G, zz); putB(k, W1)
        self.cmul(G2, G, Z256)
        putB(12, G2); self.cmul(W1, G2, Z4); putB(13, W1)
        self.cmul(G, G2, Z256)
        putB(14, G); self.cmul(W1, G, Z4); putB(15, W1)
        self.cmul(G2, G, Z256); putB(16, G2)
        self.cmul(G, G2, Z256); putB(17, G)
        self.cmul(G2, G, Z256); putB(18, G2)
        self.cmul(G, G2, Z256); putB(19, G)
        self.cmul(G2, G, Z256); putB(20, G2)
        a('s_waitcnt lgkmcnt(0)')
        a('s_barrier')
        AA, BA = T, T + 1
        a(f'v_and_b32 v{T+2}, 15, v{V_LANE}')
        a(f'v_mul_u32_u24 v{T+2}, 528, v{T+2}')
        a(f'v_lshrrev_b32 v{T+3}, 4, v{V_LANE}')
        a(f'v_lshl_add_u32 v{T+2}, v{T+3}, 4, v{T+2}')
        a(f's_mul_i32 s{S_T0}, s{S_HSEL}, 16896')
        a(f'v_add_u32 v{AA}, s{S_T0}, v{T+2}')
        a(f's_mul_i32 s{S_T0+1}, s{S_RHALF}, {16 * 528}')
        a(f's_add_u32 s{S_T0}, s{S_T0}, s{S_T0+1}')
        a(f's_add_u32 s{S_T0}, s{S_T0}, {self.KG_B}')
        a(f'v_add_u32 v{BA}, s{S_T0}, v{T+2}')
        FA, FB, DD = 56, 88, 104
        for ks in range(8):
            a(f'ds_read_b128 v[{FA}:{FA+3}], v{AA} offset:{self.KG_A + ks * 64}')
            a(f'ds_read_b128 v[{FA+4}:{FA+7}], v{AA} offset:{self.KG_A + 16 * 528 + ks * 64}')
            a(f'ds_read_b128 v[{FB}:{FB+3}], v{BA} offset:{ks * 64}')
            a('s_waitcnt lgkmcnt(0)')
            for mb in range(2):
                c = '0' if ks == 0 else f'v[{DD+4*mb}:{DD+4*mb+3}]'
                a(f'v_mfma_f32_16x16x32_f16 v[{DD+4*mb}:{DD+4*mb+3}], v[{FA+4*mb}:{FA+4*mb+3}], v[{FB}:{FB+3}], {c}')
        COL, P2 = T, T + 1
        a(f'v_and_b32 v{COL}, 15, v{V_LANE}')
        a(f's_lshl_b32 s{S_T0}, s{S_RHALF}, 4')
        a(f'v_add_u32 v{COL}, s{S_T0}, v{COL}')
        t2, t3 = T + 2, T + 3
        a(f'v_mov_b32 v{P2}, v{COL}')
        a(f'v_lshlrev_b32 v{t2}, 1, v{COL}'); a(f'v_add_u32 v{t2}, {256 - 16}, v{t2}')
        a(f'v_cmp_le_u32 vcc, 8, v{COL}'); a(f'v_cndmask_b32 v{P2}, v{P2}, v{t2}, vcc')
        a(f'v_and_b32 v{t2}, 1, v{COL}'); a(f'v_lshlrev_b32 v{t2}, 2, v{t2}')
        a(f'v_bfe_u32 v{t3}, v{COL}, 1, 1'); a(f'v_lshlrev_b32 v{t3}, 8, v{t3}')
        a(f'v_add3_u32 v{t2}, v{t2}, v{t3}, 0'); a(f'v_add_u32 v{t2}, 512, v{t2}')
        a(f'v_cmp_le_u32 vcc, 12, v{COL}'); a(f'v_cndmask_b32 v{P2}, v{P2}, v{t2}, vcc')
        a(f'v_lshlrev_b32 v{t2}, 8, v{COL}'); a(f'v_add_u32 v{t2}, {1024 - 4096 + 0x100000}, v{t2}'); a(f'v_and_b32 v{t2}, 0xfffff, v{t2}')
        a(f'v_cmp_le_u32 vcc, 16, v{COL}'); a(f'v_cndmask_b32 v{P2}, v{P2}, v{t2}, vcc')
        a(f'v_lshrrev_b32 v{t2}, 4, v{V_LANE}')
        a(f'v_lshl_add_u32 v{t2}, v{t2}, 5, v{P2}')
        a(f'v_lshlrev_b32 v{t2}, 1, v{t2}')
        a(f's_mul_i32 s{S_T0}, s{S_HSEL}, 4112')
        a(f's_add_u32 s{S_T0}, s{S_T0}, {self.KG_D}')
        a(f'v_add_u32 v{t2}, s{S_T0}, v{t2}')
        for i in range(8):
            a(f'v_mul_f32 v{DD+i}, 0x42800000, v{DD+i}')
            a(f'v_cvt_f16_f32 v{DD+i}, v{DD+i}')
        a(f'v_cmp_gt_u32 vcc, 20, v{COL}')
        a(f's_and_saveexec_b64 s[{S_T0+2}:{S_T0+3}], vcc')
        for mb in range(2):
            for r in range(4):
                a(f'ds_write_b16 v{t2}, v{DD+4*mb+r} offset:{(128*mb + 8*r) * 2}')
        a(f's_mov_b64 exec, s[{S_T0+2}:{S_T0+3}]')
        a(f'v_cmp_eq_u32 vcc, 20, v{COL}')
        a(f'v_lshrrev_b32 v{t3}, 4, v{V_LANE}')
        a(f'v_cmp_eq_u32 s[{S_T0+4}:{S_T0+5}], 0, v{t3}')
        a(f's_and_b64 vcc, vcc, s[{S_T0+4}:{S_T0+5}]')
        a(f's_and_saveexec_b64 s[{S_T0+2}:{S_T0+3}], vcc')
        a(f'ds_write_b16 v{t2}, v{DD}')
        a(f's_mov_b64 exec, s[{S_T0+2}:{S_T0+3}]')
        a('s_waitcnt lgkmcnt(0)')
        a('s_barrier')
        LL = 56
        for i in range(12):
            a(f'v_lshlrev_b32 v{T}, 3, v{V_TID}')
            a(f'v_add_u32 v{T}, {i - 4 + 0}, v{T}') if i >= 4 else a(f'v_subrev_u32 v{T}, {4 - i}, v{T}')
            a(f'v_max_i32 v{T}, 0, v{T}')
            a(f'v_cvt_f32_u32 v{T}, v{T}')
            self.rbf(T, T)
            a(f'v_cvt_u32_f32 v{T}, v{T}')
            a(f'v_lshlrev_b32 v{LL+i}, 1, v{T}')
            a(f'v_add_u32 v{LL+i}, {self.KG_D}, v{LL+i}')
        GT = 72
        for ch in range(2):
            for i in range(12):
                a(f'ds_read_u16 v{GT + 12*ch + i}, v{LL+i} offset:{ch * 4112}')
        a('s_waitcnt lgkmcnt(0)')
        for ch in range(2):
            for i in range(6):
                a(f'v_lshl_or_b32 v{V_K + 6*ch + i}, v{GT + 12*ch + 2*i + 1}, 16, v{GT + 12*ch + 2*i}')
        a(f'v_mov_b32 v{T}, {self.KG_MX + 32}')
        a(f'ds_read_b64 v[{T+2}:{T+3}], v{T}')
        a('s_waitcnt lgkmcnt(0)')
        a(f'v_readfirstlane_b32 s{S_KSC}, v{T+2}')
        a(f'v_readfirstlane_b32 s{S_KSC+1}, v{T+3}')
        a(f'v_cmp_eq_u32 vcc, 0, v{V_TID}')
        for ch in range(2):
            for i in range(2):
                a(f'v_cndmask_b32 v{V_K+6*ch+i}, v{V_K+6*ch+i}, 0, vcc') if False else a(f'v_cndmask_b32 v{V_K+6*ch+i}, v{V_K+6*ch+i}, v{self.zero_reg()}, vcc')
        a(f's_lshl_b32 s{S_T0}, s{S_C0}, 1')
        a(f's_add_u32 s{S_T0+2}, s{S_DSK}, s{S_T0}')
        a(f's_addc_u32 s{S_T0+3}, s{S_DSK+1}, 0')
        a(f's_load_dword s{S_DSKV}, s[{S_T0+2}:{S_T0+3}], 0')
        a('s_waitcnt lgkmcnt(0)')
        a('s_barrier')
        if o.dump == 'kgen': self.dump(V_K, 12, 0)

    def zero_reg(self):
        self.a(f'v_mov_b32 v119, 0')
        return 119

    CV_KC = 0
    CV_U = 33280
    CV_X1 = 42496
    CV_EX = 50688
    def k_copies(self):
        a = self.a
        a.c('K shifted copies -> LDS')
        T = V_P
        AD = T
        a(f'v_lshlrev_b32 v{AD}, 4, v{V_TID}')
        a(f'v_add_u32 v{AD}, {self.CV_KC + 32}, v{AD}')
        W = 56
        for ch in range(2):
            d = V_K + 6 * ch
            base = ch * 16640
            a(f'ds_write_b128 v{AD}, v[{d+2}:{d+5}] offset:{base}')
            for i in range(4): a(f'v_mov_b32 v{W+i}, v{d+1+i}')
            a(f'ds_write_b128 v{AD}, v[{W}:{W+3}] offset:{base + 2*4160}')
            for i in range(5): a(f'v_alignbit_b32 v{W+4+i}, v{d+i+1}, v{d+i}, 16')
            a(f'ds_write_b128 v{AD}, v[{W+4}:{W+7}] offset:{base + 3*4160}')
            for i in range(4): a(f'v_mov_b32 v{W+10+i}, v{W+5+i}')
            a(f'ds_write_b128 v{AD}, v[{W+10}:{W+13}] offset:{base + 1*4160}')
        for i in range(4): a(f'v_mov_b32 v{W+i}, 0')
        a(f'v_lshrrev_b32 v{T+1}, 1, v{V_TID}')
        a(f'v_mul_u32_u24 v{T+1}, 4160, v{T+1}')
        a(f'v_and_b32 v{T+2}, 1, v{V_TID}')
        a(f'v_lshl_add_u32 v{T+1}, v{T+2}, 4, v{T+1}')
        a(f'v_add_u32 v{T+1}, {self.CV_KC}, v{T+1}')
        a(f'v_cmp_gt_u32 vcc, 16, v{V_TID}')
        a(f's_and_saveexec_b64 s[{S_T0+2}:{S_T0+3}], vcc')
        a(f'ds_write_b128 v{T+1}, v[{W}:{W+3}]')
        a(f's_mov_b64 exec, s[{S_T0+2}:{S_T0+3}]')
        a(f'v_lshrrev_b32 v{T+1}, 5, v{V_TID}')
        a(f'v_mul_u32_u24 v{T+1}, 4608, v{T+1}')
        a(f'v_and_b32 v{T+2}, 31, v{V_TID}')
        a(f'v_lshl_add_u32 v{T+1}, v{T+2}, 4, v{T+1}')
        a(f'v_add_u32 v{T+1}, {self.CV_U}, v{T+1}')
        a(f'v_cmp_gt_u32 vcc, 64, v{V_TID}')
        a(f's_and_saveexec_b64 s[{S_T0+2}:{S_T0+3}], vcc')
        a(f'ds_write_b128 v{T+1}, v[{W}:{W+3}]')
        a(f's_mov_b64 exec, s[{S_T0+2}:{S_T0+3}]')

    def conv(self, L):
        a = self.a; o = self.o
        a.c(f'================ conv layer {L} ================')
        self.k_copies()
        self.wait(4 * L + 2, None, 256)
        self.stamp(11 + 16 * L)
        if L == 0:
            l = self.lab('nonce')
            a(f's_add_u32 s{S_T0}, s{S_WG}, s{S_W}')
            a(f's_cmp_lg_u32 s{S_T0}, 0')
            a(f's_cbranch_scc1 {l}')
            a(f'v_mov_b32 v126, {WS_NONCE}')
            a(f'v_mov_b32 v127, s{S_NONCE}')
            a(f's_mov_b64 s[{S_T0+2}:{S_T0+3}], exec')
            a(f's_mov_b64 exec, 1')
            a(f'global_store_dword v126, v127, s[{S_WS}:{S_WS+1}] sc1')
            a(f's_mov_b64 exec, s[{S_T0+2}:{S_T0+3}]')
            a.label(l)
        T = V_P
        XR = 56
        SM, SQ = 64, 72
        a(f's_lshl_b32 s{S_T0}, s{S_C0}, 12')
        a(f's_add_u32 s{S_T0}, s{S_T0}, {WS_X1T + L * 0x200000}')
        a(f'v_lshlrev_b32 v{T}, 4, v{V_TID}')
        a(f'v_add_u32 v{T+1}, s{S_T0}, v{T}')
        a(f'v_add_u32 v{T+2}, 4096, v{T+1}')
        a(f'global_load_dwordx4 v[{XR}:{XR+3}], v{T+1}, s[{S_WS}:{S_WS+1}] sc1')
        a(f'global_load_dwordx4 v[{XR+4}:{XR+7}], v{T+2}, s[{S_WS}:{S_WS+1}] sc1')
        a(f'v_lshlrev_b32 v{T+1}, 5, v{V_TID}')
        a(f'v_add_u32 v{T+1}, {WS_STATS + L * 0x4000}, v{T+1}')
        a(f'v_add_u32 v{T+2}, 8192, v{T+1}')
        a(f'global_load_dwordx4 v[{SM}:{SM+3}], v{T+1}, s[{S_WS}:{S_WS+1}] sc1')
        a(f'global_load_dwordx4 v[{SM+4}:{SM+7}], v{T+1}, s[{S_WS}:{S_WS+1}] offset:16 sc1')
        a(f'global_load_dwordx4 v[{SQ}:{SQ+3}], v{T+2}, s[{S_WS}:{S_WS+1}] sc1')
        a(f'global_load_dwordx4 v[{SQ+4}:{SQ+7}], v{T+2}, s[{S_WS}:{S_WS+1}] offset:16 sc1')
        K5 = 80
        a(f'v_mov_b32 v{K5}, 0x3b000000'); a(f'v_mov_b32 v{K5+1}, 0x3b000000')
        EP = 82
        a(f'v_mov_b32 v{EP}, 0x3727c5ac'); a(f'v_mov_b32 v{EP+1}, 0x3727c5ac')
        a('s_waitcnt vmcnt(0)')
        U = 84
        def rb2(r):
            a(f'v_cvt_pk_bf16_f32 v{U}, v{r}, v{r+1}')
            a(f'v_lshlrev_b32 v{r}, 16, v{U}')
            a(f'v_and_b32 v{r+1}, 0xffff0000, v{U}')
        for p in range(0, 8, 2):
            m, q = SM + p, SQ + p
            a(f'v_pk_mul_f32 v[{m}:{m+1}], v[{m}:{m+1}], v[{K5}:{K5+1}]')
            a(f'v_pk_mul_f32 v[{q}:{q+1}], v[{q}:{q+1}], v[{K5}:{K5+1}]')
            a(f'v_pk_fma_f32 v[{q}:{q+1}], v[{m}:{m+1}], v[{m}:{m+1}], v[{q}:{q+1}] neg_lo:[1,0,0] neg_hi:[1,0,0]')
            a(f'v_max_f32 v{q}, 0, v{q}'); a(f'v_max_f32 v{q+1}, 0, v{q+1}')
            rb2(m); rb2(q)
            a(f'v_pk_add_f32 v[{q}:{q+1}], v[{q}:{q+1}], v[{EP}:{EP+1}]')
            rb2(q)
            a(f'v_sqrt_f32 v{q}, v{q}'); a(f'v_sqrt_f32 v{q+1}, v{q+1}')
            rb2(q)
            a(f'v_rcp_f32 v{q}, v{q}'); a(f'v_rcp_f32 v{q+1}, v{q+1}')
        UO = 88
        E = 96
        for ch in range(2):
            for p in range(4):
                x = XR + 4 * ch + p
                m, q = SM + 2 * p, SQ + 2 * p
                a(f'v_lshlrev_b32 v{E}, 16, v{x}')
                a(f'v_and_b32 v{E+1}, 0xffff0000, v{x}')
                a(f'v_pk_add_f32 v[{E}:{E+1}], v[{E}:{E+1}], v[{m}:{m+1}] neg_lo:[0,1] neg_hi:[0,1]')
                rb2(E)
                a(f'v_pk_mul_f32 v[{E}:{E+1}], v[{E}:{E+1}], v[{q}:{q+1}]')
                rb2(E)
                a(f'v_cvt_pkrtz_f16_f32 v{UO+4*ch+p}, v{E}, v{E+1}')
        a(f'v_lshlrev_b32 v{T}, 4, v{V_TID}')
        for ch in range(2):
            a(f'ds_write_b128 v{T}, v[{UO+4*ch}:{UO+4*ch+3}] offset:{self.CV_U + ch*4608 + 512}')
            a(f'ds_write_b128 v{T}, v[{XR+4*ch}:{XR+4*ch+3}] offset:{self.CV_X1 + ch*4096}')
        a('s_waitcnt lgkmcnt(0)')
        a('s_barrier')
        self.stamp(12 + 16 * L)
        AA, BA = T, T + 1
        a(f'v_bfe_u32 v{T+2}, v{V_LANE}, 2, 2')
        a(f'v_mul_u32_u24 v{AA}, 4160, v{T+2}')
        a(f'v_lshrrev_b32 v{T+2}, 4, v{V_LANE}')
        a(f'v_lshlrev_b32 v{T+3}, 4, v{T+2}')
        a(f'v_sub_u32 v{AA}, v{AA}, v{T+3}')
        a(f'v_and_b32 v{T+4}, 3, v{V_LANE}')
        a(f'v_lshl_add_u32 v{AA}, v{T+4}, 3, v{AA}')
        a(f's_mul_i32 s{S_T0}, s{S_HSEL}, 16640')
        a(f's_lshl_b32 s{S_T0+1}, s{S_RHALF}, 8')
        a(f's_add_u32 s{S_T0}, s{S_T0}, s{S_T0+1}')
        a(f's_add_u32 s{S_T0}, s{S_T0}, {self.CV_KC + 32}')
        a(f'v_add_u32 v{AA}, s{S_T0}, v{AA}')
        a(f'v_and_b32 v{BA}, 15, v{V_LANE}')
        a(f'v_lshlrev_b32 v{BA}, 5, v{BA}')
        a(f'v_add_u32 v{BA}, v{BA}, v{T+3}')
        a(f's_mul_i32 s{S_T0}, s{S_HSEL}, 4608')
        a(f's_add_u32 s{S_T0}, s{S_T0}, {self.CV_U}')
        a(f's_lshl_b32 s{S_T0+1}, s{S_RHALF}, 8')
        a(f's_sub_u32 s{S_T0}, s{S_T0}, s{S_T0+1}')
        a(f'v_add_u32 v{BA}, s{S_T0}, v{BA}')
        ACC = 128
        BF = [160, 192]
        AF = [56, 60, 64]
        def readB(ee):
            e = 1 + 2 * ee
            for m in range(8):
                d = BF[ee & 1] + 4 * m
                a(f'ds_read_b128 v[{d}:{d+3}], v{BA} offset:{512 + 512*m - 32*e}')
        def readA(ee, g, slot):
            e = 1 + 2 * ee
            for x in range(2):
                a(f'ds_read_b64_tr_b16 v[{AF[slot]+2*x}:{AF[slot]+2*x+1}], v{AA} offset:{32*e + 512*g - 8*x}')
        readB(0)
        seq = [(ee, g) for ee in range(4) for g in range(8)]
        readA(0, 0, 0); readA(0, 1, 1)
        first = set()
        for idx, (ee, g) in enumerate(seq):
            pend = 0
            if idx + 2 < len(seq):
                e2, g2 = seq[idx + 2]
                readA(e2, g2, (idx + 2) % 3); pend += 2
            if idx + 1 < len(seq): pend += 2
            extra = 0
            if g == 2 and ee + 1 < 4:
                readB(ee + 1); extra = 8
            if g == 0 and ee > 0:
                a('s_waitcnt lgkmcnt(4)') if idx + 2 < len(seq) else a('s_waitcnt lgkmcnt(0)')
            else:
                a(f's_waitcnt lgkmcnt({min(pend + extra, 15)})')
            for n in range(g, 8):
                acc = ACC + 4 * n
                c = f'v[{acc}:{acc+3}]' if n in first else '0'
                first.add(n)
                b = BF[ee & 1] + 4 * (n - g)
                sl = AF[idx % 3]
                a(f'v_mfma_f32_16x16x32_f16 v[{acc}:{acc+3}], v[{sl}:{sl+3}], v[{b}:{b+3}], {c}')
        self.stamp(13 + 16 * L)
        a(f'v_lshlrev_b32 v{T}, 4, v{V_LANE}')
        a(f's_lshl_b32 s{S_T0}, s{S_W}, 13')
        a(f's_add_u32 s{S_T0}, s{S_T0}, {self.CV_EX}')
        a(f'v_add_u32 v{T+1}, s{S_T0}, v{T}')
        for n in range(8):
            a(f'ds_write_b128 v{T+1}, v[{ACC+4*n}:{ACC+4*n+3}] offset:{n*1024}')
        a('s_waitcnt lgkmcnt(0)')
        a('s_barrier')
        a(f's_lshl_b32 s{S_T0}, s{S_W}, 11')
        a(f's_add_u32 s{S_T0}, s{S_T0}, {self.CV_EX}')
        a(f'v_add_u32 v{T+1}, s{S_T0}, v{T}')
        Y = 160
        for nn in range(2):
            for ch in range(2):
                for eh in range(2):
                    a(f'ds_read_b128 v[{Y+16*nn+8*ch+4*eh}:{Y+16*nn+8*ch+4*eh+3}], v{T+1} offset:{(ch + 2*eh) * 8192 + nn * 1024}')
        a(f'v_and_b32 v{T+2}, 15, v{V_LANE}')
        a(f'v_lshlrev_b32 v{T+2}, 4, v{T+2}')
        a(f'v_lshrrev_b32 v{T+3}, 4, v{V_LANE}')
        a(f'v_lshl_add_u32 v{T+2}, v{T+3}, 2, v{T+2}')
        a(f's_lshl_b32 s{S_T0}, s{S_W}, 9')
        a(f'v_add_u32 v{T+2}, s{S_T0}, v{T+2}')
        a(f'v_lshlrev_b32 v{T+3}, 1, v{T+2}')
        XX, UU = 192, 200
        for nn in range(2):
            for ch in range(2):
                a(f'ds_read_b64 v[{XX+4*nn+2*ch}:{XX+4*nn+2*ch+1}], v{T+3} offset:{self.CV_X1 + ch*4096 + nn*512}')
                a(f'ds_read_b64 v[{UU+4*nn+2*ch}:{UU+4*nn+2*ch+1}], v{T+3} offset:{self.CV_U + ch*4608 + 512 + nn*512}')
        a(f's_lshl_b32 s{S_T0}, s{S_DSKV}, 16')
        a(f's_and_b32 s{S_T0+1}, s{S_DSKV}, 0xffff0000')
        a('s_waitcnt lgkmcnt(0)')
        R = 208
        E = 224
        for nn in range(2):
            for ch in range(2):
                y0, y1 = Y + 16*nn + 8*ch, Y + 16*nn + 8*ch + 4
                res = R + 8*nn + 4*ch
                for h in range(2):
                    a(f'v_pk_add_f32 v[{y0+2*h}:{y0+2*h+1}], v[{y0+2*h}:{y0+2*h+1}], v[{y1+2*h}:{y1+2*h+1}]')
                    xr, ur = XX + 4*nn + 2*ch + h, UU + 4*nn + 2*ch + h
                    a(f'v_cvt_f32_f16 v{E}, v{ur}')
                    a(f'v_cvt_f32_f16_sdwa v{E+1}, v{ur} dst_sel:DWORD dst_unused:UNUSED_PAD src0_sel:WORD_1')
                    a(f'v_mul_f32 v{E}, s{S_T0+ch}, v{E}')
                    a(f'v_mul_f32 v{E+1}, s{S_T0+ch}, v{E+1}')
                    a(f'v_fmac_f32 v{E}, s{S_KSC+ch}, v{y0+2*h}')
                    a(f'v_fmac_f32 v{E+1}, s{S_KSC+ch}, v{y0+2*h+1}')
                    a(f'v_lshlrev_b32 v{E+2}, 16, v{xr}')
                    a(f'v_and_b32 v{E+3}, 0xffff0000, v{xr}')
                    a(f'v_pk_add_f32 v[{res+2*h}:{res+2*h+1}], v[{E}:{E+1}], v[{E+2}:{E+3}]')
        if L == 0:
            a(f's_lshl_b32 s{S_T0+2}, s{S_C0}, 12')
            a(f's_add_u32 s{S_T0+2}, s{S_T0+2}, {WS_X2T}')
            a(f'v_add_u32 v{T+3}, s{S_T0+2}, v{T+3}')
            a(f'v_add_u32 v{T+4}, 4096, v{T+3}')
            for nn in range(2):
                for ch in range(2):
                    res = R + 8*nn + 4*ch
                    a(f'v_cvt_pk_bf16_f32 v{E+4}, v{res}, v{res+1}')
                    a(f'v_cvt_pk_bf16_f32 v{E+5}, v{res+2}, v{res+3}')
                    a(f'global_store_dwordx2 v{T+3+ch}, v[{E+4}:{E+5}], s[{S_WS}:{S_WS+1}] offset:{nn*512} sc1')
                    a('s_nop 1')
            self.signal(4 * L + 3, S_WG)
        else:
            a(f's_lshl_b32 s{S_T0+2}, s{S_C0}, 1')
            a(f'v_lshlrev_b32 v{T+2}, 10, v{T+2}')
            a(f'v_add_u32 v{T+2}, s{S_T0+2}, v{T+2}')
            for nn in range(2):
                for r in range(4):
                    a(f'v_cvt_pk_bf16_f32 v{E+4+(r&1)}, v{R+8*nn+r}, v{R+8*nn+4+r}')
                    a(f'v_add_u32 v{T+3}, {(256*nn + r) * 1024}, v{T+2}')
                    a(f'global_store_dword v{T+3}, v{E+4+(r&1)}, s[{S_OUT}:{S_OUT+1}]')
        self.stamp(14 + 16 * L)

    def init_misc(self):
        a = self.a
        T = V_P
        for i in range(4): a(f'v_mov_b32 v{T+4+i}, 0')
        a(f'v_lshlrev_b32 v{T}, 4, v{V_TID}')
        a(f'v_add_u32 v{T}, {SC_KVT}, v{T}')
        a(f'ds_write_b128 v{T}, v[{T+4}:{T+7}]')
        a(f'v_cmp_gt_u32 vcc, 64, v{V_TID}')
        a(f's_and_saveexec_b64 s[{S_T0+2}:{S_T0+3}], vcc')
        a(f'ds_write_b128 v{T}, v[{T+4}:{T+7}] offset:4096')
        a(f's_mov_b64 exec, s[{S_T0+2}:{S_T0+3}]')

    def stats_zero(self):
        a = self.a
        T = V_P
        l = self.lab('sz')
        a(f's_cmp_lg_u32 s{S_W}, 0')
        a(f's_cbranch_scc1 {l}')
        a(f'v_bfe_u32 v{T}, v{V_LANE}, 4, 1')
        a(f'v_lshlrev_b32 v{T}, 14, v{T}')
        a(f'v_bfe_u32 v{T+1}, v{V_LANE}, 3, 1')
        a(f'v_lshl_add_u32 v{T}, v{T+1}, 13, v{T}')
        a(f'v_and_b32 v{T+1}, 7, v{V_LANE}')
        a(f'v_lshl_add_u32 v{T}, v{T+1}, 2, v{T}')
        a(f's_lshl_b32 s{S_T0}, s{S_RB}, 9')
        a(f's_lshl_b32 s{S_T0+1}, s{S_HB}, 5')
        a(f's_add_u32 s{S_T0}, s{S_T0}, s{S_T0+1}')
        a(f's_add_u32 s{S_T0}, s{S_T0}, {WS_STATS}')
        a(f'v_add_u32 v{T}, s{S_T0}, v{T}')
        a(f'v_mov_b32 v{T+1}, 0')
        a(f's_mov_b64 s[{S_T0+2}:{S_T0+3}], exec')
        a(f's_mov_b32 exec_lo, -1')
        a(f's_mov_b32 exec_hi, 0')
        a(f'global_store_dword v{T}, v{T+1}, s[{S_WS}:{S_WS+1}] sc1')
        a(f's_mov_b64 exec, s[{S_T0+2}:{S_T0+3}]')
        a.label(l)

    def build(self):
        a = self.a; o = self.o
        self.prologue()
        self.stamp(0)
        self.w_dma()
        XBASE = 116
        self.x_dma_setup(0, XBASE)
        for c in range(4): self.x_dma_chunk(0, c, XBASE, XBASE + 1)
        self.wphi_load()
        self.stats_zero()
        a('s_waitcnt lgkmcnt(0)')
        a(f's_add_u32 s{S_NONCE}, s{S_NONCE}, 0x9e3779b9')
        a('s_waitcnt vmcnt(0)')
        a('s_barrier')
        self.wphi_sign()
        l1, l2 = self.lab('wk'), self.lab('wk')
        a(f's_cmp_eq_u32 s{S_HSEL}, 0')
        a(f's_cbranch_scc0 {l1}')
        for i in range(4): a(f'v_mov_b32 v{V_WPHK+i}, v{V_WPHI+i}')
        a(f's_branch {l2}')
        a.label(l1)
        for i in range(4): a(f'v_mov_b32 v{V_WPHK+i}, v{V_WPHI+4+i}')
        a.label(l2)
        acc1, acc2 = self.w_frags()
        a('s_barrier')
        for c in range(4, 8): self.x_dma_chunk(0, c, XBASE, XBASE + 1)
        self.cs_store(acc1, acc2)
        self.init_misc()
        self.stamp(1)
        stop = o.stop
        def chk(name):
            if stop == name:
                a('s_waitcnt vmcnt(0) lgkmcnt(0)')
                a('s_branch L_end')
                return True
            return False
        for L in range(2):
            if L == 1:
                self.wait(3, None, 256)
                self.stamp(15)
                self.x_dma_setup(1, XBASE)
                for c in range(8): self.x_dma_chunk(1, c, XBASE, XBASE + 1)
            self.p1(L)
            if chk(f'p1_{L}'): break
            self.o_stage(L)
            if chk(f'o_{L}'): break
            if L == 0:
                a('s_barrier')
                self.kgen()
                if chk('kgen'): break
            self.p2b(L)
            if chk(f'p2b_{L}'): break
            self.conv(L)
            if chk(f'conv_{L}'): break
        a.label('L_end')
        a('s_endpgm')

S_KSC = 64
S_DSKV = 66

HEADER = open('cdna_kernels/' + KNAME + '.s.ref').read().split('; Override launch geometry')[0]

def main():
    ap = argparse.ArgumentParser()
    ap.add_argument('--out', default='cdna_kernels/' + KNAME + '.s')
    ap.add_argument('--stop', default='')
    ap.add_argument('--dump', default='')
    ap.add_argument('--stamps', action='store_true')
    ap.add_argument('--spin', type=int, default=40000)
    o = ap.parse_args()
    g = Gen(o)
    g.build()
    body = g.a.text()
    txt = HEADER
    txt += '; Persistent fused kernel: 256 workgroups (one per CU), generated by gen/gen.py\n'
    txt += '; @launch grid=(256,1,1) block=(256,1,1) lds=163840\n'
    txt += '.amdgcn_target "amdgcn-amd-amdhsa--gfx950"\n.text\n'
    txt += f'.globl {KNAME}_kernel\n.p2align 8\n.type {KNAME}_kernel,@function\n{KNAME}_kernel:\n'
    txt += body
    txt += f'''.section .rodata,"a"
.p2align 6
.amdhsa_kernel {KNAME}_kernel
  .amdhsa_next_free_vgpr 512
  .amdhsa_next_free_sgpr 96
  .amdhsa_accum_offset 256
  .amdhsa_group_segment_fixed_size 0
  .amdhsa_kernarg_size 112
  .amdhsa_user_sgpr_count 2
  .amdhsa_user_sgpr_kernarg_segment_ptr 1
  .amdhsa_system_sgpr_workgroup_id_x 1
  .amdhsa_float_denorm_mode_32 3
.end_amdhsa_kernel
'''
    open(o.out, 'w').write(txt)
    print('wrote', o.out, len(txt), 'bytes;', body.count('\n'), 'lines')

if __name__ == '__main__':
    main()
```

```python
import sys, argparse
sys.path.insert(0, 'gen')
from asmlib import Asm, vr, ar, sr

KNAME = 'interleave_layers__linear_kernel_hedgehog__ssm_conv_s4d__prompt'

WS_NONCE = 0
WS_FLAGS = 0x10000
WS_STATS = 0x40000
WS_ZP    = 0x50000
WS_KVP   = 0x100000
WS_O     = 0x200000
WS_X1T   = 0x600000
WS_X2T   = 0xA00000
WS_DBG   = 0x1000000

LDS_X    = 0
LDS_WST  = 65536
LDS_SC   = 131072
SC_PHI   = LDS_SC
PHI_HEAD = 8704
SC_V     = SC_PHI + 2 * PHI_HEAD
SC_ST    = SC_V + 8192
SC_KVT   = SC_ST + 1024
KVT_ROW  = 80
KVT_HEAD = 32 * KVT_ROW
SC_CS    = SC_KVT + 2 * KVT_HEAD
SC_END   = SC_CS + 1024
assert SC_END <= 163840, SC_END

S_X, S_WQKV, S_WPHI, S_WO = 4, 6, 8, 10
S_LOGA, S_AIM, S_CRE, S_CIM = 12, 14, 16, 18
S_LOGDT, S_DSK, S_OUT, S_WS, S_DBG = 20, 22, 24, 26, 28
S_W, S_XCD, S_JL, S_RB, S_HB, S_T, S_CB, S_C0, S_NONCE = 30, 31, 32, 33, 34, 35, 36, 37, 38
S_W1024, S_HSEL, S_RHALF = 39, 40, 41
S_T0 = 44
S_WG = 42

V_TID, V_LANE = 0, 1
V_HH, V_J = 2, 3
V_WPHI = 4
V_RESID = 12
V_PHIQ = 20
V_K = 36
V_WPHK = 48
V_P = 52

LOG2E = 0x3fb8aa3b

class Gen:
    def __init__(self, opts):
        self.a = Asm()
        self.o = opts
        self.ndump = 0
        self.uid = 0

    def lab(self, s):
        self.uid += 1
        return f'L_{s}_{self.uid}'

    def dump(self, reg, n, slot, tmp=126):
        a = self.a
        a.c(f'DEBUG dump v{reg}..+{n} -> slot {slot}')
        a(f's_lshl_b32 s60, s{S_WG}, 10')
        a(f'v_lshlrev_b32 v{tmp}, 2, v{V_TID}')
        a(f'v_add_u32 v{tmp}, s60, v{tmp}')
        for i in range(n):
            a(f'v_add_u32 v{tmp+1}, {WS_DBG + (slot + i) * 256 * 256 * 4}, v{tmp}')
            a(f'global_store_dword v{tmp+1}, v{reg+i}, s[{S_WS}:{S_WS+1}]')
        a('s_waitcnt vmcnt(0)')

    def stamp(self, idx):
        if not self.o.stamps: return
        a = self.a
        a(f's_memrealtime s[60:61]')
        a(f's_memtime s[58:59]')
        a(f's_waitcnt lgkmcnt(0)')
        a(f'v_mov_b32 v124, s60')
        a(f'v_mov_b32 v125, s61')
        a(f'v_mov_b32 v126, s58')
        a(f'v_mov_b32 v127, s59')
        a(f's_lshl_b32 s62, s{S_WG}, 11')
        a(f's_lshl_b32 s63, s{S_W}, 9')
        a(f's_add_u32 s62, s62, s63')
        a(f's_add_u32 s62, s62, {WS_DBG + 0x4000000 + idx * 16}')
        a(f'v_mov_b32 v123, s62')
        a(f's_mov_b64 s[56:57], exec')
        a(f's_mov_b64 exec, 1')
        a(f'global_store_dwordx4 v123, v[124:127], s[{S_WS}:{S_WS+1}]')
        a(f's_mov_b64 exec, s[56:57]')

    def prologue(self):
        a = self.a
        a(f's_cmp_ge_u32 s2, 256')
        a(f's_cbranch_scc1 L_end')
        a(f's_load_dwordx8 s[4:11], s[0:1], 0')
        a(f's_load_dwordx8 s[12:19], s[0:1], 40')
        a(f's_load_dwordx4 s[20:23], s[0:1], 72')
        a(f's_load_dwordx2 s[24:25], s[0:1], 88')
        a(f's_load_dwordx2 s[28:29], s[0:1], 96')
        a(f's_load_dwordx2 s[26:27], s[0:1], 104')
        a(f's_mov_b32 s{S_WG}, s2')
        a(f'v_and_b32 v{V_LANE}, 63, v0')
        if self.o.cpf:
            a('s_getpc_b64 s[56:57]')
            a.label('L_pc')
            a('s_lshr_b32 s58, s2, 3')
            a('s_mul_i32 s58, s58, 1536')
            a(f'v_lshlrev_b32 v4, 4, v{V_LANE}')
            a('v_lshrrev_b32 v5, 6, v0')
            a('v_and_b32 v5, 1, v5')
            a('v_lshl_add_u32 v4, v5, 10, v4')
            a('v_add_u32 v4, s58, v4')
            a('v_min_u32 v4, L_end-L_pc-16, v4')
            a('global_load_dwordx4 v[8:11], v4, s[56:57]')
        a(f'v_lshrrev_b32 v{V_HH}, 6, v0')
        a(f's_nop 0')
        a(f'v_readfirstlane_b32 s{S_W}, v{V_HH}')
        a(f'v_lshrrev_b32 v{V_HH}, 5, v{V_LANE}')
        a(f'v_and_b32 v{V_J}, 31, v{V_LANE}')
        a(f's_and_b32 s{S_XCD}, s2, 7')
        a(f's_lshr_b32 s{S_JL}, s2, 3')
        a(f's_and_b32 s{S_T0}, s{S_JL}, 1')
        a(f's_lshl_b32 s{S_RB}, s{S_XCD}, 1')
        a(f's_add_u32 s{S_RB}, s{S_RB}, s{S_T0}')
        a(f's_lshr_b32 s{S_HB}, s{S_JL}, 1')
        a(f's_and_b32 s{S_T0}, s{S_HB}, 3')
        a(f's_lshl_b32 s{S_T}, s{S_RB}, 2')
        a(f's_add_u32 s{S_T}, s{S_T}, s{S_T0}')
        a(f's_lshr_b32 s{S_CB}, s{S_HB}, 2')
        a(f's_lshl_b32 s{S_C0}, s{S_XCD}, 6')
        a(f's_lshl_b32 s{S_T0}, s{S_JL}, 1')
        a(f's_add_u32 s{S_C0}, s{S_C0}, s{S_T0}')
        a(f's_lshl_b32 s{S_W1024}, s{S_W}, 10')
        a(f's_and_b32 s{S_HSEL}, s{S_W}, 1')
        a(f's_lshr_b32 s{S_RHALF}, s{S_W}, 1')
        a(f's_waitcnt lgkmcnt(0)')
        a(f's_load_dword s{S_NONCE}, s[{S_WS}:{S_WS+1}], {WS_NONCE}')

    def w_dma(self):
        a = self.a
        t, b = V_P, V_P + 1
        a.c('W staging DMA')
        a(f'v_lshrrev_b32 v{b}, 2, v{V_LANE}')
        a(f's_lshl_b32 s{S_T0}, s{S_W}, 4')
        a(f'v_add_u32 v{b}, s{S_T0}, v{b}')
        a(f'v_mul_u32_u24 v{b}, 3072, v{b}')
        a(f'v_and_b32 v{t}, 3, v{V_LANE}')
        a(f'v_lshlrev_b32 v{t}, 4, v{t}')
        a(f'v_add_u32 v{b}, v{b}, v{t}')
        a(f's_lshl_b32 s{S_T0}, s{S_HB}, 6')
        a(f'v_add_u32 v{b}, s{S_T0}, v{b}')
        for p in (1, 2, 0):
            for i in range(8):
                a(f'v_add_u32 v{t}, {p * 1024 + i * 196608}, v{b}')
                a(f's_add_u32 m0, s{S_W1024}, {LDS_WST + p * 32768 + i * 4096}')
                a(f'global_load_lds_dwordx4 v{t}, s[{S_WQKV}:{S_WQKV+1}]')

    def x_dma_setup(self, L, b):
        a = self.a
        t = b + 1
        if L == 0:
            a(f'v_lshrrev_b32 v{b}, 3, v{V_LANE}')
            a(f'v_lshrrev_b32 v{t}, 1, v{b}')
            a(f's_lshl_b32 s{S_T0}, s{S_HSEL}, 2')
            a(f'v_add_u32 v{t}, s{S_T0}, v{t}')
            a(f'v_and_b32 v{t+1}, 7, v{V_LANE}')
            a(f'v_xor_b32 v{t}, v{t}, v{t+1}')
            a(f'v_lshlrev_b32 v{t}, 4, v{t}')
            a(f's_lshl_b32 s{S_T0}, s{S_RB}, 7')
            a(f's_lshl_b32 s{S_T0+1}, s{S_W}, 3')
            a(f's_add_u32 s{S_T0}, s{S_T0}, s{S_T0+1}')
            a(f'v_add_u32 v{b}, s{S_T0}, v{b}')
            a(f'v_lshlrev_b32 v{b}, 10, v{b}')
            a(f'v_add_u32 v{b}, v{b}, v{t}')
        else:
            a(f'v_bfe_u32 v{b}, v{V_LANE}, 2, 2')
            a(f's_lshl_b32 s{S_T0}, s{S_W}, 2')
            a(f'v_add_u32 v{b}, s{S_T0}, v{b}')
            a(f'v_lshlrev_b32 v{b}, 12, v{b}')
            a(f'v_lshrrev_b32 v{t}, 4, v{V_LANE}')
            a(f'v_lshlrev_b32 v{t}, 6, v{t}')
            a(f'v_and_b32 v{t+1}, 3, v{V_LANE}')
            a(f'v_lshlrev_b32 v{t+1}, 4, v{t+1}')
            a(f'v_add3_u32 v{b}, v{b}, v{t}, v{t+1}')
            a(f's_lshl_b32 s{S_T0}, s{S_RB}, 8')
            a(f's_add_u32 s{S_T0}, s{S_T0}, {WS_X2T}')
            a(f'v_add_u32 v{b}, s{S_T0}, v{b}')

    def x_dma_chunk(self, L, c, b, t):
        a = self.a
        for i in range(4):
            if L == 0:
                off = i * 32 * 1024 + c * 128
                base = S_X; sc = ''
            else:
                off = (64 * c + 16 * i) * 4096
                base = S_WS; sc = ' sc1'
            a(f'v_add_u32 v{t}, {off}, v{b}')
            a(f's_add_u32 m0, s{S_W1024}, {LDS_X + c * 16384 + i * 4096}')
            a(f'global_load_lds_dwordx4 v{t}, s[{base}:{base+1}]{sc}')

    def w_frags(self):
        a = self.a
        b, t = V_P, V_P + 1
        a.c('W fragments -> AGPR via transposing reads')
        a(f'v_bfe_u32 v{t}, v{V_LANE}, 2, 2')
        a(f'v_lshl_add_u32 v{t}, v{V_HH}, 3, v{t}')
        a(f'v_lshlrev_b32 v{t}, 6, v{t}')
        a(f'v_and_b32 v{t+1}, 3, v{V_LANE}')
        a(f'v_lshl_add_u32 v{t}, v{t+1}, 3, v{t}')
        a(f'v_bfe_u32 v{t+1}, v{V_LANE}, 4, 1')
        a(f'v_lshlrev_b32 v{t+2}, 15, v{t+1}')
        a(f's_lshl_b32 s{S_T0}, s{S_HSEL}, 5')
        a(f's_add_u32 s{S_T0}, s{S_T0}, {LDS_WST + 32768}')
        a(f'v_add3_u32 v{b}, v{t}, v{t+2}, s{S_T0}')
        a(f'v_lshl_add_u32 v{t}, v{t+1}, 5, v{t}')
        a(f'v_add_u32 v{t}, {LDS_WST}, v{t}')
        for ks in range(32):
            for x in range(2):
                a(f'ds_read_b64_tr_b16 a[{4*ks+2*x}:{4*ks+2*x+1}], v{b} offset:{ks*1024 + x*256}')
            if ks % 4 == 3: a('s_waitcnt lgkmcnt(4)')
        for ks in range(32):
            for x in range(2):
                a(f'ds_read_b64_tr_b16 a[{128+4*ks+2*x}:{128+4*ks+2*x+1}], v{t} offset:{ks*1024 + x*256}')
            if ks % 4 == 3: a('s_waitcnt lgkmcnt(4)')
        a('s_waitcnt lgkmcnt(0)')
        ones = V_P + 4
        acc1, acc2 = V_P + 8, V_P + 24
        for i in range(4): a(f'v_mov_b32 v{ones+i}, 0x3f803f80')
        for ks in range(32):
            c1 = '0' if ks == 0 else f'v[{acc1}:{acc1+15}]'
            c2 = '0' if ks == 0 else f'v[{acc2}:{acc2+15}]'
            a(f'v_mfma_f32_32x32x16_bf16 v[{acc1}:{acc1+15}], a[{4*ks}:{4*ks+3}], v[{ones}:{ones+3}], {c1}')
            a(f'v_mfma_f32_32x32x16_bf16 v[{acc2}:{acc2+15}], a[{128+4*ks}:{128+4*ks+3}], v[{ones}:{ones+3}], {c2}')
        return acc1, acc2

    def cs_store(self, acc1, acc2):
        a = self.a
        t = V_P
        a(f'v_lshlrev_b32 v{t}, 6, v{V_HH}')
        a(f's_lshl_b32 s{S_T0}, s{S_W}, 8')
        a(f's_add_u32 s{S_T0}, s{S_T0}, {SC_CS}')
        a(f'v_add_u32 v{t}, s{S_T0}, v{t}')
        a(f'v_cmp_eq_u32 vcc, 0, v{V_J}')
        a(f's_and_saveexec_b64 s[{S_T0+2}:{S_T0+3}], vcc')
        for g in range(4):
            a(f'ds_write_b128 v{t}, v[{acc1+4*g}:{acc1+4*g+3}] offset:{16*g}')
            a(f'ds_write_b128 v{t}, v[{acc2+4*g}:{acc2+4*g+3}] offset:{128+16*g}')
        a(f's_mov_b64 exec, s[{S_T0+2}:{S_T0+3}]')

    def wphi_load(self):
        a = self.a
        b, t = V_P, V_P + 1
        a(f'v_lshrrev_b32 v{b}, 3, v{V_J}')
        a(f'v_lshlrev_b32 v{b}, 2, v{b}')
        a(f'v_and_b32 v{t}, 3, v{V_J}')
        a(f'v_add_u32 v{b}, v{b}, v{t}')
        a(f'v_lshlrev_b32 v{b}, 1, v{b}')
        a(f'v_lshl_add_u32 v{b}, v{V_HH}, 7, v{b}')
        a(f's_lshl_b32 s{S_T0}, s{S_HB}, 10')
        a(f'v_add_u32 v{b}, s{S_T0}, v{b}')
        for hd in range(2):
            for jj in range(8):
                d = 8 * (jj >> 2) + (jj & 3)
                off = hd * 512 + d * 32
                a(f'global_load_ushort v{self.WPT + 8*hd + jj}, v{b}, s[{S_WPHI}:{S_WPHI+1}] offset:{off}')
    WPT = 96
    def wphi_sign(self):
        a = self.a
        t = V_P
        for i in range(8):
            a(f'v_lshl_or_b32 v{V_WPHI+i}, v{self.WPT+2*i+1}, 16, v{self.WPT+2*i}')
        a(f'v_bfe_u32 v{t}, v{V_J}, 2, 1')
        a(f'v_mul_u32_u24 v{t}, 0x8000, v{t}')
        a(f'v_lshl_or_b32 v{t}, v{t}, 16, v{t}')
        for i in range(8):
            a(f'v_xor_b32 v{V_WPHI+i}, v{V_WPHI+i}, v{t}')

    def rbf(self, dst, src):
        a = self.a
        a(f'v_cvt_pk_bf16_f32 v{dst}, v{src}, v{src}')
        a(f'v_lshlrev_b32 v{dst}, 16, v{dst}')

    def ln_finalize(self, S, Q, m, rs, t):
        a = self.a
        a(f'v_mul_f32 v{m}, 0x3b000000, v{S}')
        a(f'v_mul_f32 v{t}, 0x3b000000, v{Q}')
        a(f'v_fma_f32 v{t}, -v{m}, v{m}, v{t}')
        a(f'v_max_f32 v{t}, 0, v{t}')
        self.rbf(m, m)
        self.rbf(t, t)
        a(f'v_add_f32 v{t}, 0x3727c5ac, v{t}')
        self.rbf(t, t)
        a(f'v_sqrt_f32 v{t}, v{t}')
        self.rbf(t, t)
        a(f'v_rcp_f32 v{rs}, v{t}')

    def softmax16(self, D, out, t):
        a = self.a
        mx = t
        a(f'v_max3_f32 v{mx}, v{D}, v{D+1}, v{D+2}')
        a(f'v_max3_f32 v{mx+1}, v{D+3}, v{D+4}, v{D+5}')
        a(f'v_max3_f32 v{mx}, v{mx}, v{D+6}, v{D+7}')
        a(f'v_max3_f32 v{mx+1}, v{mx+1}, v{D+8}, v{D+9}')
        a(f'v_max3_f32 v{mx}, v{mx}, v{D+10}, v{D+11}')
        a(f'v_max3_f32 v{mx+1}, v{mx+1}, v{D+12}, v{D+13}')
        a(f'v_max3_f32 v{mx}, v{mx}, v{D+14}, v{D+15}')
        a(f'v_max_f32 v{mx}, v{mx}, v{mx+1}')
        a(f'v_mov_b32 v{t+2}, {hex(LOG2E)}')
        a(f'v_mul_f32 v{mx}, v{t+2}, v{mx}')
        for r in range(0, 16, 2):
            a(f'v_pk_fma_f32 v[{D+r}:{D+r+1}], v[{D+r}:{D+r+1}], v[{t+2}:{t+3}], v[{mx}:{mx+1}] op_sel_hi:[1,0,0] neg_lo:[0,0,1] neg_hi:[0,0,1]')
        for r in range(16):
            a(f'v_exp_f32 v{D+r}, v{D+r}')
        s = t + 2
        a(f'v_pk_add_f32 v[{s}:{s+1}], v[{D}:{D+1}], v[{D+2}:{D+3}]')
        for r in range(4, 16, 2):
            a(f'v_pk_add_f32 v[{s}:{s+1}], v[{s}:{s+1}], v[{D+r}:{D+r+1}]')
        a(f'v_add_f32 v{s}, v{s}, v{s+1}')
        a(f'v_rcp_f32 v{s}, v{s}')
        for r in range(0, 16, 2):
            a(f'v_pk_mul_f32 v[{D+r}:{D+r+1}], v[{D+r}:{D+r+1}], v[{s}:{s+1}] op_sel_hi:[1,0]')
        for r in range(0, 16, 2):
            a(f'v_cvt_pk_bf16_f32 v{out + r//2}, v{D+r}, v{D+r+1}')

    def ln_apply16(self, A, cs, m, rs, out):
        a = self.a
        for r in range(0, 16, 2):
            a(f'v_pk_fma_f32 v[{A+r}:{A+r+1}], v[{cs+r}:{cs+r+1}], v[{m}:{m+1}], v[{A+r}:{A+r+1}] op_sel_hi:[1,0,1] neg_lo:[0,1,0] neg_hi:[0,1,0]')
        for r in range(0, 16, 2):
            a(f'v_pk_mul_f32 v[{A+r}:{A+r+1}], v[{A+r}:{A+r+1}], v[{m}:{m+1}] op_sel:[0,1] op_sel_hi:[1,1]')
        for r in range(0, 16, 2):
            a(f'v_cvt_pk_bf16_f32 v{out + r//2}, v{A+r}, v{A+r+1}')

    def signal(self, sync, slot_sgpr):
        a = self.a
        a.c(f'signal sync {sync}')
        a('s_waitcnt vmcnt(0) lgkmcnt(0)')
        a('s_barrier')
        l = self.lab('sig')
        a(f's_cmp_lg_u32 s{S_W}, 0')
        a(f's_cbranch_scc1 {l}')
        a(f's_lshl_b32 s{S_T0}, s{slot_sgpr}, 6')
        a(f's_add_u32 s{S_T0}, s{S_T0}, {WS_FLAGS + sync * 0x4000}')
        a(f'v_mov_b32 v126, s{S_T0}')
        a(f'v_mov_b32 v127, s{S_NONCE}')
        a(f's_mov_b64 s[{S_T0+2}:{S_T0+3}], exec')
        a(f's_mov_b64 exec, 1')
        a(f'global_store_dword v126, v127, s[{S_WS}:{S_WS+1}] sc1')
        a(f's_mov_b64 exec, s[{S_T0+2}:{S_T0+3}]')
        a.label(l)

    def wait(self, sync, group_sgpr, nflags):
        a = self.a
        a.c(f'wait sync {sync}')
        l, lp, ld = self.lab('wait'), self.lab('poll'), self.lab('pdone')
        a(f's_cmp_lg_u32 s{S_W}, 0')
        a(f's_cbranch_scc1 {l}')
        if nflags == 16:
            a(f'v_and_b32 v126, 15, v{V_LANE}')
            a(f'v_lshlrev_b32 v126, 6, v126')
            a(f's_lshl_b32 s{S_T0}, s{group_sgpr}, 10')
            a(f's_add_u32 s{S_T0}, s{S_T0}, {WS_FLAGS + sync * 0x4000}')
            a(f'v_add_u32 v126, s{S_T0}, v126')
        else:
            a(f'v_lshlrev_b32 v126, 6, v{V_LANE}')
            a(f'v_add_u32 v126, {WS_FLAGS + sync * 0x4000}, v126')
            a(f'v_add_u32 v125, 4096, v126')
            a(f'v_add_u32 v124, 8192, v126')
            a(f'v_add_u32 v123, 12288, v126')
        a(f's_mov_b32 s{S_T0+1}, 0')
        a.label(lp)
        a(f'global_load_dword v127, v126, s[{S_WS}:{S_WS+1}] sc1')
        if nflags != 16:
            a(f'global_load_dword v122, v125, s[{S_WS}:{S_WS+1}] sc1')
            a(f'global_load_dword v121, v124, s[{S_WS}:{S_WS+1}] sc1')
            a(f'global_load_dword v120, v123, s[{S_WS}:{S_WS+1}] sc1')
        a(f's_add_u32 s{S_T0+1}, s{S_T0+1}, 1')
        a(f's_cmp_gt_u32 s{S_T0+1}, {self.o.spin}')
        a(f's_cbranch_scc1 {ld}')
        a('s_waitcnt vmcnt(0)')
        if nflags != 16:
            a(f'v_xor_b32 v122, v122, v127')
            a(f'v_xor_b32 v121, v121, v127')
            a(f'v_xor_b32 v120, v120, v127')
            a(f'v_xor_b32 v127, s{S_NONCE}, v127')
            a(f'v_or3_b32 v122, v122, v121, v120')
            a(f'v_or_b32 v127, v127, v122')
            a(f'v_cmp_ne_u32 vcc, 0, v127')
        else:
            a(f'v_cmp_ne_u32 vcc, s{S_NONCE}, v127')
        a(f's_cbranch_vccnz {lp}')
        a.label(ld)
        a('s_waitcnt vmcnt(0)')
        a.label(l)
        a('s_barrier')

    def bfrag_setup(self, L, base):
        a = self.a
        t = base + 8
        a(f's_xor_b32 s{S_T0+1}, s{S_W}, 1')
        if L == 0:
            a(f'v_bfe_u32 v{t}, v{V_J}, 1, 3')
            a(f'v_lshlrev_b32 v{t+1}, 7, v{V_J}')
            a(f's_lshl_b32 s{S_T0}, s{S_W}, 12')
            a(f's_lshl_b32 s{S_T0+1}, s{S_T0+1}, 12')
            for k in range(4):
                a(f'v_add_u32 v{t+2}, {2*k}, v{V_HH}')
                a(f'v_xor_b32 v{t+2}, v{t+2}, v{t}')
                a(f'v_lshl_add_u32 v{t+2}, v{t+2}, 4, v{t+1}')
                a(f'v_add_u32 v{base+k}, s{S_T0}, v{t+2}')
                a(f'v_add_u32 v{base+4+k}, s{S_T0+1}, v{t+2}')
        else:
            a(f'v_bfe_u32 v{t}, v{V_LANE}, 2, 2')
            a(f'v_lshlrev_b32 v{t}, 6, v{t}')
            a(f'v_lshl_add_u32 v{t}, v{V_HH}, 11, v{t}')
            a(f'v_bfe_u32 v{t+1}, v{V_LANE}, 4, 1')
            a(f'v_lshl_add_u32 v{t}, v{t+1}, 5, v{t}')
            a(f'v_and_b32 v{t+1}, 3, v{V_LANE}')
            a(f'v_lshl_add_u32 v{t}, v{t+1}, 3, v{t}')
            a(f's_lshl_b32 s{S_T0}, s{S_W}, 8')
            a(f's_lshl_b32 s{S_T0+1}, s{S_T0+1}, 8')
            a(f'v_add_u32 v{base}, s{S_T0}, v{t}')
            a(f'v_add_u32 v{base+4}, s{S_T0+1}, v{t}')

    def bfrag_read(self, L, base, ks, dst):
        a = self.a
        if L == 0:
            c, k = ks >> 2, ks & 3
            a(f'ds_read_b128 v[{dst}:{dst+3}], v{base+k} offset:{(c & 3) * 16384}')
        else:
            for x in range(2):
                off = (ks & 15) * 4096 + x * 1024
                a(f'ds_read_b64_tr_b16 v[{dst+2*x}:{dst+2*x+1}], v{base} offset:{off}')

    def bfrag_bump(self, L, base, both=True):
        a = self.a
        bs = (base, base + 4) if both else (base,)
        for b in bs:
            for k in range(4 if L == 0 else 1): a(f'v_add_u32 v{b+k}, 65536, v{b+k}')

    def p1(self, L):
        a = self.a
        o = self.o
        a.c(f'================ P1 layer {L} ================')
        XB = V_P
        SS, SQ, ONES = 64, 65, 66
        ACC0, ACC1 = 72, 88
        FR = 104
        self.bfrag_setup(L, XB)
        a(f'v_mov_b32 v{SS}, 0')
        a(f'v_mov_b32 v{SQ}, 0')
        a(f'v_mov_b32 v{ONES}, 0x3f803f80')
        a('s_waitcnt vmcnt(0)')
        a('s_barrier')
        self.stamp(2 + 16 * L)
        nrd = 1 if L == 0 else 2
        self.bfrag_read(L, XB, 0, FR); self.bfrag_read(L, XB + 4, 0, FR + 4)
        for ks in range(32):
            cur = FR + 8 * (ks & 1); nxt = FR + 8 * ((ks + 1) & 1)
            if ks + 1 < 32:
                if ks + 1 == 16: self.bfrag_bump(L, XB)
                self.bfrag_read(L, XB, ks + 1, nxt); self.bfrag_read(L, XB + 4, ks + 1, nxt + 4)
                a(f's_waitcnt lgkmcnt({2*nrd})')
            else:
                a('s_waitcnt lgkmcnt(0)')
            c0 = '0' if ks == 0 else f'v[{ACC0}:{ACC0+15}]'
            c1 = '0' if ks == 0 else f'v[{ACC1}:{ACC1+15}]'
            a(f'v_mfma_f32_32x32x16_bf16 v[{ACC0}:{ACC0+15}], a[{4*ks}:{4*ks+3}], v[{cur}:{cur+3}], {c0}')
            a(f'v_mfma_f32_32x32x16_bf16 v[{ACC1}:{ACC1+15}], a[{4*ks}:{4*ks+3}], v[{cur+4}:{cur+7}], {c1}')
            for i in range(4):
                a(f'v_dot2c_f32_bf16 v{SS}, v{cur+i}, v{ONES}')
                a(f'v_dot2c_f32_bf16 v{SQ}, v{cur+i}, v{cur+i}')
        T = V_P + 8
        a(f'v_mov_b32 v{T}, v{SS}')
        a(f'v_mov_b32 v{T+1}, v{SQ}')
        a(f'v_permlane32_swap_b32 v{SS}, v{T}')
        a(f'v_permlane32_swap_b32 v{SQ}, v{T+1}')
        a(f'v_add_f32 v{SS}, v{SS}, v{T}')
        a(f'v_add_f32 v{SQ}, v{SQ}, v{T+1}')
        M = 68
        self.ln_finalize(SS, SQ, M, M + 1, T)
        a(f'v_lshlrev_b32 v{T}, 3, v{V_J}')
        a(f's_lshl_b32 s{S_T0}, s{S_W}, 8')
        a(f's_add_u32 s{S_T0}, s{S_T0}, {SC_ST}')
        a(f'v_add_u32 v{T}, s{S_T0}, v{T}')
        a(f'ds_write_b64 v{T}, v[{M}:{M+1}]')
        self.resid_read(L)
        a('s_waitcnt lgkmcnt(0)')
        a('s_barrier')
        self.stamp(3 + 16 * L)
        if o.dump == f'acc{L}':
            self.dump(ACC0, 16, 0); self.dump(M, 2, 16)
        CS = 128
        a(f'v_lshlrev_b32 v{T}, 6, v{V_HH}')
        a(f's_lshl_b32 s{S_T0}, s{S_W}, 8')
        a(f's_add_u32 s{S_T0}, s{S_T0}, {SC_CS}')
        a(f'v_add_u32 v{T}, s{S_T0}, v{T}')
        for g in range(4):
            a(f'ds_read_b128 v[{CS+4*g}:{CS+4*g+3}], v{T} offset:{16*g}')
        M1 = 70
        a(f'v_lshlrev_b32 v{T}, 3, v{V_J}')
        a(f's_xor_b32 s{S_T0}, s{S_W}, 1')
        a(f's_lshl_b32 s{S_T0}, s{S_T0}, 8')
        a(f's_add_u32 s{S_T0}, s{S_T0}, {SC_ST}')
        a(f'v_add_u32 v{T}, s{S_T0}, v{T}')
        a(f'ds_read_b64 v[{M1}:{M1+1}], v{T}')
        PA, VA = V_P, V_P + 2
        a(f'v_lshrrev_b32 v{T+1}, 3, v{V_J}')
        a(f'v_add_u32 v{T+1}, v{T+1}, v{V_HH}')
        a(f'v_lshlrev_b32 v{T+1}, 5, v{T+1}')
        a(f'v_lshl_add_u32 v{T+1}, v{V_J}, 6, v{T+1}')
        a(f's_mul_i32 s{S_T0}, s{S_HSEL}, {PHI_HEAD}')
        a(f's_add_u32 s{S_T0}, s{S_T0}, {SC_PHI}')
        a(f's_mul_i32 s{S_T0+1}, s{S_W}, 2176')
        a(f's_xor_b32 s{S_T0+2}, s{S_W}, 1')
        a(f's_mul_i32 s{S_T0+3}, s{S_T0+2}, 2176')
        a(f's_add_u32 s{S_T0+1}, s{S_T0+1}, s{S_T0}')
        a(f's_add_u32 s{S_T0+3}, s{S_T0+3}, s{S_T0}')
        a(f'v_add_u32 v{PA}, s{S_T0+1}, v{T+1}')
        a(f'v_add_u32 v{PA+1}, s{S_T0+3}, v{T+1}')
        a(f'v_bfe_u32 v{T+1}, v{V_J}, 3, 1')
        a(f'v_lshlrev_b32 v{T+1}, 2, v{T+1}')
        a(f'v_xor_b32 v{T}, v{V_J}, v{T+1}')
        a(f'v_lshlrev_b32 v{T}, 5, v{T}')
        a(f'v_lshl_add_u32 v{T}, v{V_HH}, 3, v{T}')
        a(f's_lshl_b32 s{S_T0}, s{S_HSEL}, 12')
        a(f's_add_u32 s{S_T0}, s{S_T0}, {SC_V}')
        a(f's_lshl_b32 s{S_T0+1}, s{S_W}, 10')
        a(f's_lshl_b32 s{S_T0+2}, s{S_T0+2}, 10')
        a(f's_add_u32 s{S_T0+1}, s{S_T0+1}, s{S_T0}')
        a(f's_add_u32 s{S_T0+2}, s{S_T0+2}, s{S_T0}')
        a(f'v_add_u32 v{VA}, s{S_T0+1}, v{T}')
        a(f'v_add_u32 v{VA+1}, s{S_T0+2}, v{T}')
        a('s_waitcnt lgkmcnt(0)')
        KB = FR
        PH = FR + 8
        D2 = 144
        TT = 160
        for tt, (ACC, MM) in enumerate(((ACC0, M), (ACC1, M1))):
            self.ln_apply16(ACC, CS, MM, MM + 1, KB)
            a(f'v_mfma_f32_32x32x16_bf16 v[{D2}:{D2+15}], v[{V_WPHK}:{V_WPHK+3}], v[{KB}:{KB+3}], 0')
            a(f'ds_write_b64 v{VA+tt}, v[{KB+4}:{KB+5}]')
            a(f'ds_write_b64 v{VA+tt}, v[{KB+6}:{KB+7}] offset:16')
            if o.dump == f'pk{L}' and tt == 0: self.dump(D2, 16, 0); self.dump(KB, 8, 16)
            self.softmax16(D2, PH, TT)
            a(f'ds_write_b128 v{PA+tt}, v[{PH}:{PH+3}]')
            a(f'ds_write_b128 v{PA+tt}, v[{PH+4}:{PH+7}] offset:16')
        a('s_waitcnt lgkmcnt(0)')
        a('s_barrier')
        AA, BA = V_P, V_P + 1
        a(f'v_lshrrev_b32 v{T}, 4, v{V_LANE}')
        a(f'v_bfe_u32 v{T+1}, v{V_LANE}, 2, 2')
        a(f'v_lshl_add_u32 v{T+2}, v{T}, 3, v{T+1}')
        a(f'v_lshlrev_b32 v{AA}, 6, v{T+2}')
        a(f'v_lshl_add_u32 v{AA}, v{T}, 5, v{AA}')
        a(f'v_and_b32 v{T+3}, 3, v{V_LANE}')
        a(f'v_lshl_add_u32 v{AA}, v{T+3}, 3, v{AA}')
        a(f's_mul_i32 s{S_T0}, s{S_HSEL}, {PHI_HEAD}')
        a(f's_lshl_b32 s{S_T0+1}, s{S_RHALF}, 5')
        a(f's_add_u32 s{S_T0}, s{S_T0}, s{S_T0+1}')
        a(f's_add_u32 s{S_T0}, s{S_T0}, {SC_PHI}')
        a(f'v_add_u32 v{AA}, s{S_T0}, v{AA}')
        a(f'v_and_b32 v{T}, 1, v{T}')
        a(f'v_lshlrev_b32 v{T}, 2, v{T}')
        a(f'v_xor_b32 v{T+1}, v{T+2}, v{T}')
        a(f'v_xor_b32 v{T+2}, 4, v{T+1}')
        a(f'v_lshlrev_b32 v{T+1}, 5, v{T+1}')
        a(f'v_lshlrev_b32 v{T+2}, 5, v{T+2}')
        a(f'v_lshl_add_u32 v{T+1}, v{T+3}, 3, v{T+1}')
        a(f'v_lshl_add_u32 v{T+2}, v{T+3}, 3, v{T+2}')
        a(f's_lshl_b32 s{S_T0}, s{S_HSEL}, 12')
        a(f's_add_u32 s{S_T0}, s{S_T0}, {SC_V}')
        a(f'v_add_u32 v{BA}, s{S_T0}, v{T+1}')
        a(f'v_add_u32 v{BA+1}, s{S_T0}, v{T+2}')
        FA, FB = 164, 180
        for kk in range(4):
            for x in range(2):
                a(f'ds_read_b64_tr_b16 v[{FA+4*kk+2*x}:{FA+4*kk+2*x+1}], v{AA} offset:{kk*2176 + x*256}')
                a(f'ds_read_b64_tr_b16 v[{FB+4*kk+2*x}:{FB+4*kk+2*x+1}], v{BA+x} offset:{kk*1024}')
        KV = 196
        ZS = 200
        a(f'v_mov_b32 v{ZS}, 0')
        a('s_waitcnt lgkmcnt(0)')
        for kk in range(4):
            c = '0' if kk == 0 else f'v[{KV}:{KV+3}]'
            a(f'v_mfma_f32_16x16x32_bf16 v[{KV}:{KV+3}], v[{FA+4*kk}:{FA+4*kk+3}], v[{FB+4*kk}:{FB+4*kk+3}], {c}')
        for i in range(16):
            a(f'v_dot2c_f32_bf16 v{ZS}, v{FA+i}, v{ONES}')
        a(f'v_mov_b32 v{ZS+1}, v{ZS}')
        a(f'v_permlane32_swap_b32 v{ZS}, v{ZS+1}')
        a(f'v_add_f32 v{ZS}, v{ZS}, v{ZS+1}')
        a(f'v_mov_b32 v{ZS+1}, v{ZS}')
        a(f'v_permlane16_swap_b32 v{ZS}, v{ZS+1}')
        a(f'v_add_f32 v{ZS}, v{ZS}, v{ZS+1}')
        a(f'v_cvt_pk_bf16_f32 v{KV}, v{KV}, v{KV+1}')
        a(f'v_cvt_pk_bf16_f32 v{KV+1}, v{KV+2}, v{KV+3}')
        a(f'v_and_b32 v{T}, 15, v{V_LANE}')
        a(f'v_lshlrev_b32 v{T}, 6, v{T}')
        a(f'v_lshrrev_b32 v{T+1}, 4, v{V_LANE}')
        a(f'v_lshl_add_u32 v{T}, v{T+1}, 3, v{T}')
        a(f's_lshl_b32 s{S_T0}, s{S_HB}, 4')
        a(f's_add_u32 s{S_T0}, s{S_T0}, s{S_RB}')
        a(f's_mov_b32 s{S_T0+8}, s{S_T0}')
        a(f's_lshl_b32 s{S_T0+1}, s{S_T0}, 11')
        a(f's_lshl_b32 s{S_T0+2}, s{S_HSEL}, 10')
        a(f's_add_u32 s{S_T0+1}, s{S_T0+1}, s{S_T0+2}')
        a(f's_lshl_b32 s{S_T0+2}, s{S_RHALF}, 5')
        a(f's_add_u32 s{S_T0+1}, s{S_T0+1}, s{S_T0+2}')
        a(f's_add_u32 s{S_T0+1}, s{S_T0+1}, {WS_KVP + L * 0x80000}')
        a(f'v_add_u32 v{T}, s{S_T0+1}, v{T}')
        a(f'global_store_dwordx2 v{T}, v[{KV}:{KV+1}], s[{S_WS}:{S_WS+1}] sc1')
        a(f's_lshl_b32 s{S_T0+1}, s{S_T0}, 8')
        a(f's_lshl_b32 s{S_T0+2}, s{S_HSEL}, 7')
        a(f's_add_u32 s{S_T0+1}, s{S_T0+1}, s{S_T0+2}')
        a(f's_lshl_b32 s{S_T0+2}, s{S_RHALF}, 6')
        a(f's_add_u32 s{S_T0+1}, s{S_T0+1}, s{S_T0+2}')
        a(f's_add_u32 s{S_T0+1}, s{S_T0+1}, {WS_ZP + L * 0x10000}')
        a(f'v_lshlrev_b32 v{T}, 2, v{V_LANE}')
        a(f'v_add_u32 v{T}, s{S_T0+1}, v{T}')
        a(f's_mov_b64 s[{S_T0+2}:{S_T0+3}], exec')
        a(f's_mov_b64 exec, 0xffff')
        a(f'global_store_dword v{T}, v{ZS}, s[{S_WS}:{S_WS+1}] sc1')
        a(f's_mov_b64 exec, s[{S_T0+2}:{S_T0+3}]')
        self.signal(4 * L + 0, S_T0 + 8)
        self.stamp(4 + 16 * L)
        self.bfrag_setup(L, XB)
        self.bfrag_read(L, XB, 0, FR)
        for ks in range(32):
            cur = FR + 4 * (ks & 1); nxt = FR + 4 * ((ks + 1) & 1)
            if ks + 1 < 32:
                if ks + 1 == 16: self.bfrag_bump(L, XB, both=False)
                self.bfrag_read(L, XB, ks + 1, nxt)
                a(f's_waitcnt lgkmcnt({nrd})')
            else:
                a('s_waitcnt lgkmcnt(0)')
            c0 = '0' if ks == 0 else f'v[{ACC0}:{ACC0+15}]'
            a(f'v_mfma_f32_32x32x16_bf16 v[{ACC0}:{ACC0+15}], a[{128+4*ks}:{128+4*ks+3}], v[{cur}:{cur+3}], {c0}')
        a(f'v_lshlrev_b32 v{T}, 6, v{V_HH}')
        a(f's_lshl_b32 s{S_T0}, s{S_W}, 8')
        a(f's_add_u32 s{S_T0}, s{S_T0}, {SC_CS + 128}')
        a(f'v_add_u32 v{T}, s{S_T0}, v{T}')
        for g in range(4):
            a(f'ds_read_b128 v[{CS+4*g}:{CS+4*g+3}], v{T} offset:{16*g}')
        a('s_waitcnt lgkmcnt(0)')
        self.ln_apply16(ACC0, CS, M, M + 1, KB)
        TT = 160
        for hd in range(2):
            a(f'v_mfma_f32_32x32x16_bf16 v[{D2}:{D2+15}], v[{V_WPHI+4*hd}:{V_WPHI+4*hd+3}], v[{KB+4*hd}:{KB+4*hd+3}], 0')
            self.softmax16(D2, V_PHIQ + 8 * hd, TT)
        self.stamp(5 + 16 * L)
        if o.dump == f'phiq{L}': self.dump(V_PHIQ, 16, 0)

    def resid_read(self, L):
        a = self.a
        T = V_P + 8
        a(f's_and_b32 s{S_T0}, s{S_HB}, 3')
        if L == 0:
            a(f's_lshl_b32 s{S_T0+1}, s{S_CB}, 1')
            a(f's_add_u32 s{S_T0+1}, s{S_T0+1}, s{S_RHALF}')
            a(f's_lshl_b32 s{S_T0+1}, s{S_T0+1}, 14')
            a(f's_lshl_b32 s{S_T0}, s{S_T0}, 12')
            a(f's_add_u32 s{S_T0}, s{S_T0}, s{S_T0+1}')
            a(f'v_lshlrev_b32 v{T}, 7, v{V_J}')
            a(f'v_lshl_add_u32 v{T}, v{V_HH}, 3, v{T}')
            a(f'v_add_u32 v{T}, s{S_T0}, v{T}')
            a(f'v_bfe_u32 v{T+1}, v{V_J}, 1, 3')
            a(f's_lshl_b32 s{S_T0+1}, s{S_HSEL}, 2')
            for g in range(4):
                a(f's_add_u32 s{S_T0+2}, s{S_T0+1}, {g}')
                a(f'v_xor_b32 v{T+2}, s{S_T0+2}, v{T+1}')
                a(f'v_lshl_add_u32 v{T+2}, v{T+2}, 4, v{T}')
                a(f'ds_read_b64 v[{V_RESID+2*g}:{V_RESID+2*g+1}], v{T+2}')
        else:
            a(f's_lshl_b32 s{S_T0+1}, s{S_CB}, 5')
            a(f's_lshl_b32 s{S_T0+2}, s{S_W}, 3')
            a(f's_add_u32 s{S_T0+1}, s{S_T0+1}, s{S_T0+2}')
            a(f's_lshl_b32 s{S_T0+1}, s{S_T0+1}, 10')
            a(f's_lshl_b32 s{S_T0}, s{S_T0}, 8')
            a(f's_add_u32 s{S_T0}, s{S_T0}, s{S_T0+1}')
            a(f'v_bfe_u32 v{T}, v{V_LANE}, 2, 2')
            a(f'v_lshlrev_b32 v{T}, 6, v{T}')
            a(f'v_lshl_add_u32 v{T}, v{V_HH}, 10, v{T}')
            a(f'v_bfe_u32 v{T+1}, v{V_LANE}, 4, 1')
            a(f'v_lshl_add_u32 v{T}, v{T+1}, 5, v{T}')
            a(f'v_and_b32 v{T+1}, 3, v{V_LANE}')
            a(f'v_lshl_add_u32 v{T}, v{T+1}, 3, v{T}')
            a(f'v_add_u32 v{T}, s{S_T0}, v{T}')
            for g in range(4):
                a(f'ds_read_b64_tr_b16 v[{V_RESID+2*g}:{V_RESID+2*g+1}], v{T} offset:{g*2048}')


    def o_stage(self, L):
        a = self.a; o = self.o
        a.c(f'================ o stage layer {L} ================')
        self.wait(4 * L + 0, S_HB, 16)
        self.stamp(6 + 16 * L)
        T = V_P
        PB = 56
        ZB = 88
        a(f's_lshl_b32 s{S_T0}, s{S_HB}, 15')
        a(f's_add_u32 s{S_T0}, s{S_T0}, {WS_KVP + L * 0x80000}')
        a(f'v_lshlrev_b32 v{T}, 3, v{V_TID}')
        a(f'v_add_u32 v{T}, s{S_T0}, v{T}')
        for p in range(16):
            if p % 2 == 0 and p > 0: a(f'v_add_u32 v{T}, 4096, v{T}')
            a(f'global_load_dwordx2 v[{PB+2*p}:{PB+2*p+1}], v{T}, s[{S_WS}:{S_WS+1}] offset:{(p % 2) * 2048} sc1')
        lz = self.lab('z')
        a(f's_cmp_lg_u32 s{S_W}, 3')
        a(f's_cbranch_scc1 {lz}')
        a(f's_lshl_b32 s{S_T0}, s{S_HB}, 12')
        a(f's_add_u32 s{S_T0}, s{S_T0}, {WS_ZP + L * 0x10000}')
        a(f'v_lshlrev_b32 v{T+1}, 2, v{V_LANE}')
        a(f'v_add_u32 v{T+1}, s{S_T0}, v{T+1}')
        for p in range(16):
            a(f'global_load_dword v{ZB+p}, v{T+1}, s[{S_WS}:{S_WS+1}] offset:{p * 256} sc1')
        a.label(lz)
        self.wo_dma()
        a('s_waitcnt vmcnt(32)')
        AC = 104
        CL, CH = 108, 109
        a(f'v_mov_b32 v{CL}, 0x00003f80')
        a(f'v_mov_b32 v{CH}, 0x3f800000')
        for i in range(4): a(f'v_mov_b32 v{AC+i}, 0')
        for p in range(16):
            a(f'v_dot2c_f32_bf16 v{AC}, v{PB+2*p}, v{CL}')
            a(f'v_dot2c_f32_bf16 v{AC+1}, v{PB+2*p}, v{CH}')
            a(f'v_dot2c_f32_bf16 v{AC+2}, v{PB+2*p+1}, v{CL}')
            a(f'v_dot2c_f32_bf16 v{AC+3}, v{PB+2*p+1}, v{CH}')
        a(f'v_cvt_pk_bf16_f32 v{AC}, v{AC}, v{AC+1}')
        a(f'v_cvt_pk_bf16_f32 v{AC+1}, v{AC+2}, v{AC+3}')
        a(f'v_lshrrev_b32 v{T}, 7, v{V_TID}')
        a(f'v_mul_u32_u24 v{T}, {KVT_HEAD}, v{T}')
        a(f'v_bfe_u32 v{T+1}, v{V_TID}, 3, 4')
        a(f'v_mul_u32_u24 v{T+1}, {KVT_ROW}, v{T+1}')
        a(f'v_and_b32 v{T+2}, 7, v{V_TID}')
        a(f'v_lshlrev_b32 v{T+2}, 3, v{T+2}')
        a(f'v_add3_u32 v{T}, v{T}, v{T+1}, v{T+2}')
        a(f'v_add_u32 v{T}, {SC_KVT}, v{T}')
        a(f'ds_write_b64 v{T}, v[{AC}:{AC+1}]')
        lz = self.lab('z')
        a(f's_cmp_lg_u32 s{S_W}, 3')
        a(f's_cbranch_scc1 {lz}')
        for p in range(1, 16):
            a(f'v_add_f32 v{ZB}, v{ZB}, v{ZB+p}')
        a(f'v_cvt_pk_bf16_f32 v{ZB}, v{ZB}, v{ZB}')
        a(f'v_mul_u32_u24 v{T}, {KVT_HEAD}, v{V_HH}')
        a(f'v_lshl_add_u32 v{T}, v{V_J}, 1, v{T}')
        a(f'v_add_u32 v{T}, {SC_KVT + 16 * KVT_ROW}, v{T}')
        a(f'ds_write_b16 v{T}, v{ZB}')
        a(f'ds_write_b16 v{T}, v{ZB} offset:{4 * KVT_ROW}')
        a.label(lz)
        a('s_waitcnt lgkmcnt(0)')
        a('s_barrier')
        AF = 56
        a(f'v_mul_u32_u24 v{T}, {KVT_ROW}, v{V_J}')
        a(f'v_lshl_add_u32 v{T}, v{V_HH}, 5, v{T}')
        a(f'v_add_u32 v{T}, {SC_KVT}, v{T}')
        for hd in range(2):
            for m in range(2):
                a(f'ds_read_b128 v[{AF+8*hd+4*m}:{AF+8*hd+4*m+3}], v{T} offset:{hd * KVT_HEAD + 16 * m}')
        a('s_waitcnt lgkmcnt(0)')
        D = [72, 88]
        for hd in range(2):
            a(f'v_mfma_f32_32x32x16_bf16 v[{D[hd]}:{D[hd]+15}], v[{AF+8*hd}:{AF+8*hd+3}], v[{V_PHIQ+8*hd}:{V_PHIQ+8*hd+3}], 0')
            a(f'v_mfma_f32_32x32x16_bf16 v[{D[hd]}:{D[hd]+15}], v[{AF+8*hd+4}:{AF+8*hd+7}], v[{V_PHIQ+8*hd+4}:{V_PHIQ+8*hd+7}], v[{D[hd]}:{D[hd]+15}]')
        a(f's_lshl_b32 s{S_T0}, s{S_RB}, 2')
        a(f's_add_u32 s{S_T0}, s{S_T0}, s{S_W}')
        a(f's_lshl_b32 s{S_T0}, s{S_T0}, 15')
        a(f's_lshl_b32 s{S_T0+1}, s{S_HB}, 11')
        a(f's_add_u32 s{S_T0}, s{S_T0}, s{S_T0+1}')
        a(f's_add_u32 s{S_T0}, s{S_T0}, {WS_O + L * 0x200000}')
        a(f'v_lshlrev_b32 v{T}, 4, v{V_LANE}')
        a(f'v_add_u32 v{T}, s{S_T0}, v{T}')
        OB = 104
        for hd in range(2):
            d = D[hd]
            a(f'v_add_f32 v{d+8}, 0x358637bd, v{d+8}')
            a(f'v_rcp_f32 v{d+8}, v{d+8}')
            for r in range(0, 8, 2):
                a(f'v_pk_mul_f32 v[{d+r}:{d+r+1}], v[{d+r}:{d+r+1}], v[{d+8}:{d+9}] op_sel_hi:[1,0]')
            for r in range(0, 8, 2):
                a(f'v_cvt_pk_bf16_f32 v{OB+4*hd+r//2}, v{d+r}, v{d+r+1}')
            a(f'global_store_dwordx4 v{T}, v[{OB+4*hd}:{OB+4*hd+3}], s[{S_WS}:{S_WS+1}] offset:{hd*1024} sc1')
        a(f's_lshl_b32 s{S_T0+8}, s{S_RB}, 4')
        a(f's_add_u32 s{S_T0+8}, s{S_T0+8}, s{S_HB}')
        self.signal(4 * L + 1, S_T0 + 8)
        self.stamp(7 + 16 * L)
        self.wo_frags()

    def wo_dma(self):
        a = self.a
        b, t = 110, 111
        a(f'v_lshrrev_b32 v{b}, 4, v{V_LANE}')
        a(f'v_lshlrev_b32 v{t}, 2, v{b}')
        a(f'v_and_b32 v{t+1}, 15, v{V_LANE}')
        a(f'v_xor_b32 v{t}, v{t}, v{t+1}')
        a(f'v_lshlrev_b32 v{t}, 4, v{t}')
        a(f's_lshl_b32 s{S_T0}, s{S_W}, 2')
        a(f'v_add_u32 v{b}, s{S_T0}, v{b}')
        a(f'v_lshl_add_u32 v{b}, v{b}, 10, v{t}')
        a(f's_lshl_b32 s{S_T0}, s{S_CB}, 8')
        a(f'v_add_u32 v{b}, s{S_T0}, v{b}')
        for i in range(32):
            a(f'v_add_u32 v{t}, {i * 16 * 1024}, v{b}')
            a(f's_add_u32 m0, s{S_W1024}, {i * 4096}')
            a(f'global_load_lds_dwordx4 v{t}, s[{S_WO}:{S_WO+1}]')

    def wo_frags(self):
        a = self.a
        b, t = V_P, V_P + 1
        a(f'v_bfe_u32 v{t}, v{V_LANE}, 2, 2')
        a(f'v_lshl_add_u32 v{b}, v{V_HH}, 2, v{t}')
        a(f'v_lshlrev_b32 v{b}, 8, v{b}')
        a(f'v_lshlrev_b32 v{t}, 2, v{t}')
        a(f'v_bfe_u32 v{t+1}, v{V_LANE}, 4, 1')
        a(f'v_lshlrev_b32 v{t+1}, 1, v{t+1}')
        a(f'v_bfe_u32 v{t+2}, v{V_LANE}, 1, 1')
        a(f's_lshl_b32 s{S_T0}, s{S_W}, 2')
        a(f'v_add3_u32 v{t+1}, v{t+1}, v{t+2}, s{S_T0}')
        a(f'v_xor_b32 v{t+1}, v{t+1}, v{t}')
        a(f'v_lshl_add_u32 v{b}, v{t+1}, 4, v{b}')
        a(f'v_and_b32 v{t+1}, 1, v{V_LANE}')
        a(f'v_lshl_add_u32 v{b}, v{t+1}, 3, v{b}')
        for hg in range(32):
            if hg == 16: a(f'v_add_u32 v{b}, 65536, v{b}')
            for x in range(2):
                a(f'ds_read_b64_tr_b16 v[{128+4*hg+2*x}:{128+4*hg+2*x+1}], v{b} offset:{(hg & 15) * 4096 + x * 2048}')
            if hg % 4 == 3: a('s_waitcnt lgkmcnt(4)')
        a('s_waitcnt lgkmcnt(0)')

    def p2b(self, L):
        a = self.a; o = self.o
        a.c(f'================ P2b layer {L} ================')
        self.wait(4 * L + 1, S_RB, 16)
        self.stamp(8 + 16 * L)
        T = V_P
        a(f's_lshl_b32 s{S_T0}, s{S_T}, 15')
        a(f's_add_u32 s{S_T0}, s{S_T0}, s{S_W1024}')
        a(f's_add_u32 s{S_T0}, s{S_T0}, {WS_O + L * 0x200000}')
        a(f'v_lshlrev_b32 v{T}, 4, v{V_LANE}')
        a(f'v_add_u32 v{T}, s{S_T0}, v{T}')
        for i in range(8):
            a(f'v_add_u32 v{T+1}, {i * 4096}, v{T}')
            a(f's_add_u32 m0, s{S_W1024}, {i * 4096}')
            a(f'global_load_lds_dwordx4 v{T+1}, s[{S_WS}:{S_WS+1}] sc1')
        a(f'v_lshlrev_b32 v{T}, 4, v{V_LANE}')
        a('s_waitcnt vmcnt(0)')
        a('s_barrier')
        FR = 56; ACC = 72
        NB = 3
        for hg in range(min(NB - 1, 32)):
            a(f'ds_read_b128 v[{FR+4*(hg%NB)}:{FR+4*(hg%NB)+3}], v{T} offset:{hg*1024}')
        for hg in range(32):
            nx = hg + NB - 1
            if nx < 32:
                a(f'ds_read_b128 v[{FR+4*(nx%NB)}:{FR+4*(nx%NB)+3}], v{T} offset:{nx*1024}')
                a(f's_waitcnt lgkmcnt({NB-1})')
            else:
                a(f's_waitcnt lgkmcnt({31-hg})')
            c = '0' if hg == 0 else f'v[{ACC}:{ACC+15}]'
            a(f'v_mfma_f32_32x32x16_bf16 v[{ACC}:{ACC+15}], v[{128+4*hg}:{128+4*hg+3}], v[{FR+4*(hg%NB)}:{FR+4*(hg%NB)+3}], {c}')
        self.stamp(9 + 16 * L)
        X = 88
        U = 96
        for g in range(8):
            a(f'v_lshlrev_b32 v{U}, 16, v{V_RESID+g}')
            a(f'v_and_b32 v{U+1}, 0xffff0000, v{V_RESID+g}')
            a(f'v_pk_add_f32 v[{ACC+2*g}:{ACC+2*g+1}], v[{ACC+2*g}:{ACC+2*g+1}], v[{U}:{U+1}]')
            a(f'v_cvt_pk_bf16_f32 v{X+g}, v{ACC+2*g}, v{ACC+2*g+1}')
        SS, SQ, ONES = 98, 99, 100
        a(f'v_mov_b32 v{SS}, 0'); a(f'v_mov_b32 v{SQ}, 0'); a(f'v_mov_b32 v{ONES}, 0x3f803f80')
        for g in range(8):
            a(f'v_dot2c_f32_bf16 v{SS}, v{X+g}, v{ONES}')
            a(f'v_dot2c_f32_bf16 v{SQ}, v{X+g}, v{X+g}')
        TR = 32768
        a(f'v_lshlrev_b32 v{T}, 6, v{V_J}')
        a(f'v_lshl_add_u32 v{T}, v{V_HH}, 3, v{T}')
        a(f's_lshl_b32 s{S_T0}, s{S_W}, 11')
        a(f's_add_u32 s{S_T0}, s{S_T0}, {TR}')
        a(f'v_add_u32 v{T}, s{S_T0}, v{T}')
        for g in range(4):
            a(f'ds_write_b64 v{T}, v[{X+2*g}:{X+2*g+1}] offset:{16*g}')
        a(f'v_mov_b32 v{U}, v{SS}')
        a(f'v_mov_b32 v{U+1}, v{SQ}')
        a(f'v_permlane32_swap_b32 v{SS}, v{U}')
        a(f'v_permlane32_swap_b32 v{SQ}, v{U+1}')
        a(f'v_add_f32 v{SS}, v{SS}, v{U}')
        a(f'v_add_f32 v{SQ}, v{SQ}, v{U+1}')
        a(f'v_cmp_eq_u32 vcc, 0, v{V_HH}')
        a(f'v_cndmask_b32 v{SS}, v{SQ}, v{SS}, vcc')
        a(f's_lshl_b32 s{S_T0}, s{S_T}, 7')
        a(f's_add_u32 s{S_T0}, s{S_T0}, {WS_STATS + L * 0x4000}')
        a(f'v_lshlrev_b32 v{U}, 2, v{V_J}')
        a(f'v_lshl_add_u32 v{U}, v{V_HH}, 13, v{U}')
        a(f'v_add_u32 v{U}, s{S_T0}, v{U}')
        a(f'global_atomic_add_f32 v{U}, v{SS}, s[{S_WS}:{S_WS+1}]')
        a(f'v_lshrrev_b32 v{T}, 4, v{V_LANE}')
        a(f'v_bfe_u32 v{T+1}, v{V_LANE}, 2, 2')
        a(f'v_lshl_add_u32 v{T+1}, v{T}, 3, v{T+1}')
        a(f'v_lshlrev_b32 v{T+1}, 6, v{T+1}')
        a(f'v_and_b32 v{T+2}, 3, v{V_LANE}')
        a(f'v_lshl_add_u32 v{T+1}, v{T+2}, 3, v{T+1}')
        a(f's_lshl_b32 s{S_T0}, s{S_W}, 11')
        a(f's_add_u32 s{S_T0}, s{S_T0}, {TR}')
        a(f'v_add_u32 v{T+1}, s{S_T0}, v{T+1}')
        a('s_waitcnt lgkmcnt(0)')
        Y = 104
        for m in range(2):
            for x in range(2):
                a(f'ds_read_b64_tr_b16 v[{Y+4*m+2*x}:{Y+4*m+2*x+1}], v{T+1} offset:{m*32 + x*256}')
        a(f's_lshl_b32 s{S_T0}, s{S_CB}, 7')
        a(f's_lshl_b32 s{S_T0+1}, s{S_W}, 5')
        a(f's_add_u32 s{S_T0}, s{S_T0}, s{S_T0+1}')
        a(f's_lshl_b32 s{S_T0}, s{S_T0}, 12')
        a(f's_lshl_b32 s{S_T0+1}, s{S_T}, 6')
        a(f's_add_u32 s{S_T0}, s{S_T0}, s{S_T0+1}')
        a(f's_add_u32 s{S_T0}, s{S_T0}, {WS_X1T + L * 0x200000}')
        a(f'v_and_b32 v{T+2}, 15, v{V_LANE}')
        a(f'v_lshlrev_b32 v{T+2}, 12, v{T+2}')
        a(f'v_lshl_add_u32 v{T+2}, v{T}, 4, v{T+2}')
        a(f'v_add_u32 v{T+2}, s{S_T0}, v{T+2}')
        a(f'v_add_u32 v{T+3}, {16 * 4096}, v{T+2}')
        a('s_waitcnt lgkmcnt(0)')
        a(f'global_store_dwordx4 v{T+2}, v[{Y}:{Y+3}], s[{S_WS}:{S_WS+1}] sc1')
        a(f'global_store_dwordx4 v{T+3}, v[{Y+4}:{Y+7}], s[{S_WS}:{S_WS+1}] sc1')
        self.signal(4 * L + 2, S_WG)
        self.stamp(10 + 16 * L)

    def exp_acc(self, dst, src, t):
        a = self.a
        a(f'v_mul_f32 v{t}, {hex(LOG2E)}, v{src}')
        a(f'v_mov_b32 v{t+1}, {hex(LOG2E)}')
        a(f'v_fma_f32 v{t+1}, v{src}, v{t+1}, -v{t}')
        a(f'v_fmac_f32 v{t+1}, 0x32a57060, v{src}')
        a(f'v_exp_f32 v{dst}, v{t}')
        a(f'v_mul_f32 v{t+1}, 0x3f317218, v{t+1}')
        a(f'v_fmac_f32 v{dst}, v{dst}, v{t+1}')

    def cis_pow(self, dst, ar2, rev, p, t):
        a = self.a
        import struct
        pf = hex(struct.unpack('<I', struct.pack('<f', float(p)))[0])
        a(f'v_mul_f32 v{t}, {pf}, v{ar2}')
        a(f'v_exp_f32 v{t}, v{t}')
        a(f'v_mul_f32 v{t+1}, {pf}, v{rev}')
        a(f'v_fract_f32 v{t+1}, v{t+1}')
        a(f'v_cos_f32 v{dst}, v{t+1}')
        a(f'v_sin_f32 v{dst+1}, v{t+1}')
        a(f'v_mul_f32 v{dst}, v{dst}, v{t}')
        a(f'v_mul_f32 v{dst+1}, v{dst+1}, v{t}')

    def cmul(self, d, x, y):
        a = self.a
        a(f'v_pk_mul_f32 v[{d}:{d+1}], v[{x}:{x+1}], v[{y}:{y+1}] op_sel_hi:[0,1]')
        a(f'v_pk_fma_f32 v[{d}:{d+1}], v[{x}:{x+1}], v[{y}:{y+1}], v[{d}:{d+1}] op_sel:[1,1,0] op_sel_hi:[1,0,1] neg_lo:[0,1,0]')

    KG_A = 0
    KG_B = 33792
    KG_D = 67584
    KG_MX = 76032
    def kgen(self):
        a = self.a; o = self.o
        a.c('================ K generation ================')
        T = V_P
        LA, AI, CR, CI, LD, DS = 56, 57, 58, 59, 60, 61
        a(f's_lshl_b32 s{S_T0}, s{S_C0}, 8')
        a(f'v_lshlrev_b32 v{T}, 1, v{V_TID}')
        a(f'v_add_u32 v{T}, s{S_T0}, v{T}')
        a(f'global_load_ushort v{LA}, v{T}, s[{S_LOGA}:{S_LOGA+1}]')
        a(f'global_load_ushort v{AI}, v{T}, s[{S_AIM}:{S_AIM+1}]')
        a(f'global_load_ushort v{CR}, v{T}, s[{S_CRE}:{S_CRE+1}]')
        a(f'global_load_ushort v{CI}, v{T}, s[{S_CIM}:{S_CIM+1}]')
        a(f'v_lshrrev_b32 v{T+1}, 7, v{V_TID}')
        a(f'v_add_u32 v{T+1}, s{S_C0}, v{T+1}')
        a(f'v_lshlrev_b32 v{T+1}, 1, v{T+1}')
        a(f'global_load_ushort v{LD}, v{T+1}, s[{S_LOGDT}:{S_LOGDT+1}]')
        a('s_waitcnt vmcnt(0)')
        for r in (LA, AI, CR, CI, LD): a(f'v_lshlrev_b32 v{r}, 16, v{r}')
        DT, EA = 62, 63
        self.exp_acc(DT, LD, T); self.rbf(DT, DT)
        self.exp_acc(EA, LA, T); self.rbf(EA, EA)
        AR2, REV = 64, 65
        a(f'v_mul_f32 v{AR2}, v{EA}, v{DT}')
        a(f'v_mul_f32 v{AR2}, {hex(LOG2E ^ 0x80000000)}, v{AR2}')
        a(f'v_mul_f32 v{REV}, v{AI}, v{DT}')
        a(f'v_mul_f32 v{REV}, 0.15915494, v{REV}')
        MX = 66
        a(f'v_max_f32 v{MX}, |v{CR}|, |v{CI}|')
        for ctrl in ('row_ror:1', 'row_ror:2', 'row_ror:4', 'row_ror:8'):
            a(f'v_mov_b32_dpp v{T}, v{MX} {ctrl} row_mask:0xf bank_mask:0xf')
            a(f'v_max_f32 v{MX}, v{MX}, v{T}')
        a(f'v_mov_b32 v{T}, v{MX}')
        a(f'v_permlane16_swap_b32 v{MX}, v{T}')
        a(f'v_max_f32 v{MX}, v{MX}, v{T}')
        a(f'v_mov_b32 v{T}, v{MX}')
        a(f'v_permlane32_swap_b32 v{MX}, v{T}')
        a(f'v_max_f32 v{MX}, v{MX}, v{T}')
        a(f's_lshl_b32 s{S_T0}, s{S_W}, 2')
        a(f's_add_u32 s{S_T0}, s{S_T0}, {self.KG_MX}')
        a(f'v_mov_b32 v{T}, s{S_T0}')
        a(f'ds_write_b32 v{T}, v{MX}')
        a('s_waitcnt lgkmcnt(0)')
        a('s_barrier')
        a(f's_lshl_b32 s{S_T0}, s{S_RHALF}, 3')
        a(f's_add_u32 s{S_T0}, s{S_T0}, {self.KG_MX}')
        a(f'v_mov_b32 v{T}, s{S_T0}')
        a(f'ds_read_b64 v[{T+2}:{T+3}], v{T}')
        a('s_waitcnt lgkmcnt(0)')
        a(f'v_max_f32 v{MX}, v{T+2}, v{T+3}')
        a(f'v_lshrrev_b32 v{MX}, 23, v{MX}')
        a(f'v_max_u32 v{MX}, 1, v{MX}')
        a(f'v_min_u32 v{MX}, 253, v{MX}')
        SCL = 67
        a(f'v_sub_u32 v{SCL}, 254, v{MX}')
        a(f'v_lshlrev_b32 v{SCL}, 23, v{SCL}')
        a(f'v_lshlrev_b32 v{T}, 23, v{MX}')
        a(f'v_mul_f32 v{T}, v{T}, v{DT}')
        a(f'v_mul_f32 v{T}, 0x3d000000, v{T}')
        a(f's_lshl_b32 s{S_T0}, s{S_RHALF}, 2')
        a(f's_add_u32 s{S_T0}, s{S_T0}, {self.KG_MX + 32}')
        a(f'v_mov_b32 v{T+1}, s{S_T0}')
        a(f'ds_write_b32 v{T+1}, v{T}')
        C = 58
        a(f'v_pk_mul_f32 v[{C}:{C+1}], v[{C}:{C+1}], v[{SCL-1}:{SCL}] op_sel:[0,1] op_sel_hi:[1,1]')
        Z1, Z8, Z256 = 68, 70, 72
        self.cis_pow(Z1, AR2, REV, 1, T)
        self.cis_pow(Z8, AR2, REV, 8, T)
        self.cis_pow(Z256, AR2, REV, 256, T)
        TA = 74
        a(f'v_lshrrev_b32 v{T}, 7, v{V_TID}')
        a(f'v_mul_u32_u24 v{T}, 16896, v{T}')
        a(f'v_and_b32 v{T+1}, 127, v{V_TID}')
        a(f'v_lshl_add_u32 v{TA}, v{T+1}, 2, v{T}')
        P0, P1 = 76, 78
        H = 80
        a(f'v_mov_b32 v{P0}, 1.0'); a(f'v_mov_b32 v{P0+1}, 0')
        cur, nxt = P0, P1
        for b in range(32):
            a(f'v_cvt_pkrtz_f16_f32 v{H + (b & 1)}, v{cur}, -v{cur+1}')
            a(f'ds_write_b32 v{TA}, v{H + (b & 1)} offset:{self.KG_A + b * 528}')
            if b < 31:
                self.cmul(nxt, cur, Z8); cur, nxt = nxt, cur
        def putB(col, r):
            a(f'v_cvt_pkrtz_f16_f32 v{H + (col & 1)}, v{r}, v{r+1}')
            a(f'ds_write_b32 v{TA}, v{H + (col & 1)} offset:{self.KG_B + col * 528}')
        Z2, Z4, Z6 = 82, 84, 86
        self.cmul(Z2, Z1, Z1); self.cmul(Z4, Z2, Z2); self.cmul(Z6, Z4, Z2)
        putB(0, C)
        cur, nxt = P0, P1
        self.cmul(cur, C, Z1); putB(1, cur)
        for k in range(2, 8):
            self.cmul(nxt, cur, Z1); cur, nxt = nxt, cur; putB(k, cur)
        G, G2, W1 = 88, 90, 92
        self.cmul(G, C, Z256)
        putB(8, G)
        for k, zz in ((9, Z2), (10, Z4), (11, Z6)):
            self.cmul(W1, G, zz); putB(k, W1)
        self.cmul(G2, G, Z256)
        putB(12, G2); self.cmul(W1, G2, Z4); putB(13, W1)
        self.cmul(G, G2, Z256)
        putB(14, G); self.cmul(W1, G, Z4); putB(15, W1)
        self.cmul(G2, G, Z256); putB(16, G2)
        self.cmul(G, G2, Z256); putB(17, G)
        self.cmul(G2, G, Z256); putB(18, G2)
        self.cmul(G, G2, Z256); putB(19, G)
        self.cmul(G2, G, Z256); putB(20, G2)
        a('s_waitcnt lgkmcnt(0)')
        a('s_barrier')
        AA, BA = T, T + 1
        a(f'v_and_b32 v{T+2}, 15, v{V_LANE}')
        a(f'v_mul_u32_u24 v{T+2}, 528, v{T+2}')
        a(f'v_lshrrev_b32 v{T+3}, 4, v{V_LANE}')
        a(f'v_lshl_add_u32 v{T+2}, v{T+3}, 4, v{T+2}')
        a(f's_mul_i32 s{S_T0}, s{S_HSEL}, 16896')
        a(f'v_add_u32 v{AA}, s{S_T0}, v{T+2}')
        a(f's_mul_i32 s{S_T0+1}, s{S_RHALF}, {16 * 528}')
        a(f's_add_u32 s{S_T0}, s{S_T0}, s{S_T0+1}')
        a(f's_add_u32 s{S_T0}, s{S_T0}, {self.KG_B}')
        a(f'v_add_u32 v{BA}, s{S_T0}, v{T+2}')
        FA, FB, DD = 56, 88, 104
        for ks in range(8):
            a(f'ds_read_b128 v[{FA}:{FA+3}], v{AA} offset:{self.KG_A + ks * 64}')
            a(f'ds_read_b128 v[{FA+4}:{FA+7}], v{AA} offset:{self.KG_A + 16 * 528 + ks * 64}')
            a(f'ds_read_b128 v[{FB}:{FB+3}], v{BA} offset:{ks * 64}')
            a('s_waitcnt lgkmcnt(0)')
            for mb in range(2):
                c = '0' if ks == 0 else f'v[{DD+4*mb}:{DD+4*mb+3}]'
                a(f'v_mfma_f32_16x16x32_f16 v[{DD+4*mb}:{DD+4*mb+3}], v[{FA+4*mb}:{FA+4*mb+3}], v[{FB}:{FB+3}], {c}')
        COL, P2 = T, T + 1
        a(f'v_and_b32 v{COL}, 15, v{V_LANE}')
        a(f's_lshl_b32 s{S_T0}, s{S_RHALF}, 4')
        a(f'v_add_u32 v{COL}, s{S_T0}, v{COL}')
        t2, t3 = T + 2, T + 3
        a(f'v_mov_b32 v{P2}, v{COL}')
        a(f'v_lshlrev_b32 v{t2}, 1, v{COL}'); a(f'v_add_u32 v{t2}, {256 - 16}, v{t2}')
        a(f'v_cmp_le_u32 vcc, 8, v{COL}'); a(f'v_cndmask_b32 v{P2}, v{P2}, v{t2}, vcc')
        a(f'v_and_b32 v{t2}, 1, v{COL}'); a(f'v_lshlrev_b32 v{t2}, 2, v{t2}')
        a(f'v_bfe_u32 v{t3}, v{COL}, 1, 1'); a(f'v_lshlrev_b32 v{t3}, 8, v{t3}')
        a(f'v_add3_u32 v{t2}, v{t2}, v{t3}, 0'); a(f'v_add_u32 v{t2}, 512, v{t2}')
        a(f'v_cmp_le_u32 vcc, 12, v{COL}'); a(f'v_cndmask_b32 v{P2}, v{P2}, v{t2}, vcc')
        a(f'v_lshlrev_b32 v{t2}, 8, v{COL}'); a(f'v_add_u32 v{t2}, {1024 - 4096 + 0x100000}, v{t2}'); a(f'v_and_b32 v{t2}, 0xfffff, v{t2}')
        a(f'v_cmp_le_u32 vcc, 16, v{COL}'); a(f'v_cndmask_b32 v{P2}, v{P2}, v{t2}, vcc')
        a(f'v_lshrrev_b32 v{t2}, 4, v{V_LANE}')
        a(f'v_lshl_add_u32 v{t2}, v{t2}, 5, v{P2}')
        a(f'v_lshlrev_b32 v{t2}, 1, v{t2}')
        a(f's_mul_i32 s{S_T0}, s{S_HSEL}, 4112')
        a(f's_add_u32 s{S_T0}, s{S_T0}, {self.KG_D}')
        a(f'v_add_u32 v{t2}, s{S_T0}, v{t2}')
        for i in range(8):
            a(f'v_mul_f32 v{DD+i}, 0x42800000, v{DD+i}')
            a(f'v_cvt_f16_f32 v{DD+i}, v{DD+i}')
        a(f'v_cmp_gt_u32 vcc, 20, v{COL}')
        a(f's_and_saveexec_b64 s[{S_T0+2}:{S_T0+3}], vcc')
        for mb in range(2):
            for r in range(4):
                a(f'ds_write_b16 v{t2}, v{DD+4*mb+r} offset:{(128*mb + 8*r) * 2}')
        a(f's_mov_b64 exec, s[{S_T0+2}:{S_T0+3}]')
        a(f'v_cmp_eq_u32 vcc, 20, v{COL}')
        a(f'v_lshrrev_b32 v{t3}, 4, v{V_LANE}')
        a(f'v_cmp_eq_u32 s[{S_T0+4}:{S_T0+5}], 0, v{t3}')
        a(f's_and_b64 vcc, vcc, s[{S_T0+4}:{S_T0+5}]')
        a(f's_and_saveexec_b64 s[{S_T0+2}:{S_T0+3}], vcc')
        a(f'ds_write_b16 v{t2}, v{DD}')
        a(f's_mov_b64 exec, s[{S_T0+2}:{S_T0+3}]')
        a('s_waitcnt lgkmcnt(0)')
        a('s_barrier')
        LL = 56
        for i in range(12):
            a(f'v_lshlrev_b32 v{T}, 3, v{V_TID}')
            a(f'v_add_u32 v{T}, {i - 4 + 0}, v{T}') if i >= 4 else a(f'v_subrev_u32 v{T}, {4 - i}, v{T}')
            a(f'v_max_i32 v{T}, 0, v{T}')
            a(f'v_cvt_f32_u32 v{T}, v{T}')
            self.rbf(T, T)
            a(f'v_cvt_u32_f32 v{T}, v{T}')
            a(f'v_lshlrev_b32 v{LL+i}, 1, v{T}')
            a(f'v_add_u32 v{LL+i}, {self.KG_D}, v{LL+i}')
        GT = 72
        for ch in range(2):
            for i in range(12):
                a(f'ds_read_u16 v{GT + 12*ch + i}, v{LL+i} offset:{ch * 4112}')
        a('s_waitcnt lgkmcnt(0)')
        for ch in range(2):
            for i in range(6):
                a(f'v_lshl_or_b32 v{V_K + 6*ch + i}, v{GT + 12*ch + 2*i + 1}, 16, v{GT + 12*ch + 2*i}')
        a(f'v_mov_b32 v{T}, {self.KG_MX + 32}')
        a(f'ds_read_b64 v[{T+2}:{T+3}], v{T}')
        a('s_waitcnt lgkmcnt(0)')
        a(f'v_readfirstlane_b32 s{S_KSC}, v{T+2}')
        a(f'v_readfirstlane_b32 s{S_KSC+1}, v{T+3}')
        a(f'v_cmp_eq_u32 vcc, 0, v{V_TID}')
        for ch in range(2):
            for i in range(2):
                a(f'v_cndmask_b32 v{V_K+6*ch+i}, v{V_K+6*ch+i}, 0, vcc') if False else a(f'v_cndmask_b32 v{V_K+6*ch+i}, v{V_K+6*ch+i}, v{self.zero_reg()}, vcc')
        a(f's_lshl_b32 s{S_T0}, s{S_C0}, 1')
        a(f's_add_u32 s{S_T0+2}, s{S_DSK}, s{S_T0}')
        a(f's_addc_u32 s{S_T0+3}, s{S_DSK+1}, 0')
        a(f's_load_dword s{S_DSKV}, s[{S_T0+2}:{S_T0+3}], 0')
        a('s_waitcnt lgkmcnt(0)')
        a('s_barrier')
        if o.dump == 'kgen': self.dump(V_K, 12, 0)

    def zero_reg(self):
        self.a(f'v_mov_b32 v119, 0')
        return 119

    CV_KC = 0
    CV_U = 33280
    CV_X1 = 42496
    CV_EX = 50688
    def k_copies(self):
        a = self.a
        a.c('K shifted copies -> LDS')
        T = V_P
        AD = T
        a(f'v_lshlrev_b32 v{AD}, 4, v{V_TID}')
        a(f'v_add_u32 v{AD}, {self.CV_KC + 32}, v{AD}')
        W = 56
        for ch in range(2):
            d = V_K + 6 * ch
            base = ch * 16640
            a(f'ds_write_b128 v{AD}, v[{d+2}:{d+5}] offset:{base}')
            for i in range(4): a(f'v_mov_b32 v{W+i}, v{d+1+i}')
            a(f'ds_write_b128 v{AD}, v[{W}:{W+3}] offset:{base + 2*4160}')
            for i in range(5): a(f'v_alignbit_b32 v{W+4+i}, v{d+i+1}, v{d+i}, 16')
            a(f'ds_write_b128 v{AD}, v[{W+4}:{W+7}] offset:{base + 3*4160}')
            for i in range(4): a(f'v_mov_b32 v{W+10+i}, v{W+5+i}')
            a(f'ds_write_b128 v{AD}, v[{W+10}:{W+13}] offset:{base + 1*4160}')
        for i in range(4): a(f'v_mov_b32 v{W+i}, 0')
        a(f'v_lshrrev_b32 v{T+1}, 1, v{V_TID}')
        a(f'v_mul_u32_u24 v{T+1}, 4160, v{T+1}')
        a(f'v_and_b32 v{T+2}, 1, v{V_TID}')
        a(f'v_lshl_add_u32 v{T+1}, v{T+2}, 4, v{T+1}')
        a(f'v_add_u32 v{T+1}, {self.CV_KC}, v{T+1}')
        a(f'v_cmp_gt_u32 vcc, 16, v{V_TID}')
        a(f's_and_saveexec_b64 s[{S_T0+2}:{S_T0+3}], vcc')
        a(f'ds_write_b128 v{T+1}, v[{W}:{W+3}]')
        a(f's_mov_b64 exec, s[{S_T0+2}:{S_T0+3}]')
        a(f'v_lshrrev_b32 v{T+1}, 5, v{V_TID}')
        a(f'v_mul_u32_u24 v{T+1}, 4608, v{T+1}')
        a(f'v_and_b32 v{T+2}, 31, v{V_TID}')
        a(f'v_lshl_add_u32 v{T+1}, v{T+2}, 4, v{T+1}')
        a(f'v_add_u32 v{T+1}, {self.CV_U}, v{T+1}')
        a(f'v_cmp_gt_u32 vcc, 64, v{V_TID}')
        a(f's_and_saveexec_b64 s[{S_T0+2}:{S_T0+3}], vcc')
        a(f'ds_write_b128 v{T+1}, v[{W}:{W+3}]')
        a(f's_mov_b64 exec, s[{S_T0+2}:{S_T0+3}]')

    def conv(self, L):
        a = self.a; o = self.o
        a.c(f'================ conv layer {L} ================')
        self.k_copies()
        self.wait(4 * L + 2, None, 256)
        self.stamp(11 + 16 * L)
        if L == 0:
            l = self.lab('nonce')
            a(f's_add_u32 s{S_T0}, s{S_WG}, s{S_W}')
            a(f's_cmp_lg_u32 s{S_T0}, 0')
            a(f's_cbranch_scc1 {l}')
            a(f'v_mov_b32 v126, {WS_NONCE}')
            a(f'v_mov_b32 v127, s{S_NONCE}')
            a(f's_mov_b64 s[{S_T0+2}:{S_T0+3}], exec')
            a(f's_mov_b64 exec, 1')
            a(f'global_store_dword v126, v127, s[{S_WS}:{S_WS+1}] sc1')
            a(f's_mov_b64 exec, s[{S_T0+2}:{S_T0+3}]')
            a.label(l)
        T = V_P
        XR = 56
        SM, SQ = 64, 72
        a(f's_lshl_b32 s{S_T0}, s{S_C0}, 12')
        a(f's_add_u32 s{S_T0}, s{S_T0}, {WS_X1T + L * 0x200000}')
        a(f'v_lshlrev_b32 v{T}, 4, v{V_TID}')
        a(f'v_add_u32 v{T+1}, s{S_T0}, v{T}')
        a(f'v_add_u32 v{T+2}, 4096, v{T+1}')
        a(f'global_load_dwordx4 v[{XR}:{XR+3}], v{T+1}, s[{S_WS}:{S_WS+1}] sc1')
        a(f'global_load_dwordx4 v[{XR+4}:{XR+7}], v{T+2}, s[{S_WS}:{S_WS+1}] sc1')
        a(f'v_lshlrev_b32 v{T+1}, 5, v{V_TID}')
        a(f'v_add_u32 v{T+1}, {WS_STATS + L * 0x4000}, v{T+1}')
        a(f'v_add_u32 v{T+2}, 8192, v{T+1}')
        a(f'global_load_dwordx4 v[{SM}:{SM+3}], v{T+1}, s[{S_WS}:{S_WS+1}] sc1')
        a(f'global_load_dwordx4 v[{SM+4}:{SM+7}], v{T+1}, s[{S_WS}:{S_WS+1}] offset:16 sc1')
        a(f'global_load_dwordx4 v[{SQ}:{SQ+3}], v{T+2}, s[{S_WS}:{S_WS+1}] sc1')
        a(f'global_load_dwordx4 v[{SQ+4}:{SQ+7}], v{T+2}, s[{S_WS}:{S_WS+1}] offset:16 sc1')
        K5 = 80
        a(f'v_mov_b32 v{K5}, 0x3b000000'); a(f'v_mov_b32 v{K5+1}, 0x3b000000')
        EP = 82
        a(f'v_mov_b32 v{EP}, 0x3727c5ac'); a(f'v_mov_b32 v{EP+1}, 0x3727c5ac')
        a('s_waitcnt vmcnt(0)')
        U = 84
        def rb2(r):
            a(f'v_cvt_pk_bf16_f32 v{U}, v{r}, v{r+1}')
            a(f'v_lshlrev_b32 v{r}, 16, v{U}')
            a(f'v_and_b32 v{r+1}, 0xffff0000, v{U}')
        for p in range(0, 8, 2):
            m, q = SM + p, SQ + p
            a(f'v_pk_mul_f32 v[{m}:{m+1}], v[{m}:{m+1}], v[{K5}:{K5+1}]')
            a(f'v_pk_mul_f32 v[{q}:{q+1}], v[{q}:{q+1}], v[{K5}:{K5+1}]')
            a(f'v_pk_fma_f32 v[{q}:{q+1}], v[{m}:{m+1}], v[{m}:{m+1}], v[{q}:{q+1}] neg_lo:[1,0,0] neg_hi:[1,0,0]')
            a(f'v_max_f32 v{q}, 0, v{q}'); a(f'v_max_f32 v{q+1}, 0, v{q+1}')
            rb2(m); rb2(q)
            a(f'v_pk_add_f32 v[{q}:{q+1}], v[{q}:{q+1}], v[{EP}:{EP+1}]')
            rb2(q)
            a(f'v_sqrt_f32 v{q}, v{q}'); a(f'v_sqrt_f32 v{q+1}, v{q+1}')
            rb2(q)
            a(f'v_rcp_f32 v{q}, v{q}'); a(f'v_rcp_f32 v{q+1}, v{q+1}')
        UO = 88
        E = 96
        for ch in range(2):
            for p in range(4):
                x = XR + 4 * ch + p
                m, q = SM + 2 * p, SQ + 2 * p
                a(f'v_lshlrev_b32 v{E}, 16, v{x}')
                a(f'v_and_b32 v{E+1}, 0xffff0000, v{x}')
                a(f'v_pk_add_f32 v[{E}:{E+1}], v[{E}:{E+1}], v[{m}:{m+1}] neg_lo:[0,1] neg_hi:[0,1]')
                rb2(E)
                a(f'v_pk_mul_f32 v[{E}:{E+1}], v[{E}:{E+1}], v[{q}:{q+1}]')
                rb2(E)
                a(f'v_cvt_pkrtz_f16_f32 v{UO+4*ch+p}, v{E}, v{E+1}')
        a(f'v_lshlrev_b32 v{T}, 4, v{V_TID}')
        for ch in range(2):
            a(f'ds_write_b128 v{T}, v[{UO+4*ch}:{UO+4*ch+3}] offset:{self.CV_U + ch*4608 + 512}')
            a(f'ds_write_b128 v{T}, v[{XR+4*ch}:{XR+4*ch+3}] offset:{self.CV_X1 + ch*4096}')
        a('s_waitcnt lgkmcnt(0)')
        a('s_barrier')
        self.stamp(12 + 16 * L)
        AA, BA = T, T + 1
        a(f'v_bfe_u32 v{T+2}, v{V_LANE}, 2, 2')
        a(f'v_mul_u32_u24 v{AA}, 4160, v{T+2}')
        a(f'v_lshrrev_b32 v{T+2}, 4, v{V_LANE}')
        a(f'v_lshlrev_b32 v{T+3}, 4, v{T+2}')
        a(f'v_sub_u32 v{AA}, v{AA}, v{T+3}')
        a(f'v_and_b32 v{T+4}, 3, v{V_LANE}')
        a(f'v_lshl_add_u32 v{AA}, v{T+4}, 3, v{AA}')
        a(f's_mul_i32 s{S_T0}, s{S_HSEL}, 16640')
        a(f's_lshl_b32 s{S_T0+1}, s{S_RHALF}, 8')
        a(f's_add_u32 s{S_T0}, s{S_T0}, s{S_T0+1}')
        a(f's_add_u32 s{S_T0}, s{S_T0}, {self.CV_KC + 32}')
        a(f'v_add_u32 v{AA}, s{S_T0}, v{AA}')
        a(f'v_and_b32 v{BA}, 15, v{V_LANE}')
        a(f'v_lshlrev_b32 v{BA}, 5, v{BA}')
        a(f'v_add_u32 v{BA}, v{BA}, v{T+3}')
        a(f's_mul_i32 s{S_T0}, s{S_HSEL}, 4608')
        a(f's_add_u32 s{S_T0}, s{S_T0}, {self.CV_U}')
        a(f's_lshl_b32 s{S_T0+1}, s{S_RHALF}, 8')
        a(f's_sub_u32 s{S_T0}, s{S_T0}, s{S_T0+1}')
        a(f'v_add_u32 v{BA}, s{S_T0}, v{BA}')
        ACC = 128
        BF = [160, 192]
        AF = [56, 60, 64]
        def readB(ee):
            e = 1 + 2 * ee
            for m in range(8):
                d = BF[ee & 1] + 4 * m
                a(f'ds_read_b128 v[{d}:{d+3}], v{BA} offset:{512 + 512*m - 32*e}')
        def readA(ee, g, slot):
            e = 1 + 2 * ee
            for x in range(2):
                a(f'ds_read_b64_tr_b16 v[{AF[slot]+2*x}:{AF[slot]+2*x+1}], v{AA} offset:{32*e + 512*g - 8*x}')
        readB(0)
        seq = [(ee, g) for ee in range(4) for g in range(8)]
        readA(0, 0, 0); readA(0, 1, 1)
        first = set()
        for idx, (ee, g) in enumerate(seq):
            pend = 0
            if idx + 2 < len(seq):
                e2, g2 = seq[idx + 2]
                readA(e2, g2, (idx + 2) % 3); pend += 2
            if idx + 1 < len(seq): pend += 2
            extra = 0
            if g == 2 and ee + 1 < 4:
                readB(ee + 1); extra = 8
            if g == 0 and ee > 0:
                a('s_waitcnt lgkmcnt(4)') if idx + 2 < len(seq) else a('s_waitcnt lgkmcnt(0)')
            else:
                a(f's_waitcnt lgkmcnt({min(pend + extra, 15)})')
            for n in range(g, 8):
                acc = ACC + 4 * n
                c = f'v[{acc}:{acc+3}]' if n in first else '0'
                first.add(n)
                b = BF[ee & 1] + 4 * (n - g)
                sl = AF[idx % 3]
                a(f'v_mfma_f32_16x16x32_f16 v[{acc}:{acc+3}], v[{sl}:{sl+3}], v[{b}:{b+3}], {c}')
        self.stamp(13 + 16 * L)
        a(f'v_lshlrev_b32 v{T}, 4, v{V_LANE}')
        a(f's_lshl_b32 s{S_T0}, s{S_W}, 13')
        a(f's_add_u32 s{S_T0}, s{S_T0}, {self.CV_EX}')
        a(f'v_add_u32 v{T+1}, s{S_T0}, v{T}')
        for n in range(8):
            a(f'ds_write_b128 v{T+1}, v[{ACC+4*n}:{ACC+4*n+3}] offset:{n*1024}')
        a('s_waitcnt lgkmcnt(0)')
        a('s_barrier')
        a(f's_lshl_b32 s{S_T0}, s{S_W}, 11')
        a(f's_add_u32 s{S_T0}, s{S_T0}, {self.CV_EX}')
        a(f'v_add_u32 v{T+1}, s{S_T0}, v{T}')
        Y = 160
        for nn in range(2):
            for ch in range(2):
                for eh in range(2):
                    a(f'ds_read_b128 v[{Y+16*nn+8*ch+4*eh}:{Y+16*nn+8*ch+4*eh+3}], v{T+1} offset:{(ch + 2*eh) * 8192 + nn * 1024}')
        a(f'v_and_b32 v{T+2}, 15, v{V_LANE}')
        a(f'v_lshlrev_b32 v{T+2}, 4, v{T+2}')
        a(f'v_lshrrev_b32 v{T+3}, 4, v{V_LANE}')
        a(f'v_lshl_add_u32 v{T+2}, v{T+3}, 2, v{T+2}')
        a(f's_lshl_b32 s{S_T0}, s{S_W}, 9')
        a(f'v_add_u32 v{T+2}, s{S_T0}, v{T+2}')
        a(f'v_lshlrev_b32 v{T+3}, 1, v{T+2}')
        XX, UU = 192, 200
        for nn in range(2):
            for ch in range(2):
                a(f'ds_read_b64 v[{XX+4*nn+2*ch}:{XX+4*nn+2*ch+1}], v{T+3} offset:{self.CV_X1 + ch*4096 + nn*512}')
                a(f'ds_read_b64 v[{UU+4*nn+2*ch}:{UU+4*nn+2*ch+1}], v{T+3} offset:{self.CV_U + ch*4608 + 512 + nn*512}')
        a(f's_lshl_b32 s{S_T0}, s{S_DSKV}, 16')
        a(f's_and_b32 s{S_T0+1}, s{S_DSKV}, 0xffff0000')
        a('s_waitcnt lgkmcnt(0)')
        R = 208
        E = 224
        for nn in range(2):
            for ch in range(2):
                y0, y1 = Y + 16*nn + 8*ch, Y + 16*nn + 8*ch + 4
                res = R + 8*nn + 4*ch
                for h in range(2):
                    a(f'v_pk_add_f32 v[{y0+2*h}:{y0+2*h+1}], v[{y0+2*h}:{y0+2*h+1}], v[{y1+2*h}:{y1+2*h+1}]')
                    xr, ur = XX + 4*nn + 2*ch + h, UU + 4*nn + 2*ch + h
                    a(f'v_cvt_f32_f16 v{E}, v{ur}')
                    a(f'v_cvt_f32_f16_sdwa v{E+1}, v{ur} dst_sel:DWORD dst_unused:UNUSED_PAD src0_sel:WORD_1')
                    a(f'v_mul_f32 v{E}, s{S_T0+ch}, v{E}')
                    a(f'v_mul_f32 v{E+1}, s{S_T0+ch}, v{E+1}')
                    a(f'v_fmac_f32 v{E}, s{S_KSC+ch}, v{y0+2*h}')
                    a(f'v_fmac_f32 v{E+1}, s{S_KSC+ch}, v{y0+2*h+1}')
                    a(f'v_lshlrev_b32 v{E+2}, 16, v{xr}')
                    a(f'v_and_b32 v{E+3}, 0xffff0000, v{xr}')
                    a(f'v_pk_add_f32 v[{res+2*h}:{res+2*h+1}], v[{E}:{E+1}], v[{E+2}:{E+3}]')
        if L == 0:
            a(f's_lshl_b32 s{S_T0+2}, s{S_C0}, 12')
            a(f's_add_u32 s{S_T0+2}, s{S_T0+2}, {WS_X2T}')
            a(f'v_add_u32 v{T+3}, s{S_T0+2}, v{T+3}')
            a(f'v_add_u32 v{T+4}, 4096, v{T+3}')
            for nn in range(2):
                for ch in range(2):
                    res = R + 8*nn + 4*ch
                    a(f'v_cvt_pk_bf16_f32 v{E+4}, v{res}, v{res+1}')
                    a(f'v_cvt_pk_bf16_f32 v{E+5}, v{res+2}, v{res+3}')
                    a(f'global_store_dwordx2 v{T+3+ch}, v[{E+4}:{E+5}], s[{S_WS}:{S_WS+1}] offset:{nn*512} sc1')
                    a('s_nop 1')
            self.signal(4 * L + 3, S_WG)
        else:
            a(f's_lshl_b32 s{S_T0+2}, s{S_C0}, 1')
            a(f'v_lshlrev_b32 v{T+2}, 10, v{T+2}')
            a(f'v_add_u32 v{T+2}, s{S_T0+2}, v{T+2}')
            for nn in range(2):
                for r in range(4):
                    a(f'v_cvt_pk_bf16_f32 v{E+4+(r&1)}, v{R+8*nn+r}, v{R+8*nn+4+r}')
                    a(f'v_add_u32 v{T+3}, {(256*nn + r) * 1024}, v{T+2}')
                    a(f'global_store_dword v{T+3}, v{E+4+(r&1)}, s[{S_OUT}:{S_OUT+1}]')
        self.stamp(14 + 16 * L)

    def init_misc(self):
        a = self.a
        T = V_P
        for i in range(4): a(f'v_mov_b32 v{T+4+i}, 0')
        a(f'v_lshlrev_b32 v{T}, 4, v{V_TID}')
        a(f'v_add_u32 v{T}, {SC_KVT}, v{T}')
        a(f'ds_write_b128 v{T}, v[{T+4}:{T+7}]')
        a(f'v_cmp_gt_u32 vcc, 64, v{V_TID}')
        a(f's_and_saveexec_b64 s[{S_T0+2}:{S_T0+3}], vcc')
        a(f'ds_write_b128 v{T}, v[{T+4}:{T+7}] offset:4096')
        a(f's_mov_b64 exec, s[{S_T0+2}:{S_T0+3}]')

    def stats_zero(self):
        a = self.a
        T = V_P
        l = self.lab('sz')
        a(f's_cmp_lg_u32 s{S_W}, 0')
        a(f's_cbranch_scc1 {l}')
        a(f'v_bfe_u32 v{T}, v{V_LANE}, 4, 1')
        a(f'v_lshlrev_b32 v{T}, 14, v{T}')
        a(f'v_bfe_u32 v{T+1}, v{V_LANE}, 3, 1')
        a(f'v_lshl_add_u32 v{T}, v{T+1}, 13, v{T}')
        a(f'v_and_b32 v{T+1}, 7, v{V_LANE}')
        a(f'v_lshl_add_u32 v{T}, v{T+1}, 2, v{T}')
        a(f's_lshl_b32 s{S_T0}, s{S_RB}, 9')
        a(f's_lshl_b32 s{S_T0+1}, s{S_HB}, 5')
        a(f's_add_u32 s{S_T0}, s{S_T0}, s{S_T0+1}')
        a(f's_add_u32 s{S_T0}, s{S_T0}, {WS_STATS}')
        a(f'v_add_u32 v{T}, s{S_T0}, v{T}')
        a(f'v_mov_b32 v{T+1}, 0')
        a(f's_mov_b64 s[{S_T0+2}:{S_T0+3}], exec')
        a(f's_mov_b32 exec_lo, -1')
        a(f's_mov_b32 exec_hi, 0')
        a(f'global_store_dword v{T}, v{T+1}, s[{S_WS}:{S_WS+1}] sc1')
        a(f's_mov_b64 exec, s[{S_T0+2}:{S_T0+3}]')
        a.label(l)

    def build(self):
        a = self.a; o = self.o
        self.prologue()
        self.stamp(0)
        self.w_dma()
        XBASE = 116
        self.x_dma_setup(0, XBASE)
        for c in range(4): self.x_dma_chunk(0, c, XBASE, XBASE + 1)
        self.wphi_load()
        self.stats_zero()
        a('s_waitcnt lgkmcnt(0)')
        a(f's_add_u32 s{S_NONCE}, s{S_NONCE}, 0x9e3779b9')
        a('s_waitcnt vmcnt(0)')
        a('s_barrier')
        self.wphi_sign()
        l1, l2 = self.lab('wk'), self.lab('wk')
        a(f's_cmp_eq_u32 s{S_HSEL}, 0')
        a(f's_cbranch_scc0 {l1}')
        for i in range(4): a(f'v_mov_b32 v{V_WPHK+i}, v{V_WPHI+i}')
        a(f's_branch {l2}')
        a.label(l1)
        for i in range(4): a(f'v_mov_b32 v{V_WPHK+i}, v{V_WPHI+4+i}')
        a.label(l2)
        acc1, acc2 = self.w_frags()
        a('s_barrier')
        for c in range(4, 8): self.x_dma_chunk(0, c, XBASE, XBASE + 1)
        self.cs_store(acc1, acc2)
        self.init_misc()
        self.stamp(1)
        stop = o.stop
        def chk(name):
            if stop == name:
                a('s_waitcnt vmcnt(0) lgkmcnt(0)')
                a('s_branch L_end')
                return True
            return False
        for L in range(2):
            if L == 1:
                self.wait(3, None, 256)
                self.stamp(15)
                self.x_dma_setup(1, XBASE)
                for c in range(8): self.x_dma_chunk(1, c, XBASE, XBASE + 1)
            self.p1(L)
            if chk(f'p1_{L}'): break
            self.o_stage(L)
            if chk(f'o_{L}'): break
            if L == 0:
                a('s_barrier')
                self.kgen()
                if chk('kgen'): break
            self.p2b(L)
            if chk(f'p2b_{L}'): break
            self.conv(L)
            if chk(f'conv_{L}'): break
        a.label('L_end')
        a('s_endpgm')

S_KSC = 64
S_DSKV = 66

HEADER = open('cdna_kernels/' + KNAME + '.s.ref').read().split('; Override launch geometry')[0]

def main():
    ap = argparse.ArgumentParser()
    ap.add_argument('--out', default='cdna_kernels/' + KNAME + '.s')
    ap.add_argument('--stop', default='')
    ap.add_argument('--dump', default='')
    ap.add_argument('--stamps', action='store_true')
    ap.add_argument('--spin', type=int, default=40000)
    ap.add_argument('--cpf', action='store_true')
    o = ap.parse_args()
    g = Gen(o)
    g.build()
    body = g.a.text()
    txt = HEADER
    txt += '; Persistent fused kernel: 256 workgroups (one per CU), generated by gen/gen.py\n'
    txt += '; @launch grid=(256,1,1) block=(256,1,1) lds=163840\n'
    txt += '.amdgcn_target "amdgcn-amd-amdhsa--gfx950"\n.text\n'
    txt += f'.globl {KNAME}_kernel\n.p2align 8\n.type {KNAME}_kernel,@function\n{KNAME}_kernel:\n'
    txt += body
    txt += f'''.section .rodata,"a"
.p2align 6
.amdhsa_kernel {KNAME}_kernel
  .amdhsa_next_free_vgpr 512
  .amdhsa_next_free_sgpr 96
  .amdhsa_accum_offset 256
  .amdhsa_group_segment_fixed_size 0
  .amdhsa_kernarg_size 112
  .amdhsa_user_sgpr_count 2
  .amdhsa_user_sgpr_kernarg_segment_ptr 1
  .amdhsa_system_sgpr_workgroup_id_x 1
  .amdhsa_float_denorm_mode_32 3
.end_amdhsa_kernel
'''
    open(o.out, 'w').write(txt)
    print('wrote', o.out, len(txt), 'bytes;', body.count('\n'), 'lines')

if __name__ == '__main__':
    main()
```

```python
import sys, argparse, struct
sys.path.insert(0, 'gen')
from asmlib import Asm

KNAME = 'interleave_layers__linear_kernel_hedgehog__ssm_conv_s4d__prompt'

WS_NONCE = 0
WS_FLAGS = 0xE00000
WS_STATS = 0x40000
WS_ZP    = 0x50000
WS_KVP   = 0x100000
WS_O     = 0x300000
WS_X1T   = 0x700000
WS_X2T   = 0xB00000
WS_DBG   = 0x1000000

LDS_WK, LDS_WV, LDS_WQ = 65536, 98304, 131072
LDS_SC   = 131072
SC_PHI   = LDS_SC
PHI_HEAD = 8704
SC_V     = SC_PHI + 2 * PHI_HEAD
SC_ST    = SC_V + 8192
SC_KVT   = SC_ST + 1024
KVT_ROW  = 80
KVT_HEAD = 32 * KVT_ROW
SC_CS    = SC_KVT + 2 * KVT_HEAD
SC_END   = SC_CS + 384
assert SC_END <= 163840, SC_END

S_X, S_WQKV, S_WPHI, S_WO = 4, 6, 8, 10
S_LOGA, S_AIM, S_CRE, S_CIM = 12, 14, 16, 18
S_LOGDT, S_DSK, S_OUT, S_WS, S_DBG = 20, 22, 24, 26, 28
S_W, S_XCD, S_JL, S_RB, S_HB, S_T, S_CB, S_C0, S_NONCE = 30, 31, 32, 33, 34, 35, 36, 37, 38
S_W1024, S_HSEL, S_RHALF, S_WG = 39, 40, 41, 42
S_T0 = 44
S_KSC = 64
S_DSKV = 66
S_SLOT1 = 67

V_TID, V_LANE, V_HH, V_J = 0, 1, 2, 3
V_WPHI = 4
V_RESID = 12
V_PHIQ = 20
V_K = 36
V_P = 48
LOG2E = 0x3fb8aa3b
WSB = f's[{S_WS}:{S_WS+1}]'

def f2h(x): return hex(struct.unpack('<I', struct.pack('<f', float(x)))[0])

class Gen:
    def __init__(self, opts):
        self.a = Asm(); self.o = opts; self.uid = 0
    def lab(self, s):
        self.uid += 1
        return f'L_{s}_{self.uid}'
    def cap(self, fn):
        old = self.a; self.a = Asm(); fn(); lines = self.a.lines; self.a = old
        return lines
    def merge(self, *streams):
        n = max(len(s) for s in streams)
        pos = [0] * len(streams)
        for i in range(n):
            for k, s in enumerate(streams):
                want = (i + 1) * len(s) // n
                while pos[k] < want:
                    self.a.lines.append(s[pos[k]]); pos[k] += 1

    def dump(self, reg, n, slot, tmp=126):
        a = self.a
        a(f's_lshl_b32 s60, s{S_WG}, 10')
        a(f'v_lshlrev_b32 v{tmp}, 2, v{V_TID}')
        a(f'v_add_u32 v{tmp}, s60, v{tmp}')
        for i in range(n):
            a(f'v_add_u32 v{tmp+1}, {WS_DBG + (slot + i) * 256 * 256 * 4}, v{tmp}')
            a(f'global_store_dword v{tmp+1}, v{reg+i}, {WSB}')
        a('s_waitcnt vmcnt(0)')

    def stamp(self, idx):
        if not self.o.stamps: return
        a = self.a
        a('s_memrealtime s[60:61]')
        a('s_memtime s[58:59]')
        a('s_waitcnt lgkmcnt(0)')
        a('v_mov_b32 v124, s60'); a('v_mov_b32 v125, s61'); a('v_mov_b32 v126, s58'); a('v_mov_b32 v127, s59')
        a(f's_lshl_b32 s62, s{S_WG}, 11')
        a(f's_lshl_b32 s63, s{S_W}, 9')
        a('s_add_u32 s62, s62, s63')
        a(f's_add_u32 s62, s62, {WS_DBG + 0x4000000 + idx * 16}')
        a('v_mov_b32 v123, s62')
        a('s_mov_b64 s[56:57], exec')
        a('s_mov_b64 exec, 1')
        a(f'global_store_dwordx4 v123, v[124:127], {WSB}')
        a('s_mov_b64 exec, s[56:57]')
        self.nstamp_vm = 1

    def prologue(self):
        a = self.a
        a('s_cmp_ge_u32 s2, 256')
        a('s_cbranch_scc1 L_end')
        a('s_load_dwordx8 s[4:11], s[0:1], 0')
        a('s_load_dwordx2 s[26:27], s[0:1], 104')
        a('s_load_dwordx8 s[12:19], s[0:1], 40')
        a('s_load_dwordx4 s[20:23], s[0:1], 72')
        a('s_load_dwordx2 s[24:25], s[0:1], 88')
        a(f's_mov_b32 s{S_WG}, s2')
        a(f'v_and_b32 v{V_LANE}, 63, v0')
        a('s_getpc_b64 s[56:57]')
        a.label('L_pc')
        a('s_lshr_b32 s58, s2, 3')
        a('s_mul_i32 s58, s58, (L_end-L_pc)/32+128')
        a(f'v_lshlrev_b32 v4, 3, v0')
        a('v_add_u32 v4, s58, v4')
        a('v_min_u32 v4, L_end-L_pc-8, v4')
        a('global_load_dwordx2 a[252:253], v4, s[56:57]')
        a(f'v_lshrrev_b32 v{V_HH}, 6, v0')
        a('s_nop 0')
        a(f'v_readfirstlane_b32 s{S_W}, v{V_HH}')
        a(f'v_lshrrev_b32 v{V_HH}, 5, v{V_LANE}')
        a(f'v_and_b32 v{V_J}, 31, v{V_LANE}')
        a(f's_and_b32 s{S_XCD}, s2, 7')
        a(f's_lshr_b32 s{S_JL}, s2, 3')
        a(f's_and_b32 s{S_T0}, s{S_JL}, 1')
        a(f's_lshl_b32 s{S_RB}, s{S_XCD}, 1')
        a(f's_add_u32 s{S_RB}, s{S_RB}, s{S_T0}')
        a(f's_lshr_b32 s{S_HB}, s{S_JL}, 1')
        a(f's_and_b32 s{S_T0}, s{S_HB}, 3')
        a(f's_lshl_b32 s{S_T}, s{S_RB}, 2')
        a(f's_add_u32 s{S_T}, s{S_T}, s{S_T0}')
        a(f's_lshr_b32 s{S_CB}, s{S_HB}, 2')
        a(f's_lshl_b32 s{S_C0}, s{S_XCD}, 6')
        a(f's_lshl_b32 s{S_T0}, s{S_JL}, 1')
        a(f's_add_u32 s{S_C0}, s{S_C0}, s{S_T0}')
        a(f's_lshl_b32 s{S_W1024}, s{S_W}, 10')
        a(f's_and_b32 s{S_HSEL}, s{S_W}, 1')
        a(f's_lshr_b32 s{S_RHALF}, s{S_W}, 1')
        a(f's_lshl_b32 s{S_SLOT1}, s{S_HB}, 4')
        a(f's_add_u32 s{S_SLOT1}, s{S_SLOT1}, s{S_RB}')
        a('s_waitcnt lgkmcnt(0)')
        a(f's_load_dword s{S_NONCE}, {WSB}, {WS_NONCE}')

    def x_slice_prefetch(self, L):
        a = self.a
        if L == 0:
            a(f's_lshl_b32 s{S_T0}, s{S_RB}, 17')
            a(f's_lshl_b32 s{S_T0+1}, s{S_HB}, 13')
            a(f's_add_u32 s{S_T0}, s{S_T0}, s{S_T0+1}')
            a(f'v_lshlrev_b32 v123, 5, v{V_TID}')
            a(f'v_add_u32 v123, s{S_T0}, v123')
            a(f'global_load_dword a251, v123, s[{S_X}:{S_X+1}]')
        else:
            a(f'v_lshrrev_b32 v123, 3, v{V_TID}')
            a(f's_lshl_b32 s{S_T0}, s{S_HB}, 5')
            a(f'v_add_u32 v123, s{S_T0}, v123')
            a(f'v_lshlrev_b32 v123, 12, v123')
            a(f'v_and_b32 v122, 7, v{V_TID}')
            a(f'v_lshl_add_u32 v123, v122, 5, v123')
            a(f's_lshl_b32 s{S_T0}, s{S_RB}, 8')
            a(f's_add_u32 s{S_T0}, s{S_T0}, {WS_X2T}')
            a(f'v_add_u32 v123, s{S_T0}, v123')
            a(f'global_load_dword v121, v123, {WSB} sc1')

    def w_dma_setup(self, b):
        a = self.a
        t = b + 1
        a(f'v_lshrrev_b32 v{b}, 2, v{V_LANE}')
        a(f's_lshl_b32 s{S_T0}, s{S_W}, 4')
        a(f'v_add_u32 v{b}, s{S_T0}, v{b}')
        a(f'v_mul_u32_u24 v{b}, 3072, v{b}')
        a(f'v_and_b32 v{t}, 3, v{V_LANE}')
        a(f'v_lshlrev_b32 v{t}, 4, v{t}')
        a(f'v_add_u32 v{b}, v{b}, v{t}')
        a(f's_lshl_b32 s{S_T0}, s{S_HB}, 6')
        a(f'v_add_u32 v{b}, s{S_T0}, v{b}')
    def w_dma(self, p, b):
        a = self.a
        dst = {0: LDS_WQ, 1: LDS_WK, 2: LDS_WV}[p]
        for i in range(8):
            a(f'v_add_u32 v{b+1}, {p * 1024 + i * 196608}, v{b}')
            a(f's_add_u32 m0, s{S_W1024}, {dst + i * 4096}')
            a(f'global_load_lds_dwordx4 v{b+1}, s[{S_WQKV}:{S_WQKV+1}]')

    def x_dma_setup(self, L, b):
        a = self.a
        t = b + 1
        if L == 0:
            a(f'v_lshrrev_b32 v{b}, 3, v{V_LANE}')
            a(f'v_lshrrev_b32 v{t}, 1, v{b}')
            a(f's_lshl_b32 s{S_T0}, s{S_HSEL}, 2')
            a(f'v_add_u32 v{t}, s{S_T0}, v{t}')
            a(f'v_and_b32 v{t+1}, 7, v{V_LANE}')
            a(f'v_xor_b32 v{t}, v{t}, v{t+1}')
            a(f'v_lshlrev_b32 v{t}, 4, v{t}')
            a(f's_lshl_b32 s{S_T0}, s{S_RB}, 7')
            a(f's_lshl_b32 s{S_T0+1}, s{S_W}, 3')
            a(f's_add_u32 s{S_T0}, s{S_T0}, s{S_T0+1}')
            a(f'v_add_u32 v{b}, s{S_T0}, v{b}')
            a(f'v_lshlrev_b32 v{b}, 10, v{b}')
            a(f'v_add_u32 v{b}, v{b}, v{t}')
        else:
            a(f'v_bfe_u32 v{b}, v{V_LANE}, 2, 2')
            a(f's_lshl_b32 s{S_T0}, s{S_W}, 2')
            a(f'v_add_u32 v{b}, s{S_T0}, v{b}')
            a(f'v_lshlrev_b32 v{b}, 12, v{b}')
            a(f'v_lshrrev_b32 v{t}, 4, v{V_LANE}')
            a(f'v_lshlrev_b32 v{t}, 6, v{t}')
            a(f'v_and_b32 v{t+1}, 3, v{V_LANE}')
            a(f'v_lshlrev_b32 v{t+1}, 4, v{t+1}')
            a(f'v_add3_u32 v{b}, v{b}, v{t}, v{t+1}')
            a(f's_lshl_b32 s{S_T0}, s{S_RB}, 8')
            a(f's_add_u32 s{S_T0}, s{S_T0}, {WS_X2T}')
            a(f'v_add_u32 v{b}, s{S_T0}, v{b}')
    def x_dma_piece(self, L, c, i, b, t):
        a = self.a
        if L == 0:
            off = i * 32 * 1024 + c * 128; base = f's[{S_X}:{S_X+1}]'; sc = ''
        else:
            off = (64 * c + 16 * i) * 4096; base = WSB; sc = ' sc1'
        a(f'v_add_u32 v{t}, {off}, v{b}')
        a(f's_add_u32 m0, s{S_W1024}, {c * 16384 + i * 4096}')
        a(f'global_load_lds_dwordx4 v{t}, {base}{sc}')

    def wfrag_addr(self, kv, q, t):
        a = self.a
        a(f'v_bfe_u32 v{t}, v{V_LANE}, 2, 2')
        a(f'v_lshl_add_u32 v{t}, v{V_HH}, 3, v{t}')
        a(f'v_lshlrev_b32 v{t}, 6, v{t}')
        a(f'v_and_b32 v{t+1}, 3, v{V_LANE}')
        a(f'v_lshl_add_u32 v{t}, v{t+1}, 3, v{t}')
        a(f'v_bfe_u32 v{t+1}, v{V_LANE}, 4, 1')
        a(f'v_lshlrev_b32 v{t+2}, 15, v{t+1}')
        a(f's_lshl_b32 s{S_T0}, s{S_HSEL}, 5')
        a(f's_add_u32 s{S_T0}, s{S_T0}, {LDS_WK}')
        a(f'v_add3_u32 v{kv}, v{t}, v{t+2}, s{S_T0}')
        a(f'v_lshl_add_u32 v{q}, v{t+1}, 5, v{t}')
        a(f'v_add_u32 v{q}, {LDS_WQ}, v{q}')

    def cs_sel(self, r):
        a = self.a
        a(f'v_and_b32 v{r}, 15, v{V_LANE}')
        a(f'v_bfe_u32 v{r+1}, v{V_LANE}, 4, 1')
        a(f'v_cmp_eq_u32 vcc, v{r}, v{r+1}')
        a(f'v_mov_b32 v{r+1}, 0x3f803f80')
        a(f'v_cndmask_b32 v{r}, 0, v{r+1}, vcc')
        for i in range(1, 4): a(f'v_mov_b32 v{r+i}, v{r}')
    def cs_mfma(self, abase, sel, dst):
        a = self.a
        for ks in range(32):
            c = '0' if ks == 0 else f'v[{dst}:{dst+3}]'
            a(f'v_mfma_f32_16x16x32_bf16 v[{dst}:{dst+3}], a[{abase+4*ks}:{abase+4*ks+3}], v[{sel}:{sel+3}], {c}')
    def cs_write(self, src, sgpr_off, const, t):
        a = self.a
        a(f'v_and_b32 v{t}, 15, v{V_LANE}')
        a(f'v_lshlrev_b32 v{t}, 6, v{t}')
        a(f'v_lshrrev_b32 v{t+1}, 4, v{V_LANE}')
        a(f'v_lshl_add_u32 v{t}, v{t+1}, 4, v{t}')
        a(f'v_add_u32 v{t}, {SC_CS + const}, v{t}')
        if sgpr_off is not None: a(f'v_add_u32 v{t}, s{sgpr_off}, v{t}')
        a(f's_mov_b32 exec_lo, 0x00030003')
        a(f's_mov_b32 exec_hi, 0x00030003')
        a(f'ds_write_b128 v{t}, v[{src}:{src+3}]')
        a(f's_mov_b64 exec, -1')
    def cs_read(self, dst, sgpr_off, const, t):
        a = self.a
        a(f'v_lshlrev_b32 v{t}, 4, v{V_HH}')
        a(f'v_add_u32 v{t}, {SC_CS + const}, v{t}')
        if sgpr_off is not None: a(f'v_add_u32 v{t}, s{sgpr_off}, v{t}')
        for g in range(4):
            a(f'ds_read_b128 v[{dst+4*g}:{dst+4*g+3}], v{t} offset:{32*g}')

    WPT = 128
    def wphi_load(self, b):
        a = self.a
        t = b + 1
        a(f'v_lshrrev_b32 v{b}, 3, v{V_J}')
        a(f'v_lshlrev_b32 v{b}, 2, v{b}')
        a(f'v_and_b32 v{t}, 3, v{V_J}')
        a(f'v_add_u32 v{b}, v{b}, v{t}')
        a(f'v_lshlrev_b32 v{b}, 1, v{b}')
        a(f'v_lshl_add_u32 v{b}, v{V_HH}, 7, v{b}')
        a(f's_lshl_b32 s{S_T0}, s{S_HB}, 10')
        a(f'v_add_u32 v{b}, s{S_T0}, v{b}')
        for hd in range(2):
            for jj in range(8):
                d = 8 * (jj >> 2) + (jj & 3)
                a(f'global_load_ushort v{self.WPT + 8*hd + jj}, v{b}, s[{S_WPHI}:{S_WPHI+1}] offset:{hd * 512 + d * 32}')
    def wphi_finish(self, t):
        a = self.a
        for i in range(8):
            a(f'v_lshl_or_b32 v{V_WPHI+i}, v{self.WPT+2*i+1}, 16, v{self.WPT+2*i}')
        a(f'v_bfe_u32 v{t}, v{V_J}, 2, 1')
        a(f'v_mul_u32_u24 v{t}, 0x8000, v{t}')
        a(f'v_lshl_or_b32 v{t}, v{t}, 16, v{t}')
        for i in range(8): a(f'v_xor_b32 v{V_WPHI+i}, v{V_WPHI+i}, v{t}')

    def rbf(self, dst, src):
        a = self.a
        a(f'v_cvt_pk_bf16_f32 v{dst}, v{src}, v{src}')
        a(f'v_lshlrev_b32 v{dst}, 16, v{dst}')
    def ln_finalize(self, S, Q, m, rs, t):
        a = self.a
        a(f'v_mul_f32 v{m}, 0x3b000000, v{S}')
        a(f'v_mul_f32 v{t}, 0x3b000000, v{Q}')
        a(f'v_fma_f32 v{t}, -v{m}, v{m}, v{t}')
        a(f'v_max_f32 v{t}, 0, v{t}')
        a(f'v_cvt_pk_bf16_f32 v{m}, v{m}, v{t}')
        a(f'v_and_b32 v{t}, 0xffff0000, v{m}')
        a(f'v_lshlrev_b32 v{m}, 16, v{m}')
        a(f'v_add_f32 v{t}, 0x3727c5ac, v{t}')
        self.rbf(t, t)
        a(f'v_sqrt_f32 v{t}, v{t}')
        self.rbf(t, t)
        a(f'v_rcp_f32 v{rs}, v{t}')

    def softmax16(self, D, out, t):
        a = self.a
        mx = t
        a(f'v_max3_f32 v{mx}, v{D}, v{D+1}, v{D+2}')
        a(f'v_max3_f32 v{mx+1}, v{D+3}, v{D+4}, v{D+5}')
        a(f'v_max3_f32 v{mx}, v{mx}, v{D+6}, v{D+7}')
        a(f'v_max3_f32 v{mx+1}, v{mx+1}, v{D+8}, v{D+9}')
        a(f'v_max3_f32 v{mx}, v{mx}, v{D+10}, v{D+11}')
        a(f'v_max3_f32 v{mx+1}, v{mx+1}, v{D+12}, v{D+13}')
        a(f'v_max3_f32 v{mx}, v{mx}, v{D+14}, v{D+15}')
        a(f'v_mov_b32 v{t+2}, {hex(LOG2E)}')
        a(f'v_max_f32 v{mx}, v{mx}, v{mx+1}')
        a(f'v_mul_f32 v{mx}, v{t+2}, v{mx}')
        for r in range(0, 16, 2):
            a(f'v_pk_fma_f32 v[{D+r}:{D+r+1}], v[{D+r}:{D+r+1}], v[{t+2}:{t+3}], v[{mx}:{mx+1}] op_sel_hi:[1,0,0] neg_lo:[0,0,1] neg_hi:[0,0,1]')
        for r in range(16): a(f'v_exp_f32 v{D+r}, v{D+r}')
        s = t + 2
        a(f'v_pk_add_f32 v[{s}:{s+1}], v[{D}:{D+1}], v[{D+2}:{D+3}]')
        a(f'v_pk_add_f32 v[{mx}:{mx+1}], v[{D+4}:{D+5}], v[{D+6}:{D+7}]')
        a(f'v_pk_add_f32 v[{s}:{s+1}], v[{s}:{s+1}], v[{D+8}:{D+9}]')
        a(f'v_pk_add_f32 v[{mx}:{mx+1}], v[{mx}:{mx+1}], v[{D+10}:{D+11}]')
        a(f'v_pk_add_f32 v[{s}:{s+1}], v[{s}:{s+1}], v[{D+12}:{D+13}]')
        a(f'v_pk_add_f32 v[{mx}:{mx+1}], v[{mx}:{mx+1}], v[{D+14}:{D+15}]')
        a(f'v_pk_add_f32 v[{s}:{s+1}], v[{s}:{s+1}], v[{mx}:{mx+1}]')
        a(f'v_add_f32 v{s}, v{s}, v{s+1}')
        a(f'v_rcp_f32 v{s}, v{s}')
        for r in range(0, 16, 2):
            a(f'v_pk_mul_f32 v[{D+r}:{D+r+1}], v[{D+r}:{D+r+1}], v[{s}:{s+1}] op_sel_hi:[1,0]')
        for r in range(0, 16, 2):
            a(f'v_cvt_pk_bf16_f32 v{out + r//2}, v{D+r}, v{D+r+1}')

    def ln_apply16(self, A, cs, m, out):
        a = self.a
        for r in range(0, 16, 2):
            a(f'v_pk_fma_f32 v[{A+r}:{A+r+1}], v[{cs+r}:{cs+r+1}], v[{m}:{m+1}], v[{A+r}:{A+r+1}] op_sel_hi:[1,0,1] neg_lo:[0,1,0] neg_hi:[0,1,0]')
        for r in range(0, 16, 2):
            a(f'v_pk_mul_f32 v[{A+r}:{A+r+1}], v[{A+r}:{A+r+1}], v[{m}:{m+1}] op_sel:[0,1] op_sel_hi:[1,1]')
        for r in range(0, 16, 2):
            a(f'v_cvt_pk_bf16_f32 v{out + r//2}, v{A+r}, v{A+r+1}')

    def flag_store(self, sync, slot_sgpr):
        a = self.a
        a(f's_lshl_b32 s{S_T0}, s{slot_sgpr}, 6')
        a(f's_add_u32 s{S_T0}, s{S_T0}, {WS_FLAGS + sync * 0x10000}')
        a(f'v_mov_b32 v126, s{S_T0}')
        a(f'v_mov_b32 v127, s{S_NONCE}')
        a('s_mov_b64 exec, 1')
        a(f'global_store_dword v126, v127, {WSB} sc1')
        a('s_mov_b64 exec, -1')
    def signal_wg(self, sync, slot_sgpr):
        a = self.a
        a.c(f'signal sync {sync}')
        a('s_waitcnt vmcnt(0)')
        a('s_barrier')
        l = self.lab('sig')
        a(f's_cmp_lg_u32 s{S_W}, 0')
        a(f's_cbranch_scc1 {l}')
        self.flag_store(sync, slot_sgpr)
        a.label(l)
    def wait(self, sync, first_slot_sgpr, nflags):
        a = self.a
        a.c(f'wait sync {sync}')
        l, lp, ld = self.lab('wait'), self.lab('poll'), self.lab('pdone')
        a(f's_cmp_lg_u32 s{S_W}, 0')
        a(f's_cbranch_scc1 {l}')
        if nflags == 16:
            a(f'v_and_b32 v126, 15, v{V_LANE}')
            a('v_lshlrev_b32 v126, 6, v126')
            a(f's_lshl_b32 s{S_T0}, s{first_slot_sgpr}, 6')
            a(f's_add_u32 s{S_T0}, s{S_T0}, {WS_FLAGS + sync * 0x10000}')
            a(f'v_add_u32 v126, s{S_T0}, v126')
        else:
            a(f'v_lshlrev_b32 v126, 6, v{V_LANE}')
            a(f'v_add_u32 v126, {WS_FLAGS + sync * 0x10000}, v126')
            a('v_add_u32 v125, 4096, v126'); a('v_add_u32 v124, 8192, v126'); a('v_add_u32 v123, 12288, v126')
        a(f's_mov_b32 s{S_T0+1}, 0')
        a.label(lp)
        a(f'global_load_dword v127, v126, {WSB} sc1')
        if nflags != 16:
            a(f'global_load_dword v122, v125, {WSB} sc1')
            a(f'global_load_dword v121, v124, {WSB} sc1')
            a(f'global_load_dword v120, v123, {WSB} sc1')
        a(f's_add_u32 s{S_T0+1}, s{S_T0+1}, 1')
        a(f's_cmp_gt_u32 s{S_T0+1}, {self.o.spin}')
        a(f's_cbranch_scc1 {ld}')
        a('s_waitcnt vmcnt(0)')
        if nflags != 16:
            a(f'v_sad_u32 v127, v127, s{S_NONCE}, 0')
            a(f'v_sad_u32 v127, v122, s{S_NONCE}, v127')
            a(f'v_sad_u32 v127, v121, s{S_NONCE}, v127')
            a(f'v_sad_u32 v127, v120, s{S_NONCE}, v127')
            a('v_cmp_ne_u32 vcc, 0, v127')
        else:
            a(f'v_cmp_ne_u32 vcc, s{S_NONCE}, v127')
        a(f's_cbranch_vccnz {lp}')
        a.label(ld)
        a('s_waitcnt vmcnt(0)')
        a.label(l)
        a('s_barrier')

    def trk_reset(self):
        self.vm = []; self.lg = []
    def vm_op(self, line, tag):
        self.a(line); self.vm.append(tag)
    def lg_op(self, line, tag):
        self.a(line); self.lg.append(tag)
    def wait_vm(self, tag):
        idx = max(i for i, t in enumerate(self.vm) if t == tag)
        n = len(self.vm) - 1 - idx
        self.a(f's_waitcnt vmcnt({min(n, 63)})')
        self.vm = self.vm[idx + 1:] if n <= 63 else self.vm
    def wait_lg(self, tag):
        c = [i for i, t in enumerate(self.lg) if t == tag]
        if not c: return
        idx = max(c)
        n = len(self.lg) - 1 - idx
        self.a(f's_waitcnt lgkmcnt({min(n, 15)})')
        if n <= 15: self.lg = self.lg[idx + 1:]
        else: self.lg = self.lg[len(self.lg) - 15:]
    def dma_x(self, L, c, i):
        a = self.a
        b, t = self.XD, self.XD + 1
        if L == 0:
            off = i * 32 * 1024 + c * 128; base = f's[{S_X}:{S_X+1}]'; sc = ''
        else:
            off = (64 * c + 16 * i) * 4096; base = WSB; sc = ' sc1'
        a(f'v_add_u32 v{t}, {off}, v{b}')
        a(f's_add_u32 m0, s{S_W1024}, {c * 16384 + i * 4096}')
        self.vm_op(f'global_load_lds_dwordx4 v{t}, {base}{sc}', f'x{c}')
    XD = 36

    def bfrag_setup(self, L, base, own_only=False):
        a = self.a
        t = 24
        a(f's_xor_b32 s{S_T0+1}, s{S_W}, 1')
        if L == 0:
            a(f'v_bfe_u32 v{t}, v{V_J}, 1, 3')
            a(f'v_lshlrev_b32 v{t+1}, 7, v{V_J}')
            a(f's_lshl_b32 s{S_T0}, s{S_W}, 12')
            a(f's_lshl_b32 s{S_T0+1}, s{S_T0+1}, 12')
            for k in range(4):
                a(f'v_add_u32 v{t+2}, {2*k}, v{V_HH}')
                a(f'v_xor_b32 v{t+2}, v{t+2}, v{t}')
                a(f'v_lshl_add_u32 v{t+2}, v{t+2}, 4, v{t+1}')
                a(f'v_add_u32 v{base+k}, s{S_T0}, v{t+2}')
                if not own_only: a(f'v_add_u32 v{base+4+k}, s{S_T0+1}, v{t+2}')
        else:
            a(f'v_bfe_u32 v{t}, v{V_LANE}, 2, 2')
            a(f'v_lshlrev_b32 v{t}, 6, v{t}')
            a(f'v_lshl_add_u32 v{t}, v{V_HH}, 11, v{t}')
            a(f'v_bfe_u32 v{t+1}, v{V_LANE}, 4, 1')
            a(f'v_lshl_add_u32 v{t}, v{t+1}, 5, v{t}')
            a(f'v_and_b32 v{t+1}, 3, v{V_LANE}')
            a(f'v_lshl_add_u32 v{t}, v{t+1}, 3, v{t}')
            a(f's_lshl_b32 s{S_T0}, s{S_W}, 8')
            a(f's_lshl_b32 s{S_T0+1}, s{S_T0+1}, 8')
            a(f'v_add_u32 v{base}, s{S_T0}, v{t}')
            if not own_only: a(f'v_add_u32 v{base+4}, s{S_T0+1}, v{t}')
    def bfrag_read(self, L, base, ks, dst, tag):
        if L == 0:
            c, k = ks >> 2, ks & 3
            self.lg_op(f'ds_read_b128 v[{dst}:{dst+3}], v{base+k} offset:{(c & 3) * 16384}', tag)
        else:
            for x in range(2):
                self.lg_op(f'ds_read_b64_tr_b16 v[{dst+2*x}:{dst+2*x+1}], v{base} offset:{(ks & 15) * 4096 + x * 1024}', tag)
    def bfrag_bump(self, L, base, both=True):
        for b in ((base, base + 4) if both else (base,)):
            for k in range(4 if L == 0 else 1): self.a(f'v_add_u32 v{b+k}, 65536, v{b+k}')

    ACC0, ACC1, FR, XB = 48, 64, 80, 112
    SS, SQ, ONES = 20, 21, 22
    M, M1 = 32, 34
    def kv_pass(self, L, qaddr=None):
        a = self.a
        ACC0, ACC1, FR, XB = self.ACC0, self.ACC1, self.FR, self.XB
        SS, SQ, ONES = self.SS, self.SQ, self.ONES
        a(f'v_mov_b32 v{SS}, 0'); a(f'v_mov_b32 v{SQ}, 0'); a(f'v_mov_b32 v{ONES}, 0x3f803f80')
        def rd(ks):
            st = FR + 8 * (ks & 3)
            if ks == 16: self.bfrag_bump(L, XB)
            self.bfrag_read(L, XB, ks, st, f'f{ks}')
            self.bfrag_read(L, XB + 4, ks, st + 4, f'f{ks}')
        self.wait_vm('x0'); a('s_barrier')
        self.stamp(2 + 16 * L)
        rd(0); rd(1)
        qn = 0
        for ks in range(0, 32, 2):
            c = ks >> 2
            if (ks & 3) == 2 and c + 1 < 8:
                self.wait_vm(f'x{c+1}')
                if L == 0 and c + 1 == 3: self.wait_vm('wq')
                a('s_barrier')
            if ks + 2 < 32:
                rd(ks + 2); rd(ks + 3)
            for k in (ks, ks + 1):
                st = FR + 8 * (k & 3)
                self.wait_lg(f'f{k}')
                c0 = '0' if k == 0 else f'v[{ACC0}:{ACC0+15}]'
                c1 = '0' if k == 0 else f'v[{ACC1}:{ACC1+15}]'
                a(f'v_mfma_f32_32x32x16_bf16 v[{ACC0}:{ACC0+15}], a[{4*k}:{4*k+3}], v[{st}:{st+3}], {c0}')
                if L == 1 and (k >> 2) + 3 < 8: self.dma_x(1, (k >> 2) + 3, k & 3)
                a(f'v_mfma_f32_32x32x16_bf16 v[{ACC1}:{ACC1+15}], a[{4*k}:{4*k+3}], v[{st+4}:{st+7}], {c1}')
                if L == 0 and 12 <= k < 28:
                    for _ in range(2):
                        for x in range(2):
                            self.lg_op(f'ds_read_b64_tr_b16 a[{128+4*qn+2*x}:{128+4*qn+2*x+1}], v{qaddr} offset:{qn*1024 + x*256}', 'wqf')
                        qn += 1
            for k in (ks, ks + 1):
                st = FR + 8 * (k & 3)
                for i in range(4):
                    a(f'v_dot2c_f32_bf16 v{SS}, v{st+i}, v{ONES}')
                    a(f'v_dot2c_f32_bf16 v{SQ}, v{st+i}, v{st+i}')
            if L == 0 and ks == 28:
                a('s_waitcnt lgkmcnt(0)'); self.lg = []
                a('s_barrier')

    def resid_read(self, L, T):
        a = self.a
        a(f's_and_b32 s{S_T0}, s{S_HB}, 3')
        if L == 0:
            a(f's_lshl_b32 s{S_T0+1}, s{S_CB}, 1')
            a(f's_add_u32 s{S_T0+1}, s{S_T0+1}, s{S_RHALF}')
            a(f's_lshl_b32 s{S_T0+1}, s{S_T0+1}, 14')
            a(f's_lshl_b32 s{S_T0}, s{S_T0}, 12')
            a(f's_add_u32 s{S_T0}, s{S_T0}, s{S_T0+1}')
            a(f'v_lshlrev_b32 v{T}, 7, v{V_J}')
            a(f'v_lshl_add_u32 v{T}, v{V_HH}, 3, v{T}')
            a(f'v_add_u32 v{T}, s{S_T0}, v{T}')
            a(f'v_bfe_u32 v{T+1}, v{V_J}, 1, 3')
            a(f's_lshl_b32 s{S_T0+1}, s{S_HSEL}, 2')
            for g in range(4):
                a(f's_add_u32 s{S_T0+2}, s{S_T0+1}, {g}')
                a(f'v_xor_b32 v{T+2}, s{S_T0+2}, v{T+1}')
                a(f'v_lshl_add_u32 v{T+2}, v{T+2}, 4, v{T}')
                a(f'ds_read_b64 v[{V_RESID+2*g}:{V_RESID+2*g+1}], v{T+2}')
        else:
            a(f's_lshl_b32 s{S_T0+1}, s{S_CB}, 5')
            a(f's_lshl_b32 s{S_T0+2}, s{S_W}, 3')
            a(f's_add_u32 s{S_T0+1}, s{S_T0+1}, s{S_T0+2}')
            a(f's_lshl_b32 s{S_T0+1}, s{S_T0+1}, 10')
            a(f's_lshl_b32 s{S_T0}, s{S_T0}, 8')
            a(f's_add_u32 s{S_T0}, s{S_T0}, s{S_T0+1}')
            a(f'v_bfe_u32 v{T}, v{V_LANE}, 2, 2')
            a(f'v_lshlrev_b32 v{T}, 6, v{T}')
            a(f'v_lshl_add_u32 v{T}, v{V_HH}, 10, v{T}')
            a(f'v_bfe_u32 v{T+1}, v{V_LANE}, 4, 1')
            a(f'v_lshl_add_u32 v{T}, v{T+1}, 5, v{T}')
            a(f'v_and_b32 v{T+1}, 3, v{V_LANE}')
            a(f'v_lshl_add_u32 v{T}, v{T+1}, 3, v{T}')
            a(f'v_add_u32 v{T}, s{S_T0}, v{T}')
            for g in range(4):
                a(f'ds_read_b64_tr_b16 v[{V_RESID+2*g}:{V_RESID+2*g+1}], v{T} offset:{g*2048}')

    def kv_epilogue(self, L, cs_kv_reg=None):
        a = self.a; o = self.o
        ACC0, ACC1 = self.ACC0, self.ACC1
        SS, SQ, ONES = self.SS, self.SQ, self.ONES
        M, M1 = self.M, self.M1
        T = 24
        self.stamp(3 + 16 * L)
        a(f'v_mov_b32 v{T}, v{SS}')
        a(f'v_mov_b32 v{T+1}, v{SQ}')
        a(f'v_permlane32_swap_b32 v{SS}, v{T}')
        a(f'v_permlane32_swap_b32 v{SQ}, v{T+1}')
        a(f'v_add_f32 v{SS}, v{SS}, v{T}')
        a(f'v_add_f32 v{SQ}, v{SQ}, v{T+1}')
        self.ln_finalize(SS, SQ, M, M + 1, T)
        a(f'v_lshlrev_b32 v{T}, 3, v{V_J}')
        a(f's_lshl_b32 s{S_T0}, s{S_W}, 8')
        a(f's_add_u32 s{S_T0}, s{S_T0}, {SC_ST}')
        a(f'v_add_u32 v{T+1}, s{S_T0}, v{T}')
        a(f'ds_write_b64 v{T+1}, v[{M}:{M+1}]')
        if L == 0:
            a(f's_lshl_b32 s{S_T0+4}, s{S_HSEL}, 7')
            self.cs_write(cs_kv_reg, S_T0 + 4, 0, T + 2)
            self.wphi_finish(T + 2)
        self.resid_read(L, T + 4)
        PA, VA = 112, 114
        a(f'v_lshrrev_b32 v{T+1}, 3, v{V_J}')
        a(f'v_add_u32 v{T+1}, v{T+1}, v{V_HH}')
        a(f'v_lshlrev_b32 v{T+1}, 5, v{T+1}')
        a(f'v_lshl_add_u32 v{T+1}, v{V_J}, 6, v{T+1}')
        a(f's_mul_i32 s{S_T0}, s{S_HSEL}, {PHI_HEAD}')
        a(f's_add_u32 s{S_T0}, s{S_T0}, {SC_PHI}')
        a(f's_mul_i32 s{S_T0+1}, s{S_W}, 2176')
        a(f's_xor_b32 s{S_T0+2}, s{S_W}, 1')
        a(f's_mul_i32 s{S_T0+3}, s{S_T0+2}, 2176')
        a(f's_add_u32 s{S_T0+1}, s{S_T0+1}, s{S_T0}')
        a(f's_add_u32 s{S_T0+3}, s{S_T0+3}, s{S_T0}')
        a(f'v_add_u32 v{PA}, s{S_T0+1}, v{T+1}')
        a(f'v_add_u32 v{PA+1}, s{S_T0+3}, v{T+1}')
        a(f'v_bfe_u32 v{T+1}, v{V_J}, 3, 1')
        a(f'v_lshlrev_b32 v{T+1}, 2, v{T+1}')
        a(f'v_xor_b32 v{T+1}, v{V_J}, v{T+1}')
        a(f'v_lshlrev_b32 v{T+1}, 5, v{T+1}')
        a(f'v_lshl_add_u32 v{T+1}, v{V_HH}, 3, v{T+1}')
        a(f's_lshl_b32 s{S_T0}, s{S_HSEL}, 12')
        a(f's_add_u32 s{S_T0}, s{S_T0}, {SC_V}')
        a(f's_lshl_b32 s{S_T0+1}, s{S_W}, 10')
        a(f's_lshl_b32 s{S_T0+2}, s{S_T0+2}, 10')
        a(f's_add_u32 s{S_T0+1}, s{S_T0+1}, s{S_T0}')
        a(f's_add_u32 s{S_T0+2}, s{S_T0+2}, s{S_T0}')
        a(f'v_add_u32 v{VA}, s{S_T0+1}, v{T+1}')
        a(f'v_add_u32 v{VA+1}, s{S_T0+2}, v{T+1}')
        a(f's_xor_b32 s{S_T0}, s{S_W}, 1')
        a(f's_lshl_b32 s{S_T0}, s{S_T0}, 8')
        a(f's_add_u32 s{S_T0}, s{S_T0}, {SC_ST}')
        a(f'v_add_u32 v{T}, s{S_T0}, v{T}')
        a('s_waitcnt lgkmcnt(0)')
        a('s_barrier')
        CS = 80
        a(f's_lshl_b32 s{S_T0+4}, s{S_HSEL}, 7')
        a(f'ds_read_b64 v[{M1}:{M1+1}], v{T}')
        self.cs_read(CS, S_T0 + 4, 0, T + 2)
        KB0, KB1 = 96, 104
        a('s_waitcnt lgkmcnt(0)')
        self.ln_apply16(ACC0, CS, M, KB0)
        self.ln_apply16(ACC1, CS, M1, KB1)
        l1, l2 = self.lab('wp'), self.lab('wp')
        a(f's_cmp_eq_u32 s{S_HSEL}, 0')
        a(f's_cbranch_scc0 {l1}')
        a(f'v_mfma_f32_32x32x16_bf16 v[{ACC0}:{ACC0+15}], v[{V_WPHI}:{V_WPHI+3}], v[{KB0}:{KB0+3}], 0')
        a(f'v_mfma_f32_32x32x16_bf16 v[{ACC1}:{ACC1+15}], v[{V_WPHI}:{V_WPHI+3}], v[{KB1}:{KB1+3}], 0')
        a(f's_branch {l2}')
        a.label(l1)
        a('s_nop 1')
        a(f'v_mfma_f32_32x32x16_bf16 v[{ACC0}:{ACC0+15}], v[{V_WPHI+4}:{V_WPHI+7}], v[{KB0}:{KB0+3}], 0')
        a(f'v_mfma_f32_32x32x16_bf16 v[{ACC1}:{ACC1+15}], v[{V_WPHI+4}:{V_WPHI+7}], v[{KB1}:{KB1+3}], 0')
        a.label(l2)
        for tt, kb in enumerate((KB0, KB1)):
            a(f'ds_write_b64 v{VA+tt}, v[{kb+4}:{kb+5}]')
            a(f'ds_write_b64 v{VA+tt}, v[{kb+6}:{kb+7}] offset:16')
        AA, BA = 116, 117
        a(f'v_lshrrev_b32 v{T}, 4, v{V_LANE}')
        a(f'v_bfe_u32 v{T+1}, v{V_LANE}, 2, 2')
        a(f'v_lshl_add_u32 v{T+2}, v{T}, 3, v{T+1}')
        a(f'v_lshlrev_b32 v{AA}, 6, v{T+2}')
        a(f'v_lshl_add_u32 v{AA}, v{T}, 5, v{AA}')
        a(f'v_and_b32 v{T+3}, 3, v{V_LANE}')
        a(f'v_lshl_add_u32 v{AA}, v{T+3}, 3, v{AA}')
        a(f's_mul_i32 s{S_T0}, s{S_HSEL}, {PHI_HEAD}')
        a(f's_lshl_b32 s{S_T0+1}, s{S_RHALF}, 5')
        a(f's_add_u32 s{S_T0}, s{S_T0}, s{S_T0+1}')
        a(f's_add_u32 s{S_T0}, s{S_T0}, {SC_PHI}')
        a(f'v_add_u32 v{AA}, s{S_T0}, v{AA}')
        a(f'v_and_b32 v{T}, 1, v{T}')
        a(f'v_lshlrev_b32 v{T}, 2, v{T}')
        a(f'v_xor_b32 v{T+1}, v{T+2}, v{T}')
        a(f'v_xor_b32 v{T+2}, 4, v{T+1}')
        a(f'v_lshlrev_b32 v{T+1}, 5, v{T+1}')
        a(f'v_lshlrev_b32 v{T+2}, 5, v{T+2}')
        a(f'v_lshl_add_u32 v{T+1}, v{T+3}, 3, v{T+1}')
        a(f'v_lshl_add_u32 v{T+2}, v{T+3}, 3, v{T+2}')
        a(f's_lshl_b32 s{S_T0}, s{S_HSEL}, 12')
        a(f's_add_u32 s{S_T0}, s{S_T0}, {SC_V}')
        a(f'v_add_u32 v{BA}, s{S_T0}, v{T+1}')
        a(f'v_add_u32 v{BA+1}, s{S_T0}, v{T+2}')
        a('s_nop 3')
        PH0, PH1 = 80, 88
        s0 = self.cap(lambda: self.softmax16(ACC0, PH0, 24))
        s1 = self.cap(lambda: self.softmax16(ACC1, PH1, 28))
        self.merge(s0, s1)
        for tt, ph in enumerate((PH0, PH1)):
            a(f'ds_write_b128 v{PA+tt}, v[{ph}:{ph+3}]')
            a(f'ds_write_b128 v{PA+tt}, v[{ph+4}:{ph+7}] offset:16')
        a('s_waitcnt lgkmcnt(0)')
        a('s_barrier')
        FA, FB, KV, ZS = 48, 64, 80, 84
        for kk in range(4):
            for x in range(2):
                a(f'ds_read_b64_tr_b16 v[{FA+4*kk+2*x}:{FA+4*kk+2*x+1}], v{AA} offset:{kk*2176 + x*256}')
                a(f'ds_read_b64_tr_b16 v[{FB+4*kk+2*x}:{FB+4*kk+2*x+1}], v{BA+x} offset:{kk*1024}')
        a(f'v_and_b32 v{T}, 15, v{V_LANE}')
        a(f'v_lshlrev_b32 v{T}, 7, v{T}')
        a(f'v_lshrrev_b32 v{T+1}, 4, v{V_LANE}')
        a(f'v_lshl_add_u32 v{T}, v{T+1}, 4, v{T}')
        a(f's_lshl_b32 s{S_T0+1}, s{S_SLOT1}, 12')
        a(f's_lshl_b32 s{S_T0+2}, s{S_HSEL}, 11')
        a(f's_add_u32 s{S_T0+1}, s{S_T0+1}, s{S_T0+2}')
        a(f's_lshl_b32 s{S_T0+2}, s{S_RHALF}, 6')
        a(f's_add_u32 s{S_T0+1}, s{S_T0+1}, s{S_T0+2}')
        a(f's_add_u32 s{S_T0+1}, s{S_T0+1}, {WS_KVP + L * 0x100000}')
        a(f'v_add_u32 v{T}, s{S_T0+1}, v{T}')
        a(f's_lshl_b32 s{S_T0+1}, s{S_SLOT1}, 9')
        a(f's_lshl_b32 s{S_T0+2}, s{S_HSEL}, 8')
        a(f's_add_u32 s{S_T0+1}, s{S_T0+1}, s{S_T0+2}')
        a(f's_lshl_b32 s{S_T0+2}, s{S_RHALF}, 7')
        a(f's_add_u32 s{S_T0+1}, s{S_T0+1}, s{S_T0+2}')
        a(f's_add_u32 s{S_T0+1}, s{S_T0+1}, {WS_ZP + L * 0x20000}')
        a(f'v_lshlrev_b32 v{T+1}, 3, v{V_LANE}')
        a(f'v_add_u32 v{T+1}, s{S_T0+1}, v{T+1}')
        a(f'v_mov_b32 v{ZS}, 0')
        a(f'v_mov_b32 v{ONES}, 0x3f803f80')
        for kk in range(4):
            a(f's_waitcnt lgkmcnt({12 - 4*kk})')
            c = '0' if kk == 0 else f'v[{KV}:{KV+3}]'
            a(f'v_mfma_f32_16x16x32_bf16 v[{KV}:{KV+3}], v[{FA+4*kk}:{FA+4*kk+3}], v[{FB+4*kk}:{FB+4*kk+3}], {c}')
        for i in range(16): a(f'v_dot2c_f32_bf16 v{ZS}, v{FA+i}, v{ONES}')
        a(f'v_cvt_pk_bf16_f32 v{KV+4+2}, v{KV}, v{KV+1}')
        a(f'v_cvt_pk_bf16_f32 v{KV+4+4}, v{KV+2}, v{KV+3}')
        a(f'v_mov_b32 v{KV+4+3}, s{S_NONCE}')
        a(f'v_mov_b32 v{KV+4+5}, s{S_NONCE}')
        a(f'v_mov_b32 v{ZS+1}, v{ZS}')
        a(f'global_store_dwordx4 v{T}, v[{KV+6}:{KV+9}], {WSB} sc1')
        a(f'v_permlane32_swap_b32 v{ZS}, v{ZS+1}')
        a(f'v_add_f32 v{ZS}, v{ZS}, v{ZS+1}')
        a(f'v_mov_b32 v{ZS+1}, v{ZS}')
        a(f'v_permlane16_swap_b32 v{ZS}, v{ZS+1}')
        a(f'v_add_f32 v{ZS}, v{ZS}, v{ZS+1}')
        a(f'v_mov_b32 v{ZS+1}, s{S_NONCE}')
        a('s_mov_b64 exec, 0xffff')
        a(f'global_store_dwordx2 v{T+1}, v[{ZS}:{ZS+1}], {WSB} sc1')
        a('s_mov_b64 exec, -1')
        self.stamp(4 + 16 * L)

    def q_pass(self, L):
        a = self.a; o = self.o
        ACC, FR, XB = 48, 80, 112
        M = self.M
        self.lg = []
        self.bfrag_setup(L, XB, own_only=True)
        if L == 0:
            SEL = 96
            self.cs_sel(SEL)
            self.cs_mfma(128, SEL, 100)
        for ks in range(3): self.bfrag_read(L, XB, ks, FR + 4 * (ks & 3), f'f{ks}')
        if L == 0:
            self.cs_write(100, None, 256, 104)
            self.lg.append('csw')
        for ks in range(32):
            if ks + 3 < 32:
                if ks + 3 == 16: self.bfrag_bump(L, XB, both=False)
                self.bfrag_read(L, XB, ks + 3, FR + 4 * ((ks + 3) & 3), f'f{ks+3}')
            self.wait_lg(f'f{ks}')
            c0 = '0' if ks == 0 else f'v[{ACC}:{ACC+15}]'
            st = FR + 4 * (ks & 3)
            a(f'v_mfma_f32_32x32x16_bf16 v[{ACC}:{ACC+15}], a[{128+4*ks}:{128+4*ks+3}], v[{st}:{st+3}], {c0}')
            if ks == 24:
                self.cs_read(64, None, 256, 104)
                self.lg += ['cs'] * 4
        a('s_waitcnt lgkmcnt(0)'); self.lg = []
        KB = 96
        self.ln_apply16(ACC, 64, M, KB)
        D = (48, 64)
        for hd in range(2):
            a(f'v_mfma_f32_32x32x16_bf16 v[{D[hd]}:{D[hd]+15}], v[{V_WPHI+4*hd}:{V_WPHI+4*hd+3}], v[{KB+4*hd}:{KB+4*hd+3}], 0')
        a('s_nop 7')
        s0 = self.cap(lambda: self.softmax16(D[0], V_PHIQ, 104))
        s1 = self.cap(lambda: self.softmax16(D[1], V_PHIQ + 8, 108))
        self.merge(s0, s1)
        self.stamp(5 + 16 * L)

    def o_stage(self, L):
        a = self.a; o = self.o
        a.c(f'================ o stage layer {L} ================')
        T = 120
        PB, ZB = 48, 112
        lp, ld = self.lab('s1poll'), self.lab('s1done')
        a(f's_lshl_b32 s{S_T0}, s{S_HB}, 16')
        a(f's_add_u32 s{S_T0}, s{S_T0}, {WS_KVP + L * 0x100000}')
        a(f'v_lshlrev_b32 v{T}, 4, v{V_TID}')
        a(f'v_add_u32 v{T}, s{S_T0}, v{T}')
        a(f's_lshl_b32 s{S_T0}, s{S_HB}, 13')
        a(f's_lshl_b32 s{S_T0+1}, s{S_W}, 11')
        a(f's_add_u32 s{S_T0}, s{S_T0}, s{S_T0+1}')
        a(f's_add_u32 s{S_T0}, s{S_T0}, {WS_ZP + L * 0x20000}')
        a(f'v_lshlrev_b32 v{T+1}, 3, v{V_LANE}')
        a(f'v_add_u32 v{T+1}, s{S_T0}, v{T+1}')
        a(f's_mov_b32 s{S_T0+2}, 0')
        a.label(lp)
        for p in range(16):
            a(f'v_add_u32 v{T+2}, {p * 4096}, v{T}')
            a(f'global_load_dwordx4 v[{PB+4*p}:{PB+4*p+3}], v{T+2}, {WSB} sc1')
        for i in range(4):
            a(f'global_load_dwordx2 v[{ZB+2*i}:{ZB+2*i+1}], v{T+1}, {WSB} offset:{i * 512} sc1')
        a(f'v_mov_b32 v{T+2}, 0')
        a(f's_add_u32 s{S_T0+2}, s{S_T0+2}, 1')
        for p in range(16):
            if p % 4 == 0: a(f's_waitcnt vmcnt({4 + 12 - p})')
            a(f'v_sad_u32 v{T+2}, v{PB+4*p+1}, s{S_NONCE}, v{T+2}')
            a(f'v_sad_u32 v{T+2}, v{PB+4*p+3}, s{S_NONCE}, v{T+2}')
        a('s_waitcnt vmcnt(0)')
        for i in range(4):
            a(f'v_sad_u32 v{T+2}, v{ZB+2*i+1}, s{S_NONCE}, v{T+2}')
        a(f's_cmp_gt_u32 s{S_T0+2}, {self.o.spin}')
        a(f's_cbranch_scc1 {ld}')
        a(f'v_cmp_ne_u32 vcc, 0, v{T+2}')
        a(f's_cbranch_vccnz {lp}')
        a.label(ld)
        self.stamp(6 + 16 * L)
        AC, CL, CH = 120, 124, 125
        a(f'v_mov_b32 v{CL}, 0x00003f80')
        a(f'v_mov_b32 v{CH}, 0x3f800000')
        for i in range(4): a(f'v_mov_b32 v{AC+i}, 0')
        for p in range(16):
            a(f'v_dot2c_f32_bf16 v{AC}, v{PB+4*p}, v{CL}')
            a(f'v_dot2c_f32_bf16 v{AC+1}, v{PB+4*p}, v{CH}')
            a(f'v_dot2c_f32_bf16 v{AC+2}, v{PB+4*p+2}, v{CL}')
            a(f'v_dot2c_f32_bf16 v{AC+3}, v{PB+4*p+2}, v{CH}')
        a(f'v_add_f32 v{ZB}, v{ZB}, v{ZB+2}')
        a(f'v_add_f32 v{ZB+4}, v{ZB+4}, v{ZB+6}')
        a(f'v_add_f32 v{ZB}, v{ZB}, v{ZB+4}')
        a(f'v_cvt_pk_bf16_f32 v{AC}, v{AC}, v{AC+1}')
        a(f'v_cvt_pk_bf16_f32 v{AC+1}, v{AC+2}, v{AC+3}')
        a(f'v_cvt_pk_bf16_f32 v{ZB}, v{ZB}, v{ZB}')
        T = 48
        a(f'v_lshrrev_b32 v{T}, 7, v{V_TID}')
        a(f'v_mul_u32_u24 v{T}, {KVT_HEAD}, v{T}')
        a(f'v_bfe_u32 v{T+1}, v{V_TID}, 3, 4')
        a(f'v_mul_u32_u24 v{T+1}, {KVT_ROW}, v{T+1}')
        a(f'v_and_b32 v{T+2}, 7, v{V_TID}')
        a(f'v_lshlrev_b32 v{T+2}, 3, v{T+2}')
        a(f'v_add3_u32 v{T}, v{T}, v{T+1}, v{T+2}')
        a(f'v_add_u32 v{T}, {SC_KVT}, v{T}')
        a(f'ds_write_b64 v{T}, v[{AC}:{AC+1}]')
        a(f'v_mul_u32_u24 v{T+1}, {KVT_HEAD}, v{V_HH}')
        a(f'v_lshl_add_u32 v{T+1}, v{V_J}, 1, v{T+1}')
        a(f's_mul_i32 s{S_T0}, s{S_W}, {KVT_ROW}')
        a(f's_add_u32 s{S_T0}, s{S_T0}, {SC_KVT + 16 * KVT_ROW}')
        a(f'v_add_u32 v{T+1}, s{S_T0}, v{T+1}')
        a(f'ds_write_b16 v{T+1}, v{ZB}')
        a(f'ds_write_b16 v{T+1}, v{ZB} offset:{4 * KVT_ROW}')
        a(f'v_mul_u32_u24 v{T+2}, {KVT_ROW}, v{V_J}')
        a(f'v_lshl_add_u32 v{T+2}, v{V_HH}, 5, v{T+2}')
        a(f'v_add_u32 v{T+2}, {SC_KVT}, v{T+2}')
        a(f's_lshl_b32 s{S_T0}, s{S_RB}, 2')
        a(f's_add_u32 s{S_T0}, s{S_T0}, s{S_W}')
        a(f's_lshl_b32 s{S_T0+8}, s{S_T0}, 4')
        a(f's_add_u32 s{S_T0+8}, s{S_T0+8}, s{S_HB}')
        a(f's_lshl_b32 s{S_T0}, s{S_T0}, 15')
        a(f's_lshl_b32 s{S_T0+1}, s{S_HB}, 11')
        a(f's_add_u32 s{S_T0}, s{S_T0}, s{S_T0+1}')
        a(f's_add_u32 s{S_T0}, s{S_T0}, {WS_O + L * 0x200000}')
        a(f'v_lshlrev_b32 v{T+3}, 4, v{V_LANE}')
        a(f'v_add_u32 v{T+3}, s{S_T0}, v{T+3}')
        a('s_waitcnt lgkmcnt(0)')
        a('s_barrier')
        AF = 56
        for hd in range(2):
            for m in range(2):
                a(f'ds_read_b128 v[{AF+8*hd+4*m}:{AF+8*hd+4*m+3}], v{T+2} offset:{hd * KVT_HEAD + 16 * m}')
        D = [72, 88]
        for hd in range(2):
            a(f's_waitcnt lgkmcnt({2 - 2*hd})')
            a(f'v_mfma_f32_32x32x16_bf16 v[{D[hd]}:{D[hd]+15}], v[{AF+8*hd}:{AF+8*hd+3}], v[{V_PHIQ+8*hd}:{V_PHIQ+8*hd+3}], 0')
            a(f'v_mfma_f32_32x32x16_bf16 v[{D[hd]}:{D[hd]+15}], v[{AF+8*hd+4}:{AF+8*hd+7}], v[{V_PHIQ+8*hd+4}:{V_PHIQ+8*hd+7}], v[{D[hd]}:{D[hd]+15}]')
        OB = 104
        for hd in range(2):
            d = D[hd]
            a(f'v_add_f32 v{d+8}, v{d+8}, v{d+9}')
            a(f'v_add_f32 v{d+10}, v{d+10}, v{d+11}')
            a(f'v_add_f32 v{d+8}, v{d+8}, v{d+10}')
            a(f'v_add_f32 v{d+8}, 0x358637bd, v{d+8}')
            a(f'v_rcp_f32 v{d+8}, v{d+8}')
            for r in range(0, 8, 2):
                a(f'v_pk_mul_f32 v[{d+r}:{d+r+1}], v[{d+r}:{d+r+1}], v[{d+8}:{d+9}] op_sel_hi:[1,0]')
            for r in range(0, 8, 2):
                a(f'v_cvt_pk_bf16_f32 v{OB+4*hd+r//2}, v{d+r}, v{d+r+1}')
            a(f'global_store_dwordx4 v{T+3}, v[{OB+4*hd}:{OB+4*hd+3}], {WSB} offset:{hd*1024} sc1')
        a('s_waitcnt vmcnt(0)')
        self.flag_store(4 * L + 1, S_T0 + 8)
        self.stamp(7 + 16 * L)

    def wo_stage(self):
        a = self.a
        b, t = 48, 49
        a(f'v_lshrrev_b32 v{b}, 4, v{V_LANE}')
        a(f'v_lshlrev_b32 v{t}, 2, v{b}')
        a(f'v_and_b32 v{t+1}, 15, v{V_LANE}')
        a(f'v_xor_b32 v{t}, v{t}, v{t+1}')
        a(f'v_lshlrev_b32 v{t}, 4, v{t}')
        a(f's_lshl_b32 s{S_T0}, s{S_W}, 2')
        a(f'v_add_u32 v{b}, s{S_T0}, v{b}')
        a(f'v_lshl_add_u32 v{b}, v{b}, 10, v{t}')
        a(f's_lshl_b32 s{S_T0}, s{S_CB}, 8')
        a(f'v_add_u32 v{b}, s{S_T0}, v{b}')
        for i in range(32):
            a(f'v_add_u32 v{t}, {i * 16 * 1024}, v{b}')
            a(f's_add_u32 m0, s{S_W1024}, {i * 4096}')
            a(f'global_load_lds_dwordx4 v{t}, s[{S_WO}:{S_WO+1}]')
        b, t = 52, 53
        a(f'v_bfe_u32 v{t}, v{V_LANE}, 2, 2')
        a(f'v_lshl_add_u32 v{b}, v{V_HH}, 2, v{t}')
        a(f'v_lshlrev_b32 v{b}, 8, v{b}')
        a(f'v_lshlrev_b32 v{t}, 2, v{t}')
        a(f'v_bfe_u32 v{t+1}, v{V_LANE}, 4, 1')
        a(f'v_lshlrev_b32 v{t+1}, 1, v{t+1}')
        a(f'v_bfe_u32 v{t+2}, v{V_LANE}, 1, 1')
        a(f's_lshl_b32 s{S_T0}, s{S_W}, 2')
        a(f'v_add3_u32 v{t+1}, v{t+1}, v{t+2}, s{S_T0}')
        a(f'v_xor_b32 v{t+1}, v{t+1}, v{t}')
        a(f'v_lshl_add_u32 v{b}, v{t+1}, 4, v{b}')
        a(f'v_and_b32 v{t+1}, 1, v{V_LANE}')
        a(f'v_lshl_add_u32 v{b}, v{t+1}, 3, v{b}')
        for half in range(2):
            a(f's_waitcnt vmcnt({16 - 16*half})')
            a('s_barrier')
            if half == 1: a(f'v_add_u32 v{b}, 65536, v{b}')
            for hg in range(16 * half, 16 * half + 16):
                for x in range(2):
                    a(f'ds_read_b64_tr_b16 v[{128+4*hg+2*x}:{128+4*hg+2*x+1}], v{b} offset:{(hg & 15) * 4096 + x * 2048}')
        a('s_waitcnt lgkmcnt(0)')

    def p2b(self, L):
        a = self.a; o = self.o
        a.c(f'================ P2b layer {L} ================')
        a(f's_lshl_b32 s{S_T0+9}, s{S_T}, 4')
        T = V_P
        a(f's_lshl_b32 s{S_T0+4}, s{S_T}, 15')
        a(f's_add_u32 s{S_T0+4}, s{S_T0+4}, s{S_W1024}')
        a(f's_add_u32 s{S_T0+4}, s{S_T0+4}, {WS_O + L * 0x200000}')
        a(f'v_lshlrev_b32 v{T+2}, 4, v{V_LANE}')
        a(f'v_add_u32 v{T}, s{S_T0+4}, v{T+2}')
        self.wait(4 * L + 1, S_T0 + 9, 16)
        self.stamp(8 + 16 * L)
        for i in range(8):
            a(f'v_add_u32 v{T+1}, {i * 4096}, v{T}')
            a(f's_add_u32 m0, s{S_W1024}, {i * 4096}')
            a(f'global_load_lds_dwordx4 v{T+1}, {WSB} sc1')
        FR, ACC, NB = 56, 72, 4
        self.lg = []
        def rd(hg): self.lg_op(f'ds_read_b128 v[{FR+4*(hg%NB)}:{FR+4*(hg%NB)+3}], v{T+2} offset:{hg*1024}', f'o{hg}')
        a('s_waitcnt vmcnt(4)')
        a('s_barrier')
        for hg in range(3): rd(hg)
        for hg in range(32):
            if hg == 12:
                a('s_waitcnt vmcnt(0)')
                a('s_barrier')
            if hg + 3 < 32: rd(hg + 3)
            self.wait_lg(f'o{hg}')
            c = '0' if hg == 0 else f'v[{ACC}:{ACC+15}]'
            a(f'v_mfma_f32_32x32x16_bf16 v[{ACC}:{ACC+15}], v[{128+4*hg}:{128+4*hg+3}], v[{FR+4*(hg%NB)}:{FR+4*(hg%NB)+3}], {c}')
        self.stamp(9 + 16 * L)
        TR = 32768
        W1, R1, G1, A1 = 52, 53, 54, 55
        a(f'v_lshlrev_b32 v{W1}, 6, v{V_J}')
        a(f'v_lshl_add_u32 v{W1}, v{V_HH}, 3, v{W1}')
        a(f's_lshl_b32 s{S_T0}, s{S_W}, 11')
        a(f's_add_u32 s{S_T0}, s{S_T0}, {TR}')
        a(f'v_add_u32 v{W1}, s{S_T0}, v{W1}')
        a(f'v_lshrrev_b32 v{T}, 4, v{V_LANE}')
        a(f'v_bfe_u32 v{R1}, v{V_LANE}, 2, 2')
        a(f'v_lshl_add_u32 v{R1}, v{T}, 3, v{R1}')
        a(f'v_lshlrev_b32 v{R1}, 6, v{R1}')
        a(f'v_and_b32 v{T+1}, 3, v{V_LANE}')
        a(f'v_lshl_add_u32 v{R1}, v{T+1}, 3, v{R1}')
        a(f'v_add_u32 v{R1}, s{S_T0}, v{R1}')
        a(f's_lshl_b32 s{S_T0}, s{S_CB}, 7')
        a(f's_lshl_b32 s{S_T0+1}, s{S_W}, 5')
        a(f's_add_u32 s{S_T0}, s{S_T0}, s{S_T0+1}')
        a(f's_lshl_b32 s{S_T0}, s{S_T0}, 12')
        a(f's_lshl_b32 s{S_T0+1}, s{S_T}, 6')
        a(f's_add_u32 s{S_T0}, s{S_T0}, s{S_T0+1}')
        a(f's_add_u32 s{S_T0}, s{S_T0}, {WS_X1T + L * 0x200000}')
        a(f'v_and_b32 v{G1}, 15, v{V_LANE}')
        a(f'v_lshlrev_b32 v{G1}, 12, v{G1}')
        a(f'v_lshl_add_u32 v{G1}, v{T}, 4, v{G1}')
        a(f'v_add_u32 v{G1}, s{S_T0}, v{G1}')
        a(f's_lshl_b32 s{S_T0}, s{S_T}, 7')
        a(f's_add_u32 s{S_T0}, s{S_T0}, {WS_STATS + L * 0x4000}')
        a(f'v_lshlrev_b32 v{A1}, 2, v{V_J}')
        a(f'v_lshl_add_u32 v{A1}, v{V_HH}, 13, v{A1}')
        a(f'v_add_u32 v{A1}, s{S_T0}, v{A1}')
        X, U = 88, 96
        SS, SQ, ONES = 100, 101, 102
        a(f'v_mov_b32 v{SS}, 0'); a(f'v_mov_b32 v{SQ}, 0'); a(f'v_mov_b32 v{ONES}, 0x3f803f80')
        for g in range(8):
            u = U + 2 * (g & 1)
            a(f'v_lshlrev_b32 v{u}, 16, v{V_RESID+g}')
            a(f'v_and_b32 v{u+1}, 0xffff0000, v{V_RESID+g}')
            a(f'v_pk_add_f32 v[{ACC+2*g}:{ACC+2*g+1}], v[{ACC+2*g}:{ACC+2*g+1}], v[{u}:{u+1}]')
            a(f'v_cvt_pk_bf16_f32 v{X+g}, v{ACC+2*g}, v{ACC+2*g+1}')
            if g & 1: a(f'ds_write_b64 v{W1}, v[{X+g-1}:{X+g}] offset:{8*(g-1)}')
        for g in range(8):
            a(f'v_dot2c_f32_bf16 v{SS}, v{X+g}, v{ONES}')
            a(f'v_dot2c_f32_bf16 v{SQ}, v{X+g}, v{X+g}')
        Y = 104
        a('s_waitcnt lgkmcnt(0)')
        for m in range(2):
            for x in range(2):
                a(f'ds_read_b64_tr_b16 v[{Y+4*m+2*x}:{Y+4*m+2*x+1}], v{R1} offset:{m*32 + x*256}')
        a(f'v_mov_b32 v{U}, v{SS}')
        a(f'v_mov_b32 v{U+1}, v{SQ}')
        a(f'v_permlane32_swap_b32 v{SS}, v{U}')
        a(f'v_permlane32_swap_b32 v{SQ}, v{U+1}')
        a(f'v_add_f32 v{SS}, v{SS}, v{U}')
        a(f'v_add_f32 v{SQ}, v{SQ}, v{U+1}')
        a(f'v_cmp_eq_u32 vcc, 0, v{V_HH}')
        a(f'v_cndmask_b32 v{SS}, v{SQ}, v{SS}, vcc')
        a(f'global_atomic_add_f32 v{A1}, v{SS}, {WSB}')
        a(f'v_add_u32 v{T}, {16 * 4096}, v{G1}')
        a('s_waitcnt lgkmcnt(2)')
        a(f'global_store_dwordx4 v{G1}, v[{Y}:{Y+3}], {WSB} sc1')
        a('s_waitcnt lgkmcnt(0)')
        a(f'global_store_dwordx4 v{T}, v[{Y+4}:{Y+7}], {WSB} sc1')
        self.signal_wg(4 * L + 2, S_WG)
        self.stamp(10 + 16 * L)

    def exp_acc(self, dst, src, t):
        a = self.a
        a(f'v_mul_f32 v{t}, {hex(LOG2E)}, v{src}')
        a(f'v_mov_b32 v{t+1}, {hex(LOG2E)}')
        a(f'v_fma_f32 v{t+1}, v{src}, v{t+1}, -v{t}')
        a(f'v_fmac_f32 v{t+1}, 0x32a57060, v{src}')
        a(f'v_exp_f32 v{dst}, v{t}')
        a(f'v_mul_f32 v{t+1}, 0x3f317218, v{t+1}')
        a(f'v_fmac_f32 v{dst}, v{dst}, v{t+1}')

    def cis_pow(self, dst, ar2, rev, p, t):
        a = self.a
        import struct
        pf = hex(struct.unpack('<I', struct.pack('<f', float(p)))[0])
        a(f'v_mul_f32 v{t}, {pf}, v{ar2}')
        a(f'v_exp_f32 v{t}, v{t}')
        a(f'v_mul_f32 v{t+1}, {pf}, v{rev}')
        a(f'v_fract_f32 v{t+1}, v{t+1}')
        a(f'v_cos_f32 v{dst}, v{t+1}')
        a(f'v_sin_f32 v{dst+1}, v{t+1}')
        a(f'v_mul_f32 v{dst}, v{dst}, v{t}')
        a(f'v_mul_f32 v{dst+1}, v{dst+1}, v{t}')

    def cmul(self, d, x, y):
        a = self.a
        a(f'v_pk_mul_f32 v[{d}:{d+1}], v[{x}:{x+1}], v[{y}:{y+1}] op_sel_hi:[0,1]')
        a(f'v_pk_fma_f32 v[{d}:{d+1}], v[{x}:{x+1}], v[{y}:{y+1}], v[{d}:{d+1}] op_sel:[1,1,0] op_sel_hi:[1,0,1] neg_lo:[0,1,0]')

    KG_A = 0
    KG_B = 33792
    KG_D = 67584
    KG_MX = 76032
    def kgen_loads(self):
        a = self.a
        T = 46
        a(f's_lshl_b32 s{S_T0}, s{S_C0}, 8')
        a(f'v_lshlrev_b32 v{T}, 1, v{V_TID}')
        a(f'v_add_u32 v{T}, s{S_T0}, v{T}')
        a(f'global_load_ushort v40, v{T}, s[{S_LOGA}:{S_LOGA+1}]')
        a(f'global_load_ushort v41, v{T}, s[{S_AIM}:{S_AIM+1}]')
        a(f'global_load_ushort v42, v{T}, s[{S_CRE}:{S_CRE+1}]')
        a(f'global_load_ushort v43, v{T}, s[{S_CIM}:{S_CIM+1}]')
        a(f'v_lshrrev_b32 v{T+1}, 7, v{V_TID}')
        a(f'v_add_u32 v{T+1}, s{S_C0}, v{T+1}')
        a(f'v_lshlrev_b32 v{T+1}, 1, v{T+1}')
        a(f'global_load_ushort v44, v{T+1}, s[{S_LOGDT}:{S_LOGDT+1}]')
        a(f's_lshl_b32 s{S_T0}, s{S_C0}, 1')
        a(f's_add_u32 s{S_T0+2}, s{S_DSK}, s{S_T0}')
        a(f's_addc_u32 s{S_T0+3}, s{S_DSK+1}, 0')
        a(f's_load_dword s{S_DSKV}, s[{S_T0+2}:{S_T0+3}], 0')

    def kgen(self):
        a = self.a; o = self.o
        a.c('================ K generation ================')
        T = V_P
        LA, AI, CR, CI, LD = 56, 57, 58, 59, 60
        for i, r in enumerate((LA, AI, CR, CI, LD)): a(f'v_mov_b32 v{r}, v{40+i}')
        for r in (LA, AI, CR, CI, LD): a(f'v_lshlrev_b32 v{r}, 16, v{r}')
        DT, EA = 62, 63
        self.exp_acc(DT, LD, T); self.rbf(DT, DT)
        self.exp_acc(EA, LA, T); self.rbf(EA, EA)
        AR2, REV = 64, 65
        a(f'v_mul_f32 v{AR2}, v{EA}, v{DT}')
        a(f'v_mul_f32 v{AR2}, {hex(LOG2E ^ 0x80000000)}, v{AR2}')
        a(f'v_mul_f32 v{REV}, v{AI}, v{DT}')
        a(f'v_mul_f32 v{REV}, 0.15915494, v{REV}')
        MX = 66
        a(f'v_max_f32 v{MX}, |v{CR}|, |v{CI}|')
        for ctrl in ('row_ror:1', 'row_ror:2', 'row_ror:4', 'row_ror:8'):
            a(f'v_mov_b32_dpp v{T}, v{MX} {ctrl} row_mask:0xf bank_mask:0xf')
            a(f'v_max_f32 v{MX}, v{MX}, v{T}')
        a(f'v_mov_b32 v{T}, v{MX}')
        a(f'v_permlane16_swap_b32 v{MX}, v{T}')
        a(f'v_max_f32 v{MX}, v{MX}, v{T}')
        a(f'v_mov_b32 v{T}, v{MX}')
        a(f'v_permlane32_swap_b32 v{MX}, v{T}')
        a(f'v_max_f32 v{MX}, v{MX}, v{T}')
        a(f's_lshl_b32 s{S_T0}, s{S_W}, 2')
        a(f's_add_u32 s{S_T0}, s{S_T0}, {self.KG_MX}')
        a(f'v_mov_b32 v{T}, s{S_T0}')
        a(f'ds_write_b32 v{T}, v{MX}')
        a('s_waitcnt lgkmcnt(0)')
        a('s_barrier')
        a(f's_lshl_b32 s{S_T0}, s{S_RHALF}, 3')
        a(f's_add_u32 s{S_T0}, s{S_T0}, {self.KG_MX}')
        a(f'v_mov_b32 v{T}, s{S_T0}')
        a(f'ds_read_b64 v[{T+2}:{T+3}], v{T}')
        a('s_waitcnt lgkmcnt(0)')
        a(f'v_max_f32 v{MX}, v{T+2}, v{T+3}')
        a(f'v_lshrrev_b32 v{MX}, 23, v{MX}')
        a(f'v_max_u32 v{MX}, 1, v{MX}')
        a(f'v_min_u32 v{MX}, 253, v{MX}')
        SCL = 67
        a(f'v_sub_u32 v{SCL}, 254, v{MX}')
        a(f'v_lshlrev_b32 v{SCL}, 23, v{SCL}')
        a(f'v_lshlrev_b32 v{T}, 23, v{MX}')
        a(f'v_mul_f32 v{T}, v{T}, v{DT}')
        a(f'v_mul_f32 v{T}, 0x3d000000, v{T}')
        a(f's_lshl_b32 s{S_T0}, s{S_RHALF}, 2')
        a(f's_add_u32 s{S_T0}, s{S_T0}, {self.KG_MX + 32}')
        a(f'v_mov_b32 v{T+1}, s{S_T0}')
        a(f'ds_write_b32 v{T+1}, v{T}')
        C = 58
        a(f'v_pk_mul_f32 v[{C}:{C+1}], v[{C}:{C+1}], v[{SCL-1}:{SCL}] op_sel:[0,1] op_sel_hi:[1,1]')
        Z1, Z8, Z256 = 68, 70, 72
        self.cis_pow(Z1, AR2, REV, 1, T)
        self.cis_pow(Z8, AR2, REV, 8, T)
        self.cis_pow(Z256, AR2, REV, 256, T)
        TA = 74
        a(f'v_lshrrev_b32 v{T}, 7, v{V_TID}')
        a(f'v_mul_u32_u24 v{T}, 16896, v{T}')
        a(f'v_and_b32 v{T+1}, 127, v{V_TID}')
        a(f'v_lshl_add_u32 v{TA}, v{T+1}, 2, v{T}')
        P0, P1 = 76, 78
        H = 80
        a(f'v_mov_b32 v{P0}, 1.0'); a(f'v_mov_b32 v{P0+1}, 0')
        cur, nxt = P0, P1
        for b in range(32):
            a(f'v_cvt_pkrtz_f16_f32 v{H + (b & 1)}, v{cur}, -v{cur+1}')
            a(f'ds_write_b32 v{TA}, v{H + (b & 1)} offset:{self.KG_A + b * 528}')
            if b < 31:
                self.cmul(nxt, cur, Z8); cur, nxt = nxt, cur
        def putB(col, r):
            a(f'v_cvt_pkrtz_f16_f32 v{H + (col & 1)}, v{r}, v{r+1}')
            a(f'ds_write_b32 v{TA}, v{H + (col & 1)} offset:{self.KG_B + col * 528}')
        Z2, Z4, Z6 = 82, 84, 86
        self.cmul(Z2, Z1, Z1); self.cmul(Z4, Z2, Z2); self.cmul(Z6, Z4, Z2)
        putB(0, C)
        cur, nxt = P0, P1
        self.cmul(cur, C, Z1); putB(1, cur)
        for k in range(2, 8):
            self.cmul(nxt, cur, Z1); cur, nxt = nxt, cur; putB(k, cur)
        G, G2, W1 = 88, 90, 92
        self.cmul(G, C, Z256)
        putB(8, G)
        for k, zz in ((9, Z2), (10, Z4), (11, Z6)):
            self.cmul(W1, G, zz); putB(k, W1)
        self.cmul(G2, G, Z256)
        putB(12, G2); self.cmul(W1, G2, Z4); putB(13, W1)
        self.cmul(G, G2, Z256)
        putB(14, G); self.cmul(W1, G, Z4); putB(15, W1)
        self.cmul(G2, G, Z256); putB(16, G2)
        self.cmul(G, G2, Z256); putB(17, G)
        self.cmul(G2, G, Z256); putB(18, G2)
        self.cmul(G, G2, Z256); putB(19, G)
        self.cmul(G2, G, Z256); putB(20, G2)
        a('s_waitcnt lgkmcnt(0)')
        a('s_barrier')
        AA, BA = T, T + 1
        a(f'v_and_b32 v{T+2}, 15, v{V_LANE}')
        a(f'v_mul_u32_u24 v{T+2}, 528, v{T+2}')
        a(f'v_lshrrev_b32 v{T+3}, 4, v{V_LANE}')
        a(f'v_lshl_add_u32 v{T+2}, v{T+3}, 4, v{T+2}')
        a(f's_mul_i32 s{S_T0}, s{S_HSEL}, 16896')
        a(f'v_add_u32 v{AA}, s{S_T0}, v{T+2}')
        a(f's_mul_i32 s{S_T0+1}, s{S_RHALF}, {16 * 528}')
        a(f's_add_u32 s{S_T0}, s{S_T0}, s{S_T0+1}')
        a(f's_add_u32 s{S_T0}, s{S_T0}, {self.KG_B}')
        a(f'v_add_u32 v{BA}, s{S_T0}, v{T+2}')
        FA, FB, DD = 56, 88, 104
        for ks in range(8):
            a(f'ds_read_b128 v[{FA}:{FA+3}], v{AA} offset:{self.KG_A + ks * 64}')
            a(f'ds_read_b128 v[{FA+4}:{FA+7}], v{AA} offset:{self.KG_A + 16 * 528 + ks * 64}')
            a(f'ds_read_b128 v[{FB}:{FB+3}], v{BA} offset:{ks * 64}')
            a('s_waitcnt lgkmcnt(0)')
            for mb in range(2):
                c = '0' if ks == 0 else f'v[{DD+4*mb}:{DD+4*mb+3}]'
                a(f'v_mfma_f32_16x16x32_f16 v[{DD+4*mb}:{DD+4*mb+3}], v[{FA+4*mb}:{FA+4*mb+3}], v[{FB}:{FB+3}], {c}')
        COL, P2 = T, T + 1
        a(f'v_and_b32 v{COL}, 15, v{V_LANE}')
        a(f's_lshl_b32 s{S_T0}, s{S_RHALF}, 4')
        a(f'v_add_u32 v{COL}, s{S_T0}, v{COL}')
        t2, t3 = T + 2, T + 3
        a(f'v_mov_b32 v{P2}, v{COL}')
        a(f'v_lshlrev_b32 v{t2}, 1, v{COL}'); a(f'v_add_u32 v{t2}, {256 - 16}, v{t2}')
        a(f'v_cmp_le_u32 vcc, 8, v{COL}'); a(f'v_cndmask_b32 v{P2}, v{P2}, v{t2}, vcc')
        a(f'v_and_b32 v{t2}, 1, v{COL}'); a(f'v_lshlrev_b32 v{t2}, 2, v{t2}')
        a(f'v_bfe_u32 v{t3}, v{COL}, 1, 1'); a(f'v_lshlrev_b32 v{t3}, 8, v{t3}')
        a(f'v_add3_u32 v{t2}, v{t2}, v{t3}, 0'); a(f'v_add_u32 v{t2}, 512, v{t2}')
        a(f'v_cmp_le_u32 vcc, 12, v{COL}'); a(f'v_cndmask_b32 v{P2}, v{P2}, v{t2}, vcc')
        a(f'v_lshlrev_b32 v{t2}, 8, v{COL}'); a(f'v_add_u32 v{t2}, {1024 - 4096 + 0x100000}, v{t2}'); a(f'v_and_b32 v{t2}, 0xfffff, v{t2}')
        a(f'v_cmp_le_u32 vcc, 16, v{COL}'); a(f'v_cndmask_b32 v{P2}, v{P2}, v{t2}, vcc')
        a(f'v_lshrrev_b32 v{t2}, 4, v{V_LANE}')
        a(f'v_lshl_add_u32 v{t2}, v{t2}, 5, v{P2}')
        a(f'v_lshlrev_b32 v{t2}, 1, v{t2}')
        a(f's_mul_i32 s{S_T0}, s{S_HSEL}, 4112')
        a(f's_add_u32 s{S_T0}, s{S_T0}, {self.KG_D}')
        a(f'v_add_u32 v{t2}, s{S_T0}, v{t2}')
        for i in range(8):
            a(f'v_mul_f32 v{DD+i}, 0x42800000, v{DD+i}')
            a(f'v_cvt_f16_f32 v{DD+i}, v{DD+i}')
        a(f'v_cmp_gt_u32 vcc, 20, v{COL}')
        a(f's_and_saveexec_b64 s[{S_T0+2}:{S_T0+3}], vcc')
        for mb in range(2):
            for r in range(4):
                a(f'ds_write_b16 v{t2}, v{DD+4*mb+r} offset:{(128*mb + 8*r) * 2}')
        a(f's_mov_b64 exec, s[{S_T0+2}:{S_T0+3}]')
        a(f'v_cmp_eq_u32 vcc, 20, v{COL}')
        a(f'v_lshrrev_b32 v{t3}, 4, v{V_LANE}')
        a(f'v_cmp_eq_u32 s[{S_T0+4}:{S_T0+5}], 0, v{t3}')
        a(f's_and_b64 vcc, vcc, s[{S_T0+4}:{S_T0+5}]')
        a(f's_and_saveexec_b64 s[{S_T0+2}:{S_T0+3}], vcc')
        a(f'ds_write_b16 v{t2}, v{DD}')
        a(f's_mov_b64 exec, s[{S_T0+2}:{S_T0+3}]')
        a('s_waitcnt lgkmcnt(0)')
        a('s_barrier')
        LL = 56
        for i in range(12):
            a(f'v_lshlrev_b32 v{T}, 3, v{V_TID}')
            a(f'v_add_u32 v{T}, {i - 4 + 0}, v{T}') if i >= 4 else a(f'v_subrev_u32 v{T}, {4 - i}, v{T}')
            a(f'v_max_i32 v{T}, 0, v{T}')
            a(f'v_cvt_f32_u32 v{T}, v{T}')
            self.rbf(T, T)
            a(f'v_cvt_u32_f32 v{T}, v{T}')
            a(f'v_lshlrev_b32 v{LL+i}, 1, v{T}')
            a(f'v_add_u32 v{LL+i}, {self.KG_D}, v{LL+i}')
        GT = 72
        for ch in range(2):
            for i in range(12):
                a(f'ds_read_u16 v{GT + 12*ch + i}, v{LL+i} offset:{ch * 4112}')
        a('s_waitcnt lgkmcnt(0)')
        for ch in range(2):
            for i in range(6):
                a(f'v_lshl_or_b32 v{V_K + 6*ch + i}, v{GT + 12*ch + 2*i + 1}, 16, v{GT + 12*ch + 2*i}')
        a(f'v_mov_b32 v{T}, {self.KG_MX + 32}')
        a(f'ds_read_b64 v[{T+2}:{T+3}], v{T}')
        a('s_waitcnt lgkmcnt(0)')
        a(f'v_readfirstlane_b32 s{S_KSC}, v{T+2}')
        a(f'v_readfirstlane_b32 s{S_KSC+1}, v{T+3}')
        a(f'v_cmp_eq_u32 vcc, 0, v{V_TID}')
        for ch in range(2):
            for i in range(2):
                a(f'v_cndmask_b32 v{V_K+6*ch+i}, v{V_K+6*ch+i}, 0, vcc') if False else a(f'v_cndmask_b32 v{V_K+6*ch+i}, v{V_K+6*ch+i}, v{self.zero_reg()}, vcc')
        a('s_waitcnt lgkmcnt(0)')
        a('s_barrier')
        if o.dump == 'kgen': self.dump(V_K, 12, 0)

    def zero_reg(self):
        self.a(f'v_mov_b32 v119, 0')
        return 119

    CV_KC = 0
    CV_U = 33280
    CV_X1 = 42496
    CV_EX = 50688
    def k_copies(self):
        a = self.a
        a.c('K shifted copies -> LDS')
        T = V_P
        AD = T
        a(f'v_lshlrev_b32 v{AD}, 4, v{V_TID}')
        a(f'v_add_u32 v{AD}, {self.CV_KC + 32}, v{AD}')
        W = 56
        for ch in range(2):
            d = V_K + 6 * ch
            base = ch * 16640
            a(f'ds_write_b128 v{AD}, v[{d+2}:{d+5}] offset:{base}')
            for i in range(4): a(f'v_mov_b32 v{W+i}, v{d+1+i}')
            a(f'ds_write_b128 v{AD}, v[{W}:{W+3}] offset:{base + 2*4160}')
            for i in range(5): a(f'v_alignbit_b32 v{W+4+i}, v{d+i+1}, v{d+i}, 16')
            a(f'ds_write_b128 v{AD}, v[{W+4}:{W+7}] offset:{base + 3*4160}')
            for i in range(4): a(f'v_mov_b32 v{W+10+i}, v{W+5+i}')
            a(f'ds_write_b128 v{AD}, v[{W+10}:{W+13}] offset:{base + 1*4160}')
        for i in range(4): a(f'v_mov_b32 v{W+i}, 0')
        a(f'v_lshrrev_b32 v{T+1}, 1, v{V_TID}')
        a(f'v_mul_u32_u24 v{T+1}, 4160, v{T+1}')
        a(f'v_and_b32 v{T+2}, 1, v{V_TID}')
        a(f'v_lshl_add_u32 v{T+1}, v{T+2}, 4, v{T+1}')
        a(f'v_add_u32 v{T+1}, {self.CV_KC}, v{T+1}')
        a(f'v_cmp_gt_u32 vcc, 16, v{V_TID}')
        a(f's_and_saveexec_b64 s[{S_T0+2}:{S_T0+3}], vcc')
        a(f'ds_write_b128 v{T+1}, v[{W}:{W+3}]')
        a(f's_mov_b64 exec, s[{S_T0+2}:{S_T0+3}]')
        a(f'v_lshrrev_b32 v{T+1}, 5, v{V_TID}')
        a(f'v_mul_u32_u24 v{T+1}, 4608, v{T+1}')
        a(f'v_and_b32 v{T+2}, 31, v{V_TID}')
        a(f'v_lshl_add_u32 v{T+1}, v{T+2}, 4, v{T+1}')
        a(f'v_add_u32 v{T+1}, {self.CV_U}, v{T+1}')
        a(f'v_cmp_gt_u32 vcc, 64, v{V_TID}')
        a(f's_and_saveexec_b64 s[{S_T0+2}:{S_T0+3}], vcc')
        a(f'ds_write_b128 v{T+1}, v[{W}:{W+3}]')
        a(f's_mov_b64 exec, s[{S_T0+2}:{S_T0+3}]')

    def conv(self, L):
        a = self.a; o = self.o
        a.c(f'================ conv layer {L} ================')
        self.k_copies()
        T = V_P
        XR, SM, SQ = 48, 56, 64
        GA = 112
        a(f's_lshl_b32 s{S_T0}, s{S_C0}, 12')
        a(f's_add_u32 s{S_T0}, s{S_T0}, {WS_X1T + L * 0x200000}')
        a(f'v_lshlrev_b32 v{GA}, 4, v{V_TID}')
        a(f'v_add_u32 v{GA}, s{S_T0}, v{GA}')
        a(f'v_add_u32 v{GA+1}, 4096, v{GA}')
        a(f'v_lshlrev_b32 v{GA+2}, 5, v{V_TID}')
        a(f'v_add_u32 v{GA+2}, {WS_STATS + L * 0x4000}, v{GA+2}')
        a(f'v_add_u32 v{GA+3}, 8192, v{GA+2}')
        AA, BA = 24, 25
        a(f'v_bfe_u32 v{T+2}, v{V_LANE}, 2, 2')
        a(f'v_mul_u32_u24 v{AA}, 4160, v{T+2}')
        a(f'v_lshrrev_b32 v{T+2}, 4, v{V_LANE}')
        a(f'v_lshlrev_b32 v{T+3}, 4, v{T+2}')
        a(f'v_sub_u32 v{AA}, v{AA}, v{T+3}')
        a(f'v_and_b32 v{T+4}, 3, v{V_LANE}')
        a(f'v_lshl_add_u32 v{AA}, v{T+4}, 3, v{AA}')
        a(f's_mul_i32 s{S_T0}, s{S_HSEL}, 16640')
        a(f's_lshl_b32 s{S_T0+1}, s{S_RHALF}, 8')
        a(f's_add_u32 s{S_T0}, s{S_T0}, s{S_T0+1}')
        a(f's_add_u32 s{S_T0}, s{S_T0}, {self.CV_KC + 32}')
        a(f'v_add_u32 v{AA}, s{S_T0}, v{AA}')
        a(f'v_and_b32 v{BA}, 15, v{V_LANE}')
        a(f'v_lshlrev_b32 v{BA}, 5, v{BA}')
        a(f'v_add_u32 v{BA}, v{BA}, v{T+3}')
        a(f's_mul_i32 s{S_T0}, s{S_HSEL}, 4608')
        a(f's_add_u32 s{S_T0}, s{S_T0}, {self.CV_U}')
        a(f's_lshl_b32 s{S_T0+1}, s{S_RHALF}, 8')
        a(f's_sub_u32 s{S_T0}, s{S_T0}, s{S_T0+1}')
        a(f'v_add_u32 v{BA}, s{S_T0}, v{BA}')
        K5, EP = 72, 74
        a(f'v_mov_b32 v{K5}, 0x3b000000'); a(f'v_mov_b32 v{K5+1}, 0x3b000000')
        a(f'v_mov_b32 v{EP}, 0x3727c5ac'); a(f'v_mov_b32 v{EP+1}, 0x3727c5ac')
        a('s_waitcnt lgkmcnt(0)')
        self.wait(4 * L + 2, None, 256)
        self.stamp(11 + 16 * L)
        a(f'global_load_dwordx4 v[{SM}:{SM+3}], v{GA+2}, {WSB} sc1')
        a(f'global_load_dwordx4 v[{SQ}:{SQ+3}], v{GA+3}, {WSB} sc1')
        a(f'global_load_dwordx4 v[{SM+4}:{SM+7}], v{GA+2}, {WSB} offset:16 sc1')
        a(f'global_load_dwordx4 v[{SQ+4}:{SQ+7}], v{GA+3}, {WSB} offset:16 sc1')
        a(f'global_load_dwordx4 v[{XR}:{XR+3}], v{GA}, {WSB} sc1')
        a(f'global_load_dwordx4 v[{XR+4}:{XR+7}], v{GA+1}, {WSB} sc1')
        if L == 0:
            l = self.lab('nonce')
            a(f's_add_u32 s{S_T0}, s{S_WG}, s{S_W}')
            a(f's_cmp_lg_u32 s{S_T0}, 0')
            a(f's_cbranch_scc1 {l}')
            a(f'v_mov_b32 v126, {WS_NONCE}')
            a(f'v_mov_b32 v127, s{S_NONCE}')
            a('s_mov_b64 exec, 1')
            a(f'global_store_dword v126, v127, {WSB} sc1')
            a('s_mov_b64 exec, -1')
            a.label(l)
        def rb2(r, u):
            a = self.a
            a(f'v_cvt_pk_bf16_f32 v{u}, v{r}, v{r+1}')
            a(f'v_lshlrev_b32 v{r}, 16, v{u}')
            a(f'v_and_b32 v{r+1}, 0xffff0000, v{u}')
        def fin(p, u):
            a = self.a
            m, q = SM + p, SQ + p
            a(f'v_pk_mul_f32 v[{m}:{m+1}], v[{m}:{m+1}], v[{K5}:{K5+1}]')
            a(f'v_pk_mul_f32 v[{q}:{q+1}], v[{q}:{q+1}], v[{K5}:{K5+1}]')
            a(f'v_pk_fma_f32 v[{q}:{q+1}], v[{m}:{m+1}], v[{m}:{m+1}], v[{q}:{q+1}] neg_lo:[1,0,0] neg_hi:[1,0,0]')
            a(f'v_max_f32 v{q}, 0, v{q}'); a(f'v_max_f32 v{q+1}, 0, v{q+1}')
            rb2(m, u); rb2(q, u)
            a(f'v_pk_add_f32 v[{q}:{q+1}], v[{q}:{q+1}], v[{EP}:{EP+1}]')
            rb2(q, u)
            a(f'v_sqrt_f32 v{q}, v{q}'); a(f'v_sqrt_f32 v{q+1}, v{q+1}')
            rb2(q, u)
            a(f'v_rcp_f32 v{q}, v{q}'); a(f'v_rcp_f32 v{q+1}, v{q+1}')
        a('s_waitcnt vmcnt(4)') if L == 1 else a('s_waitcnt vmcnt(4)')
        self.merge(self.cap(lambda: fin(0, 76)), self.cap(lambda: fin(2, 77)))
        a('s_waitcnt vmcnt(2)') if L == 1 else a('s_waitcnt vmcnt(0)')
        self.merge(self.cap(lambda: fin(4, 76)), self.cap(lambda: fin(6, 77)))
        a('s_waitcnt vmcnt(0)')
        UO, E = 80, 88
        def elem(ch, p, e, u):
            a = self.a
            x = XR + 4 * ch + p
            m, q = SM + 2 * p, SQ + 2 * p
            a(f'v_lshlrev_b32 v{e}, 16, v{x}')
            a(f'v_and_b32 v{e+1}, 0xffff0000, v{x}')
            a(f'v_pk_add_f32 v[{e}:{e+1}], v[{e}:{e+1}], v[{m}:{m+1}] neg_lo:[0,1] neg_hi:[0,1]')
            rb2(e, u)
            a(f'v_pk_mul_f32 v[{e}:{e+1}], v[{e}:{e+1}], v[{q}:{q+1}]')
            rb2(e, u)
            a(f'v_cvt_pkrtz_f16_f32 v{UO+4*ch+p}, v{e}, v{e+1}')
        a(f'v_lshlrev_b32 v{GA}, 4, v{V_TID}')
        for ch in range(2):
            a(f'ds_write_b128 v{GA}, v[{XR+4*ch}:{XR+4*ch+3}] offset:{self.CV_X1 + ch*4096}')
        for ch in range(2):
            for p in range(0, 4, 2):
                self.merge(self.cap(lambda: elem(ch, p, E, 76)), self.cap(lambda: elem(ch, p + 1, E + 2, 77)))
            a(f'ds_write_b128 v{GA}, v[{UO+4*ch}:{UO+4*ch+3}] offset:{self.CV_U + ch*4608 + 512}')
        a('s_waitcnt lgkmcnt(0)')
        a('s_barrier')
        self.stamp(12 + 16 * L)
        ACC, BF, AF = 48, 80, [12, 16, 20]
        self.lg = []
        def readB(ee, m):
            e = 1 + 2 * ee
            d = BF + 4 * m
            self.lg_op(f'ds_read_b128 v[{d}:{d+3}], v{BA} offset:{512 + 512*m - 32*e}', f'B{ee}_{m}')
        def readA(idx):
            ee, g = seq[idx]
            e = 1 + 2 * ee
            sl = AF[idx % 3]
            for x in range(2):
                self.lg_op(f'ds_read_b64_tr_b16 v[{sl+2*x}:{sl+2*x+1}], v{AA} offset:{32*e + 512*g - 8*x}', f'A{idx}')
        seq = [(ee, g) for ee in range(4) for g in range(8)]
        readA(0)
        for m in range(7, -1, -1): readB(0, m)
        readA(1)
        first = set()
        for idx, (ee, g) in enumerate(seq):
            if idx + 2 < len(seq): readA(idx + 2)
            self.wait_lg(f'A{idx}')
            sl = AF[idx % 3]
            for n in range(7, g - 1, -1):
                m = n - g
                if g == 0: self.wait_lg(f'B{ee}_{m}')
                acc = ACC + 4 * n
                c = f'v[{acc}:{acc+3}]' if n in first else '0'
                first.add(n)
                a(f'v_mfma_f32_16x16x32_f16 v[{acc}:{acc+3}], v[{sl}:{sl+3}], v[{BF+4*m}:{BF+4*m+3}], {c}')
                if n == 7 and ee + 1 < 4: readB(ee + 1, m)
        self.stamp(13 + 16 * L)
        T = 12
        a(f'v_lshlrev_b32 v{T}, 4, v{V_LANE}')
        a(f's_lshl_b32 s{S_T0}, s{S_W}, 13')
        a(f's_add_u32 s{S_T0}, s{S_T0}, {self.CV_EX}')
        a(f'v_add_u32 v{T+1}, s{S_T0}, v{T}')
        for n in range(7, -1, -1):
            a(f'ds_write_b128 v{T+1}, v[{ACC+4*n}:{ACC+4*n+3}] offset:{n*1024}')
        a(f's_lshl_b32 s{S_T0}, s{S_W}, 11')
        a(f's_add_u32 s{S_T0}, s{S_T0}, {self.CV_EX}')
        a(f'v_add_u32 v{T+1}, s{S_T0}, v{T}')
        a(f'v_and_b32 v{T+2}, 15, v{V_LANE}')
        a(f'v_lshlrev_b32 v{T+2}, 4, v{T+2}')
        a(f'v_lshrrev_b32 v{T+3}, 4, v{V_LANE}')
        a(f'v_lshl_add_u32 v{T+2}, v{T+3}, 2, v{T+2}')
        a(f's_lshl_b32 s{S_T0}, s{S_W}, 9')
        a(f'v_add_u32 v{T+2}, s{S_T0}, v{T+2}')
        a(f'v_lshlrev_b32 v{T+3}, 1, v{T+2}')
        XX, UU = 80, 88
        for nn in range(2):
            for ch in range(2):
                a(f'ds_read_b64 v[{XX+4*nn+2*ch}:{XX+4*nn+2*ch+1}], v{T+3} offset:{self.CV_X1 + ch*4096 + nn*512}')
                a(f'ds_read_b64 v[{UU+4*nn+2*ch}:{UU+4*nn+2*ch+1}], v{T+3} offset:{self.CV_U + ch*4608 + 512 + nn*512}')
        a(f's_lshl_b32 s{S_T0}, s{S_DSKV}, 16')
        a(f's_and_b32 s{S_T0+1}, s{S_DSKV}, 0xffff0000')
        if L == 0:
            a(f's_lshl_b32 s{S_T0+2}, s{S_C0}, 12')
            a(f's_add_u32 s{S_T0+2}, s{S_T0+2}, {WS_X2T}')
            a(f'v_add_u32 v{T+4}, s{S_T0+2}, v{T+3}')
            a(f'v_add_u32 v{T+5}, 4096, v{T+4}')
        else:
            a(f's_lshl_b32 s{S_T0+2}, s{S_C0}, 1')
            a(f'v_lshlrev_b32 v{T+4}, 10, v{T+2}')
            a(f'v_add_u32 v{T+4}, s{S_T0+2}, v{T+4}')
        a('s_waitcnt lgkmcnt(0)')
        a('s_barrier')
        Y = 48
        for nn in range(2):
            for ch in range(2):
                for eh in range(2):
                    a(f'ds_read_b128 v[{Y+16*nn+8*ch+4*eh}:{Y+16*nn+8*ch+4*eh+3}], v{T+1} offset:{(ch + 2*eh) * 8192 + nn * 1024}')
        R = 96
        def pre(nn, ch, h, e):
            a = self.a
            res = R + 8*nn + 4*ch + 2*h
            xr, ur = XX + 4*nn + 2*ch + h, UU + 4*nn + 2*ch + h
            a(f'v_cvt_f32_f16 v{e}, v{ur}')
            a(f'v_cvt_f32_f16_sdwa v{e+1}, v{ur} dst_sel:DWORD dst_unused:UNUSED_PAD src0_sel:WORD_1')
            a(f'v_lshlrev_b32 v{res}, 16, v{xr}')
            a(f'v_and_b32 v{res+1}, 0xffff0000, v{xr}')
            a(f'v_fmac_f32 v{res}, s{S_T0+ch}, v{e}')
            a(f'v_fmac_f32 v{res+1}, s{S_T0+ch}, v{e+1}')
        for nn in range(2):
            for ch in range(2):
                self.merge(self.cap(lambda: pre(nn, ch, 0, 112)), self.cap(lambda: pre(nn, ch, 1, 114)))
        E = 116
        for nn in range(2):
            a(f's_waitcnt lgkmcnt({4 - 4*nn})')
            for ch in range(2):
                y0, y1 = Y + 16*nn + 8*ch, Y + 16*nn + 8*ch + 4
                res = R + 8*nn + 4*ch
                for h in range(2):
                    a(f'v_pk_add_f32 v[{y0+2*h}:{y0+2*h+1}], v[{y0+2*h}:{y0+2*h+1}], v[{y1+2*h}:{y1+2*h+1}]')
                for i in range(4):
                    a(f'v_fmac_f32 v{res+i}, s{S_KSC+ch}, v{y0+i}')
                if L == 0:
                    e = E + 2 * (ch & 1)
                    a(f'v_cvt_pk_bf16_f32 v{e}, v{res}, v{res+1}')
                    a(f'v_cvt_pk_bf16_f32 v{e+1}, v{res+2}, v{res+3}')
                    a(f'global_store_dwordx2 v{T+4+ch}, v[{e}:{e+1}], {WSB} offset:{nn*512} sc1')
            if L == 1:
                for r in range(4):
                    a(f'v_cvt_pk_bf16_f32 v{E+(r&3)}, v{R+8*nn+r}, v{R+8*nn+4+r}')
                    a(f'v_add_u32 v{T+6+(r&1)}, {(256*nn + r) * 1024}, v{T+4}')
                    a(f'global_store_dword v{T+6+(r&1)}, v{E+(r&3)}, s[{S_OUT}:{S_OUT+1}]')
        if L == 0: self.signal_wg(4 * L + 3, S_WG)
        self.stamp(14 + 16 * L)

    def kvt_zero(self, T):
        a = self.a
        for i in range(4): a(f'v_mov_b32 v{T+4+i}, 0')
        a(f'v_lshlrev_b32 v{T}, 4, v{V_TID}')
        a(f'v_add_u32 v{T}, {SC_KVT}, v{T}')
        a(f'ds_write_b128 v{T}, v[{T+4}:{T+7}]')
        a(f's_mov_b64 exec, -1') ;
        l = self.lab('kz')
        a(f's_cmp_lg_u32 s{S_W}, 0')
        a(f's_cbranch_scc1 {l}')
        a(f'ds_write_b128 v{T}, v[{T+4}:{T+7}] offset:4096')
        a.label(l)

    def stats_zero(self, T):
        a = self.a
        a(f'v_bfe_u32 v{T}, v{V_LANE}, 2, 1')
        a(f'v_lshlrev_b32 v{T}, 14, v{T}')
        a(f'v_bfe_u32 v{T+1}, v{V_LANE}, 1, 1')
        a(f'v_lshl_add_u32 v{T}, v{T+1}, 13, v{T}')
        a(f'v_and_b32 v{T+1}, 1, v{V_LANE}')
        a(f'v_lshl_add_u32 v{T}, v{T+1}, 2, v{T}')
        a(f's_lshl_b32 s{S_T0}, s{S_RB}, 9')
        a(f's_lshl_b32 s{S_T0+1}, s{S_W}, 7')
        a(f's_add_u32 s{S_T0}, s{S_T0}, s{S_T0+1}')
        a(f's_lshl_b32 s{S_T0+1}, s{S_HB}, 3')
        a(f's_add_u32 s{S_T0}, s{S_T0}, s{S_T0+1}')
        a(f's_add_u32 s{S_T0}, s{S_T0}, {WS_STATS}')
        a(f'v_add_u32 v{T}, s{S_T0}, v{T}')
        a(f'v_mov_b32 v{T+1}, 0')
        a('s_mov_b64 exec, 0xff')
        a(f'global_store_dword v{T}, v{T+1}, {WSB} sc1')
        a('s_mov_b64 exec, -1')

    def build(self):
        a = self.a; o = self.o
        self.trk_reset()
        self.prologue()
        self.stamp(0)
        stop = o.stop
        def chk(name):
            if stop == name:
                a('s_waitcnt vmcnt(0) lgkmcnt(0)')
                a('s_branch L_end')
                return True
            return False
        self.x_slice_prefetch(0)
        self.stats_zero(48)
        WB = 50
        self.w_dma_setup(WB)
        self.XD = 36
        self.x_dma_setup(0, self.XD)
        self.vm = []
        def wd(p, tag):
            n0 = len(self.a.lines)
            self.w_dma(p, WB); self.vm += [tag] * 8
        wd(1, 'wk'); wd(2, 'wv')
        for c in range(4):
            for i in range(4): self.dma_x(0, c, i)
        wd(0, 'wq')
        self.wphi_load(52); self.vm += ['wphi'] * 16
        self.kgen_loads(); self.vm += ['kg'] * 5
        KVA, QA = 44 + 1, 46 + 1
        self.wfrag_addr(KVA, QA, 52)
        SEL = 56
        self.cs_sel(SEL)
        self.bfrag_setup(0, self.XB)
        a('s_waitcnt lgkmcnt(0)')
        a(f's_add_u32 s{S_NONCE}, s{S_NONCE}, 0x9e3779b9')
        self.wait_vm('wv')
        a('s_barrier')
        for ks in range(32):
            for x in range(2):
                a(f'ds_read_b64_tr_b16 a[{4*ks+2*x}:{4*ks+2*x+1}], v{KVA} offset:{ks*1024 + x*256}')
        a('s_waitcnt lgkmcnt(0)')
        a('s_barrier')
        for c in range(4, 8):
            for i in range(4): self.dma_x(0, c, i)
        CSKV = 28
        self.cs_mfma(0, SEL, CSKV)
        self.stamp(1)
        if o.stamps: self.vm.append('stamp')
        for L in range(2):
            if L == 1:
                self.XD = 20 + 6
                self.XD = 28
                self.x_dma_setup(1, self.XD)
                self.bfrag_setup(1, self.XB)
                self.wait(3, None, 256)
                self.stamp(15)
                self.vm = []
                self.x_slice_prefetch(1); self.vm.append('pf')
                for c in range(3):
                    for i in range(4): self.dma_x(1, c, i)
            self.lg = []
            self.kv_pass(L, qaddr=QA)
            if L == 0: self.kvt_zero(96)
            self.kv_epilogue(L, cs_kv_reg=CSKV)
            self.q_pass(L)
            if chk(f'p1_{L}'): break
            self.o_stage(L)
            if chk(f'o_{L}'): break
            if L == 0: self.wo_stage()
            self.p2b(L)
            if chk(f'p2b_{L}'): break
            if L == 0:
                self.kgen()
                if chk('kgen'): break
            self.conv(L)
            if chk(f'conv_{L}'): break
        a.label('L_end')
        a('s_endpgm')

HEADER = open('cdna_kernels/' + KNAME + '.s.ref').read().split('; Override launch geometry')[0]

def main():
    ap = argparse.ArgumentParser()
    ap.add_argument('--out', default='cdna_kernels/' + KNAME + '.s')
    ap.add_argument('--stop', default='')
    ap.add_argument('--dump', default='')
    ap.add_argument('--stamps', action='store_true')
    ap.add_argument('--spin', type=int, default=40000)
    o = ap.parse_args()
    g = Gen(o)
    g.build()
    body = g.a.text()
    txt = HEADER
    txt += '; Persistent fused kernel: 256 workgroups (one per CU), generated by gen/gen2.py\n'
    txt += '; @launch grid=(256,1,1) block=(256,1,1) lds=163840\n'
    txt += '.amdgcn_target "amdgcn-amd-amdhsa--gfx950"\n.text\n'
    txt += f'.globl {KNAME}_kernel\n.p2align 8\n.type {KNAME}_kernel,@function\n{KNAME}_kernel:\n'
    txt += body
    txt += f'''.section .rodata,"a"
.p2align 6
.amdhsa_kernel {KNAME}_kernel
  .amdhsa_next_free_vgpr 512
  .amdhsa_next_free_sgpr 96
  .amdhsa_accum_offset 256
  .amdhsa_group_segment_fixed_size 0
  .amdhsa_kernarg_size 112
  .amdhsa_user_sgpr_count 2
  .amdhsa_user_sgpr_kernarg_segment_ptr 1
  .amdhsa_system_sgpr_workgroup_id_x 1
  .amdhsa_float_denorm_mode_32 3
.end_amdhsa_kernel
'''
    open(o.out, 'w').write(txt)
    print('wrote', o.out, len(txt), 'bytes;', body.count('\n'), 'lines')

if __name__ == '__main__':
    main()
```

```python
import sys, argparse, struct
sys.path.insert(0, 'gen')
from asmlib import Asm

KNAME = 'interleave_layers__linear_kernel_hedgehog__ssm_conv_s4d__prompt'

WS_NONCE = 0
WS_FLAGS = 0xE00000
WS_STATS = 0x40000
WS_ZP    = 0x50000
WS_KVP   = 0x100000
WS_O     = 0x300000
WS_X1T   = 0x700000
WS_X2T   = 0xB00000
WS_DBG   = 0x1000000

LDS_WK, LDS_WV, LDS_WQ = 65536, 98304, 131072
LDS_SC   = 131072
SC_PHI   = LDS_SC
PHI_HEAD = 8704
SC_V     = SC_PHI + 2 * PHI_HEAD
SC_ST    = SC_V + 8192
SC_KVT   = SC_ST + 1024
KVT_ROW  = 80
KVT_HEAD = 32 * KVT_ROW
SC_CS    = SC_KVT + 2 * KVT_HEAD
SC_END   = SC_CS + 384
assert SC_END <= 163840, SC_END

S_X, S_WQKV, S_WPHI, S_WO = 4, 6, 8, 10
S_LOGA, S_AIM, S_CRE, S_CIM = 12, 14, 16, 18
S_LOGDT, S_DSK, S_OUT, S_WS, S_DBG = 20, 22, 24, 26, 28
S_W, S_XCD, S_JL, S_RB, S_HB, S_T, S_CB, S_C0, S_NONCE = 30, 31, 32, 33, 34, 35, 36, 37, 38
S_W1024, S_HSEL, S_RHALF, S_WG = 39, 40, 41, 42
S_T0 = 44
S_KSC = 64
S_DSKV = 66
S_SLOT1 = 67

V_TID, V_LANE, V_HH, V_J = 0, 1, 2, 3
V_WPHI = 4
V_RESID = 12
V_PHIQ = 20
V_K = 36
V_P = 48
LOG2E = 0x3fb8aa3b
WSB = f's[{S_WS}:{S_WS+1}]'

def f2h(x): return hex(struct.unpack('<I', struct.pack('<f', float(x)))[0])

class Gen:
    def __init__(self, opts):
        self.a = Asm(); self.o = opts; self.uid = 0
    def lab(self, s):
        self.uid += 1
        return f'L_{s}_{self.uid}'
    def cap(self, fn):
        old = self.a; self.a = Asm(); fn(); lines = self.a.lines; self.a = old
        return lines
    def merge(self, *streams):
        n = max(len(s) for s in streams)
        pos = [0] * len(streams)
        for i in range(n):
            for k, s in enumerate(streams):
                want = (i + 1) * len(s) // n
                while pos[k] < want:
                    self.a.lines.append(s[pos[k]]); pos[k] += 1

    def dump(self, reg, n, slot, tmp=126):
        a = self.a
        a(f's_lshl_b32 s60, s{S_WG}, 10')
        a(f'v_lshlrev_b32 v{tmp}, 2, v{V_TID}')
        a(f'v_add_u32 v{tmp}, s60, v{tmp}')
        for i in range(n):
            a(f'v_add_u32 v{tmp+1}, {WS_DBG + (slot + i) * 256 * 256 * 4}, v{tmp}')
            a(f'global_store_dword v{tmp+1}, v{reg+i}, {WSB}')
        a('s_waitcnt vmcnt(0)')

    def stamp(self, idx):
        if not self.o.stamps: return
        a = self.a
        a('s_memrealtime s[60:61]')
        a('s_memtime s[58:59]')
        a('s_waitcnt lgkmcnt(0)')
        a('v_mov_b32 v124, s60'); a('v_mov_b32 v125, s61'); a('v_mov_b32 v126, s58'); a('v_mov_b32 v127, s59')
        a(f's_lshl_b32 s62, s{S_WG}, 11')
        a(f's_lshl_b32 s63, s{S_W}, 9')
        a('s_add_u32 s62, s62, s63')
        a(f's_add_u32 s62, s62, {WS_DBG + 0x4000000 + idx * 16}')
        a('v_mov_b32 v123, s62')
        a('s_mov_b64 s[56:57], exec')
        a('s_mov_b64 exec, 1')
        a(f'global_store_dwordx4 v123, v[124:127], {WSB}')
        a('s_mov_b64 exec, s[56:57]')
        self.nstamp_vm = 1

    def prologue(self):
        a = self.a
        a('s_cmp_ge_u32 s2, 256')
        a('s_cbranch_scc1 L_end')
        a('s_load_dwordx8 s[4:11], s[0:1], 0')
        a('s_load_dwordx2 s[26:27], s[0:1], 104')
        a('s_load_dwordx8 s[12:19], s[0:1], 40')
        a('s_load_dwordx4 s[20:23], s[0:1], 72')
        a('s_load_dwordx2 s[24:25], s[0:1], 88')
        a(f's_mov_b32 s{S_WG}, s2')
        a(f'v_and_b32 v{V_LANE}, 63, v0')
        a('s_getpc_b64 s[56:57]')
        a.label('L_pc')
        a('s_lshr_b32 s58, s2, 3')
        a('s_mul_i32 s58, s58, (L_end-L_pc)/32+128')
        a(f'v_lshlrev_b32 v4, 3, v0')
        a('v_add_u32 v4, s58, v4')
        a('v_min_u32 v4, L_end-L_pc-8, v4')
        a('global_load_dwordx2 a[252:253], v4, s[56:57]')
        a(f'v_lshrrev_b32 v{V_HH}, 6, v0')
        a('s_nop 0')
        a(f'v_readfirstlane_b32 s{S_W}, v{V_HH}')
        a(f'v_lshrrev_b32 v{V_HH}, 5, v{V_LANE}')
        a(f'v_and_b32 v{V_J}, 31, v{V_LANE}')
        a(f's_and_b32 s{S_XCD}, s2, 7')
        a(f's_lshr_b32 s{S_JL}, s2, 3')
        a(f's_and_b32 s{S_T0}, s{S_JL}, 1')
        a(f's_lshl_b32 s{S_RB}, s{S_XCD}, 1')
        a(f's_add_u32 s{S_RB}, s{S_RB}, s{S_T0}')
        a(f's_lshr_b32 s{S_HB}, s{S_JL}, 1')
        a(f's_and_b32 s{S_T0}, s{S_HB}, 3')
        a(f's_lshl_b32 s{S_T}, s{S_RB}, 2')
        a(f's_add_u32 s{S_T}, s{S_T}, s{S_T0}')
        a(f's_lshr_b32 s{S_CB}, s{S_HB}, 2')
        a(f's_lshl_b32 s{S_C0}, s{S_XCD}, 6')
        a(f's_lshl_b32 s{S_T0}, s{S_JL}, 1')
        a(f's_add_u32 s{S_C0}, s{S_C0}, s{S_T0}')
        a(f's_lshl_b32 s{S_W1024}, s{S_W}, 10')
        a(f's_and_b32 s{S_HSEL}, s{S_W}, 1')
        a(f's_lshr_b32 s{S_RHALF}, s{S_W}, 1')
        a(f's_lshl_b32 s{S_SLOT1}, s{S_HB}, 4')
        a(f's_add_u32 s{S_SLOT1}, s{S_SLOT1}, s{S_RB}')
        a('s_waitcnt lgkmcnt(0)')
        a(f's_load_dword s{S_NONCE}, {WSB}, {WS_NONCE}')

    def x_slice_prefetch(self, L):
        a = self.a
        if L == 0:
            a(f's_lshl_b32 s{S_T0}, s{S_RB}, 17')
            a(f's_lshl_b32 s{S_T0+1}, s{S_HB}, 13')
            a(f's_add_u32 s{S_T0}, s{S_T0}, s{S_T0+1}')
            a(f'v_lshlrev_b32 v123, 5, v{V_TID}')
            a(f'v_add_u32 v123, s{S_T0}, v123')
            a(f'global_load_dword a251, v123, s[{S_X}:{S_X+1}]')
        else:
            a(f'v_lshrrev_b32 v123, 3, v{V_TID}')
            a(f's_lshl_b32 s{S_T0}, s{S_HB}, 5')
            a(f'v_add_u32 v123, s{S_T0}, v123')
            a(f'v_lshlrev_b32 v123, 12, v123')
            a(f'v_and_b32 v122, 7, v{V_TID}')
            a(f'v_lshl_add_u32 v123, v122, 5, v123')
            a(f's_lshl_b32 s{S_T0}, s{S_RB}, 8')
            a(f's_add_u32 s{S_T0}, s{S_T0}, {WS_X2T}')
            a(f'v_add_u32 v123, s{S_T0}, v123')
            a(f'global_load_dword v121, v123, {WSB} sc1')

    def w_dma_setup(self, b):
        a = self.a
        t = b + 1
        a(f'v_lshrrev_b32 v{b}, 2, v{V_LANE}')
        a(f's_lshl_b32 s{S_T0}, s{S_W}, 4')
        a(f'v_add_u32 v{b}, s{S_T0}, v{b}')
        a(f'v_mul_u32_u24 v{b}, 3072, v{b}')
        a(f'v_and_b32 v{t}, 3, v{V_LANE}')
        a(f'v_lshlrev_b32 v{t}, 4, v{t}')
        a(f'v_add_u32 v{b}, v{b}, v{t}')
        a(f's_lshl_b32 s{S_T0}, s{S_HB}, 6')
        a(f'v_add_u32 v{b}, s{S_T0}, v{b}')
    def w_dma(self, p, b):
        a = self.a
        dst = {0: LDS_WQ, 1: LDS_WK, 2: LDS_WV}[p]
        for i in range(8):
            a(f'v_add_u32 v{b+1}, {p * 1024 + i * 196608}, v{b}')
            a(f's_add_u32 m0, s{S_W1024}, {dst + i * 4096}')
            a(f'global_load_lds_dwordx4 v{b+1}, s[{S_WQKV}:{S_WQKV+1}]')

    def x_dma_setup(self, L, b):
        a = self.a
        t = b + 1
        if L == 0:
            a(f'v_lshrrev_b32 v{b}, 3, v{V_LANE}')
            a(f'v_lshrrev_b32 v{t}, 1, v{b}')
            a(f's_lshl_b32 s{S_T0}, s{S_HSEL}, 2')
            a(f'v_add_u32 v{t}, s{S_T0}, v{t}')
            a(f'v_and_b32 v{t+1}, 7, v{V_LANE}')
            a(f'v_xor_b32 v{t}, v{t}, v{t+1}')
            a(f'v_lshlrev_b32 v{t}, 4, v{t}')
            a(f's_lshl_b32 s{S_T0}, s{S_RB}, 7')
            a(f's_lshl_b32 s{S_T0+1}, s{S_W}, 3')
            a(f's_add_u32 s{S_T0}, s{S_T0}, s{S_T0+1}')
            a(f'v_add_u32 v{b}, s{S_T0}, v{b}')
            a(f'v_lshlrev_b32 v{b}, 10, v{b}')
            a(f'v_add_u32 v{b}, v{b}, v{t}')
        else:
            a(f'v_bfe_u32 v{b}, v{V_LANE}, 2, 2')
            a(f's_lshl_b32 s{S_T0}, s{S_W}, 2')
            a(f'v_add_u32 v{b}, s{S_T0}, v{b}')
            a(f'v_lshlrev_b32 v{b}, 12, v{b}')
            a(f'v_lshrrev_b32 v{t}, 4, v{V_LANE}')
            a(f'v_lshlrev_b32 v{t}, 6, v{t}')
            a(f'v_and_b32 v{t+1}, 3, v{V_LANE}')
            a(f'v_lshlrev_b32 v{t+1}, 4, v{t+1}')
            a(f'v_add3_u32 v{b}, v{b}, v{t}, v{t+1}')
            a(f's_lshl_b32 s{S_T0}, s{S_RB}, 8')
            a(f's_add_u32 s{S_T0}, s{S_T0}, {WS_X2T}')
            a(f'v_add_u32 v{b}, s{S_T0}, v{b}')
    def x_dma_piece(self, L, c, i, b, t):
        a = self.a
        if L == 0:
            off = i * 32 * 1024 + c * 128; base = f's[{S_X}:{S_X+1}]'; sc = ''
        else:
            off = (64 * c + 16 * i) * 4096; base = WSB; sc = ' sc1'
        a(f'v_add_u32 v{t}, {off}, v{b}')
        a(f's_add_u32 m0, s{S_W1024}, {c * 16384 + i * 4096}')
        a(f'global_load_lds_dwordx4 v{t}, {base}{sc}')

    def wfrag_addr(self, kv, q, t):
        a = self.a
        a(f'v_bfe_u32 v{t}, v{V_LANE}, 2, 2')
        a(f'v_lshl_add_u32 v{t}, v{V_HH}, 3, v{t}')
        a(f'v_lshlrev_b32 v{t}, 6, v{t}')
        a(f'v_and_b32 v{t+1}, 3, v{V_LANE}')
        a(f'v_lshl_add_u32 v{t}, v{t+1}, 3, v{t}')
        a(f'v_bfe_u32 v{t+1}, v{V_LANE}, 4, 1')
        a(f'v_lshlrev_b32 v{t+2}, 15, v{t+1}')
        a(f's_lshl_b32 s{S_T0}, s{S_HSEL}, 5')
        a(f's_add_u32 s{S_T0}, s{S_T0}, {LDS_WK}')
        a(f'v_add3_u32 v{kv}, v{t}, v{t+2}, s{S_T0}')
        a(f'v_lshl_add_u32 v{q}, v{t+1}, 5, v{t}')
        a(f'v_add_u32 v{q}, {LDS_WQ}, v{q}')

    def cs_sel(self, r):
        a = self.a
        a(f'v_and_b32 v{r}, 15, v{V_LANE}')
        a(f'v_bfe_u32 v{r+1}, v{V_LANE}, 4, 1')
        a(f'v_cmp_eq_u32 vcc, v{r}, v{r+1}')
        a(f'v_mov_b32 v{r+1}, 0x3f803f80')
        a(f'v_cndmask_b32 v{r}, 0, v{r+1}, vcc')
        for i in range(1, 4): a(f'v_mov_b32 v{r+i}, v{r}')
    def cs_mfma(self, abase, sel, dst):
        a = self.a
        for ks in range(32):
            c = '0' if ks == 0 else f'v[{dst}:{dst+3}]'
            a(f'v_mfma_f32_16x16x32_bf16 v[{dst}:{dst+3}], a[{abase+4*ks}:{abase+4*ks+3}], v[{sel}:{sel+3}], {c}')
    def cs_write(self, src, sgpr_off, const, t):
        a = self.a
        a(f'v_and_b32 v{t}, 15, v{V_LANE}')
        a(f'v_lshlrev_b32 v{t}, 6, v{t}')
        a(f'v_lshrrev_b32 v{t+1}, 4, v{V_LANE}')
        a(f'v_lshl_add_u32 v{t}, v{t+1}, 4, v{t}')
        a(f'v_add_u32 v{t}, {SC_CS + const}, v{t}')
        if sgpr_off is not None: a(f'v_add_u32 v{t}, s{sgpr_off}, v{t}')
        a(f's_mov_b32 exec_lo, 0x00030003')
        a(f's_mov_b32 exec_hi, 0x00030003')
        a(f'ds_write_b128 v{t}, v[{src}:{src+3}]')
        a(f's_mov_b64 exec, -1')
    def cs_read(self, dst, sgpr_off, const, t):
        a = self.a
        a(f'v_lshlrev_b32 v{t}, 4, v{V_HH}')
        a(f'v_add_u32 v{t}, {SC_CS + const}, v{t}')
        if sgpr_off is not None: a(f'v_add_u32 v{t}, s{sgpr_off}, v{t}')
        for g in range(4):
            a(f'ds_read_b128 v[{dst+4*g}:{dst+4*g+3}], v{t} offset:{32*g}')

    WPT = 128
    def wphi_load(self, b):
        a = self.a
        t = b + 1
        a(f'v_lshrrev_b32 v{b}, 3, v{V_J}')
        a(f'v_lshlrev_b32 v{b}, 2, v{b}')
        a(f'v_and_b32 v{t}, 3, v{V_J}')
        a(f'v_add_u32 v{b}, v{b}, v{t}')
        a(f'v_lshlrev_b32 v{b}, 1, v{b}')
        a(f'v_lshl_add_u32 v{b}, v{V_HH}, 7, v{b}')
        a(f's_lshl_b32 s{S_T0}, s{S_HB}, 10')
        a(f'v_add_u32 v{b}, s{S_T0}, v{b}')
        for hd in range(2):
            for jj in range(8):
                d = 8 * (jj >> 2) + (jj & 3)
                a(f'global_load_ushort v{self.WPT + 8*hd + jj}, v{b}, s[{S_WPHI}:{S_WPHI+1}] offset:{hd * 512 + d * 32}')
    def wphi_finish(self, t):
        a = self.a
        for i in range(8):
            a(f'v_lshl_or_b32 v{V_WPHI+i}, v{self.WPT+2*i+1}, 16, v{self.WPT+2*i}')
        a(f'v_bfe_u32 v{t}, v{V_J}, 2, 1')
        a(f'v_mul_u32_u24 v{t}, 0x8000, v{t}')
        a(f'v_lshl_or_b32 v{t}, v{t}, 16, v{t}')
        for i in range(8): a(f'v_xor_b32 v{V_WPHI+i}, v{V_WPHI+i}, v{t}')

    def rbf(self, dst, src):
        a = self.a
        a(f'v_cvt_pk_bf16_f32 v{dst}, v{src}, v{src}')
        a(f'v_lshlrev_b32 v{dst}, 16, v{dst}')
    def ln_finalize(self, S, Q, m, rs, t):
        a = self.a
        a(f'v_mul_f32 v{m}, 0x3b000000, v{S}')
        a(f'v_mul_f32 v{t}, 0x3b000000, v{Q}')
        a(f'v_fma_f32 v{t}, -v{m}, v{m}, v{t}')
        a(f'v_max_f32 v{t}, 0, v{t}')
        a(f'v_cvt_pk_bf16_f32 v{m}, v{m}, v{t}')
        a(f'v_and_b32 v{t}, 0xffff0000, v{m}')
        a(f'v_lshlrev_b32 v{m}, 16, v{m}')
        a(f'v_add_f32 v{t}, 0x3727c5ac, v{t}')
        self.rbf(t, t)
        a(f'v_sqrt_f32 v{t}, v{t}')
        self.rbf(t, t)
        a(f'v_rcp_f32 v{rs}, v{t}')

    def softmax16(self, D, out, t):
        a = self.a
        mx = t
        a(f'v_max3_f32 v{mx}, v{D}, v{D+1}, v{D+2}')
        a(f'v_max3_f32 v{mx+1}, v{D+3}, v{D+4}, v{D+5}')
        a(f'v_max3_f32 v{mx}, v{mx}, v{D+6}, v{D+7}')
        a(f'v_max3_f32 v{mx+1}, v{mx+1}, v{D+8}, v{D+9}')
        a(f'v_max3_f32 v{mx}, v{mx}, v{D+10}, v{D+11}')
        a(f'v_max3_f32 v{mx+1}, v{mx+1}, v{D+12}, v{D+13}')
        a(f'v_max3_f32 v{mx}, v{mx}, v{D+14}, v{D+15}')
        a(f'v_mov_b32 v{t+2}, {hex(LOG2E)}')
        a(f'v_max_f32 v{mx}, v{mx}, v{mx+1}')
        a(f'v_mul_f32 v{mx}, v{t+2}, v{mx}')
        for r in range(0, 16, 2):
            a(f'v_pk_fma_f32 v[{D+r}:{D+r+1}], v[{D+r}:{D+r+1}], v[{t+2}:{t+3}], v[{mx}:{mx+1}] op_sel_hi:[1,0,0] neg_lo:[0,0,1] neg_hi:[0,0,1]')
        for r in range(16): a(f'v_exp_f32 v{D+r}, v{D+r}')
        s = t + 2
        a(f'v_pk_add_f32 v[{s}:{s+1}], v[{D}:{D+1}], v[{D+2}:{D+3}]')
        a(f'v_pk_add_f32 v[{mx}:{mx+1}], v[{D+4}:{D+5}], v[{D+6}:{D+7}]')
        a(f'v_pk_add_f32 v[{s}:{s+1}], v[{s}:{s+1}], v[{D+8}:{D+9}]')
        a(f'v_pk_add_f32 v[{mx}:{mx+1}], v[{mx}:{mx+1}], v[{D+10}:{D+11}]')
        a(f'v_pk_add_f32 v[{s}:{s+1}], v[{s}:{s+1}], v[{D+12}:{D+13}]')
        a(f'v_pk_add_f32 v[{mx}:{mx+1}], v[{mx}:{mx+1}], v[{D+14}:{D+15}]')
        a(f'v_pk_add_f32 v[{s}:{s+1}], v[{s}:{s+1}], v[{mx}:{mx+1}]')
        a(f'v_add_f32 v{s}, v{s}, v{s+1}')
        a(f'v_rcp_f32 v{s}, v{s}')
        for r in range(0, 16, 2):
            a(f'v_pk_mul_f32 v[{D+r}:{D+r+1}], v[{D+r}:{D+r+1}], v[{s}:{s+1}] op_sel_hi:[1,0]')
        for r in range(0, 16, 2):
            a(f'v_cvt_pk_bf16_f32 v{out + r//2}, v{D+r}, v{D+r+1}')

    def ln_apply16(self, A, cs, m, out):
        a = self.a
        for r in range(0, 16, 2):
            a(f'v_pk_fma_f32 v[{A+r}:{A+r+1}], v[{cs+r}:{cs+r+1}], v[{m}:{m+1}], v[{A+r}:{A+r+1}] op_sel_hi:[1,0,1] neg_lo:[0,1,0] neg_hi:[0,1,0]')
        for r in range(0, 16, 2):
            a(f'v_pk_mul_f32 v[{A+r}:{A+r+1}], v[{A+r}:{A+r+1}], v[{m}:{m+1}] op_sel:[0,1] op_sel_hi:[1,1]')
        for r in range(0, 16, 2):
            a(f'v_cvt_pk_bf16_f32 v{out + r//2}, v{A+r}, v{A+r+1}')

    def flag_store(self, sync, slot_sgpr):
        a = self.a
        a(f's_lshl_b32 s{S_T0}, s{slot_sgpr}, 6')
        a(f's_add_u32 s{S_T0}, s{S_T0}, {WS_FLAGS + sync * 0x10000}')
        a(f'v_mov_b32 v126, s{S_T0}')
        a(f'v_mov_b32 v127, s{S_NONCE}')
        a('s_mov_b64 exec, 1')
        a(f'global_store_dword v126, v127, {WSB} sc1')
        a('s_mov_b64 exec, -1')
    def signal_wg(self, sync, slot_sgpr):
        a = self.a
        a.c(f'signal sync {sync}')
        a('s_waitcnt vmcnt(0)')
        a('s_barrier')
        l = self.lab('sig')
        a(f's_cmp_lg_u32 s{S_W}, 0')
        a(f's_cbranch_scc1 {l}')
        self.flag_store(sync, slot_sgpr)
        a.label(l)
    def wait(self, sync, first_slot_sgpr, nflags):
        a = self.a
        a.c(f'wait sync {sync}')
        l, lp, ld = self.lab('wait'), self.lab('poll'), self.lab('pdone')
        a(f's_cmp_lg_u32 s{S_W}, 0')
        a(f's_cbranch_scc1 {l}')
        if nflags == 16:
            a(f'v_and_b32 v126, 15, v{V_LANE}')
            a('v_lshlrev_b32 v126, 6, v126')
            a(f's_lshl_b32 s{S_T0}, s{first_slot_sgpr}, 6')
            a(f's_add_u32 s{S_T0}, s{S_T0}, {WS_FLAGS + sync * 0x10000}')
            a(f'v_add_u32 v126, s{S_T0}, v126')
        else:
            a(f'v_lshlrev_b32 v126, 6, v{V_LANE}')
            a(f'v_add_u32 v126, {WS_FLAGS + sync * 0x10000}, v126')
            a('v_add_u32 v125, 4096, v126'); a('v_add_u32 v124, 8192, v126'); a('v_add_u32 v123, 12288, v126')
        a(f's_mov_b32 s{S_T0+1}, 0')
        a.label(lp)
        a(f'global_load_dword v127, v126, {WSB} sc1')
        if nflags != 16:
            a(f'global_load_dword v122, v125, {WSB} sc1')
            a(f'global_load_dword v121, v124, {WSB} sc1')
            a(f'global_load_dword v120, v123, {WSB} sc1')
        a(f's_add_u32 s{S_T0+1}, s{S_T0+1}, 1')
        a(f's_cmp_gt_u32 s{S_T0+1}, {self.o.spin}')
        a(f's_cbranch_scc1 {ld}')
        a('s_waitcnt vmcnt(0)')
        if nflags != 16:
            a(f'v_sad_u32 v127, v127, s{S_NONCE}, 0')
            a(f'v_sad_u32 v127, v122, s{S_NONCE}, v127')
            a(f'v_sad_u32 v127, v121, s{S_NONCE}, v127')
            a(f'v_sad_u32 v127, v120, s{S_NONCE}, v127')
            a('v_cmp_ne_u32 vcc, 0, v127')
        else:
            a(f'v_cmp_ne_u32 vcc, s{S_NONCE}, v127')
        a(f's_cbranch_vccnz {lp}')
        a.label(ld)
        a('s_waitcnt vmcnt(0)')
        a.label(l)
        a('s_barrier')

    def trk_reset(self):
        self.vm = []; self.lg = []
    def vm_op(self, line, tag):
        self.a(line); self.vm.append(tag)
    def lg_op(self, line, tag):
        self.a(line); self.lg.append(tag)
    def wait_vm(self, tag):
        idx = max(i for i, t in enumerate(self.vm) if t == tag)
        n = len(self.vm) - 1 - idx
        self.a(f's_waitcnt vmcnt({min(n, 63)})')
        self.vm = self.vm[idx + 1:] if n <= 63 else self.vm
    def wait_lg(self, tag):
        c = [i for i, t in enumerate(self.lg) if t == tag]
        if not c: return
        idx = max(c)
        n = len(self.lg) - 1 - idx
        self.a(f's_waitcnt lgkmcnt({min(n, 15)})')
        if n <= 15: self.lg = self.lg[idx + 1:]
        else: self.lg = self.lg[len(self.lg) - 15:]
    def dma_x(self, L, c, i):
        a = self.a
        b, t = self.XD, self.XD + 1
        if L == 0:
            off = i * 32 * 1024 + c * 128; base = f's[{S_X}:{S_X+1}]'; sc = ''
        else:
            off = (64 * c + 16 * i) * 4096; base = WSB; sc = ' sc1'
        a(f'v_add_u32 v{t}, {off}, v{b}')
        a(f's_add_u32 m0, s{S_W1024}, {c * 16384 + i * 4096}')
        self.vm_op(f'global_load_lds_dwordx4 v{t}, {base}{sc}', f'x{c}')
    XD = 36

    def bfrag_setup(self, L, base, own_only=False):
        a = self.a
        t = 24
        a(f's_xor_b32 s{S_T0+1}, s{S_W}, 1')
        if L == 0:
            a(f'v_bfe_u32 v{t}, v{V_J}, 1, 3')
            a(f'v_lshlrev_b32 v{t+1}, 7, v{V_J}')
            a(f's_lshl_b32 s{S_T0}, s{S_W}, 12')
            a(f's_lshl_b32 s{S_T0+1}, s{S_T0+1}, 12')
            for k in range(4):
                a(f'v_add_u32 v{t+2}, {2*k}, v{V_HH}')
                a(f'v_xor_b32 v{t+2}, v{t+2}, v{t}')
                a(f'v_lshl_add_u32 v{t+2}, v{t+2}, 4, v{t+1}')
                a(f'v_add_u32 v{base+k}, s{S_T0}, v{t+2}')
                if not own_only: a(f'v_add_u32 v{base+4+k}, s{S_T0+1}, v{t+2}')
        else:
            a(f'v_bfe_u32 v{t}, v{V_LANE}, 2, 2')
            a(f'v_lshlrev_b32 v{t}, 6, v{t}')
            a(f'v_lshl_add_u32 v{t}, v{V_HH}, 11, v{t}')
            a(f'v_bfe_u32 v{t+1}, v{V_LANE}, 4, 1')
            a(f'v_lshl_add_u32 v{t}, v{t+1}, 5, v{t}')
            a(f'v_and_b32 v{t+1}, 3, v{V_LANE}')
            a(f'v_lshl_add_u32 v{t}, v{t+1}, 3, v{t}')
            a(f's_lshl_b32 s{S_T0}, s{S_W}, 8')
            a(f's_lshl_b32 s{S_T0+1}, s{S_T0+1}, 8')
            a(f'v_add_u32 v{base}, s{S_T0}, v{t}')
            if not own_only: a(f'v_add_u32 v{base+4}, s{S_T0+1}, v{t}')
    def bfrag_read(self, L, base, ks, dst, tag):
        if L == 0:
            c, k = ks >> 2, ks & 3
            self.lg_op(f'ds_read_b128 v[{dst}:{dst+3}], v{base+k} offset:{(c & 3) * 16384}', tag)
        else:
            for x in range(2):
                self.lg_op(f'ds_read_b64_tr_b16 v[{dst+2*x}:{dst+2*x+1}], v{base} offset:{(ks & 15) * 4096 + x * 1024}', tag)
    def bfrag_bump(self, L, base, both=True):
        for b in ((base, base + 4) if both else (base,)):
            for k in range(4 if L == 0 else 1): self.a(f'v_add_u32 v{b+k}, 65536, v{b+k}')

    ACC0, ACC1, FR, XB = 48, 64, 80, 112
    SS, SQ, ONES = 20, 21, 22
    M, M1 = 32, 34
    def kv_pass(self, L, qaddr=None):
        a = self.a
        ACC0, ACC1, FR, XB = self.ACC0, self.ACC1, self.FR, self.XB
        SS, SQ, ONES = self.SS, self.SQ, self.ONES
        a(f'v_mov_b32 v{SS}, 0'); a(f'v_mov_b32 v{SQ}, 0'); a(f'v_mov_b32 v{ONES}, 0x3f803f80')
        def rd(ks):
            st = FR + 8 * (ks & 3)
            if ks == 16: self.bfrag_bump(L, XB)
            self.bfrag_read(L, XB, ks, st, f'f{ks}')
            self.bfrag_read(L, XB + 4, ks, st + 4, f'f{ks}')
        self.wait_vm('x0'); a('s_barrier')
        self.stamp(2 + 16 * L)
        rd(0); rd(1)
        qn = 0
        for ks in range(0, 32, 2):
            c = ks >> 2
            if (ks & 3) == 2 and c + 1 < 8:
                self.wait_vm(f'x{c+1}')
                if L == 0 and c + 1 == 3: self.wait_vm('wq')
                a('s_barrier')
            if ks + 2 < 32:
                rd(ks + 2); rd(ks + 3)
            for k in (ks, ks + 1):
                st = FR + 8 * (k & 3)
                self.wait_lg(f'f{k}')
                c0 = '0' if k == 0 else f'v[{ACC0}:{ACC0+15}]'
                c1 = '0' if k == 0 else f'v[{ACC1}:{ACC1+15}]'
                a(f'v_mfma_f32_32x32x16_bf16 v[{ACC0}:{ACC0+15}], a[{4*k}:{4*k+3}], v[{st}:{st+3}], {c0}')
                if L == 1 and (k >> 2) + 3 < 8: self.dma_x(1, (k >> 2) + 3, k & 3)
                a(f'v_mfma_f32_32x32x16_bf16 v[{ACC1}:{ACC1+15}], a[{4*k}:{4*k+3}], v[{st+4}:{st+7}], {c1}')
                if L == 0 and 12 <= k < 28:
                    for _ in range(2):
                        for x in range(2):
                            self.lg_op(f'ds_read_b64_tr_b16 a[{128+4*qn+2*x}:{128+4*qn+2*x+1}], v{qaddr} offset:{qn*1024 + x*256}', 'wqf')
                        qn += 1
            for k in (ks, ks + 1):
                st = FR + 8 * (k & 3)
                for i in range(4):
                    a(f'v_dot2c_f32_bf16 v{SS}, v{st+i}, v{ONES}')
                    a(f'v_dot2c_f32_bf16 v{SQ}, v{st+i}, v{st+i}')
            if L == 0 and ks == 28:
                a('s_waitcnt lgkmcnt(0)'); self.lg = []
                a('s_barrier')

    def resid_read(self, L, T):
        a = self.a
        a(f's_and_b32 s{S_T0}, s{S_HB}, 3')
        if L == 0:
            a(f's_lshl_b32 s{S_T0+1}, s{S_CB}, 1')
            a(f's_add_u32 s{S_T0+1}, s{S_T0+1}, s{S_RHALF}')
            a(f's_lshl_b32 s{S_T0+1}, s{S_T0+1}, 14')
            a(f's_lshl_b32 s{S_T0}, s{S_T0}, 12')
            a(f's_add_u32 s{S_T0}, s{S_T0}, s{S_T0+1}')
            a(f'v_lshlrev_b32 v{T}, 7, v{V_J}')
            a(f'v_lshl_add_u32 v{T}, v{V_HH}, 3, v{T}')
            a(f'v_add_u32 v{T}, s{S_T0}, v{T}')
            a(f'v_bfe_u32 v{T+1}, v{V_J}, 1, 3')
            a(f's_lshl_b32 s{S_T0+1}, s{S_HSEL}, 2')
            for g in range(4):
                a(f's_add_u32 s{S_T0+2}, s{S_T0+1}, {g}')
                a(f'v_xor_b32 v{T+2}, s{S_T0+2}, v{T+1}')
                a(f'v_lshl_add_u32 v{T+2}, v{T+2}, 4, v{T}')
                a(f'ds_read_b64 v[{V_RESID+2*g}:{V_RESID+2*g+1}], v{T+2}')
        else:
            a(f's_lshl_b32 s{S_T0+1}, s{S_CB}, 5')
            a(f's_lshl_b32 s{S_T0+2}, s{S_W}, 3')
            a(f's_add_u32 s{S_T0+1}, s{S_T0+1}, s{S_T0+2}')
            a(f's_lshl_b32 s{S_T0+1}, s{S_T0+1}, 10')
            a(f's_lshl_b32 s{S_T0}, s{S_T0}, 8')
            a(f's_add_u32 s{S_T0}, s{S_T0}, s{S_T0+1}')
            a(f'v_bfe_u32 v{T}, v{V_LANE}, 2, 2')
            a(f'v_lshlrev_b32 v{T}, 6, v{T}')
            a(f'v_lshl_add_u32 v{T}, v{V_HH}, 10, v{T}')
            a(f'v_bfe_u32 v{T+1}, v{V_LANE}, 4, 1')
            a(f'v_lshl_add_u32 v{T}, v{T+1}, 5, v{T}')
            a(f'v_and_b32 v{T+1}, 3, v{V_LANE}')
            a(f'v_lshl_add_u32 v{T}, v{T+1}, 3, v{T}')
            a(f'v_add_u32 v{T}, s{S_T0}, v{T}')
            for g in range(4):
                a(f'ds_read_b64_tr_b16 v[{V_RESID+2*g}:{V_RESID+2*g+1}], v{T} offset:{g*2048}')

    def kv_epilogue(self, L, cs_kv_reg=None):
        a = self.a; o = self.o
        ACC0, ACC1 = self.ACC0, self.ACC1
        SS, SQ, ONES = self.SS, self.SQ, self.ONES
        M, M1 = self.M, self.M1
        T = 24
        self.stamp(3 + 16 * L)
        a(f'v_mov_b32 v{T}, v{SS}')
        a(f'v_mov_b32 v{T+1}, v{SQ}')
        a(f'v_permlane32_swap_b32 v{SS}, v{T}')
        a(f'v_permlane32_swap_b32 v{SQ}, v{T+1}')
        a(f'v_add_f32 v{SS}, v{SS}, v{T}')
        a(f'v_add_f32 v{SQ}, v{SQ}, v{T+1}')
        self.ln_finalize(SS, SQ, M, M + 1, T)
        a(f'v_lshlrev_b32 v{T}, 3, v{V_J}')
        a(f's_lshl_b32 s{S_T0}, s{S_W}, 8')
        a(f's_add_u32 s{S_T0}, s{S_T0}, {SC_ST}')
        a(f'v_add_u32 v{T+1}, s{S_T0}, v{T}')
        a(f'ds_write_b64 v{T+1}, v[{M}:{M+1}]')
        if L == 0:
            a(f's_lshl_b32 s{S_T0+4}, s{S_HSEL}, 7')
            self.cs_write(cs_kv_reg, S_T0 + 4, 0, T + 2)
            self.wphi_finish(T + 2)
        self.resid_read(L, T + 4)
        PA, VA = 112, 114
        a(f'v_lshrrev_b32 v{T+1}, 3, v{V_J}')
        a(f'v_add_u32 v{T+1}, v{T+1}, v{V_HH}')
        a(f'v_lshlrev_b32 v{T+1}, 5, v{T+1}')
        a(f'v_lshl_add_u32 v{T+1}, v{V_J}, 6, v{T+1}')
        a(f's_mul_i32 s{S_T0}, s{S_HSEL}, {PHI_HEAD}')
        a(f's_add_u32 s{S_T0}, s{S_T0}, {SC_PHI}')
        a(f's_mul_i32 s{S_T0+1}, s{S_W}, 2176')
        a(f's_xor_b32 s{S_T0+2}, s{S_W}, 1')
        a(f's_mul_i32 s{S_T0+3}, s{S_T0+2}, 2176')
        a(f's_add_u32 s{S_T0+1}, s{S_T0+1}, s{S_T0}')
        a(f's_add_u32 s{S_T0+3}, s{S_T0+3}, s{S_T0}')
        a(f'v_add_u32 v{PA}, s{S_T0+1}, v{T+1}')
        a(f'v_add_u32 v{PA+1}, s{S_T0+3}, v{T+1}')
        a(f'v_bfe_u32 v{T+1}, v{V_J}, 3, 1')
        a(f'v_lshlrev_b32 v{T+1}, 2, v{T+1}')
        a(f'v_xor_b32 v{T+1}, v{V_J}, v{T+1}')
        a(f'v_lshlrev_b32 v{T+1}, 5, v{T+1}')
        a(f'v_lshl_add_u32 v{T+1}, v{V_HH}, 3, v{T+1}')
        a(f's_lshl_b32 s{S_T0}, s{S_HSEL}, 12')
        a(f's_add_u32 s{S_T0}, s{S_T0}, {SC_V}')
        a(f's_lshl_b32 s{S_T0+1}, s{S_W}, 10')
        a(f's_lshl_b32 s{S_T0+2}, s{S_T0+2}, 10')
        a(f's_add_u32 s{S_T0+1}, s{S_T0+1}, s{S_T0}')
        a(f's_add_u32 s{S_T0+2}, s{S_T0+2}, s{S_T0}')
        a(f'v_add_u32 v{VA}, s{S_T0+1}, v{T+1}')
        a(f'v_add_u32 v{VA+1}, s{S_T0+2}, v{T+1}')
        a(f's_xor_b32 s{S_T0}, s{S_W}, 1')
        a(f's_lshl_b32 s{S_T0}, s{S_T0}, 8')
        a(f's_add_u32 s{S_T0}, s{S_T0}, {SC_ST}')
        a(f'v_add_u32 v{T}, s{S_T0}, v{T}')
        a('s_waitcnt lgkmcnt(0)')
        a('s_barrier')
        CS = 80
        a(f's_lshl_b32 s{S_T0+4}, s{S_HSEL}, 7')
        a(f'ds_read_b64 v[{M1}:{M1+1}], v{T}')
        self.cs_read(CS, S_T0 + 4, 0, T + 2)
        KB0, KB1 = 96, 104
        a('s_waitcnt lgkmcnt(0)')
        self.ln_apply16(ACC0, CS, M, KB0)
        self.ln_apply16(ACC1, CS, M1, KB1)
        l1, l2 = self.lab('wp'), self.lab('wp')
        a(f's_cmp_eq_u32 s{S_HSEL}, 0')
        a(f's_cbranch_scc0 {l1}')
        a(f'v_mfma_f32_32x32x16_bf16 v[{ACC0}:{ACC0+15}], v[{V_WPHI}:{V_WPHI+3}], v[{KB0}:{KB0+3}], 0')
        a(f'v_mfma_f32_32x32x16_bf16 v[{ACC1}:{ACC1+15}], v[{V_WPHI}:{V_WPHI+3}], v[{KB1}:{KB1+3}], 0')
        a(f's_branch {l2}')
        a.label(l1)
        a('s_nop 1')
        a(f'v_mfma_f32_32x32x16_bf16 v[{ACC0}:{ACC0+15}], v[{V_WPHI+4}:{V_WPHI+7}], v[{KB0}:{KB0+3}], 0')
        a(f'v_mfma_f32_32x32x16_bf16 v[{ACC1}:{ACC1+15}], v[{V_WPHI+4}:{V_WPHI+7}], v[{KB1}:{KB1+3}], 0')
        a.label(l2)
        for tt, kb in enumerate((KB0, KB1)):
            a(f'ds_write_b64 v{VA+tt}, v[{kb+4}:{kb+5}]')
            a(f'ds_write_b64 v{VA+tt}, v[{kb+6}:{kb+7}] offset:16')
        AA, BA = 116, 117
        a(f'v_lshrrev_b32 v{T}, 4, v{V_LANE}')
        a(f'v_bfe_u32 v{T+1}, v{V_LANE}, 2, 2')
        a(f'v_lshl_add_u32 v{T+2}, v{T}, 3, v{T+1}')
        a(f'v_lshlrev_b32 v{AA}, 6, v{T+2}')
        a(f'v_lshl_add_u32 v{AA}, v{T}, 5, v{AA}')
        a(f'v_and_b32 v{T+3}, 3, v{V_LANE}')
        a(f'v_lshl_add_u32 v{AA}, v{T+3}, 3, v{AA}')
        a(f's_mul_i32 s{S_T0}, s{S_HSEL}, {PHI_HEAD}')
        a(f's_lshl_b32 s{S_T0+1}, s{S_RHALF}, 5')
        a(f's_add_u32 s{S_T0}, s{S_T0}, s{S_T0+1}')
        a(f's_add_u32 s{S_T0}, s{S_T0}, {SC_PHI}')
        a(f'v_add_u32 v{AA}, s{S_T0}, v{AA}')
        a(f'v_and_b32 v{T}, 1, v{T}')
        a(f'v_lshlrev_b32 v{T}, 2, v{T}')
        a(f'v_xor_b32 v{T+1}, v{T+2}, v{T}')
        a(f'v_xor_b32 v{T+2}, 4, v{T+1}')
        a(f'v_lshlrev_b32 v{T+1}, 5, v{T+1}')
        a(f'v_lshlrev_b32 v{T+2}, 5, v{T+2}')
        a(f'v_lshl_add_u32 v{T+1}, v{T+3}, 3, v{T+1}')
        a(f'v_lshl_add_u32 v{T+2}, v{T+3}, 3, v{T+2}')
        a(f's_lshl_b32 s{S_T0}, s{S_HSEL}, 12')
        a(f's_add_u32 s{S_T0}, s{S_T0}, {SC_V}')
        a(f'v_add_u32 v{BA}, s{S_T0}, v{T+1}')
        a(f'v_add_u32 v{BA+1}, s{S_T0}, v{T+2}')
        a('s_nop 3')
        PH0, PH1 = 80, 88
        s0 = self.cap(lambda: self.softmax16(ACC0, PH0, 24))
        s1 = self.cap(lambda: self.softmax16(ACC1, PH1, 28))
        self.merge(s0, s1)
        for tt, ph in enumerate((PH0, PH1)):
            a(f'ds_write_b128 v{PA+tt}, v[{ph}:{ph+3}]')
            a(f'ds_write_b128 v{PA+tt}, v[{ph+4}:{ph+7}] offset:16')
        a('s_waitcnt lgkmcnt(0)')
        a('s_barrier')
        FA, FB, KV, ZS = 48, 64, 80, 84
        for kk in range(4):
            for x in range(2):
                a(f'ds_read_b64_tr_b16 v[{FA+4*kk+2*x}:{FA+4*kk+2*x+1}], v{AA} offset:{kk*2176 + x*256}')
                a(f'ds_read_b64_tr_b16 v[{FB+4*kk+2*x}:{FB+4*kk+2*x+1}], v{BA+x} offset:{kk*1024}')
        a(f'v_and_b32 v{T}, 15, v{V_LANE}')
        a(f'v_lshlrev_b32 v{T}, 7, v{T}')
        a(f'v_lshrrev_b32 v{T+1}, 4, v{V_LANE}')
        a(f'v_lshl_add_u32 v{T}, v{T+1}, 4, v{T}')
        a(f's_lshl_b32 s{S_T0+1}, s{S_SLOT1}, 12')
        a(f's_lshl_b32 s{S_T0+2}, s{S_HSEL}, 11')
        a(f's_add_u32 s{S_T0+1}, s{S_T0+1}, s{S_T0+2}')
        a(f's_lshl_b32 s{S_T0+2}, s{S_RHALF}, 6')
        a(f's_add_u32 s{S_T0+1}, s{S_T0+1}, s{S_T0+2}')
        a(f's_add_u32 s{S_T0+1}, s{S_T0+1}, {WS_KVP + L * 0x100000}')
        a(f'v_add_u32 v{T}, s{S_T0+1}, v{T}')
        a(f's_lshl_b32 s{S_T0+1}, s{S_SLOT1}, 9')
        a(f's_lshl_b32 s{S_T0+2}, s{S_HSEL}, 8')
        a(f's_add_u32 s{S_T0+1}, s{S_T0+1}, s{S_T0+2}')
        a(f's_lshl_b32 s{S_T0+2}, s{S_RHALF}, 7')
        a(f's_add_u32 s{S_T0+1}, s{S_T0+1}, s{S_T0+2}')
        a(f's_add_u32 s{S_T0+1}, s{S_T0+1}, {WS_ZP + L * 0x20000}')
        a(f'v_lshlrev_b32 v{T+1}, 3, v{V_LANE}')
        a(f'v_add_u32 v{T+1}, s{S_T0+1}, v{T+1}')
        a(f'v_mov_b32 v{ZS}, 0')
        a(f'v_mov_b32 v{ONES}, 0x3f803f80')
        for kk in range(4):
            a(f's_waitcnt lgkmcnt({12 - 4*kk})')
            c = '0' if kk == 0 else f'v[{KV}:{KV+3}]'
            a(f'v_mfma_f32_16x16x32_bf16 v[{KV}:{KV+3}], v[{FA+4*kk}:{FA+4*kk+3}], v[{FB+4*kk}:{FB+4*kk+3}], {c}')
        for i in range(16): a(f'v_dot2c_f32_bf16 v{ZS}, v{FA+i}, v{ONES}')
        a(f'v_cvt_pk_bf16_f32 v{KV+4+2}, v{KV}, v{KV+1}')
        a(f'v_cvt_pk_bf16_f32 v{KV+4+4}, v{KV+2}, v{KV+3}')
        a(f'v_mov_b32 v{KV+4+3}, s{S_NONCE}')
        a(f'v_mov_b32 v{KV+4+5}, s{S_NONCE}')
        a(f'v_mov_b32 v{ZS+1}, v{ZS}')
        a(f'global_store_dwordx4 v{T}, v[{KV+6}:{KV+9}], {WSB} sc1')
        a(f'v_permlane32_swap_b32 v{ZS}, v{ZS+1}')
        a(f'v_add_f32 v{ZS}, v{ZS}, v{ZS+1}')
        a(f'v_mov_b32 v{ZS+1}, v{ZS}')
        a(f'v_permlane16_swap_b32 v{ZS}, v{ZS+1}')
        a(f'v_add_f32 v{ZS}, v{ZS}, v{ZS+1}')
        a(f'v_mov_b32 v{ZS+1}, s{S_NONCE}')
        a('s_mov_b64 exec, 0xffff')
        a(f'global_store_dwordx2 v{T+1}, v[{ZS}:{ZS+1}], {WSB} sc1')
        a('s_mov_b64 exec, -1')
        self.stamp(4 + 16 * L)

    def q_pass(self, L):
        a = self.a; o = self.o
        ACC, FR, XB = 48, 80, 112
        M = self.M
        self.lg = []
        self.bfrag_setup(L, XB, own_only=True)
        if L == 0:
            SEL = 96
            self.cs_sel(SEL)
            self.cs_mfma(128, SEL, 100)
        for ks in range(3): self.bfrag_read(L, XB, ks, FR + 4 * (ks & 3), f'f{ks}')
        if L == 0:
            self.cs_write(100, None, 256, 104)
            self.lg.append('csw')
        for ks in range(32):
            if ks + 3 < 32:
                if ks + 3 == 16: self.bfrag_bump(L, XB, both=False)
                self.bfrag_read(L, XB, ks + 3, FR + 4 * ((ks + 3) & 3), f'f{ks+3}')
            self.wait_lg(f'f{ks}')
            c0 = '0' if ks == 0 else f'v[{ACC}:{ACC+15}]'
            st = FR + 4 * (ks & 3)
            a(f'v_mfma_f32_32x32x16_bf16 v[{ACC}:{ACC+15}], a[{128+4*ks}:{128+4*ks+3}], v[{st}:{st+3}], {c0}')
            if ks == 24:
                self.cs_read(64, None, 256, 104)
                self.lg += ['cs'] * 4
        a('s_waitcnt lgkmcnt(0)'); self.lg = []
        KB = 96
        self.ln_apply16(ACC, 64, M, KB)
        D = (48, 64)
        for hd in range(2):
            a(f'v_mfma_f32_32x32x16_bf16 v[{D[hd]}:{D[hd]+15}], v[{V_WPHI+4*hd}:{V_WPHI+4*hd+3}], v[{KB+4*hd}:{KB+4*hd+3}], 0')
        a('s_nop 7')
        s0 = self.cap(lambda: self.softmax16(D[0], V_PHIQ, 104))
        s1 = self.cap(lambda: self.softmax16(D[1], V_PHIQ + 8, 108))
        self.merge(s0, s1)
        self.stamp(5 + 16 * L)

    def o_stage(self, L):
        a = self.a; o = self.o
        a.c(f'================ o stage layer {L} ================')
        T = 120
        PB, ZB = 48, 112
        lp, ld = self.lab('s1poll'), self.lab('s1done')
        a(f's_lshl_b32 s{S_T0}, s{S_HB}, 16')
        a(f's_add_u32 s{S_T0}, s{S_T0}, {WS_KVP + L * 0x100000}')
        a(f'v_lshlrev_b32 v{T}, 4, v{V_TID}')
        a(f'v_add_u32 v{T}, s{S_T0}, v{T}')
        a(f's_lshl_b32 s{S_T0}, s{S_HB}, 13')
        a(f's_lshl_b32 s{S_T0+1}, s{S_W}, 11')
        a(f's_add_u32 s{S_T0}, s{S_T0}, s{S_T0+1}')
        a(f's_add_u32 s{S_T0}, s{S_T0}, {WS_ZP + L * 0x20000}')
        a(f'v_lshlrev_b32 v{T+1}, 3, v{V_LANE}')
        a(f'v_add_u32 v{T+1}, s{S_T0}, v{T+1}')
        a(f's_mov_b32 s{S_T0+2}, 0')
        a.label(lp)
        for p in range(16):
            a(f'v_add_u32 v{T+2}, {p * 4096}, v{T}')
            a(f'global_load_dwordx4 v[{PB+4*p}:{PB+4*p+3}], v{T+2}, {WSB} sc1')
        for i in range(4):
            a(f'global_load_dwordx2 v[{ZB+2*i}:{ZB+2*i+1}], v{T+1}, {WSB} offset:{i * 512} sc1')
        a(f'v_mov_b32 v{T+2}, 0')
        a(f's_add_u32 s{S_T0+2}, s{S_T0+2}, 1')
        for p in range(16):
            if p % 4 == 0: a(f's_waitcnt vmcnt({4 + 12 - p})')
            a(f'v_sad_u32 v{T+2}, v{PB+4*p+1}, s{S_NONCE}, v{T+2}')
            a(f'v_sad_u32 v{T+2}, v{PB+4*p+3}, s{S_NONCE}, v{T+2}')
        a('s_waitcnt vmcnt(0)')
        for i in range(4):
            a(f'v_sad_u32 v{T+2}, v{ZB+2*i+1}, s{S_NONCE}, v{T+2}')
        a(f's_cmp_gt_u32 s{S_T0+2}, {self.o.spin}')
        a(f's_cbranch_scc1 {ld}')
        a(f'v_cmp_ne_u32 vcc, 0, v{T+2}')
        a(f's_cbranch_vccnz {lp}')
        a.label(ld)
        self.stamp(6 + 16 * L)
        AC, CL, CH = 120, 124, 125
        a(f'v_mov_b32 v{CL}, 0x00003f80')
        a(f'v_mov_b32 v{CH}, 0x3f800000')
        for i in range(4): a(f'v_mov_b32 v{AC+i}, 0')
        for p in range(16):
            a(f'v_dot2c_f32_bf16 v{AC}, v{PB+4*p}, v{CL}')
            a(f'v_dot2c_f32_bf16 v{AC+1}, v{PB+4*p}, v{CH}')
            a(f'v_dot2c_f32_bf16 v{AC+2}, v{PB+4*p+2}, v{CL}')
            a(f'v_dot2c_f32_bf16 v{AC+3}, v{PB+4*p+2}, v{CH}')
        a(f'v_add_f32 v{ZB}, v{ZB}, v{ZB+2}')
        a(f'v_add_f32 v{ZB+4}, v{ZB+4}, v{ZB+6}')
        a(f'v_add_f32 v{ZB}, v{ZB}, v{ZB+4}')
        a(f'v_cvt_pk_bf16_f32 v{AC}, v{AC}, v{AC+1}')
        a(f'v_cvt_pk_bf16_f32 v{AC+1}, v{AC+2}, v{AC+3}')
        a(f'v_cvt_pk_bf16_f32 v{ZB}, v{ZB}, v{ZB}')
        T = 48
        a(f'v_lshrrev_b32 v{T}, 7, v{V_TID}')
        a(f'v_mul_u32_u24 v{T}, {KVT_HEAD}, v{T}')
        a(f'v_bfe_u32 v{T+1}, v{V_TID}, 3, 4')
        a(f'v_mul_u32_u24 v{T+1}, {KVT_ROW}, v{T+1}')
        a(f'v_and_b32 v{T+2}, 7, v{V_TID}')
        a(f'v_lshlrev_b32 v{T+2}, 3, v{T+2}')
        a(f'v_add3_u32 v{T}, v{T}, v{T+1}, v{T+2}')
        a(f'v_add_u32 v{T}, {SC_KVT}, v{T}')
        a(f'ds_write_b64 v{T}, v[{AC}:{AC+1}]')
        a(f'v_mul_u32_u24 v{T+1}, {KVT_HEAD}, v{V_HH}')
        a(f'v_lshl_add_u32 v{T+1}, v{V_J}, 1, v{T+1}')
        a(f's_mul_i32 s{S_T0}, s{S_W}, {KVT_ROW}')
        a(f's_add_u32 s{S_T0}, s{S_T0}, {SC_KVT + 16 * KVT_ROW}')
        a(f'v_add_u32 v{T+1}, s{S_T0}, v{T+1}')
        a(f'ds_write_b16 v{T+1}, v{ZB}')
        a(f'ds_write_b16 v{T+1}, v{ZB} offset:{4 * KVT_ROW}')
        a(f'v_mul_u32_u24 v{T+2}, {KVT_ROW}, v{V_J}')
        a(f'v_lshl_add_u32 v{T+2}, v{V_HH}, 5, v{T+2}')
        a(f'v_add_u32 v{T+2}, {SC_KVT}, v{T+2}')
        a(f's_lshl_b32 s{S_T0}, s{S_RB}, 2')
        a(f's_add_u32 s{S_T0}, s{S_T0}, s{S_W}')
        a(f's_lshl_b32 s{S_T0+8}, s{S_T0}, 4')
        a(f's_add_u32 s{S_T0+8}, s{S_T0+8}, s{S_HB}')
        a(f's_lshl_b32 s{S_T0}, s{S_T0}, 15')
        a(f's_lshl_b32 s{S_T0+1}, s{S_HB}, 11')
        a(f's_add_u32 s{S_T0}, s{S_T0}, s{S_T0+1}')
        a(f's_add_u32 s{S_T0}, s{S_T0}, {WS_O + L * 0x200000}')
        a(f'v_lshlrev_b32 v{T+3}, 4, v{V_LANE}')
        a(f'v_add_u32 v{T+3}, s{S_T0}, v{T+3}')
        a('s_waitcnt lgkmcnt(0)')
        a('s_barrier')
        AF = 56
        for hd in range(2):
            for m in range(2):
                a(f'ds_read_b128 v[{AF+8*hd+4*m}:{AF+8*hd+4*m+3}], v{T+2} offset:{hd * KVT_HEAD + 16 * m}')
        D = [72, 88]
        for hd in range(2):
            a(f's_waitcnt lgkmcnt({2 - 2*hd})')
            a(f'v_mfma_f32_32x32x16_bf16 v[{D[hd]}:{D[hd]+15}], v[{AF+8*hd}:{AF+8*hd+3}], v[{V_PHIQ+8*hd}:{V_PHIQ+8*hd+3}], 0')
            a(f'v_mfma_f32_32x32x16_bf16 v[{D[hd]}:{D[hd]+15}], v[{AF+8*hd+4}:{AF+8*hd+7}], v[{V_PHIQ+8*hd+4}:{V_PHIQ+8*hd+7}], v[{D[hd]}:{D[hd]+15}]')
        OB = 104
        for hd in range(2):
            d = D[hd]
            a(f'v_add_f32 v{d+8}, v{d+8}, v{d+9}')
            a(f'v_add_f32 v{d+10}, v{d+10}, v{d+11}')
            a(f'v_add_f32 v{d+8}, v{d+8}, v{d+10}')
            a(f'v_add_f32 v{d+8}, 0x358637bd, v{d+8}')
            a(f'v_rcp_f32 v{d+8}, v{d+8}')
            for r in range(0, 8, 2):
                a(f'v_pk_mul_f32 v[{d+r}:{d+r+1}], v[{d+r}:{d+r+1}], v[{d+8}:{d+9}] op_sel_hi:[1,0]')
            for r in range(0, 8, 2):
                a(f'v_cvt_pk_bf16_f32 v{OB+4*hd+r//2}, v{d+r}, v{d+r+1}')
            a(f'global_store_dwordx4 v{T+3}, v[{OB+4*hd}:{OB+4*hd+3}], {WSB} offset:{hd*1024} sc1')
        a('s_waitcnt vmcnt(0)')
        self.flag_store(4 * L + 1, S_T0 + 8)
        self.stamp(7 + 16 * L)

    def wo_stage(self):
        a = self.a
        b, t = 48, 49
        a(f'v_lshrrev_b32 v{b}, 4, v{V_LANE}')
        a(f'v_lshlrev_b32 v{t}, 2, v{b}')
        a(f'v_and_b32 v{t+1}, 15, v{V_LANE}')
        a(f'v_xor_b32 v{t}, v{t}, v{t+1}')
        a(f'v_lshlrev_b32 v{t}, 4, v{t}')
        a(f's_lshl_b32 s{S_T0}, s{S_W}, 2')
        a(f'v_add_u32 v{b}, s{S_T0}, v{b}')
        a(f'v_lshl_add_u32 v{b}, v{b}, 10, v{t}')
        a(f's_lshl_b32 s{S_T0}, s{S_CB}, 8')
        a(f'v_add_u32 v{b}, s{S_T0}, v{b}')
        for i in range(32):
            a(f'v_add_u32 v{t}, {i * 16 * 1024}, v{b}')
            a(f's_add_u32 m0, s{S_W1024}, {i * 4096}')
            a(f'global_load_lds_dwordx4 v{t}, s[{S_WO}:{S_WO+1}]')
        b, t = 52, 53
        a(f'v_bfe_u32 v{t}, v{V_LANE}, 2, 2')
        a(f'v_lshl_add_u32 v{b}, v{V_HH}, 2, v{t}')
        a(f'v_lshlrev_b32 v{b}, 8, v{b}')
        a(f'v_lshlrev_b32 v{t}, 2, v{t}')
        a(f'v_bfe_u32 v{t+1}, v{V_LANE}, 4, 1')
        a(f'v_lshlrev_b32 v{t+1}, 1, v{t+1}')
        a(f'v_bfe_u32 v{t+2}, v{V_LANE}, 1, 1')
        a(f's_lshl_b32 s{S_T0}, s{S_W}, 2')
        a(f'v_add3_u32 v{t+1}, v{t+1}, v{t+2}, s{S_T0}')
        a(f'v_xor_b32 v{t+1}, v{t+1}, v{t}')
        a(f'v_lshl_add_u32 v{b}, v{t+1}, 4, v{b}')
        a(f'v_and_b32 v{t+1}, 1, v{V_LANE}')
        a(f'v_lshl_add_u32 v{b}, v{t+1}, 3, v{b}')
        for half in range(2):
            a(f's_waitcnt vmcnt({16 - 16*half})')
            a('s_barrier')
            if half == 1: a(f'v_add_u32 v{b}, 65536, v{b}')
            for hg in range(16 * half, 16 * half + 16):
                for x in range(2):
                    a(f'ds_read_b64_tr_b16 v[{128+4*hg+2*x}:{128+4*hg+2*x+1}], v{b} offset:{(hg & 15) * 4096 + x * 2048}')
        a('s_waitcnt lgkmcnt(0)')

    def p2b(self, L):
        a = self.a; o = self.o
        a.c(f'================ P2b layer {L} ================')
        a(f's_lshl_b32 s{S_T0+9}, s{S_T}, 4')
        T = V_P
        a(f's_lshl_b32 s{S_T0+4}, s{S_T}, 15')
        a(f's_add_u32 s{S_T0+4}, s{S_T0+4}, s{S_W1024}')
        a(f's_add_u32 s{S_T0+4}, s{S_T0+4}, {WS_O + L * 0x200000}')
        a(f'v_lshlrev_b32 v{T+2}, 4, v{V_LANE}')
        a(f'v_add_u32 v{T}, s{S_T0+4}, v{T+2}')
        self.wait(4 * L + 1, S_T0 + 9, 16)
        self.stamp(8 + 16 * L)
        for i in range(8):
            a(f'v_add_u32 v{T+1}, {i * 4096}, v{T}')
            a(f's_add_u32 m0, s{S_W1024}, {i * 4096}')
            a(f'global_load_lds_dwordx4 v{T+1}, {WSB} sc1')
        FR, ACC, NB = 56, 72, 4
        self.lg = []
        def rd(hg): self.lg_op(f'ds_read_b128 v[{FR+4*(hg%NB)}:{FR+4*(hg%NB)+3}], v{T+2} offset:{hg*1024}', f'o{hg}')
        a('s_waitcnt vmcnt(4)')
        a('s_barrier')
        for hg in range(3): rd(hg)
        for hg in range(32):
            if hg == 12:
                a('s_waitcnt vmcnt(0)')
                a('s_barrier')
            if hg + 3 < 32: rd(hg + 3)
            self.wait_lg(f'o{hg}')
            c = '0' if hg == 0 else f'v[{ACC}:{ACC+15}]'
            a(f'v_mfma_f32_32x32x16_bf16 v[{ACC}:{ACC+15}], v[{128+4*hg}:{128+4*hg+3}], v[{FR+4*(hg%NB)}:{FR+4*(hg%NB)+3}], {c}')
        self.stamp(9 + 16 * L)
        TR = 32768
        W1, R1, G1, A1 = 52, 53, 54, 55
        a(f'v_lshlrev_b32 v{W1}, 6, v{V_J}')
        a(f'v_lshl_add_u32 v{W1}, v{V_HH}, 3, v{W1}')
        a(f's_lshl_b32 s{S_T0}, s{S_W}, 11')
        a(f's_add_u32 s{S_T0}, s{S_T0}, {TR}')
        a(f'v_add_u32 v{W1}, s{S_T0}, v{W1}')
        a(f'v_lshrrev_b32 v{T}, 4, v{V_LANE}')
        a(f'v_bfe_u32 v{R1}, v{V_LANE}, 2, 2')
        a(f'v_lshl_add_u32 v{R1}, v{T}, 3, v{R1}')
        a(f'v_lshlrev_b32 v{R1}, 6, v{R1}')
        a(f'v_and_b32 v{T+1}, 3, v{V_LANE}')
        a(f'v_lshl_add_u32 v{R1}, v{T+1}, 3, v{R1}')
        a(f'v_add_u32 v{R1}, s{S_T0}, v{R1}')
        a(f's_lshl_b32 s{S_T0}, s{S_CB}, 7')
        a(f's_lshl_b32 s{S_T0+1}, s{S_W}, 5')
        a(f's_add_u32 s{S_T0}, s{S_T0}, s{S_T0+1}')
        a(f's_lshl_b32 s{S_T0}, s{S_T0}, 12')
        a(f's_lshl_b32 s{S_T0+1}, s{S_T}, 6')
        a(f's_add_u32 s{S_T0}, s{S_T0}, s{S_T0+1}')
        a(f's_add_u32 s{S_T0}, s{S_T0}, {WS_X1T + L * 0x200000}')
        a(f'v_and_b32 v{G1}, 15, v{V_LANE}')
        a(f'v_lshlrev_b32 v{G1}, 12, v{G1}')
        a(f'v_lshl_add_u32 v{G1}, v{T}, 4, v{G1}')
        a(f'v_add_u32 v{G1}, s{S_T0}, v{G1}')
        a(f's_lshl_b32 s{S_T0}, s{S_T}, 7')
        a(f's_add_u32 s{S_T0}, s{S_T0}, {WS_STATS + L * 0x4000}')
        a(f'v_lshlrev_b32 v{A1}, 2, v{V_J}')
        a(f'v_lshl_add_u32 v{A1}, v{V_HH}, 13, v{A1}')
        a(f'v_add_u32 v{A1}, s{S_T0}, v{A1}')
        X, U = 88, 96
        SS, SQ, ONES = 100, 101, 102
        a(f'v_mov_b32 v{SS}, 0'); a(f'v_mov_b32 v{SQ}, 0'); a(f'v_mov_b32 v{ONES}, 0x3f803f80')
        for g in range(8):
            u = U + 2 * (g & 1)
            a(f'v_lshlrev_b32 v{u}, 16, v{V_RESID+g}')
            a(f'v_and_b32 v{u+1}, 0xffff0000, v{V_RESID+g}')
            a(f'v_pk_add_f32 v[{ACC+2*g}:{ACC+2*g+1}], v[{ACC+2*g}:{ACC+2*g+1}], v[{u}:{u+1}]')
            a(f'v_cvt_pk_bf16_f32 v{X+g}, v{ACC+2*g}, v{ACC+2*g+1}')
            if g & 1: a(f'ds_write_b64 v{W1}, v[{X+g-1}:{X+g}] offset:{8*(g-1)}')
        for g in range(8):
            a(f'v_dot2c_f32_bf16 v{SS}, v{X+g}, v{ONES}')
            a(f'v_dot2c_f32_bf16 v{SQ}, v{X+g}, v{X+g}')
        Y = 104
        a('s_waitcnt lgkmcnt(0)')
        for m in range(2):
            for x in range(2):
                a(f'ds_read_b64_tr_b16 v[{Y+4*m+2*x}:{Y+4*m+2*x+1}], v{R1} offset:{m*32 + x*256}')
        a(f'v_mov_b32 v{U}, v{SS}')
        a(f'v_mov_b32 v{U+1}, v{SQ}')
        a(f'v_permlane32_swap_b32 v{SS}, v{U}')
        a(f'v_permlane32_swap_b32 v{SQ}, v{U+1}')
        a(f'v_add_f32 v{SS}, v{SS}, v{U}')
        a(f'v_add_f32 v{SQ}, v{SQ}, v{U+1}')
        a(f'v_cmp_eq_u32 vcc, 0, v{V_HH}')
        a(f'v_cndmask_b32 v{SS}, v{SQ}, v{SS}, vcc')
        a(f'global_atomic_add_f32 v{A1}, v{SS}, {WSB}')
        a(f'v_add_u32 v{T}, {16 * 4096}, v{G1}')
        a('s_waitcnt lgkmcnt(2)')
        a(f'global_store_dwordx4 v{G1}, v[{Y}:{Y+3}], {WSB} sc1')
        a('s_waitcnt lgkmcnt(0)')
        a(f'global_store_dwordx4 v{T}, v[{Y+4}:{Y+7}], {WSB} sc1')
        self.signal_wg(4 * L + 2, S_WG)
        self.stamp(10 + 16 * L)

    def exp_acc(self, dst, src, t):
        a = self.a
        a(f'v_mul_f32 v{t}, {hex(LOG2E)}, v{src}')
        a(f'v_mov_b32 v{t+1}, {hex(LOG2E)}')
        a(f'v_fma_f32 v{t+1}, v{src}, v{t+1}, -v{t}')
        a(f'v_fmac_f32 v{t+1}, 0x32a57060, v{src}')
        a(f'v_exp_f32 v{dst}, v{t}')
        a(f'v_mul_f32 v{t+1}, 0x3f317218, v{t+1}')
        a(f'v_fmac_f32 v{dst}, v{dst}, v{t+1}')

    def cis_pow(self, dst, ar2, rev, p, t):
        a = self.a
        import struct
        pf = hex(struct.unpack('<I', struct.pack('<f', float(p)))[0])
        a(f'v_mul_f32 v{t}, {pf}, v{ar2}')
        a(f'v_exp_f32 v{t}, v{t}')
        a(f'v_mul_f32 v{t+1}, {pf}, v{rev}')
        a(f'v_fract_f32 v{t+1}, v{t+1}')
        a(f'v_cos_f32 v{dst}, v{t+1}')
        a(f'v_sin_f32 v{dst+1}, v{t+1}')
        a(f'v_mul_f32 v{dst}, v{dst}, v{t}')
        a(f'v_mul_f32 v{dst+1}, v{dst+1}, v{t}')

    def cmul(self, d, x, y):
        a = self.a
        a(f'v_pk_mul_f32 v[{d}:{d+1}], v[{x}:{x+1}], v[{y}:{y+1}] op_sel_hi:[0,1]')
        a(f'v_pk_fma_f32 v[{d}:{d+1}], v[{x}:{x+1}], v[{y}:{y+1}], v[{d}:{d+1}] op_sel:[1,1,0] op_sel_hi:[1,0,1] neg_lo:[0,1,0]')

    KG_A = 0
    KG_B = 33792
    KG_D = 67584
    KG_MX = 76032
    def kgen_loads(self):
        a = self.a
        T = 46
        a(f's_lshl_b32 s{S_T0}, s{S_C0}, 8')
        a(f'v_lshlrev_b32 v{T}, 1, v{V_TID}')
        a(f'v_add_u32 v{T}, s{S_T0}, v{T}')
        a(f'global_load_ushort v40, v{T}, s[{S_LOGA}:{S_LOGA+1}]')
        a(f'global_load_ushort v41, v{T}, s[{S_AIM}:{S_AIM+1}]')
        a(f'global_load_ushort v42, v{T}, s[{S_CRE}:{S_CRE+1}]')
        a(f'global_load_ushort v43, v{T}, s[{S_CIM}:{S_CIM+1}]')
        a(f'v_lshrrev_b32 v{T+1}, 7, v{V_TID}')
        a(f'v_add_u32 v{T+1}, s{S_C0}, v{T+1}')
        a(f'v_lshlrev_b32 v{T+1}, 1, v{T+1}')
        a(f'global_load_ushort v44, v{T+1}, s[{S_LOGDT}:{S_LOGDT+1}]')
        a(f's_lshl_b32 s{S_T0}, s{S_C0}, 1')
        a(f's_add_u32 s{S_T0+2}, s{S_DSK}, s{S_T0}')
        a(f's_addc_u32 s{S_T0+3}, s{S_DSK+1}, 0')
        a(f's_load_dword s{S_DSKV}, s[{S_T0+2}:{S_T0+3}], 0')

    def kgen(self):
        a = self.a; o = self.o
        a.c('================ K generation ================')
        T = V_P
        LA, AI, CR, CI, LD = 56, 57, 58, 59, 60
        for i, r in enumerate((LA, AI, CR, CI, LD)): a(f'v_mov_b32 v{r}, v{40+i}')
        for r in (LA, AI, CR, CI, LD): a(f'v_lshlrev_b32 v{r}, 16, v{r}')
        DT, EA = 62, 63
        self.exp_acc(DT, LD, T); self.rbf(DT, DT)
        self.exp_acc(EA, LA, T); self.rbf(EA, EA)
        AR2, REV = 64, 65
        a(f'v_mul_f32 v{AR2}, v{EA}, v{DT}')
        a(f'v_mul_f32 v{AR2}, {hex(LOG2E ^ 0x80000000)}, v{AR2}')
        a(f'v_mul_f32 v{REV}, v{AI}, v{DT}')
        a(f'v_mul_f32 v{REV}, 0.15915494, v{REV}')
        MX = 66
        a(f'v_max_f32 v{MX}, |v{CR}|, |v{CI}|')
        for ctrl in ('row_ror:1', 'row_ror:2', 'row_ror:4', 'row_ror:8'):
            a(f'v_mov_b32_dpp v{T}, v{MX} {ctrl} row_mask:0xf bank_mask:0xf')
            a(f'v_max_f32 v{MX}, v{MX}, v{T}')
        a(f'v_mov_b32 v{T}, v{MX}')
        a(f'v_permlane16_swap_b32 v{MX}, v{T}')
        a(f'v_max_f32 v{MX}, v{MX}, v{T}')
        a(f'v_mov_b32 v{T}, v{MX}')
        a(f'v_permlane32_swap_b32 v{MX}, v{T}')
        a(f'v_max_f32 v{MX}, v{MX}, v{T}')
        a(f's_lshl_b32 s{S_T0}, s{S_W}, 2')
        a(f's_add_u32 s{S_T0}, s{S_T0}, {self.KG_MX}')
        a(f'v_mov_b32 v{T}, s{S_T0}')
        a(f'ds_write_b32 v{T}, v{MX}')
        a('s_waitcnt lgkmcnt(0)')
        a('s_barrier')
        a(f's_lshl_b32 s{S_T0}, s{S_RHALF}, 3')
        a(f's_add_u32 s{S_T0}, s{S_T0}, {self.KG_MX}')
        a(f'v_mov_b32 v{T}, s{S_T0}')
        a(f'ds_read_b64 v[{T+2}:{T+3}], v{T}')
        a('s_waitcnt lgkmcnt(0)')
        a(f'v_max_f32 v{MX}, v{T+2}, v{T+3}')
        a(f'v_lshrrev_b32 v{MX}, 23, v{MX}')
        a(f'v_max_u32 v{MX}, 1, v{MX}')
        a(f'v_min_u32 v{MX}, 253, v{MX}')
        SCL = 67
        a(f'v_sub_u32 v{SCL}, 254, v{MX}')
        a(f'v_lshlrev_b32 v{SCL}, 23, v{SCL}')
        a(f'v_lshlrev_b32 v{T}, 23, v{MX}')
        a(f'v_mul_f32 v{T}, v{T}, v{DT}')
        a(f'v_mul_f32 v{T}, 0x3d000000, v{T}')
        a(f's_lshl_b32 s{S_T0}, s{S_RHALF}, 2')
        a(f's_add_u32 s{S_T0}, s{S_T0}, {self.KG_MX + 32}')
        a(f'v_mov_b32 v{T+1}, s{S_T0}')
        a(f'ds_write_b32 v{T+1}, v{T}')
        C = 58
        a(f'v_pk_mul_f32 v[{C}:{C+1}], v[{C}:{C+1}], v[{SCL-1}:{SCL}] op_sel:[0,1] op_sel_hi:[1,1]')
        Z1, Z8, Z256 = 68, 70, 72
        self.cis_pow(Z1, AR2, REV, 1, T)
        self.cis_pow(Z8, AR2, REV, 8, T)
        self.cis_pow(Z256, AR2, REV, 256, T)
        TA = 74
        a(f'v_lshrrev_b32 v{T}, 7, v{V_TID}')
        a(f'v_mul_u32_u24 v{T}, 16896, v{T}')
        a(f'v_and_b32 v{T+1}, 127, v{V_TID}')
        a(f'v_lshl_add_u32 v{TA}, v{T+1}, 2, v{T}')
        P0, P1 = 76, 78
        H = 80
        a(f'v_mov_b32 v{P0}, 1.0'); a(f'v_mov_b32 v{P0+1}, 0')
        cur, nxt = P0, P1
        for b in range(32):
            a(f'v_cvt_pkrtz_f16_f32 v{H + (b & 1)}, v{cur}, -v{cur+1}')
            a(f'ds_write_b32 v{TA}, v{H + (b & 1)} offset:{self.KG_A + b * 528}')
            if b < 31:
                self.cmul(nxt, cur, Z8); cur, nxt = nxt, cur
        def putB(col, r):
            a(f'v_cvt_pkrtz_f16_f32 v{H + (col & 1)}, v{r}, v{r+1}')
            a(f'ds_write_b32 v{TA}, v{H + (col & 1)} offset:{self.KG_B + col * 528}')
        Z2, Z4, Z6 = 82, 84, 86
        self.cmul(Z2, Z1, Z1); self.cmul(Z4, Z2, Z2); self.cmul(Z6, Z4, Z2)
        putB(0, C)
        cur, nxt = P0, P1
        self.cmul(cur, C, Z1); putB(1, cur)
        for k in range(2, 8):
            self.cmul(nxt, cur, Z1); cur, nxt = nxt, cur; putB(k, cur)
        G, G2, W1 = 88, 90, 92
        self.cmul(G, C, Z256)
        putB(8, G)
        for k, zz in ((9, Z2), (10, Z4), (11, Z6)):
            self.cmul(W1, G, zz); putB(k, W1)
        self.cmul(G2, G, Z256)
        putB(12, G2); self.cmul(W1, G2, Z4); putB(13, W1)
        self.cmul(G, G2, Z256)
        putB(14, G); self.cmul(W1, G, Z4); putB(15, W1)
        self.cmul(G2, G, Z256); putB(16, G2)
        self.cmul(G, G2, Z256); putB(17, G)
        self.cmul(G2, G, Z256); putB(18, G2)
        self.cmul(G, G2, Z256); putB(19, G)
        self.cmul(G2, G, Z256); putB(20, G2)
        a('s_waitcnt lgkmcnt(0)')
        a('s_barrier')
        AA, BA = T, T + 1
        a(f'v_and_b32 v{T+2}, 15, v{V_LANE}')
        a(f'v_mul_u32_u24 v{T+2}, 528, v{T+2}')
        a(f'v_lshrrev_b32 v{T+3}, 4, v{V_LANE}')
        a(f'v_lshl_add_u32 v{T+2}, v{T+3}, 4, v{T+2}')
        a(f's_mul_i32 s{S_T0}, s{S_HSEL}, 16896')
        a(f'v_add_u32 v{AA}, s{S_T0}, v{T+2}')
        a(f's_mul_i32 s{S_T0+1}, s{S_RHALF}, {16 * 528}')
        a(f's_add_u32 s{S_T0}, s{S_T0}, s{S_T0+1}')
        a(f's_add_u32 s{S_T0}, s{S_T0}, {self.KG_B}')
        a(f'v_add_u32 v{BA}, s{S_T0}, v{T+2}')
        FA, FB, DD = 56, 88, 104
        for ks in range(8):
            a(f'ds_read_b128 v[{FA}:{FA+3}], v{AA} offset:{self.KG_A + ks * 64}')
            a(f'ds_read_b128 v[{FA+4}:{FA+7}], v{AA} offset:{self.KG_A + 16 * 528 + ks * 64}')
            a(f'ds_read_b128 v[{FB}:{FB+3}], v{BA} offset:{ks * 64}')
            a('s_waitcnt lgkmcnt(0)')
            for mb in range(2):
                c = '0' if ks == 0 else f'v[{DD+4*mb}:{DD+4*mb+3}]'
                a(f'v_mfma_f32_16x16x32_f16 v[{DD+4*mb}:{DD+4*mb+3}], v[{FA+4*mb}:{FA+4*mb+3}], v[{FB}:{FB+3}], {c}')
        COL, P2 = T, T + 1
        a(f'v_and_b32 v{COL}, 15, v{V_LANE}')
        a(f's_lshl_b32 s{S_T0}, s{S_RHALF}, 4')
        a(f'v_add_u32 v{COL}, s{S_T0}, v{COL}')
        t2, t3 = T + 2, T + 3
        a(f'v_mov_b32 v{P2}, v{COL}')
        a(f'v_lshlrev_b32 v{t2}, 1, v{COL}'); a(f'v_add_u32 v{t2}, {256 - 16}, v{t2}')
        a(f'v_cmp_le_u32 vcc, 8, v{COL}'); a(f'v_cndmask_b32 v{P2}, v{P2}, v{t2}, vcc')
        a(f'v_and_b32 v{t2}, 1, v{COL}'); a(f'v_lshlrev_b32 v{t2}, 2, v{t2}')
        a(f'v_bfe_u32 v{t3}, v{COL}, 1, 1'); a(f'v_lshlrev_b32 v{t3}, 8, v{t3}')
        a(f'v_add3_u32 v{t2}, v{t2}, v{t3}, 0'); a(f'v_add_u32 v{t2}, 512, v{t2}')
        a(f'v_cmp_le_u32 vcc, 12, v{COL}'); a(f'v_cndmask_b32 v{P2}, v{P2}, v{t2}, vcc')
        a(f'v_lshlrev_b32 v{t2}, 8, v{COL}'); a(f'v_add_u32 v{t2}, {1024 - 4096 + 0x100000}, v{t2}'); a(f'v_and_b32 v{t2}, 0xfffff, v{t2}')
        a(f'v_cmp_le_u32 vcc, 16, v{COL}'); a(f'v_cndmask_b32 v{P2}, v{P2}, v{t2}, vcc')
        a(f'v_lshrrev_b32 v{t2}, 4, v{V_LANE}')
        a(f'v_lshl_add_u32 v{t2}, v{t2}, 5, v{P2}')
        a(f'v_lshlrev_b32 v{t2}, 1, v{t2}')
        a(f's_mul_i32 s{S_T0}, s{S_HSEL}, 4112')
        a(f's_add_u32 s{S_T0}, s{S_T0}, {self.KG_D}')
        a(f'v_add_u32 v{t2}, s{S_T0}, v{t2}')
        for i in range(8):
            a(f'v_mul_f32 v{DD+i}, 0x42800000, v{DD+i}')
            a(f'v_cvt_f16_f32 v{DD+i}, v{DD+i}')
        a(f'v_cmp_gt_u32 vcc, 20, v{COL}')
        a(f's_and_saveexec_b64 s[{S_T0+2}:{S_T0+3}], vcc')
        for mb in range(2):
            for r in range(4):
                a(f'ds_write_b16 v{t2}, v{DD+4*mb+r} offset:{(128*mb + 8*r) * 2}')
        a(f's_mov_b64 exec, s[{S_T0+2}:{S_T0+3}]')
        a(f'v_cmp_eq_u32 vcc, 20, v{COL}')
        a(f'v_lshrrev_b32 v{t3}, 4, v{V_LANE}')
        a(f'v_cmp_eq_u32 s[{S_T0+4}:{S_T0+5}], 0, v{t3}')
        a(f's_and_b64 vcc, vcc, s[{S_T0+4}:{S_T0+5}]')
        a(f's_and_saveexec_b64 s[{S_T0+2}:{S_T0+3}], vcc')
        a(f'ds_write_b16 v{t2}, v{DD}')
        a(f's_mov_b64 exec, s[{S_T0+2}:{S_T0+3}]')
        a('s_waitcnt lgkmcnt(0)')
        a('s_barrier')
        LL = 56
        for i in range(12):
            a(f'v_lshlrev_b32 v{T}, 3, v{V_TID}')
            a(f'v_add_u32 v{T}, {i - 4 + 0}, v{T}') if i >= 4 else a(f'v_subrev_u32 v{T}, {4 - i}, v{T}')
            a(f'v_max_i32 v{T}, 0, v{T}')
            a(f'v_cvt_f32_u32 v{T}, v{T}')
            self.rbf(T, T)
            a(f'v_cvt_u32_f32 v{T}, v{T}')
            a(f'v_lshlrev_b32 v{LL+i}, 1, v{T}')
            a(f'v_add_u32 v{LL+i}, {self.KG_D}, v{LL+i}')
        GT = 72
        for ch in range(2):
            for i in range(12):
                a(f'ds_read_u16 v{GT + 12*ch + i}, v{LL+i} offset:{ch * 4112}')
        a('s_waitcnt lgkmcnt(0)')
        for ch in range(2):
            for i in range(6):
                a(f'v_lshl_or_b32 v{V_K + 6*ch + i}, v{GT + 12*ch + 2*i + 1}, 16, v{GT + 12*ch + 2*i}')
        a(f'v_mov_b32 v{T}, {self.KG_MX + 32}')
        a(f'ds_read_b64 v[{T+2}:{T+3}], v{T}')
        a('s_waitcnt lgkmcnt(0)')
        a(f'v_readfirstlane_b32 s{S_KSC}, v{T+2}')
        a(f'v_readfirstlane_b32 s{S_KSC+1}, v{T+3}')
        a(f'v_cmp_eq_u32 vcc, 0, v{V_TID}')
        for ch in range(2):
            for i in range(2):
                a(f'v_cndmask_b32 v{V_K+6*ch+i}, v{V_K+6*ch+i}, 0, vcc') if False else a(f'v_cndmask_b32 v{V_K+6*ch+i}, v{V_K+6*ch+i}, v{self.zero_reg()}, vcc')
        a('s_waitcnt lgkmcnt(0)')
        a('s_barrier')
        if o.dump == 'kgen': self.dump(V_K, 12, 0)

    def zero_reg(self):
        self.a(f'v_mov_b32 v119, 0')
        return 119

    CV_KC = 0
    CV_U = 33280
    CV_X1 = 42496
    CV_EX = 50688
    def k_copies(self):
        a = self.a
        a.c('K shifted copies -> LDS')
        T = V_P
        AD = T
        a(f'v_lshlrev_b32 v{AD}, 4, v{V_TID}')
        a(f'v_add_u32 v{AD}, {self.CV_KC + 32}, v{AD}')
        W = 56
        for ch in range(2):
            d = V_K + 6 * ch
            base = ch * 16640
            a(f'ds_write_b128 v{AD}, v[{d+2}:{d+5}] offset:{base}')
            for i in range(4): a(f'v_mov_b32 v{W+i}, v{d+1+i}')
            a(f'ds_write_b128 v{AD}, v[{W}:{W+3}] offset:{base + 2*4160}')
            for i in range(5): a(f'v_alignbit_b32 v{W+4+i}, v{d+i+1}, v{d+i}, 16')
            a(f'ds_write_b128 v{AD}, v[{W+4}:{W+7}] offset:{base + 3*4160}')
            for i in range(4): a(f'v_mov_b32 v{W+10+i}, v{W+5+i}')
            a(f'ds_write_b128 v{AD}, v[{W+10}:{W+13}] offset:{base + 1*4160}')
        for i in range(4): a(f'v_mov_b32 v{W+i}, 0')
        a(f'v_lshrrev_b32 v{T+1}, 1, v{V_TID}')
        a(f'v_mul_u32_u24 v{T+1}, 4160, v{T+1}')
        a(f'v_and_b32 v{T+2}, 1, v{V_TID}')
        a(f'v_lshl_add_u32 v{T+1}, v{T+2}, 4, v{T+1}')
        a(f'v_add_u32 v{T+1}, {self.CV_KC}, v{T+1}')
        a(f'v_cmp_gt_u32 vcc, 16, v{V_TID}')
        a(f's_and_saveexec_b64 s[{S_T0+2}:{S_T0+3}], vcc')
        a(f'ds_write_b128 v{T+1}, v[{W}:{W+3}]')
        a(f's_mov_b64 exec, s[{S_T0+2}:{S_T0+3}]')
        a(f'v_lshrrev_b32 v{T+1}, 5, v{V_TID}')
        a(f'v_mul_u32_u24 v{T+1}, 4608, v{T+1}')
        a(f'v_and_b32 v{T+2}, 31, v{V_TID}')
        a(f'v_lshl_add_u32 v{T+1}, v{T+2}, 4, v{T+1}')
        a(f'v_add_u32 v{T+1}, {self.CV_U}, v{T+1}')
        a(f'v_cmp_gt_u32 vcc, 64, v{V_TID}')
        a(f's_and_saveexec_b64 s[{S_T0+2}:{S_T0+3}], vcc')
        a(f'ds_write_b128 v{T+1}, v[{W}:{W+3}]')
        a(f's_mov_b64 exec, s[{S_T0+2}:{S_T0+3}]')

    def conv(self, L):
        a = self.a; o = self.o
        a.c(f'================ conv layer {L} ================')
        self.k_copies()
        T = V_P
        XR, SM, SQ = 48, 56, 64
        GA = 112
        a(f's_lshl_b32 s{S_T0}, s{S_C0}, 12')
        a(f's_add_u32 s{S_T0}, s{S_T0}, {WS_X1T + L * 0x200000}')
        a(f'v_lshlrev_b32 v{GA}, 4, v{V_TID}')
        a(f'v_add_u32 v{GA}, s{S_T0}, v{GA}')
        a(f'v_add_u32 v{GA+1}, 4096, v{GA}')
        a(f'v_lshlrev_b32 v{GA+2}, 5, v{V_TID}')
        a(f'v_add_u32 v{GA+2}, {WS_STATS + L * 0x4000}, v{GA+2}')
        a(f'v_add_u32 v{GA+3}, 8192, v{GA+2}')
        AA, BA = 24, 25
        a(f'v_bfe_u32 v{T+2}, v{V_LANE}, 2, 2')
        a(f'v_mul_u32_u24 v{AA}, 4160, v{T+2}')
        a(f'v_lshrrev_b32 v{T+2}, 4, v{V_LANE}')
        a(f'v_lshlrev_b32 v{T+3}, 4, v{T+2}')
        a(f'v_sub_u32 v{AA}, v{AA}, v{T+3}')
        a(f'v_and_b32 v{T+4}, 3, v{V_LANE}')
        a(f'v_lshl_add_u32 v{AA}, v{T+4}, 3, v{AA}')
        a(f's_mul_i32 s{S_T0}, s{S_HSEL}, 16640')
        a(f's_lshl_b32 s{S_T0+1}, s{S_RHALF}, 8')
        a(f's_add_u32 s{S_T0}, s{S_T0}, s{S_T0+1}')
        a(f's_add_u32 s{S_T0}, s{S_T0}, {self.CV_KC + 32}')
        a(f'v_add_u32 v{AA}, s{S_T0}, v{AA}')
        a(f'v_and_b32 v{BA}, 15, v{V_LANE}')
        a(f'v_lshlrev_b32 v{BA}, 5, v{BA}')
        a(f'v_add_u32 v{BA}, v{BA}, v{T+3}')
        a(f's_mul_i32 s{S_T0}, s{S_HSEL}, 4608')
        a(f's_add_u32 s{S_T0}, s{S_T0}, {self.CV_U}')
        a(f's_lshl_b32 s{S_T0+1}, s{S_RHALF}, 8')
        a(f's_sub_u32 s{S_T0}, s{S_T0}, s{S_T0+1}')
        a(f'v_add_u32 v{BA}, s{S_T0}, v{BA}')
        K5, EP = 72, 74
        a(f'v_mov_b32 v{K5}, 0x3b000000'); a(f'v_mov_b32 v{K5+1}, 0x3b000000')
        a(f'v_mov_b32 v{EP}, 0x3727c5ac'); a(f'v_mov_b32 v{EP+1}, 0x3727c5ac')
        a('s_waitcnt lgkmcnt(0)')
        self.wait(4 * L + 2, None, 256)
        self.stamp(11 + 16 * L)
        a(f'global_load_dwordx4 v[{SM}:{SM+3}], v{GA+2}, {WSB} sc1')
        a(f'global_load_dwordx4 v[{SQ}:{SQ+3}], v{GA+3}, {WSB} sc1')
        a(f'global_load_dwordx4 v[{SM+4}:{SM+7}], v{GA+2}, {WSB} offset:16 sc1')
        a(f'global_load_dwordx4 v[{SQ+4}:{SQ+7}], v{GA+3}, {WSB} offset:16 sc1')
        a(f'global_load_dwordx4 v[{XR}:{XR+3}], v{GA}, {WSB} sc1')
        a(f'global_load_dwordx4 v[{XR+4}:{XR+7}], v{GA+1}, {WSB} sc1')
        if L == 0:
            l = self.lab('nonce')
            a(f's_add_u32 s{S_T0}, s{S_WG}, s{S_W}')
            a(f's_cmp_lg_u32 s{S_T0}, 0')
            a(f's_cbranch_scc1 {l}')
            a(f'v_mov_b32 v126, {WS_NONCE}')
            a(f'v_mov_b32 v127, s{S_NONCE}')
            a('s_mov_b64 exec, 1')
            a(f'global_store_dword v126, v127, {WSB} sc1')
            a('s_mov_b64 exec, -1')
            a.label(l)
        def rb2(r, u):
            a = self.a
            a(f'v_cvt_pk_bf16_f32 v{u}, v{r}, v{r+1}')
            a(f'v_lshlrev_b32 v{r}, 16, v{u}')
            a(f'v_and_b32 v{r+1}, 0xffff0000, v{u}')
        def fin(p, u):
            a = self.a
            m, q = SM + p, SQ + p
            a(f'v_pk_mul_f32 v[{m}:{m+1}], v[{m}:{m+1}], v[{K5}:{K5+1}]')
            a(f'v_pk_mul_f32 v[{q}:{q+1}], v[{q}:{q+1}], v[{K5}:{K5+1}]')
            a(f'v_pk_fma_f32 v[{q}:{q+1}], v[{m}:{m+1}], v[{m}:{m+1}], v[{q}:{q+1}] neg_lo:[1,0,0] neg_hi:[1,0,0]')
            a(f'v_max_f32 v{q}, 0, v{q}'); a(f'v_max_f32 v{q+1}, 0, v{q+1}')
            rb2(m, u); rb2(q, u)
            a(f'v_pk_add_f32 v[{q}:{q+1}], v[{q}:{q+1}], v[{EP}:{EP+1}]')
            rb2(q, u)
            a(f'v_sqrt_f32 v{q}, v{q}'); a(f'v_sqrt_f32 v{q+1}, v{q+1}')
            rb2(q, u)
            a(f'v_rcp_f32 v{q}, v{q}'); a(f'v_rcp_f32 v{q+1}, v{q+1}')
        a('s_waitcnt vmcnt(4)') if L == 1 else a('s_waitcnt vmcnt(4)')
        self.merge(self.cap(lambda: fin(0, 76)), self.cap(lambda: fin(2, 77)))
        a('s_waitcnt vmcnt(2)') if L == 1 else a('s_waitcnt vmcnt(0)')
        self.merge(self.cap(lambda: fin(4, 76)), self.cap(lambda: fin(6, 77)))
        a('s_waitcnt vmcnt(0)')
        UO, E = 80, 88
        def elem(ch, p, e, u):
            a = self.a
            x = XR + 4 * ch + p
            m, q = SM + 2 * p, SQ + 2 * p
            a(f'v_lshlrev_b32 v{e}, 16, v{x}')
            a(f'v_and_b32 v{e+1}, 0xffff0000, v{x}')
            a(f'v_pk_add_f32 v[{e}:{e+1}], v[{e}:{e+1}], v[{m}:{m+1}] neg_lo:[0,1] neg_hi:[0,1]')
            rb2(e, u)
            a(f'v_pk_mul_f32 v[{e}:{e+1}], v[{e}:{e+1}], v[{q}:{q+1}]')
            rb2(e, u)
            a(f'v_cvt_pkrtz_f16_f32 v{UO+4*ch+p}, v{e}, v{e+1}')
        a(f'v_lshlrev_b32 v{GA}, 4, v{V_TID}')
        for ch in range(2):
            a(f'ds_write_b128 v{GA}, v[{XR+4*ch}:{XR+4*ch+3}] offset:{self.CV_X1 + ch*4096}')
        for ch in range(2):
            for p in range(0, 4, 2):
                self.merge(self.cap(lambda: elem(ch, p, E, 76)), self.cap(lambda: elem(ch, p + 1, E + 2, 77)))
            a(f'ds_write_b128 v{GA}, v[{UO+4*ch}:{UO+4*ch+3}] offset:{self.CV_U + ch*4608 + 512}')
        a('s_waitcnt lgkmcnt(0)')
        a('s_barrier')
        self.stamp(12 + 16 * L)
        ACC, BF, AF = 48, 80, [12, 16, 20]
        self.lg = []
        def readB(ee, m):
            e = 1 + 2 * ee
            d = BF + 4 * m
            self.lg_op(f'ds_read_b128 v[{d}:{d+3}], v{BA} offset:{512 + 512*m - 32*e}', f'B{ee}_{m}')
        def readA(idx):
            ee, g = seq[idx]
            e = 1 + 2 * ee
            sl = AF[idx % 3]
            for x in range(2):
                self.lg_op(f'ds_read_b64_tr_b16 v[{sl+2*x}:{sl+2*x+1}], v{AA} offset:{32*e + 512*g - 8*x}', f'A{idx}')
        seq = [(ee, g) for ee in range(4) for g in range(8)]
        readA(0)
        for m in range(7, -1, -1): readB(0, m)
        readA(1)
        first = set()
        for idx, (ee, g) in enumerate(seq):
            if idx + 2 < len(seq): readA(idx + 2)
            self.wait_lg(f'A{idx}')
            sl = AF[idx % 3]
            for n in range(7, g - 1, -1):
                m = n - g
                if g == 0: self.wait_lg(f'B{ee}_{m}')
                acc = ACC + 4 * n
                c = f'v[{acc}:{acc+3}]' if n in first else '0'
                first.add(n)
                a(f'v_mfma_f32_16x16x32_f16 v[{acc}:{acc+3}], v[{sl}:{sl+3}], v[{BF+4*m}:{BF+4*m+3}], {c}')
                if n == 7 and ee + 1 < 4: readB(ee + 1, m)
        self.stamp(13 + 16 * L)
        T = 12
        a(f'v_lshlrev_b32 v{T}, 4, v{V_LANE}')
        a(f's_lshl_b32 s{S_T0}, s{S_W}, 13')
        a(f's_add_u32 s{S_T0}, s{S_T0}, {self.CV_EX}')
        a(f'v_add_u32 v{T+1}, s{S_T0}, v{T}')
        for n in range(7, -1, -1):
            a(f'ds_write_b128 v{T+1}, v[{ACC+4*n}:{ACC+4*n+3}] offset:{n*1024}')
        a(f's_lshl_b32 s{S_T0}, s{S_W}, 11')
        a(f's_add_u32 s{S_T0}, s{S_T0}, {self.CV_EX}')
        a(f'v_add_u32 v{T+1}, s{S_T0}, v{T}')
        a(f'v_and_b32 v{T+2}, 15, v{V_LANE}')
        a(f'v_lshlrev_b32 v{T+2}, 4, v{T+2}')
        a(f'v_lshrrev_b32 v{T+3}, 4, v{V_LANE}')
        a(f'v_lshl_add_u32 v{T+2}, v{T+3}, 2, v{T+2}')
        a(f's_lshl_b32 s{S_T0}, s{S_W}, 9')
        a(f'v_add_u32 v{T+2}, s{S_T0}, v{T+2}')
        a(f'v_lshlrev_b32 v{T+3}, 1, v{T+2}')
        XX, UU = 80, 88
        for nn in range(2):
            for ch in range(2):
                a(f'ds_read_b64 v[{XX+4*nn+2*ch}:{XX+4*nn+2*ch+1}], v{T+3} offset:{self.CV_X1 + ch*4096 + nn*512}')
                a(f'ds_read_b64 v[{UU+4*nn+2*ch}:{UU+4*nn+2*ch+1}], v{T+3} offset:{self.CV_U + ch*4608 + 512 + nn*512}')
        a(f's_lshl_b32 s{S_T0}, s{S_DSKV}, 16')
        a(f's_and_b32 s{S_T0+1}, s{S_DSKV}, 0xffff0000')
        if L == 0:
            a(f's_lshl_b32 s{S_T0+2}, s{S_C0}, 12')
            a(f's_add_u32 s{S_T0+2}, s{S_T0+2}, {WS_X2T}')
            a(f'v_add_u32 v{T+4}, s{S_T0+2}, v{T+3}')
            a(f'v_add_u32 v{T+5}, 4096, v{T+4}')
        else:
            a(f's_lshl_b32 s{S_T0+2}, s{S_C0}, 1')
            a(f'v_lshlrev_b32 v{T+4}, 10, v{T+2}')
            a(f'v_add_u32 v{T+4}, s{S_T0+2}, v{T+4}')
        a('s_waitcnt lgkmcnt(0)')
        a('s_barrier')
        Y = 48
        for nn in range(2):
            for ch in range(2):
                for eh in range(2):
                    a(f'ds_read_b128 v[{Y+16*nn+8*ch+4*eh}:{Y+16*nn+8*ch+4*eh+3}], v{T+1} offset:{(ch + 2*eh) * 8192 + nn * 1024}')
        R = 96
        def pre(nn, ch, h, e):
            a = self.a
            res = R + 8*nn + 4*ch + 2*h
            xr, ur = XX + 4*nn + 2*ch + h, UU + 4*nn + 2*ch + h
            a(f'v_cvt_f32_f16 v{e}, v{ur}')
            a(f'v_cvt_f32_f16_sdwa v{e+1}, v{ur} dst_sel:DWORD dst_unused:UNUSED_PAD src0_sel:WORD_1')
            a(f'v_lshlrev_b32 v{res}, 16, v{xr}')
            a(f'v_and_b32 v{res+1}, 0xffff0000, v{xr}')
            a(f'v_fmac_f32 v{res}, s{S_T0+ch}, v{e}')
            a(f'v_fmac_f32 v{res+1}, s{S_T0+ch}, v{e+1}')
        for nn in range(2):
            for ch in range(2):
                self.merge(self.cap(lambda: pre(nn, ch, 0, 112)), self.cap(lambda: pre(nn, ch, 1, 114)))
        E = 116
        for nn in range(2):
            a(f's_waitcnt lgkmcnt({4 - 4*nn})')
            for ch in range(2):
                y0, y1 = Y + 16*nn + 8*ch, Y + 16*nn + 8*ch + 4
                res = R + 8*nn + 4*ch
                for h in range(2):
                    a(f'v_pk_add_f32 v[{y0+2*h}:{y0+2*h+1}], v[{y0+2*h}:{y0+2*h+1}], v[{y1+2*h}:{y1+2*h+1}]')
                for i in range(4):
                    a(f'v_fmac_f32 v{res+i}, s{S_KSC+ch}, v{y0+i}')
                if L == 0:
                    e = E + 2 * (ch & 1)
                    a(f'v_cvt_pk_bf16_f32 v{e}, v{res}, v{res+1}')
                    a(f'v_cvt_pk_bf16_f32 v{e+1}, v{res+2}, v{res+3}')
                    a(f'global_store_dwordx2 v{T+4+ch}, v[{e}:{e+1}], {WSB} offset:{nn*512} sc1')
            if L == 1:
                for r in range(4):
                    a(f'v_cvt_pk_bf16_f32 v{E+(r&3)}, v{R+8*nn+r}, v{R+8*nn+4+r}')
                    a(f'v_add_u32 v{T+6+(r&1)}, {(256*nn + r) * 1024}, v{T+4}')
                    a(f'global_store_dword v{T+6+(r&1)}, v{E+(r&3)}, s[{S_OUT}:{S_OUT+1}]')
        if L == 0: self.signal_wg(4 * L + 3, S_WG)
        self.stamp(14 + 16 * L)

    def kvt_zero(self, T):
        a = self.a
        for i in range(4): a(f'v_mov_b32 v{T+4+i}, 0')
        a(f'v_lshlrev_b32 v{T}, 4, v{V_TID}')
        a(f'v_add_u32 v{T}, {SC_KVT}, v{T}')
        a(f'ds_write_b128 v{T}, v[{T+4}:{T+7}]')
        a(f's_mov_b64 exec, -1') ;
        l = self.lab('kz')
        a(f's_cmp_lg_u32 s{S_W}, 0')
        a(f's_cbranch_scc1 {l}')
        a(f'ds_write_b128 v{T}, v[{T+4}:{T+7}] offset:4096')
        a.label(l)

    def stats_zero(self, T):
        a = self.a
        a(f'v_bfe_u32 v{T}, v{V_LANE}, 2, 1')
        a(f'v_lshlrev_b32 v{T}, 14, v{T}')
        a(f'v_bfe_u32 v{T+1}, v{V_LANE}, 1, 1')
        a(f'v_lshl_add_u32 v{T}, v{T+1}, 13, v{T}')
        a(f'v_and_b32 v{T+1}, 1, v{V_LANE}')
        a(f'v_lshl_add_u32 v{T}, v{T+1}, 2, v{T}')
        a(f's_lshl_b32 s{S_T0}, s{S_RB}, 9')
        a(f's_lshl_b32 s{S_T0+1}, s{S_W}, 7')
        a(f's_add_u32 s{S_T0}, s{S_T0}, s{S_T0+1}')
        a(f's_lshl_b32 s{S_T0+1}, s{S_HB}, 3')
        a(f's_add_u32 s{S_T0}, s{S_T0}, s{S_T0+1}')
        a(f's_add_u32 s{S_T0}, s{S_T0}, {WS_STATS}')
        a(f'v_add_u32 v{T}, s{S_T0}, v{T}')
        a(f'v_mov_b32 v{T+1}, 0')
        a('s_mov_b64 exec, 0xff')
        a(f'global_store_dword v{T}, v{T+1}, {WSB} sc1')
        a('s_mov_b64 exec, -1')

    def build(self):
        a = self.a; o = self.o
        self.trk_reset()
        self.prologue()
        self.stamp(0)
        stop = o.stop
        def chk(name):
            if stop == name:
                a('s_waitcnt vmcnt(0) lgkmcnt(0)')
                a('s_branch L_end')
                return True
            return False
        if o.pt:
            sh = o.pt
            a(f'v_lshlrev_b32 v122, {sh}, v{V_TID}')
            a(f'v_min_u32 v122, {0xF00000 - 4}, v122')
            a(f'v_cmp_gt_u32 vcc, {min((0xF00000 >> sh), 256)}, v{V_TID}')
            a(f's_and_saveexec_b64 s[{S_T0+2}:{S_T0+3}], vcc')
            l = self.lab('pt')
            a(f's_cbranch_execz {l}')
            a(f'global_load_dword a250, v122, {WSB}')
            a.label(l)
            a(f's_mov_b64 exec, s[{S_T0+2}:{S_T0+3}]')
            a(f'v_mov_b32 v122, 0')
            a(f's_mov_b64 exec, 1')
            a(f'global_load_dword a249, v122, s[{S_OUT}:{S_OUT+1}]')
            a(f'global_load_dword a248, v122, s[{S_WO}:{S_WO+1}]')
            a(f's_mov_b64 exec, -1')
        self.x_slice_prefetch(0)
        self.stats_zero(48)
        WB = 50
        self.w_dma_setup(WB)
        self.XD = 36
        self.x_dma_setup(0, self.XD)
        self.vm = []
        def wd(p, tag):
            n0 = len(self.a.lines)
            self.w_dma(p, WB); self.vm += [tag] * 8
        wd(1, 'wk'); wd(2, 'wv')
        for c in range(4):
            for i in range(4): self.dma_x(0, c, i)
        wd(0, 'wq')
        self.wphi_load(52); self.vm += ['wphi'] * 16
        self.kgen_loads(); self.vm += ['kg'] * 5
        KVA, QA = 44 + 1, 46 + 1
        self.wfrag_addr(KVA, QA, 52)
        SEL = 56
        self.cs_sel(SEL)
        self.bfrag_setup(0, self.XB)
        a('s_waitcnt lgkmcnt(0)')
        a(f's_add_u32 s{S_NONCE}, s{S_NONCE}, 0x9e3779b9')
        self.wait_vm('wv')
        a('s_barrier')
        for ks in range(32):
            for x in range(2):
                a(f'ds_read_b64_tr_b16 a[{4*ks+2*x}:{4*ks+2*x+1}], v{KVA} offset:{ks*1024 + x*256}')
        a('s_waitcnt lgkmcnt(0)')
        a('s_barrier')
        for c in range(4, 8):
            for i in range(4): self.dma_x(0, c, i)
        CSKV = 28
        self.cs_mfma(0, SEL, CSKV)
        self.stamp(1)
        if o.stamps: self.vm.append('stamp')
        for L in range(2):
            if L == 1:
                self.XD = 20 + 6
                self.XD = 28
                self.x_dma_setup(1, self.XD)
                self.bfrag_setup(1, self.XB)
                self.wait(3, None, 256)
                self.stamp(15)
                self.vm = []
                self.x_slice_prefetch(1); self.vm.append('pf')
                for c in range(3):
                    for i in range(4): self.dma_x(1, c, i)
            self.lg = []
            self.kv_pass(L, qaddr=QA)
            if L == 0: self.kvt_zero(96)
            self.kv_epilogue(L, cs_kv_reg=CSKV)
            self.q_pass(L)
            if chk(f'p1_{L}'): break
            self.o_stage(L)
            if chk(f'o_{L}'): break
            if L == 0: self.wo_stage()
            self.p2b(L)
            if chk(f'p2b_{L}'): break
            if L == 0:
                self.kgen()
                if chk('kgen'): break
            self.conv(L)
            if chk(f'conv_{L}'): break
        a.label('L_end')
        a('s_endpgm')

HEADER = open('cdna_kernels/' + KNAME + '.s.ref').read().split('; Override launch geometry')[0]

def main():
    ap = argparse.ArgumentParser()
    ap.add_argument('--out', default='cdna_kernels/' + KNAME + '.s')
    ap.add_argument('--stop', default='')
    ap.add_argument('--dump', default='')
    ap.add_argument('--stamps', action='store_true')
    ap.add_argument('--spin', type=int, default=40000)
    ap.add_argument('--pt', type=int, default=0)
    o = ap.parse_args()
    g = Gen(o)
    g.build()
    body = g.a.text()
    txt = HEADER
    txt += '; Persistent fused kernel: 256 workgroups (one per CU), generated by gen/gen2.py\n'
    txt += '; @launch grid=(256,1,1) block=(256,1,1) lds=163840\n'
    txt += '.amdgcn_target "amdgcn-amd-amdhsa--gfx950"\n.text\n'
    txt += f'.globl {KNAME}_kernel\n.p2align 8\n.type {KNAME}_kernel,@function\n{KNAME}_kernel:\n'
    txt += body
    txt += f'''.section .rodata,"a"
.p2align 6
.amdhsa_kernel {KNAME}_kernel
  .amdhsa_next_free_vgpr 512
  .amdhsa_next_free_sgpr 96
  .amdhsa_accum_offset 256
  .amdhsa_group_segment_fixed_size 0
  .amdhsa_kernarg_size 112
  .amdhsa_user_sgpr_count 2
  .amdhsa_user_sgpr_kernarg_segment_ptr 1
  .amdhsa_system_sgpr_workgroup_id_x 1
  .amdhsa_float_denorm_mode_32 3
.end_amdhsa_kernel
'''
    open(o.out, 'w').write(txt)
    print('wrote', o.out, len(txt), 'bytes;', body.count('\n'), 'lines')

if __name__ == '__main__':
    main()
```

```python
import sys, argparse, struct
sys.path.insert(0, 'gen')
from asmlib import Asm

KNAME = 'interleave_layers__linear_kernel_hedgehog__ssm_conv_s4d__prompt'

WS_NONCE = 0
WS_FLAGS = 0x80000
WS_STATS = 0x40000
WS_KVR   = 0x50000
WS_XT    = 0x78000
WS_KVP   = 0x100000
KVP_L    = 0x240000
KVB      = 9216
WS_O     = 0x600000
WS_X1T   = 0xA00000
WS_X2T   = 0xE00000
WS_DBG   = 0x2000000

LDS_WK, LDS_WV, LDS_WQ = 65536, 98304, 131072
SC_PHI   = 65536
PHI_W    = 4352
SC_V     = SC_PHI + 4 * PHI_W
SC_ST    = SC_V + 8192
SC_RED   = SC_ST + 1024
SC_KVT   = SC_RED + 2048
KVT_ROW  = 80
KVT_HEAD = 32 * KVT_ROW
SC_CS    = SC_KVT + 4 * KVT_HEAD
SC_END   = SC_CS + 768
LDS_KC   = 106496
assert SC_END <= LDS_KC, SC_END
LDS_FREE = LDS_KC + 33280

S_X, S_WQKV, S_WPHI, S_WO = 4, 6, 8, 10
S_LOGA, S_AIM, S_CRE, S_CIM = 12, 14, 16, 18
S_LOGDT, S_DSK, S_OUT, S_WS, S_DBG = 20, 22, 24, 26, 28
S_W, S_XCD, S_JL, S_RB, S_HB, S_T, S_CB, S_C0, S_NONCE = 30, 31, 32, 33, 34, 35, 36, 37, 38
S_W1024, S_HSEL, S_RHALF, S_WG = 39, 40, 41, 42
S_T0 = 44
S_KSC = 64
S_DSKV = 66
S_SLOT1 = 67
S_FAST = 68
S_XCC = 69

V_TID, V_LANE, V_HH, V_J = 0, 1, 2, 3
V_WPHI = 4
V_RESID = 12
V_PHIQ = 20
V_K = 36
V_P = 48
LOG2E = 0x3fb8aa3b
WSB = f's[{S_WS}:{S_WS+1}]'

def f2h(x): return hex(struct.unpack('<I', struct.pack('<f', float(x)))[0])

class Gen:
    def __init__(self, opts):
        self.a = Asm(); self.o = opts; self.uid = 0
    def lab(self, s):
        self.uid += 1
        return f'L_{s}_{self.uid}'
    def cap(self, fn):
        old = self.a; self.a = Asm(); fn(); lines = self.a.lines; self.a = old
        return lines
    def merge(self, *streams):
        n = max(len(s) for s in streams)
        pos = [0] * len(streams)
        for i in range(n):
            for k, s in enumerate(streams):
                want = (i + 1) * len(s) // n
                while pos[k] < want:
                    self.a.lines.append(s[pos[k]]); pos[k] += 1

    def dump(self, reg, n, slot, tmp=126):
        a = self.a
        a(f's_lshl_b32 s60, s{S_WG}, 10')
        a(f'v_lshlrev_b32 v{tmp}, 2, v{V_TID}')
        a(f'v_add_u32 v{tmp}, s60, v{tmp}')
        for i in range(n):
            a(f'v_add_u32 v{tmp+1}, {WS_DBG + (slot + i) * 256 * 256 * 4}, v{tmp}')
            a(f'global_store_dword v{tmp+1}, v{reg+i}, {WSB}')
        a('s_waitcnt vmcnt(0)')

    def stamp(self, idx):
        if not self.o.stamps: return
        a = self.a
        a('s_memrealtime s[60:61]')
        a('s_memtime s[58:59]')
        a('s_waitcnt lgkmcnt(0)')
        a('v_mov_b32 v124, s60'); a('v_mov_b32 v125, s61'); a('v_mov_b32 v126, s58'); a('v_mov_b32 v127, s59')
        a(f's_lshl_b32 s62, s{S_WG}, 11')
        a(f's_lshl_b32 s63, s{S_W}, 9')
        a('s_add_u32 s62, s62, s63')
        a(f's_add_u32 s62, s62, {WS_DBG + 0x4000000 + idx * 16}')
        a('v_mov_b32 v123, s62')
        a('s_mov_b64 s[56:57], exec')
        a('s_mov_b64 exec, 1')
        a(f'global_store_dwordx4 v123, v[124:127], {WSB}')
        a('s_mov_b64 exec, s[56:57]')
        self.nstamp_vm = 1

    def prologue(self):
        a = self.a
        a('s_cmp_ge_u32 s2, 256')
        a('s_cbranch_scc1 L_end')
        a('s_load_dwordx8 s[4:11], s[0:1], 0')
        a('s_load_dwordx2 s[26:27], s[0:1], 104')
        a('s_load_dwordx8 s[12:19], s[0:1], 40')
        a('s_load_dwordx4 s[20:23], s[0:1], 72')
        a('s_load_dwordx2 s[24:25], s[0:1], 88')
        a(f's_mov_b32 s{S_WG}, s2')
        a(f'v_and_b32 v{V_LANE}, 63, v0')
        a('s_getpc_b64 s[56:57]')
        a.label('L_pc')
        a('s_lshr_b32 s58, s2, 3')
        a('s_mul_i32 s58, s58, (L_end-L_pc)/32+128')
        a(f'v_lshlrev_b32 v4, 3, v0')
        a('v_add_u32 v4, s58, v4')
        a('v_min_u32 v4, L_end-L_pc-8, v4')
        a('global_load_dwordx2 a[252:253], v4, s[56:57]')
        a(f'v_lshrrev_b32 v{V_HH}, 6, v0')
        a('s_nop 0')
        a(f'v_readfirstlane_b32 s{S_W}, v{V_HH}')
        a(f'v_lshrrev_b32 v{V_HH}, 5, v{V_LANE}')
        a(f'v_and_b32 v{V_J}, 31, v{V_LANE}')
        a(f's_and_b32 s{S_XCD}, s2, 7')
        a(f's_lshr_b32 s{S_JL}, s2, 3')
        a(f's_and_b32 s{S_T0}, s{S_JL}, 3')
        a(f's_lshl_b32 s{S_RB}, s{S_XCD}, 2')
        a(f's_add_u32 s{S_RB}, s{S_RB}, s{S_T0}')
        a(f's_lshr_b32 s{S_HB}, s{S_JL}, 2')
        a(f's_and_b32 s{S_T0}, s{S_HB}, 1')
        a(f's_lshl_b32 s{S_T}, s{S_RB}, 1')
        a(f's_add_u32 s{S_T}, s{S_T}, s{S_T0}')
        a(f's_lshr_b32 s{S_CB}, s{S_HB}, 1')
        a(f's_lshl_b32 s{S_C0}, s{S_XCD}, 6')
        a(f's_lshl_b32 s{S_T0}, s{S_JL}, 1')
        a(f's_add_u32 s{S_C0}, s{S_C0}, s{S_T0}')
        a(f's_lshl_b32 s{S_W1024}, s{S_W}, 10')
        a(f's_and_b32 s{S_HSEL}, s{S_W}, 1')
        a(f's_lshr_b32 s{S_RHALF}, s{S_W}, 1')
        a(f's_lshl_b32 s{S_SLOT1}, s{S_HB}, 5')
        a(f's_add_u32 s{S_SLOT1}, s{S_SLOT1}, s{S_RB}')
        a('s_waitcnt lgkmcnt(0)')
        a(f's_load_dword s{S_NONCE}, {WSB}, {WS_NONCE}')

    def x_slice_prefetch(self, L):
        a = self.a
        if L == 0:
            a(f's_lshl_b32 s{S_T0}, s{S_RB}, 16')
            a(f's_lshl_b32 s{S_T0+1}, s{S_HB}, 13')
            a(f's_add_u32 s{S_T0}, s{S_T0}, s{S_T0+1}')
            a(f'v_lshlrev_b32 v123, 5, v{V_TID}')
            a(f'v_add_u32 v123, s{S_T0}, v123')
            a(f'global_load_dword a251, v123, s[{S_X}:{S_X+1}]')
        else:
            a(f'v_lshrrev_b32 v123, 2, v{V_TID}')
            a(f's_lshl_b32 s{S_T0}, s{S_HB}, 6')
            a(f'v_add_u32 v123, s{S_T0}, v123')
            a(f'v_lshlrev_b32 v123, 12, v123')
            a(f'v_and_b32 v122, 3, v{V_TID}')
            a(f'v_lshl_add_u32 v123, v122, 5, v123')
            a(f's_lshl_b32 s{S_T0}, s{S_RB}, 7')
            a(f's_add_u32 s{S_T0}, s{S_T0}, {WS_X2T}')
            a(f'v_add_u32 v123, s{S_T0}, v123')
            a(f'global_load_dword v121, v123, {WSB} sc1')

    def w_dma_setup(self, b):
        a = self.a
        t = b + 2
        a(f'v_lshrrev_b32 v{b}, 3, v{V_LANE}')
        a(f's_lshl_b32 s{S_T0}, s{S_W}, 3')
        a(f'v_add_u32 v{b}, s{S_T0}, v{b}')
        a(f'v_mul_u32_u24 v{b}, 3072, v{b}')
        a(f's_lshl_b32 s{S_T0}, s{S_HB}, 7')
        a(f'v_add_u32 v{b}, s{S_T0}, v{b}')
        a(f'v_bfe_u32 v{t}, v{V_LANE}, 4, 1')
        a(f'v_lshlrev_b32 v{t}, 2, v{t}')
        a(f'v_and_b32 v{t+1}, 7, v{V_LANE}')
        a(f'v_xor_b32 v{t}, v{t}, v{t+1}')
        a(f'v_xor_b32 v{t+1}, 2, v{t}')
        a(f'v_lshl_add_u32 v{b+1}, v{t+1}, 4, v{b}')
        a(f'v_lshl_add_u32 v{b}, v{t}, 4, v{b}')

    def w_dma(self, p, hf, b, tag):
        a = self.a
        dst = {0: LDS_WQ, 1: LDS_WK, 2: LDS_WV}[p]
        src = b + 1 if p == 2 else b
        for i in range(8):
            a(f'v_add_u32 v{b+2}, {p * 1024 + (256 * hf + 32 * i) * 3072}, v{src}')
            a(f's_add_u32 m0, s{S_W1024}, {dst + i * 4096}')
            self.vm_op(f'global_load_lds_dwordx4 v{b+2}, s[{S_WQKV}:{S_WQKV+1}]', tag)

    def x_dma_setup(self, L, b):
        a = self.a
        t = b + 1
        if L == 0:
            a(f'v_lshrrev_b32 v{b}, 3, v{V_LANE}')
            a(f'v_lshrrev_b32 v{t}, 1, v{b}')
            a(f's_lshl_b32 s{S_T0}, s{S_HSEL}, 2')
            a(f'v_add_u32 v{t}, s{S_T0}, v{t}')
            a(f'v_and_b32 v{t+1}, 7, v{V_LANE}')
            a(f'v_xor_b32 v{t}, v{t}, v{t+1}')
            a(f'v_lshlrev_b32 v{t}, 4, v{t}')
            a(f's_lshl_b32 s{S_T0}, s{S_RB}, 6')
            a(f's_lshl_b32 s{S_T0+1}, s{S_W}, 3')
            a(f's_add_u32 s{S_T0}, s{S_T0}, s{S_T0+1}')
            a(f'v_add_u32 v{b}, s{S_T0}, v{b}')
            a(f'v_lshlrev_b32 v{b}, 10, v{b}')
            a(f'v_add_u32 v{b}, v{b}, v{t}')
        else:
            a(f'v_bfe_u32 v{b}, v{V_LANE}, 2, 2')
            a(f'v_lshl_add_u32 v{b}, v{V_HH}, 2, v{b}')
            a(f's_lshl_b32 s{S_T0}, s{S_W}, 3')
            a(f'v_add_u32 v{b}, s{S_T0}, v{b}')
            a(f'v_lshlrev_b32 v{b}, 12, v{b}')
            a(f'v_bfe_u32 v{t}, v{V_LANE}, 4, 1')
            a(f'v_lshlrev_b32 v{t}, 6, v{t}')
            a(f'v_and_b32 v{t+1}, 3, v{V_LANE}')
            a(f'v_lshlrev_b32 v{t+1}, 4, v{t+1}')
            a(f'v_add3_u32 v{b}, v{b}, v{t}, v{t+1}')
            a(f's_lshl_b32 s{S_T0}, s{S_RB}, 7')
            a(f's_add_u32 s{S_T0}, s{S_T0}, {WS_X2T}')
            a(f'v_add_u32 v{b}, s{S_T0}, v{b}')

    def _unused(self): pass

    def wfrag_addr(self, kv, q, t):
        a = self.a
        a(f'v_bfe_u32 v{t}, v{V_LANE}, 2, 2')
        a(f'v_lshl_add_u32 v{t+1}, v{V_HH}, 3, v{t}')
        a(f'v_lshlrev_b32 v{t+1}, 7, v{t+1}')
        a(f'v_and_b32 v{t+2}, 1, v{V_LANE}')
        a(f'v_lshl_add_u32 v{t+1}, v{t+2}, 3, v{t+1}')
        a(f'v_bfe_u32 v{t}, v{V_LANE}, 3, 1')
        a(f'v_lshlrev_b32 v{t}, 2, v{t}')
        a(f'v_bfe_u32 v{t+2}, v{V_LANE}, 4, 1')
        a(f'v_bfe_u32 v{t+3}, v{V_LANE}, 1, 1')
        a(f's_lshl_b32 s{S_T0}, s{S_W}, 1')
        a(f'v_add_u32 v{kv}, s{S_T0}, v{t+3}')
        a(f'v_lshl_add_u32 v{q}, v{t+2}, 1, v{t}')
        a(f'v_xor_b32 v{kv}, v{kv}, v{q}')
        a(f'v_lshl_add_u32 v{kv}, v{kv}, 4, v{t+1}')
        a(f'v_lshl_add_u32 v{kv}, v{t+2}, 15, v{kv}')
        a(f'v_add_u32 v{kv}, {LDS_WK}, v{kv}')
        a(f's_lshl_b32 s{S_T0}, s{S_RHALF}, 2')
        a(f'v_lshl_add_u32 v{q}, v{t+2}, 1, v{t+3}')
        a(f'v_add_u32 v{q}, s{S_T0}, v{q}')
        a(f'v_xor_b32 v{q}, v{q}, v{t}')
        a(f'v_lshl_add_u32 v{q}, v{q}, 4, v{t+1}')
        a(f'v_add_u32 v{q}, {LDS_WQ}, v{q}')

    def cs_sel(self, r):
        a = self.a
        a(f'v_and_b32 v{r}, 15, v{V_LANE}')
        a(f'v_bfe_u32 v{r+1}, v{V_LANE}, 4, 1')
        a(f'v_cmp_eq_u32 vcc, v{r}, v{r+1}')
        a(f'v_mov_b32 v{r+1}, 0x3f803f80')
        a(f'v_cndmask_b32 v{r}, 0, v{r+1}, vcc')
        for i in range(1, 4): a(f'v_mov_b32 v{r+i}, v{r}')
    def cs_mfma(self, abase, sel, dst):
        a = self.a
        for ks in range(32):
            c = '0' if ks == 0 else f'v[{dst}:{dst+3}]'
            a(f'v_mfma_f32_16x16x32_bf16 v[{dst}:{dst+3}], a[{abase+4*ks}:{abase+4*ks+3}], v[{sel}:{sel+3}], {c}')
    def cs_write(self, src, sgpr_off, const, t):
        a = self.a
        a(f'v_and_b32 v{t}, 15, v{V_LANE}')
        a(f'v_lshlrev_b32 v{t}, 6, v{t}')
        a(f'v_lshrrev_b32 v{t+1}, 4, v{V_LANE}')
        a(f'v_lshl_add_u32 v{t}, v{t+1}, 4, v{t}')
        a(f'v_add_u32 v{t}, {SC_CS + const}, v{t}')
        if sgpr_off is not None: a(f'v_add_u32 v{t}, s{sgpr_off}, v{t}')
        a(f's_mov_b32 exec_lo, 0x00030003')
        a(f's_mov_b32 exec_hi, 0x00030003')
        a(f'ds_write_b128 v{t}, v[{src}:{src+3}]')
        a(f's_mov_b64 exec, -1')
    def cs_read(self, dst, sgpr_off, const, t):
        a = self.a
        a(f'v_lshlrev_b32 v{t}, 4, v{V_HH}')
        a(f'v_add_u32 v{t}, {SC_CS + const}, v{t}')
        if sgpr_off is not None: a(f'v_add_u32 v{t}, s{sgpr_off}, v{t}')
        for g in range(4):
            a(f'ds_read_b128 v[{dst+4*g}:{dst+4*g+3}], v{t} offset:{32*g}')

    WPT = 128
    def wphi_load(self, b):
        a = self.a
        t = b + 1
        a(f'v_lshrrev_b32 v{b}, 3, v{V_J}')
        a(f'v_lshlrev_b32 v{b}, 2, v{b}')
        a(f'v_and_b32 v{t}, 3, v{V_J}')
        a(f'v_add_u32 v{b}, v{b}, v{t}')
        a(f'v_lshlrev_b32 v{b}, 1, v{b}')
        a(f'v_lshl_add_u32 v{b}, v{V_HH}, 7, v{b}')
        a(f's_lshl_b32 s{S_T0}, s{S_HB}, 11')
        a(f's_lshl_b32 s{S_T0+1}, s{S_RHALF}, 10')
        a(f's_add_u32 s{S_T0}, s{S_T0}, s{S_T0+1}')
        a(f'v_add_u32 v{b}, s{S_T0}, v{b}')
        for hd in range(2):
            for jj in range(8):
                d = 8 * (jj >> 2) + (jj & 3)
                a(f'global_load_ushort v{self.WPT + 8*hd + jj}, v{b}, s[{S_WPHI}:{S_WPHI+1}] offset:{hd * 512 + d * 32}')
    def wphi_finish(self, t):
        a = self.a
        for i in range(8):
            a(f'v_lshl_or_b32 v{V_WPHI+i}, v{self.WPT+2*i+1}, 16, v{self.WPT+2*i}')
        a(f'v_bfe_u32 v{t}, v{V_J}, 2, 1')
        a(f'v_mul_u32_u24 v{t}, 0x8000, v{t}')
        a(f'v_lshl_or_b32 v{t}, v{t}, 16, v{t}')
        for i in range(8): a(f'v_xor_b32 v{V_WPHI+i}, v{V_WPHI+i}, v{t}')

    def rbf(self, dst, src):
        a = self.a
        a(f'v_cvt_pk_bf16_f32 v{dst}, v{src}, v{src}')
        a(f'v_lshlrev_b32 v{dst}, 16, v{dst}')
    def ln_finalize(self, S, Q, m, rs, t):
        a = self.a
        a(f'v_mul_f32 v{m}, 0x3b000000, v{S}')
        a(f'v_mul_f32 v{t}, 0x3b000000, v{Q}')
        a(f'v_fma_f32 v{t}, -v{m}, v{m}, v{t}')
        a(f'v_max_f32 v{t}, 0, v{t}')
        a(f'v_cvt_pk_bf16_f32 v{m}, v{m}, v{t}')
        a(f'v_and_b32 v{t}, 0xffff0000, v{m}')
        a(f'v_lshlrev_b32 v{m}, 16, v{m}')
        a(f'v_add_f32 v{t}, 0x3727c5ac, v{t}')
        self.rbf(t, t)
        a(f'v_sqrt_f32 v{t}, v{t}')
        self.rbf(t, t)
        a(f'v_rcp_f32 v{rs}, v{t}')

    def softmax16(self, D, out, t):
        a = self.a
        mx = t
        a(f'v_max3_f32 v{mx}, v{D}, v{D+1}, v{D+2}')
        a(f'v_max3_f32 v{mx+1}, v{D+3}, v{D+4}, v{D+5}')
        a(f'v_max3_f32 v{mx}, v{mx}, v{D+6}, v{D+7}')
        a(f'v_max3_f32 v{mx+1}, v{mx+1}, v{D+8}, v{D+9}')
        a(f'v_max3_f32 v{mx}, v{mx}, v{D+10}, v{D+11}')
        a(f'v_max3_f32 v{mx+1}, v{mx+1}, v{D+12}, v{D+13}')
        a(f'v_max3_f32 v{mx}, v{mx}, v{D+14}, v{D+15}')
        a(f'v_mov_b32 v{t+2}, {hex(LOG2E)}')
        a(f'v_max_f32 v{mx}, v{mx}, v{mx+1}')
        a(f'v_mul_f32 v{mx}, v{t+2}, v{mx}')
        for r in range(0, 16, 2):
            a(f'v_pk_fma_f32 v[{D+r}:{D+r+1}], v[{D+r}:{D+r+1}], v[{t+2}:{t+3}], v[{mx}:{mx+1}] op_sel_hi:[1,0,0] neg_lo:[0,0,1] neg_hi:[0,0,1]')
        for r in range(16): a(f'v_exp_f32 v{D+r}, v{D+r}')
        s = t + 2
        a(f'v_pk_add_f32 v[{s}:{s+1}], v[{D}:{D+1}], v[{D+2}:{D+3}]')
        a(f'v_pk_add_f32 v[{mx}:{mx+1}], v[{D+4}:{D+5}], v[{D+6}:{D+7}]')
        a(f'v_pk_add_f32 v[{s}:{s+1}], v[{s}:{s+1}], v[{D+8}:{D+9}]')
        a(f'v_pk_add_f32 v[{mx}:{mx+1}], v[{mx}:{mx+1}], v[{D+10}:{D+11}]')
        a(f'v_pk_add_f32 v[{s}:{s+1}], v[{s}:{s+1}], v[{D+12}:{D+13}]')
        a(f'v_pk_add_f32 v[{mx}:{mx+1}], v[{mx}:{mx+1}], v[{D+14}:{D+15}]')
        a(f'v_pk_add_f32 v[{s}:{s+1}], v[{s}:{s+1}], v[{mx}:{mx+1}]')
        a(f'v_add_f32 v{s}, v{s}, v{s+1}')
        a(f'v_rcp_f32 v{s}, v{s}')
        for r in range(0, 16, 2):
            a(f'v_pk_mul_f32 v[{D+r}:{D+r+1}], v[{D+r}:{D+r+1}], v[{s}:{s+1}] op_sel_hi:[1,0]')
        for r in range(0, 16, 2):
            a(f'v_cvt_pk_bf16_f32 v{out + r//2}, v{D+r}, v{D+r+1}')

    def ln_apply16(self, A, cs, m, out):
        a = self.a
        for r in range(0, 16, 2):
            a(f'v_pk_fma_f32 v[{A+r}:{A+r+1}], v[{cs+r}:{cs+r+1}], v[{m}:{m+1}], v[{A+r}:{A+r+1}] op_sel_hi:[1,0,1] neg_lo:[0,1,0] neg_hi:[0,1,0]')
        for r in range(0, 16, 2):
            a(f'v_pk_mul_f32 v[{A+r}:{A+r+1}], v[{A+r}:{A+r+1}], v[{m}:{m+1}] op_sel:[0,1] op_sel_hi:[1,1]')
        for r in range(0, 16, 2):
            a(f'v_cvt_pk_bf16_f32 v{out + r//2}, v{A+r}, v{A+r+1}')

    def flag_store(self, sync, slot_sgpr, sc=' sc1'):
        a = self.a
        a(f's_lshl_b32 s{S_T0}, s{slot_sgpr}, {self.o.fsh}')
        a(f's_add_u32 s{S_T0}, s{S_T0}, {WS_FLAGS + sync * 0x10000}')
        a(f'v_mov_b32 v126, s{S_T0}')
        a(f'v_mov_b32 v127, s{S_NONCE}')
        a('s_mov_b64 exec, 1')
        a(f'global_store_dword v126, v127, {WSB}{sc}')
        a('s_mov_b64 exec, -1')
    def signal_wg(self, sync, slot_sgpr):
        a = self.a
        a.c(f'signal sync {sync}')
        a('s_waitcnt vmcnt(0)')
        a('s_barrier')
        l = self.lab('sig')
        a(f's_cmp_lg_u32 s{S_W}, 0')
        a(f's_cbranch_scc1 {l}')
        self.flag_store(sync, slot_sgpr)
        a.label(l)
    def wait(self, sync, first_slot_sgpr, nflags, slp0=0):
        a = self.a
        fsh = self.o.fsh
        a.c(f'wait sync {sync}')
        l, lp, ld = self.lab('wait'), self.lab('poll'), self.lab('pdone')
        a(f's_cmp_lg_u32 s{S_W}, 0')
        a(f's_cbranch_scc1 {l}')
        if nflags == 16:
            a(f'v_and_b32 v126, 15, v{V_LANE}')
            a(f'v_lshlrev_b32 v126, {fsh}, v126')
            a(f's_lshl_b32 s{S_T0}, s{first_slot_sgpr}, {fsh}')
            a(f's_add_u32 s{S_T0}, s{S_T0}, {WS_FLAGS + sync * 0x10000}')
            a(f'v_add_u32 v126, s{S_T0}, v126')
        else:
            a(f'v_lshlrev_b32 v126, {fsh}, v{V_LANE}')
            a(f'v_add_u32 v126, {WS_FLAGS + sync * 0x10000}, v126')
            for i in range(1, 4): a(f'v_add_u32 v{126-i}, {i * (64 << fsh)}, v126')
        a(f's_mov_b32 s{S_T0+1}, 0')
        a('s_waitcnt vmcnt(0)')
        if slp0: a(f's_sleep {slp0}')
        a.label(lp)
        a(f'global_load_dword v127, v126, {WSB} sc1')
        if nflags != 16:
            a(f'global_load_dword v122, v125, {WSB} sc1')
            a(f'global_load_dword v121, v124, {WSB} sc1')
            a(f'global_load_dword v120, v123, {WSB} sc1')
        a(f's_add_u32 s{S_T0+1}, s{S_T0+1}, 1')
        a(f's_cmp_gt_u32 s{S_T0+1}, {self.o.spin}')
        a(f's_cbranch_scc1 {ld}')
        a('s_waitcnt vmcnt(0)')
        if nflags != 16:
            a(f'v_sad_u32 v127, v127, s{S_NONCE}, 0')
            a(f'v_sad_u32 v127, v122, s{S_NONCE}, v127')
            a(f'v_sad_u32 v127, v121, s{S_NONCE}, v127')
            a(f'v_sad_u32 v127, v120, s{S_NONCE}, v127')
            a('v_cmp_ne_u32 vcc, 0, v127')
        else:
            a(f'v_cmp_ne_u32 vcc, s{S_NONCE}, v127')
        a(f's_cbranch_vccz {ld}')
        if self.o.slp: a(f's_sleep {self.o.slp}')
        a(f's_branch {lp}')
        a.label(ld)
        a('s_waitcnt vmcnt(0)')
        a.label(l)
        a('s_barrier')

    def trk_reset(self):
        self.vm = []; self.lg = []
    def vm_op(self, line, tag):
        self.a(line); self.vm.append(tag)
    def lg_op(self, line, tag):
        self.a(line); self.lg.append(tag)
    def wait_vm(self, tag):
        c = [i for i, t in enumerate(self.vm) if t == tag]
        if not c: return False
        idx = max(c)
        n = len(self.vm) - 1 - idx
        assert n <= 63
        self.a(f's_waitcnt vmcnt({n})')
        self.vm = self.vm[idx + 1:]
        return True

    def wait_lg(self, tag):
        c = [i for i, t in enumerate(self.lg) if t == tag]
        if not c: return
        idx = max(c)
        n = len(self.lg) - 1 - idx
        self.a(f's_waitcnt lgkmcnt({min(n, 15)})')
        if n <= 15: self.lg = self.lg[idx + 1:]
        else: self.lg = self.lg[len(self.lg) - 15:]
    def dma_x(self, L, c, i):
        a = self.a
        b, t = self.XD, self.XD + 1
        if L == 0:
            off = i * 32 * 1024 + c * 128; base = f's[{S_X}:{S_X+1}]'; sc = ''
        else:
            off = (64 * c + 32 * i) * 4096; base = WSB; sc = ' sc1'
        a(f'v_add_u32 v{t}, {off}, v{b}')
        a(f's_add_u32 m0, s{S_W1024}, {c * 8192 + i * 4096}')
        self.vm_op(f'global_load_lds_dwordx4 v{t}, {base}{sc}', f'x{c}')

    SELR = 144
    XD = 36

    def bfrag_setup(self, L, base, own_only=False):
        a = self.a
        t = 24
        a(f's_xor_b32 s{S_T0+1}, s{S_HSEL}, 1')
        if L == 0:
            a(f'v_bfe_u32 v{t}, v{V_J}, 1, 3')
            a(f'v_lshlrev_b32 v{t+1}, 7, v{V_J}')
            a(f's_lshl_b32 s{S_T0}, s{S_HSEL}, 12')
            a(f's_lshl_b32 s{S_T0+1}, s{S_T0+1}, 12')
            for k in range(4):
                a(f'v_add_u32 v{t+2}, {2*k}, v{V_HH}')
                a(f'v_xor_b32 v{t+2}, v{t+2}, v{t}')
                a(f'v_lshl_add_u32 v{t+2}, v{t+2}, 4, v{t+1}')
                a(f'v_add_u32 v{base+k}, s{S_T0}, v{t+2}')
                if not own_only: a(f'v_add_u32 v{base+4+k}, s{S_T0+1}, v{t+2}')
        else:
            a(f'v_bfe_u32 v{t}, v{V_LANE}, 2, 2')
            a(f'v_lshlrev_b32 v{t}, 6, v{t}')
            a(f'v_lshl_add_u32 v{t}, v{V_HH}, 10, v{t}')
            a(f'v_bfe_u32 v{t+1}, v{V_LANE}, 4, 1')
            a(f'v_lshl_add_u32 v{t}, v{t+1}, 5, v{t}')
            a(f'v_and_b32 v{t+1}, 3, v{V_LANE}')
            a(f'v_lshl_add_u32 v{t}, v{t+1}, 3, v{t}')
            a(f's_lshl_b32 s{S_T0}, s{S_HSEL}, 8')
            a(f's_lshl_b32 s{S_T0+1}, s{S_T0+1}, 8')
            a(f'v_add_u32 v{base}, s{S_T0}, v{t}')
            if not own_only: a(f'v_add_u32 v{base+4}, s{S_T0+1}, v{t}')

    def bfrag_read(self, L, base, ks, dst, tag):
        if L == 0:
            c, k = ks >> 2, ks & 3
            self.lg_op(f'ds_read_b128 v[{dst}:{dst+3}], v{base+k} offset:{c * 8192}', tag)
        else:
            for x in range(2):
                self.lg_op(f'ds_read_b64_tr_b16 v[{dst+2*x}:{dst+2*x+1}], v{base} offset:{ks * 2048 + x * 512}', tag)

    def _unused2(self): pass

    ACC0, ACC1, FR, XB = 48, 64, 80, 112
    SS, SQ, ONES = 20, 21, 22
    M, M1 = 32, 34
    STF, XS = 104, 24
    def fr(self, k): return self.FR + 8 * (k % 3)
    def st_read(self, L, ks):
        d = self.STF + 4 * ((ks >> 1) & 1)
        if L == 0:
            self.lg_op(f'ds_read_b128 v[{d}:{d+3}], v{self.XS + ((ks >> 1) & 1)} offset:{(ks >> 2) * 8192}', f's{ks}')
        else:
            for x in range(2):
                self.lg_op(f'ds_read_b64_tr_b16 v[{d+2*x}:{d+2*x+1}], v{self.XS} offset:{ks * 2048 + x * 512}', f's{ks}')
    def st_setup(self, L):
        a = self.a
        XB, XS = self.XB, self.XS
        if L == 0:
            a(f's_cmp_eq_u32 s{S_RHALF}, 0')
            a(f's_cselect_b64 vcc, -1, 0')
            a(f'v_cndmask_b32 v{XS}, v{XB+1}, v{XB}, vcc')
            a(f'v_cndmask_b32 v{XS+1}, v{XB+3}, v{XB+2}, vcc')
        else:
            a(f's_lshl_b32 s{S_T0}, s{S_RHALF}, 11')
            a(f'v_add_u32 v{XS}, s{S_T0}, v{XB}')
    def kv_pair(self, L, ks, hook=None, last=32):
        a = self.a
        ACC0, ACC1, XB = self.ACC0, self.ACC1, self.XB
        SS, SQ, ONES = self.SS, self.SQ, self.ONES
        for k in (ks, ks + 1):
            st = self.fr(k)
            self.wait_lg(f'f{k}a')
            c0 = '0' if k == 0 else f'v[{ACC0}:{ACC0+15}]'
            c1 = '0' if k == 0 else f'v[{ACC1}:{ACC1+15}]'
            a(f'v_mfma_f32_32x32x16_bf16 v[{ACC0}:{ACC0+15}], a[{4*k}:{4*k+3}], v[{st}:{st+3}], {c0}')
            if k == ks and ks + 2 < last: self.st_read(L, ks + 2)
            if hook: hook(k, 0)
            self.wait_lg(f'f{k}b')
            a(f'v_mfma_f32_32x32x16_bf16 v[{ACC1}:{ACC1+15}], a[{4*k}:{4*k+3}], v[{st+4}:{st+7}], {c1}')
            if k + 2 < last:
                self.bfrag_read(L, XB, k + 2, self.fr(k + 2), f'f{k+2}a')
                self.bfrag_read(L, XB + 4, k + 2, self.fr(k + 2) + 4, f'f{k+2}b')
            if hook: hook(k, 1)
        self.wait_lg(f's{ks}')
        d = self.STF + 4 * ((ks >> 1) & 1)
        for i in range(4):
            a(f'v_dot2c_f32_bf16 v{SS}, v{d+i}, v{ONES}')
            a(f'v_dot2c_f32_bf16 v{SQ}, v{d+i}, v{d+i}')

    def kv_rd(self, L, ks):
        st = self.fr(ks)
        self.bfrag_read(L, self.XB, ks, st, f'f{ks}a')
        self.bfrag_read(L, self.XB + 4, ks, st + 4, f'f{ks}b')

    def kv_init(self):
        a = self.a
        a(f'v_mov_b32 v{self.SS}, 0'); a(f'v_mov_b32 v{self.SQ}, 0'); a(f'v_mov_b32 v{self.ONES}, 0x3f803f80')

    def kv_pass1(self):
        a = self.a
        L = 1
        self.kv_init()
        self.wait_vm('x0'); a('s_barrier')
        self.stamp(18)
        self.st_read(L, 0); self.kv_rd(L, 0); self.kv_rd(L, 1)
        def hook(k, h):
            c = (k >> 2) + 4
            if h == 0 and (k & 1) == 0 and c < 8: self.dma_x(1, c, (k >> 1) & 1)
        for ks in range(0, 32, 2):
            c = ks >> 2
            if (ks & 3) == 2 and c + 1 < 8:
                self.wait_vm(f'x{c+1}'); a('s_barrier')
            self.kv_pair(L, ks, hook)

    def kv_pass0(self, WB, KVA, QA, SEL, CSKV):
        a = self.a
        L = 0
        def trW(abase, addr, ks, tag):
            for x in range(2):
                self.lg_op(f'ds_read_b64_tr_b16 a[{abase+4*ks+2*x}:{abase+4*ks+2*x+1}], v{addr} offset:{(ks & 15)*2048 + x*512}', tag)
        self.kv_init()
        self.wait_vm('kva'); a('s_barrier')
        self.stamp(17)
        for ks in range(16): trW(0, KVA, ks, 'w')
        a('s_waitcnt lgkmcnt(0)'); self.lg = []
        a('s_barrier')
        self.w_dma(1, 1, WB, 'kvb'); self.w_dma(2, 1, WB, 'kvb')
        self.stamp(31)
        self.wait_vm('x0'); a('s_barrier')
        self.st_read(L, 0); self.kv_rd(L, 0); self.kv_rd(L, 1)
        qn = [0]
        def hook_a(k, h):
            if 6 <= k < 14:
                trW(128, QA, qn[0], 'wq'); qn[0] += 1
        for ks in range(0, 16, 2):
            c = ks >> 2
            if (ks & 3) == 2:
                w1 = self.wait_vm(f'x{c+1}')
                w2 = self.wait_vm('qa') if ks == 6 else False
                if w1 or w2: a('s_barrier')
            self.kv_pair(L, ks, hook_a, last=16)
        a('s_waitcnt lgkmcnt(0)'); self.lg = []
        a('s_barrier')
        self.w_dma(0, 1, WB, 'qb')
        for ks in range(16):
            c = '0' if ks == 0 else f'v[{CSKV}:{CSKV+3}]'
            a(f'v_mfma_f32_16x16x32_bf16 v[{CSKV}:{CSKV+3}], a[{4*ks}:{4*ks+3}], v[{SEL}:{SEL+3}], {c}')
        self.wait_vm('kvb'); a('s_barrier')
        for ks in range(16, 32): trW(0, KVA, ks, 'w')
        self.st_read(L, 16); self.kv_rd(L, 16); self.kv_rd(L, 17)
        a('s_waitcnt lgkmcnt(0)'); self.lg = []
        for ks in range(16, 32):
            a(f'v_mfma_f32_16x16x32_bf16 v[{CSKV}:{CSKV+3}], a[{4*ks}:{4*ks+3}], v[{SEL}:{SEL+3}], v[{CSKV}:{CSKV+3}]')
        def hook_b(k, h):
            if 22 <= k < 30:
                trW(128, QA, qn[0], 'wq'); qn[0] += 1
        for ks in range(16, 32, 2):
            c = ks >> 2
            if (ks & 3) == 2 and c + 1 < 8:
                if self.wait_vm(f'x{c+1}'): a('s_barrier')
            if ks == 22:
                self.wait_vm('qb'); a('s_barrier')
            self.kv_pair(L, ks, hook_b)
        a('s_waitcnt lgkmcnt(0)'); self.lg = []
        a('s_barrier')

    def resid_read(self, L, T):
        a = self.a
        a(f's_and_b32 s{S_T0}, s{S_HB}, 1')
        if L == 0:
            a(f's_lshl_b32 s{S_T0+1}, s{S_CB}, 1')
            a(f's_add_u32 s{S_T0+1}, s{S_T0+1}, s{S_RHALF}')
            a(f's_lshl_b32 s{S_T0+1}, s{S_T0+1}, 13')
            a(f's_lshl_b32 s{S_T0}, s{S_T0}, 12')
            a(f's_add_u32 s{S_T0}, s{S_T0}, s{S_T0+1}')
            a(f'v_lshlrev_b32 v{T}, 7, v{V_J}')
            a(f'v_lshl_add_u32 v{T}, v{V_HH}, 3, v{T}')
            a(f'v_add_u32 v{T}, s{S_T0}, v{T}')
            a(f'v_bfe_u32 v{T+1}, v{V_J}, 1, 3')
            a(f's_lshl_b32 s{S_T0+1}, s{S_HSEL}, 2')
            for g in range(4):
                a(f's_add_u32 s{S_T0+2}, s{S_T0+1}, {g}')
                a(f'v_xor_b32 v{T+2}, s{S_T0+2}, v{T+1}')
                a(f'v_lshl_add_u32 v{T+2}, v{T+2}, 4, v{T}')
                a(f'ds_read_b64 v[{V_RESID+2*g}:{V_RESID+2*g+1}], v{T+2}')
        else:
            a(f's_lshl_b32 s{S_T0+1}, s{S_CB}, 5')
            a(f's_lshl_b32 s{S_T0+2}, s{S_W}, 3')
            a(f's_add_u32 s{S_T0+1}, s{S_T0+1}, s{S_T0+2}')
            a(f's_lshl_b32 s{S_T0+1}, s{S_T0+1}, 9')
            a(f's_lshl_b32 s{S_T0}, s{S_T0}, 8')
            a(f's_add_u32 s{S_T0}, s{S_T0}, s{S_T0+1}')
            a(f'v_bfe_u32 v{T}, v{V_LANE}, 2, 2')
            a(f'v_lshlrev_b32 v{T}, 6, v{T}')
            a(f'v_lshl_add_u32 v{T}, v{V_HH}, 9, v{T}')
            a(f'v_bfe_u32 v{T+1}, v{V_LANE}, 4, 1')
            a(f'v_lshl_add_u32 v{T}, v{T+1}, 5, v{T}')
            a(f'v_and_b32 v{T+1}, 3, v{V_LANE}')
            a(f'v_lshl_add_u32 v{T}, v{T+1}, 3, v{T}')
            a(f'v_add_u32 v{T}, s{S_T0}, v{T}')
            for g in range(4):
                a(f'ds_read_b64_tr_b16 v[{V_RESID+2*g}:{V_RESID+2*g+1}], v{T} offset:{g*1024}')

    def kv_epilogue(self, L, cs_kv_reg=None):
        a = self.a; o = self.o
        ACC0, ACC1 = self.ACC0, self.ACC1
        SS, SQ, ONES = self.SS, self.SQ, self.ONES
        M, M1 = self.M, self.M1
        T = 24
        self.stamp(3 + 16 * L)
        a(f'v_mov_b32 v{T}, v{SS}')
        a(f'v_mov_b32 v{T+1}, v{SQ}')
        a(f'v_permlane32_swap_b32 v{SS}, v{T}')
        a(f'v_permlane32_swap_b32 v{SQ}, v{T+1}')
        a(f'v_add_f32 v{SS}, v{SS}, v{T}')
        a(f'v_add_f32 v{SQ}, v{SQ}, v{T+1}')
        a(f'v_lshlrev_b32 v{T}, 3, v{V_J}')
        a(f's_lshl_b32 s{S_T0}, s{S_W}, 8')
        a(f's_add_u32 s{S_T0}, s{S_T0}, {SC_ST}')
        a(f'v_add_u32 v{T+1}, s{S_T0}, v{T}')
        a(f'ds_write_b64 v{T+1}, v[{SS}:{SQ}]')
        if L == 0:
            a(f's_lshl_b32 s{S_T0+4}, s{S_W}, 7')
            self.cs_write(cs_kv_reg, S_T0 + 4, 0, T + 2)
            self.wphi_finish(T + 2)
            self.kvt_zero(96)
        self.resid_read(L, T + 4)
        PA, VA = 112, 114
        a(f'v_lshrrev_b32 v{T+1}, 3, v{V_J}')
        a(f'v_add_u32 v{T+1}, v{T+1}, v{V_HH}')
        a(f'v_lshlrev_b32 v{T+1}, 5, v{T+1}')
        a(f'v_lshl_add_u32 v{T+1}, v{V_J}, 6, v{T+1}')
        a(f's_mul_i32 s{S_T0}, s{S_W}, {PHI_W}')
        a(f's_add_u32 s{S_T0}, s{S_T0}, {SC_PHI}')
        a(f's_mul_i32 s{S_T0+1}, s{S_HSEL}, 2176')
        a(f's_xor_b32 s{S_T0+2}, s{S_HSEL}, 1')
        a(f's_mul_i32 s{S_T0+3}, s{S_T0+2}, 2176')
        a(f's_add_u32 s{S_T0+1}, s{S_T0+1}, s{S_T0}')
        a(f's_add_u32 s{S_T0+3}, s{S_T0+3}, s{S_T0}')
        a(f'v_add_u32 v{PA}, s{S_T0+1}, v{T+1}')
        a(f'v_add_u32 v{PA+1}, s{S_T0+3}, v{T+1}')
        a(f'v_bfe_u32 v{T+1}, v{V_J}, 3, 1')
        a(f'v_lshlrev_b32 v{T+1}, 2, v{T+1}')
        a(f'v_xor_b32 v{T+1}, v{V_J}, v{T+1}')
        a(f'v_lshlrev_b32 v{T+1}, 5, v{T+1}')
        a(f'v_lshl_add_u32 v{T+1}, v{V_HH}, 3, v{T+1}')
        a(f's_lshl_b32 s{S_T0}, s{S_W}, 11')
        a(f's_add_u32 s{S_T0}, s{S_T0}, {SC_V}')
        a(f's_lshl_b32 s{S_T0+1}, s{S_HSEL}, 10')
        a(f's_lshl_b32 s{S_T0+2}, s{S_T0+2}, 10')
        a(f's_add_u32 s{S_T0+1}, s{S_T0+1}, s{S_T0}')
        a(f's_add_u32 s{S_T0+2}, s{S_T0+2}, s{S_T0}')
        a(f'v_add_u32 v{VA}, s{S_T0+1}, v{T+1}')
        a(f'v_add_u32 v{VA+1}, s{S_T0+2}, v{T+1}')
        a(f's_lshl_b32 s{S_T0}, s{S_HSEL}, 8')
        a(f's_add_u32 s{S_T0+1}, s{S_T0}, {SC_ST}')
        a(f's_xor_b32 s{S_T0}, s{S_T0}, 256')
        a(f's_add_u32 s{S_T0}, s{S_T0}, {SC_ST}')
        a(f'v_add_u32 v{T+1}, s{S_T0+1}, v{T}')
        a(f'v_add_u32 v{T}, s{S_T0}, v{T}')
        a('s_waitcnt lgkmcnt(0)')
        a('s_barrier')
        CS = 80
        a(f's_lshl_b32 s{S_T0+4}, s{S_W}, 7')
        SA = 96
        a(f'ds_read_b64 v[{SA}:{SA+1}], v{T+1}')
        a(f'ds_read_b64 v[{SA+2}:{SA+3}], v{T+1} offset:512')
        a(f'ds_read_b64 v[{SA+4}:{SA+5}], v{T}')
        a(f'ds_read_b64 v[{SA+6}:{SA+7}], v{T} offset:512')
        self.cs_read(CS, S_T0 + 4, 0, T + 2)
        a('s_waitcnt lgkmcnt(4)')
        a(f'v_pk_add_f32 v[{SA}:{SA+1}], v[{SA}:{SA+1}], v[{SA+2}:{SA+3}]')
        a(f'v_pk_add_f32 v[{SA+4}:{SA+5}], v[{SA+4}:{SA+5}], v[{SA+6}:{SA+7}]')
        self.merge(self.cap(lambda: self.ln_finalize(SA, SA + 1, M, M + 1, SA + 2)),
                   self.cap(lambda: self.ln_finalize(SA + 4, SA + 5, M1, M1 + 1, SA + 6)))
        KB0, KB1 = 96, 104
        a('s_waitcnt lgkmcnt(0)')
        self.ln_apply16(ACC0, CS, M, KB0)
        self.ln_apply16(ACC1, CS, M1, KB1)
        l1, l2 = self.lab('wp'), self.lab('wp')
        a(f's_cmp_eq_u32 s{S_HSEL}, 0')
        a(f's_cbranch_scc0 {l1}')
        a(f'v_mfma_f32_32x32x16_bf16 v[{ACC0}:{ACC0+15}], v[{V_WPHI}:{V_WPHI+3}], v[{KB0}:{KB0+3}], 0')
        a(f'v_mfma_f32_32x32x16_bf16 v[{ACC1}:{ACC1+15}], v[{V_WPHI}:{V_WPHI+3}], v[{KB1}:{KB1+3}], 0')
        a(f's_branch {l2}')
        a.label(l1)
        a('s_nop 1')
        a(f'v_mfma_f32_32x32x16_bf16 v[{ACC0}:{ACC0+15}], v[{V_WPHI+4}:{V_WPHI+7}], v[{KB0}:{KB0+3}], 0')
        a(f'v_mfma_f32_32x32x16_bf16 v[{ACC1}:{ACC1+15}], v[{V_WPHI+4}:{V_WPHI+7}], v[{KB1}:{KB1+3}], 0')
        a.label(l2)
        for tt, kb in enumerate((KB0, KB1)):
            a(f'ds_write_b64 v{VA+tt}, v[{kb+4}:{kb+5}]')
            a(f'ds_write_b64 v{VA+tt}, v[{kb+6}:{kb+7}] offset:16')
        AA, BA = 116, 117
        a(f'v_lshrrev_b32 v{T}, 4, v{V_LANE}')
        a(f'v_bfe_u32 v{T+1}, v{V_LANE}, 2, 2')
        a(f'v_lshl_add_u32 v{T+2}, v{T}, 3, v{T+1}')
        a(f'v_lshlrev_b32 v{AA}, 6, v{T+2}')
        a(f'v_lshl_add_u32 v{AA}, v{T}, 5, v{AA}')
        a(f'v_and_b32 v{T+3}, 3, v{V_LANE}')
        a(f'v_lshl_add_u32 v{AA}, v{T+3}, 3, v{AA}')
        a(f's_mul_i32 s{S_T0}, s{S_W}, {PHI_W}')
        a(f's_add_u32 s{S_T0}, s{S_T0}, {SC_PHI}')
        a(f'v_add_u32 v{AA}, s{S_T0}, v{AA}')
        a(f'v_and_b32 v{T}, 1, v{T}')
        a(f'v_lshlrev_b32 v{T}, 2, v{T}')
        a(f'v_xor_b32 v{T+1}, v{T+2}, v{T}')
        a(f'v_xor_b32 v{T+2}, 4, v{T+1}')
        a(f'v_lshlrev_b32 v{T+1}, 5, v{T+1}')
        a(f'v_lshlrev_b32 v{T+2}, 5, v{T+2}')
        a(f'v_lshl_add_u32 v{T+1}, v{T+3}, 3, v{T+1}')
        a(f'v_lshl_add_u32 v{T+2}, v{T+3}, 3, v{T+2}')
        a(f's_lshl_b32 s{S_T0}, s{S_W}, 11')
        a(f's_add_u32 s{S_T0}, s{S_T0}, {SC_V}')
        a(f'v_add_u32 v{BA}, s{S_T0}, v{T+1}')
        a(f'v_add_u32 v{BA+1}, s{S_T0}, v{T+2}')
        a('s_nop 3')
        PH0, PH1 = 80, 88
        s0 = self.cap(lambda: self.softmax16(ACC0, PH0, 24))
        s1 = self.cap(lambda: self.softmax16(ACC1, PH1, 28))
        self.merge(s0, s1)
        for tt, ph in enumerate((PH0, PH1)):
            a(f'ds_write_b128 v{PA+tt}, v[{ph}:{ph+3}]')
            a(f'ds_write_b128 v{PA+tt}, v[{ph+4}:{ph+7}] offset:16')
        a(f's_mul_i32 s{S_T0+1}, s{S_SLOT1}, {KVB}')
        a(f's_add_u32 s{S_T0+1}, s{S_T0+1}, {WS_KVP + L * KVP_L}')
        a(f's_lshl_b32 s{S_T0+2}, s{S_W}, 11')
        a(f's_add_u32 s{S_T0+2}, s{S_T0+2}, s{S_T0+1}')
        a(f'v_and_b32 v{T}, 15, v{V_LANE}')
        a(f'v_lshlrev_b32 v{T}, 7, v{T}')
        a(f'v_lshrrev_b32 v{T+1}, 4, v{V_LANE}')
        a(f'v_lshl_add_u32 v{T}, v{T+1}, 4, v{T}')
        a(f'v_add_u32 v{T}, s{S_T0+2}, v{T}')
        a(f's_lshl_b32 s{S_T0+2}, s{S_W}, 8')
        a(f's_add_u32 s{S_T0+2}, s{S_T0+2}, s{S_T0+1}')
        a(f's_add_u32 s{S_T0+2}, s{S_T0+2}, 8192')
        a(f'v_lshlrev_b32 v{T+1}, 3, v{V_LANE}')
        a(f'v_add_u32 v{T+1}, s{S_T0+2}, v{T+1}')
        a('s_waitcnt lgkmcnt(0)')
        FA, FB, KV, ZS = 48, 64, 80, 88
        for kk in range(2):
            for x in range(2):
                a(f'ds_read_b64_tr_b16 v[{FB+4*kk+2*x}:{FB+4*kk+2*x+1}], v{BA+x} offset:{kk*1024}')
            for mt in range(2):
                for x in range(2):
                    a(f'ds_read_b64_tr_b16 v[{FA+8*mt+4*kk+2*x}:{FA+8*mt+4*kk+2*x+1}], v{AA} offset:{kk*2176 + x*256 + mt*32}')
        a(f'v_mov_b32 v{ZS}, 0'); a(f'v_mov_b32 v{ZS+1}, 0')
        a(f'v_mov_b32 v{ONES}, 0x3f803f80')
        for kk in range(2):
            a(f's_waitcnt lgkmcnt({6 - 6*kk})')
            for mt in range(2):
                c = '0' if kk == 0 else f'v[{KV+4*mt}:{KV+4*mt+3}]'
                a(f'v_mfma_f32_16x16x32_bf16 v[{KV+4*mt}:{KV+4*mt+3}], v[{FA+8*mt+4*kk}:{FA+8*mt+4*kk+3}], v[{FB+4*kk}:{FB+4*kk+3}], {c}')
        for i in range(8):
            a(f'v_dot2c_f32_bf16 v{ZS}, v{FA+i}, v{ONES}')
            a(f'v_dot2c_f32_bf16 v{ZS+1}, v{FA+8+i}, v{ONES}')
        G = 96
        for mt in range(2):
            g = G + 4 * mt
            a(f'v_cvt_pk_bf16_f32 v{g}, v{KV+4*mt}, v{KV+4*mt+1}')
            a(f'v_mov_b32 v{g+1}, s{S_NONCE}')
            a(f'v_cvt_pk_bf16_f32 v{g+2}, v{KV+4*mt+2}, v{KV+4*mt+3}')
            a(f'v_mov_b32 v{g+3}, s{S_NONCE}')
            a(f'global_store_dwordx4 v{T}, v[{g}:{g+3}], {WSB} offset:{mt*64} sc1')
        for zz in (ZS, ZS + 1):
            a(f'v_mov_b32 v{ZS+2}, v{zz}')
            a(f'v_permlane32_swap_b32 v{zz}, v{ZS+2}')
            a(f'v_add_f32 v{zz}, v{zz}, v{ZS+2}')
            a(f'v_mov_b32 v{ZS+2}, v{zz}')
            a(f'v_permlane16_swap_b32 v{zz}, v{ZS+2}')
            a(f'v_add_f32 v{zz}, v{zz}, v{ZS+2}')
        a(f'v_and_b32 v{ZS+2}, 16, v{V_LANE}')
        a(f'v_cmp_eq_u32 vcc, 0, v{ZS+2}')
        a(f'v_cndmask_b32 v{ZS}, v{ZS+1}, v{ZS}, vcc')
        a(f'v_cvt_pk_bf16_f32 v{ZS}, v{ZS}, 0')
        a(f'v_mov_b32 v{ZS+1}, s{S_NONCE}')
        a('s_mov_b32 exec_lo, -1'); a('s_mov_b32 exec_hi, 0')
        a(f'global_store_dwordx2 v{T+1}, v[{ZS}:{ZS+1}], {WSB} sc1')
        a('s_mov_b64 exec, -1')
        self.stamp(4 + 16 * L)

    def q_pass(self, L):
        a = self.a; o = self.o
        ACC, FR, XB = 48, 80, 112
        M = self.M
        self.lg = []
        self.bfrag_setup(L, XB, own_only=True)
        if L == 0:
            SEL = 96
            self.cs_sel(SEL)
            self.cs_mfma(128, SEL, 100)
        for ks in range(3): self.bfrag_read(L, XB, ks, FR + 4 * (ks & 3), f'f{ks}')
        a(f's_lshl_b32 s{S_T0+4}, s{S_RHALF}, 7')
        if L == 0:
            self.cs_write(100, S_T0 + 4, 512, 104)
            self.lg.append('csw')
        for ks in range(32):
            if ks + 3 < 32:
                self.bfrag_read(L, XB, ks + 3, FR + 4 * ((ks + 3) & 3), f'f{ks+3}')
            self.wait_lg(f'f{ks}')
            c0 = '0' if ks == 0 else f'v[{ACC}:{ACC+15}]'
            st = FR + 4 * (ks & 3)
            a(f'v_mfma_f32_32x32x16_bf16 v[{ACC}:{ACC+15}], a[{128+4*ks}:{128+4*ks+3}], v[{st}:{st+3}], {c0}')
            if ks == 24:
                self.cs_read(64, S_T0 + 4, 512, 104)
                self.lg += ['cs'] * 4
        H1A, H1 = 116, 80
        a(f's_lshl_b32 s{S_T0}, s{S_HB}, 5')
        a(f's_lshl_b32 s{S_T0+1}, s{S_W}, 3')
        a(f's_add_u32 s{S_T0}, s{S_T0}, s{S_T0+1}')
        a(f's_mul_i32 s{S_T0}, s{S_T0}, {KVB}')
        a(f's_mul_i32 s{S_T0+1}, s{S_RB}, 288')
        a(f's_add_u32 s{S_T0}, s{S_T0}, s{S_T0+1}')
        a(f's_add_u32 s{S_T0}, s{S_T0}, {WS_KVP + L * KVP_L}')
        a(f'v_min_u32 v{H1A}, 35, v{V_LANE}')
        a(f'v_lshlrev_b32 v{H1A}, 3, v{H1A}')
        a(f'v_add_u32 v{H1A}, s{S_T0}, v{H1A}')
        a('s_waitcnt lgkmcnt(0)'); self.lg = []
        KB = 96
        self.ln_apply16(ACC, 64, M, KB)
        D = (48, 64)
        for hd in range(2):
            a(f'v_mfma_f32_32x32x16_bf16 v[{D[hd]}:{D[hd]+15}], v[{V_WPHI+4*hd}:{V_WPHI+4*hd+3}], v[{KB+4*hd}:{KB+4*hd+3}], 0')
        def h1_loads():
            a = self.a
            for p in range(8):
                a(f'v_add_u32 v{H1A+1}, {p * KVB}, v{H1A}')
                a(f'global_load_dwordx2 v[{H1+2*p}:{H1+2*p+1}], v{H1A+1}, {WSB} sc1')
        h1_loads()
        s0 = self.cap(lambda: self.softmax16(D[0], V_PHIQ, 104))
        s1 = self.cap(lambda: self.softmax16(D[1], V_PHIQ + 8, 108))
        self.merge(s0, s1)
        self.stamp(5 + 16 * L)
        lp, ld = self.lab('h1poll'), self.lab('h1done')
        T = 48
        a(f's_mov_b32 s{S_T0+2}, 0')
        a.label(lp)
        a('s_waitcnt vmcnt(0)')
        a(f'v_mov_b32 v{T}, 0')
        for p in range(8): a(f'v_sad_u32 v{T}, v{H1+2*p+1}, s{S_NONCE}, v{T}')
        a(f's_add_u32 s{S_T0+2}, s{S_T0+2}, 1')
        a(f's_cmp_gt_u32 s{S_T0+2}, {self.o.spin}')
        a(f's_cbranch_scc1 {ld}')
        a(f'v_cmp_ne_u32 vcc, 0, v{T}')
        a(f's_cbranch_vccz {ld}')
        if self.o.slp: a(f's_sleep {self.o.slp}')
        h1_loads()
        a(f's_branch {lp}')
        a.label(ld)
        CL, CH = 52, 53
        a(f'v_mov_b32 v{CL}, 0x00003f80'); a(f'v_mov_b32 v{CH}, 0x3f800000')
        a(f'v_mov_b32 v{T}, 0'); a(f'v_mov_b32 v{T+1}, 0')
        for p in range(8):
            a(f'v_dot2c_f32_bf16 v{T}, v{H1+2*p}, v{CL}')
            a(f'v_dot2c_f32_bf16 v{T+1}, v{H1+2*p}, v{CH}')
        a(f'v_lshlrev_b32 v{T+2}, 3, v{V_LANE}')
        a(f's_lshl_b32 s{S_T0}, s{S_W}, 9')
        a(f's_add_u32 s{S_T0}, s{S_T0}, {SC_RED}')
        a(f'v_add_u32 v{T+3}, s{S_T0}, v{T+2}')
        a(f'ds_write_b64 v{T+3}, v[{T}:{T+1}]')
        a('s_waitcnt lgkmcnt(0)')
        a('s_barrier')
        l = self.lab('h1pub')
        a(f's_cmp_lg_u32 s{S_W}, 0')
        a(f's_cbranch_scc1 {l}')
        a(f'v_add_u32 v{T+3}, {SC_RED}, v{T+2}')
        for w in range(4): a(f'ds_read_b64 v[{T+4+2*w}:{T+5+2*w}], v{T+3} offset:{w*512}')
        a(f's_mul_i32 s{S_T0}, s{S_HB}, {KVB}')
        a(f's_mul_i32 s{S_T0+1}, s{S_RB}, 288')
        a(f's_add_u32 s{S_T0}, s{S_T0}, s{S_T0+1}')
        a(f's_add_u32 s{S_T0}, s{S_T0}, {WS_KVR + L * 0x12000}')
        a(f'v_add_u32 v{T+2}, s{S_T0}, v{T+2}')
        a('s_waitcnt lgkmcnt(0)')
        a(f'v_pk_add_f32 v[{T+4}:{T+5}], v[{T+4}:{T+5}], v[{T+6}:{T+7}]')
        a(f'v_pk_add_f32 v[{T+8}:{T+9}], v[{T+8}:{T+9}], v[{T+10}:{T+11}]')
        a(f'v_pk_add_f32 v[{T+4}:{T+5}], v[{T+4}:{T+5}], v[{T+8}:{T+9}]')
        a(f'v_cvt_pk_bf16_f32 v{T+4}, v{T+4}, v{T+5}')
        a(f'v_mov_b32 v{T+5}, s{S_NONCE}')
        a('s_mov_b32 exec_lo, -1'); a('s_mov_b32 exec_hi, 0xf')
        a(f'global_store_dwordx2 v{T+2}, v[{T+4}:{T+5}], {WSB} sc1')
        a('s_mov_b64 exec, -1')
        a.label(l)

    def o_stage(self, L):
        a = self.a; o = self.o
        a.c(f'================ o stage layer {L} ================')
        if L == 0:
            lp, ld = self.lab('xtpoll'), self.lab('xtdone')
            a(f'v_and_b32 v48, 7, v{V_LANE}')
            a('v_lshlrev_b32 v48, 3, v48')
            a(f's_lshl_b32 s{S_T0}, s{S_RB}, 6')
            a(f's_add_u32 s{S_T0}, s{S_T0}, {WS_XT}')
            a(f'v_add_u32 v48, s{S_T0}, v48')
            a(f's_mov_b32 s{S_T0+2}, 0')
            a(f's_mov_b32 s{S_FAST}, 0')
            a.label(lp)
            a(f'global_load_dwordx2 v[50:51], v48, {WSB} sc1')
            a(f's_add_u32 s{S_T0+2}, s{S_T0+2}, 1')
            a(f's_cmp_gt_u32 s{S_T0+2}, {self.o.spin}')
            a(f's_cbranch_scc1 {ld}')
            a('s_waitcnt vmcnt(0)')
            a(f'v_cmp_ne_u32 vcc, s{S_NONCE}, v51')
            a(f's_cbranch_vccnz {lp}')
            a(f'v_cmp_ne_u32 vcc, s{S_XCC}, v50')
            a(f's_cmp_eq_u64 vcc, 0')
            a(f's_cselect_b32 s{S_FAST}, 1, 0')
            a.label(ld)
            a('s_waitcnt vmcnt(0)')
        T = 120
        PB = 48
        lp, ld = self.lab('h2poll'), self.lab('h2done')
        a(f's_mul_i32 s{S_T0}, s{S_HB}, {KVB}')
        a(f's_add_u32 s{S_T0}, s{S_T0}, {WS_KVR + L * 0x12000}')
        a(f'v_lshlrev_b32 v{T}, 4, v{V_TID}')
        a(f'v_add_u32 v{T}, s{S_T0}, v{T}')
        a(f'v_min_u32 v{T+1}, 63, v{V_TID}')
        a(f'v_lshlrev_b32 v{T+1}, 4, v{T+1}')
        a(f'v_add_u32 v{T+1}, s{S_T0}, v{T+1}')
        a(f'v_add_u32 v{T+1}, 8192, v{T+1}')
        a(f'v_add_u32 v{T+2}, 4096, v{T}')
        W = 60
        a(f'v_lshrrev_b32 v{W}, 7, v{V_TID}')
        a(f'v_mul_u32_u24 v{W}, {KVT_HEAD}, v{W}')
        a(f'v_bfe_u32 v{W+1}, v{V_TID}, 3, 4')
        a(f'v_mul_u32_u24 v{W+1}, {KVT_ROW}, v{W+1}')
        a(f'v_and_b32 v{W+2}, 7, v{V_TID}')
        a(f'v_lshlrev_b32 v{W+2}, 3, v{W+2}')
        a(f'v_add3_u32 v{W}, v{W}, v{W+1}, v{W+2}')
        a(f'v_add_u32 v{W}, {SC_KVT}, v{W}')
        a(f'v_bfe_u32 v{W+1}, v{V_TID}, 4, 2')
        a(f'v_mul_u32_u24 v{W+1}, {KVT_HEAD}, v{W+1}')
        a(f'v_and_b32 v{W+2}, 15, v{V_TID}')
        a(f'v_lshl_add_u32 v{W+1}, v{W+2}, 2, v{W+1}')
        a(f'v_add_u32 v{W+1}, {SC_KVT + 16 * KVT_ROW}, v{W+1}')
        a(f'v_mul_u32_u24 v{W+2}, {KVT_ROW}, v{V_J}')
        a(f'v_lshl_add_u32 v{W+2}, v{V_HH}, 5, v{W+2}')
        a(f's_mul_i32 s{S_T0+1}, s{S_RHALF}, {2 * KVT_HEAD}')
        a(f's_add_u32 s{S_T0+1}, s{S_T0+1}, {SC_KVT}')
        a(f'v_add_u32 v{W+2}, s{S_T0+1}, v{W+2}')
        a(f's_lshl_b32 s{S_T0+1}, s{S_RB}, 1')
        a(f's_add_u32 s{S_T0+1}, s{S_T0+1}, s{S_HSEL}')
        a(f's_lshl_b32 s{S_T0+8}, s{S_T0+1}, 4')
        a(f's_lshl_b32 s{S_T0+3}, s{S_HB}, 1')
        a(f's_add_u32 s{S_T0+8}, s{S_T0+8}, s{S_T0+3}')
        a(f's_add_u32 s{S_T0+8}, s{S_T0+8}, s{S_RHALF}')
        a(f's_lshl_b32 s{S_T0+1}, s{S_T0+1}, 15')
        a(f's_lshl_b32 s{S_T0+3}, s{S_HB}, 12')
        a(f's_add_u32 s{S_T0+1}, s{S_T0+1}, s{S_T0+3}')
        a(f's_lshl_b32 s{S_T0+3}, s{S_RHALF}, 11')
        a(f's_add_u32 s{S_T0+1}, s{S_T0+1}, s{S_T0+3}')
        a(f's_add_u32 s{S_T0+1}, s{S_T0+1}, {WS_O + L * 0x200000}')
        a(f'v_lshlrev_b32 v{W+3}, 4, v{V_LANE}')
        a(f'v_add_u32 v{W+3}, s{S_T0+1}, v{W+3}')
        a(f's_mov_b32 s{S_T0+2}, 0')
        if o.slph and L == 1: a(f's_sleep {o.slph}')
        a.label(lp)
        a(f'global_load_dwordx4 v[{PB}:{PB+3}], v{T}, {WSB} sc1')
        a(f'global_load_dwordx4 v[{PB+4}:{PB+7}], v{T+2}, {WSB} sc1')
        a(f'global_load_dwordx4 v[{PB+8}:{PB+11}], v{T+1}, {WSB} sc1')
        a(f's_add_u32 s{S_T0+2}, s{S_T0+2}, 1')
        a(f's_cmp_gt_u32 s{S_T0+2}, {self.o.spin}')
        a(f's_cbranch_scc1 {ld}')
        a('s_waitcnt vmcnt(0)')
        a(f'v_sad_u32 v{T+3}, v{PB+1}, s{S_NONCE}, 0')
        for r in (3, 5, 7, 9, 11): a(f'v_sad_u32 v{T+3}, v{PB+r}, s{S_NONCE}, v{T+3}')
        a(f'v_cmp_ne_u32 vcc, 0, v{T+3}')
        a(f's_cbranch_vccz {ld}')
        if o.slp: a(f's_sleep {o.slp}')
        a(f's_branch {lp}')
        a.label(ld)
        a('s_waitcnt vmcnt(0)')
        self.stamp(6 + 16 * L)
        a(f'v_mov_b32 v{PB+1}, v{PB+2}')
        a(f'v_mov_b32 v{PB+5}, v{PB+6}')
        a(f'v_lshl_or_b32 v{PB+8}, v{PB+10}, 16, v{PB+8}')
        a(f'ds_write_b64 v{W}, v[{PB}:{PB+1}]')
        a(f'ds_write_b64 v{W}, v[{PB+4}:{PB+5}] offset:{2 * KVT_HEAD}')
        l = self.lab('zw')
        a(f's_cmp_lg_u32 s{S_W}, 0')
        a(f's_cbranch_scc1 {l}')
        a(f'ds_write_b32 v{W+1}, v{PB+8}')
        a(f'ds_write_b32 v{W+1}, v{PB+8} offset:{4 * KVT_ROW}')
        a.label(l)
        a('s_waitcnt lgkmcnt(0)')
        a('s_barrier')
        AF = 72
        for hd in range(2):
            for m in range(2):
                a(f'ds_read_b128 v[{AF+8*hd+4*m}:{AF+8*hd+4*m+3}], v{W+2} offset:{hd * KVT_HEAD + 16 * m}')
        D = [88, 104]
        for hd in range(2):
            a(f's_waitcnt lgkmcnt({2 - 2*hd})')
            a(f'v_mfma_f32_32x32x16_bf16 v[{D[hd]}:{D[hd]+15}], v[{AF+8*hd}:{AF+8*hd+3}], v[{V_PHIQ+8*hd}:{V_PHIQ+8*hd+3}], 0')
            a(f'v_mfma_f32_32x32x16_bf16 v[{D[hd]}:{D[hd]+15}], v[{AF+8*hd+4}:{AF+8*hd+7}], v[{V_PHIQ+8*hd+4}:{V_PHIQ+8*hd+7}], v[{D[hd]}:{D[hd]+15}]')
        OB = 48
        for hd in range(2):
            d = D[hd]
            a(f'v_add_f32 v{d+8}, 0x358637bd, v{d+8}')
            a(f'v_rcp_f32 v{d+8}, v{d+8}')
            for r in range(0, 8, 2):
                a(f'v_pk_mul_f32 v[{d+r}:{d+r+1}], v[{d+r}:{d+r+1}], v[{d+8}:{d+9}] op_sel_hi:[1,0]')
            for r in range(0, 8, 2):
                a(f'v_cvt_pk_bf16_f32 v{OB+4*hd+r//2}, v{d+r}, v{d+r+1}')
        lf, le = self.lab('ofast'), self.lab('oend')
        a(f's_cmp_eq_u32 s{S_FAST}, 1')
        a(f's_cbranch_scc1 {lf}')
        for hd in range(2):
            a(f'global_store_dwordx4 v{W+3}, v[{OB+4*hd}:{OB+4*hd+3}], {WSB} offset:{hd*1024} sc1')
        a('s_waitcnt vmcnt(0)')
        self.flag_store(4 * L + 1, S_T0 + 8)
        a(f's_branch {le}')
        a.label(lf)
        for hd in range(2):
            a(f'global_store_dwordx4 v{W+3}, v[{OB+4*hd}:{OB+4*hd+3}], {WSB} offset:{hd*1024}')
        a('s_waitcnt vmcnt(0)')
        self.flag_store(4 * L + 1, S_T0 + 8, sc='')
        a.label(le)
        self.stamp(7 + 16 * L)

    def wo_stage(self):
        a = self.a
        b, t = 48, 49
        a(f'v_lshrrev_b32 v{b}, 4, v{V_LANE}')
        a(f'v_lshlrev_b32 v{t}, 2, v{b}')
        a(f'v_and_b32 v{t+1}, 15, v{V_LANE}')
        a(f'v_xor_b32 v{t}, v{t}, v{t+1}')
        a(f'v_lshlrev_b32 v{t}, 4, v{t}')
        a(f's_lshl_b32 s{S_T0}, s{S_W}, 2')
        a(f'v_add_u32 v{b}, s{S_T0}, v{b}')
        a(f'v_lshl_add_u32 v{b}, v{b}, 10, v{t}')
        a(f's_lshl_b32 s{S_T0}, s{S_CB}, 8')
        a(f'v_add_u32 v{b}, s{S_T0}, v{b}')
        def blk(i): return i * 4096 if i < 22 else LDS_KC + (i - 22) * 4096
        for i in range(32):
            a(f'v_add_u32 v{t}, {i * 16 * 1024}, v{b}')
            a(f's_add_u32 m0, s{S_W1024}, {blk(i)}')
            a(f'global_load_lds_dwordx4 v{t}, s[{S_WO}:{S_WO+1}]')
        b, t = 52, 53
        a(f'v_bfe_u32 v{t}, v{V_LANE}, 2, 2')
        a(f'v_lshl_add_u32 v{b}, v{V_HH}, 2, v{t}')
        a(f'v_lshlrev_b32 v{b}, 8, v{b}')
        a(f'v_lshlrev_b32 v{t}, 2, v{t}')
        a(f'v_bfe_u32 v{t+1}, v{V_LANE}, 4, 1')
        a(f'v_lshlrev_b32 v{t+1}, 1, v{t+1}')
        a(f'v_bfe_u32 v{t+2}, v{V_LANE}, 1, 1')
        a(f's_lshl_b32 s{S_T0}, s{S_W}, 2')
        a(f'v_add3_u32 v{t+1}, v{t+1}, v{t+2}, s{S_T0}')
        a(f'v_xor_b32 v{t+1}, v{t+1}, v{t}')
        a(f'v_lshl_add_u32 v{b}, v{t+1}, 4, v{b}')
        a(f'v_and_b32 v{t+1}, 1, v{V_LANE}')
        a(f'v_lshl_add_u32 v{b}, v{t+1}, 3, v{b}')
        a(f'v_add_u32 v{b+1}, 65536, v{b}')
        a(f'v_add_u32 v{b+2}, {LDS_KC}, v{b}')
        for half in range(2):
            a(f's_waitcnt vmcnt({16 - 16*half})')
            a('s_barrier')
            for hg in range(16 * half, 16 * half + 16):
                if hg < 16: r, off = b, hg * 4096
                elif hg < 22: r, off = b + 1, (hg - 16) * 4096
                else: r, off = b + 2, (hg - 22) * 4096
                for x in range(2):
                    a(f'ds_read_b64_tr_b16 v[{128+4*hg+2*x}:{128+4*hg+2*x+1}], v{r} offset:{off + x * 2048}')
        a('s_waitcnt lgkmcnt(0)')

    def p2b(self, L):
        a = self.a; o = self.o
        a.c(f'================ P2b layer {L} ================')
        a(f's_lshl_b32 s{S_T0+9}, s{S_T}, 4')
        T = V_P
        a(f's_lshl_b32 s{S_T0+4}, s{S_T}, 15')
        a(f's_add_u32 s{S_T0+4}, s{S_T0+4}, s{S_W1024}')
        a(f's_add_u32 s{S_T0+4}, s{S_T0+4}, {WS_O + L * 0x200000}')
        a(f'v_lshlrev_b32 v{T+2}, 4, v{V_LANE}')
        a(f'v_add_u32 v{T}, s{S_T0+4}, v{T+2}')
        self.wait(4 * L + 1, S_T0 + 9, 16, slp0=0)
        self.stamp(8 + 16 * L)
        for i in range(8):
            a(f'v_add_u32 v{T+1}, {i * 4096}, v{T}')
            a(f's_add_u32 m0, s{S_W1024}, {i * 4096}')
            a(f'global_load_lds_dwordx4 v{T+1}, {WSB} sc1')
        FR, ACC, NB = 56, 72, 4
        self.lg = []
        def rd(hg): self.lg_op(f'ds_read_b128 v[{FR+4*(hg%NB)}:{FR+4*(hg%NB)+3}], v{T+2} offset:{hg*1024}', f'o{hg}')
        a('s_waitcnt vmcnt(4)')
        a('s_barrier')
        for hg in range(3): rd(hg)
        for hg in range(32):
            if hg == 12:
                a('s_waitcnt vmcnt(0)')
                a('s_barrier')
            if hg + 3 < 32: rd(hg + 3)
            self.wait_lg(f'o{hg}')
            c = '0' if hg == 0 else f'v[{ACC}:{ACC+15}]'
            a(f'v_mfma_f32_32x32x16_bf16 v[{ACC}:{ACC+15}], v[{128+4*hg}:{128+4*hg+3}], v[{FR+4*(hg%NB)}:{FR+4*(hg%NB)+3}], {c}')
        self.stamp(9 + 16 * L)
        TR = 32768
        W1, R1, G1, A1 = 52, 53, 54, 55
        a(f'v_lshlrev_b32 v{W1}, 6, v{V_J}')
        a(f'v_lshl_add_u32 v{W1}, v{V_HH}, 3, v{W1}')
        a(f's_lshl_b32 s{S_T0}, s{S_W}, 11')
        a(f's_add_u32 s{S_T0}, s{S_T0}, {TR}')
        a(f'v_add_u32 v{W1}, s{S_T0}, v{W1}')
        a(f'v_lshrrev_b32 v{T}, 4, v{V_LANE}')
        a(f'v_bfe_u32 v{R1}, v{V_LANE}, 2, 2')
        a(f'v_lshl_add_u32 v{R1}, v{T}, 3, v{R1}')
        a(f'v_lshlrev_b32 v{R1}, 6, v{R1}')
        a(f'v_and_b32 v{T+1}, 3, v{V_LANE}')
        a(f'v_lshl_add_u32 v{R1}, v{T+1}, 3, v{R1}')
        a(f'v_add_u32 v{R1}, s{S_T0}, v{R1}')
        a(f's_lshl_b32 s{S_T0}, s{S_CB}, 7')
        a(f's_lshl_b32 s{S_T0+1}, s{S_W}, 5')
        a(f's_add_u32 s{S_T0}, s{S_T0}, s{S_T0+1}')
        a(f's_lshl_b32 s{S_T0}, s{S_T0}, 12')
        a(f's_lshl_b32 s{S_T0+1}, s{S_T}, 6')
        a(f's_add_u32 s{S_T0}, s{S_T0}, s{S_T0+1}')
        a(f's_add_u32 s{S_T0}, s{S_T0}, {WS_X1T + L * 0x200000}')
        a(f'v_and_b32 v{G1}, 15, v{V_LANE}')
        a(f'v_lshlrev_b32 v{G1}, 12, v{G1}')
        a(f'v_lshl_add_u32 v{G1}, v{T}, 4, v{G1}')
        a(f'v_add_u32 v{G1}, s{S_T0}, v{G1}')
        a(f's_lshl_b32 s{S_T0}, s{S_T}, 7')
        a(f's_add_u32 s{S_T0}, s{S_T0}, {WS_STATS + L * 0x4000}')
        a(f'v_lshlrev_b32 v{A1}, 2, v{V_J}')
        a(f'v_lshl_add_u32 v{A1}, v{V_HH}, 13, v{A1}')
        a(f'v_add_u32 v{A1}, s{S_T0}, v{A1}')
        X, U = 88, 96
        SS, SQ, ONES = 100, 101, 102
        a(f'v_mov_b32 v{SS}, 0'); a(f'v_mov_b32 v{SQ}, 0'); a(f'v_mov_b32 v{ONES}, 0x3f803f80')
        for g in range(8):
            u = U + 2 * (g & 1)
            a(f'v_lshlrev_b32 v{u}, 16, v{V_RESID+g}')
            a(f'v_and_b32 v{u+1}, 0xffff0000, v{V_RESID+g}')
            a(f'v_pk_add_f32 v[{ACC+2*g}:{ACC+2*g+1}], v[{ACC+2*g}:{ACC+2*g+1}], v[{u}:{u+1}]')
            a(f'v_cvt_pk_bf16_f32 v{X+g}, v{ACC+2*g}, v{ACC+2*g+1}')
            if g & 1: a(f'ds_write_b64 v{W1}, v[{X+g-1}:{X+g}] offset:{8*(g-1)}')
        for g in range(8):
            a(f'v_dot2c_f32_bf16 v{SS}, v{X+g}, v{ONES}')
            a(f'v_dot2c_f32_bf16 v{SQ}, v{X+g}, v{X+g}')
        Y = 104
        a('s_waitcnt lgkmcnt(0)')
        for m in range(2):
            for x in range(2):
                a(f'ds_read_b64_tr_b16 v[{Y+4*m+2*x}:{Y+4*m+2*x+1}], v{R1} offset:{m*32 + x*256}')
        a(f'v_mov_b32 v{U}, v{SS}')
        a(f'v_mov_b32 v{U+1}, v{SQ}')
        a(f'v_permlane32_swap_b32 v{SS}, v{U}')
        a(f'v_permlane32_swap_b32 v{SQ}, v{U+1}')
        a(f'v_add_f32 v{SS}, v{SS}, v{U}')
        a(f'v_add_f32 v{SQ}, v{SQ}, v{U+1}')
        a(f'v_cmp_eq_u32 vcc, 0, v{V_HH}')
        a(f'v_cndmask_b32 v{SS}, v{SQ}, v{SS}, vcc')
        a(f'global_atomic_add_f32 v{A1}, v{SS}, {WSB}')
        a(f'v_add_u32 v{T}, {16 * 4096}, v{G1}')
        a('s_waitcnt lgkmcnt(2)')
        a(f'global_store_dwordx4 v{G1}, v[{Y}:{Y+3}], {WSB} sc1')
        a('s_waitcnt lgkmcnt(0)')
        a(f'global_store_dwordx4 v{T}, v[{Y+4}:{Y+7}], {WSB} sc1')
        self.signal_wg(4 * L + 2, S_WG)
        self.stamp(10 + 16 * L)

    def exp_acc(self, dst, src, t):
        a = self.a
        a(f'v_mul_f32 v{t}, {hex(LOG2E)}, v{src}')
        a(f'v_mov_b32 v{t+1}, {hex(LOG2E)}')
        a(f'v_fma_f32 v{t+1}, v{src}, v{t+1}, -v{t}')
        a(f'v_fmac_f32 v{t+1}, 0x32a57060, v{src}')
        a(f'v_exp_f32 v{dst}, v{t}')
        a(f'v_mul_f32 v{t+1}, 0x3f317218, v{t+1}')
        a(f'v_fmac_f32 v{dst}, v{dst}, v{t+1}')

    def cis_pow(self, dst, ar2, rev, p, t):
        a = self.a
        import struct
        pf = hex(struct.unpack('<I', struct.pack('<f', float(p)))[0])
        a(f'v_mul_f32 v{t}, {pf}, v{ar2}')
        a(f'v_exp_f32 v{t}, v{t}')
        a(f'v_mul_f32 v{t+1}, {pf}, v{rev}')
        a(f'v_fract_f32 v{t+1}, v{t+1}')
        a(f'v_cos_f32 v{dst}, v{t+1}')
        a(f'v_sin_f32 v{dst+1}, v{t+1}')
        a(f'v_mul_f32 v{dst}, v{dst}, v{t}')
        a(f'v_mul_f32 v{dst+1}, v{dst+1}, v{t}')

    def cmul(self, d, x, y):
        a = self.a
        a(f'v_pk_mul_f32 v[{d}:{d+1}], v[{x}:{x+1}], v[{y}:{y+1}] op_sel_hi:[0,1]')
        a(f'v_pk_fma_f32 v[{d}:{d+1}], v[{x}:{x+1}], v[{y}:{y+1}], v[{d}:{d+1}] op_sel:[1,1,0] op_sel_hi:[1,0,1] neg_lo:[0,1,0]')

    KG_A = 40960
    KG_B = LDS_FREE
    KG_D = 0
    KG_MX = SC_RED
    def kgen_loads(self):
        a = self.a
        T = 46
        a(f's_lshl_b32 s{S_T0}, s{S_C0}, 8')
        a(f'v_lshlrev_b32 v{T}, 1, v{V_TID}')
        a(f'v_add_u32 v{T}, s{S_T0}, v{T}')
        a(f'global_load_ushort v40, v{T}, s[{S_LOGA}:{S_LOGA+1}]')
        a(f'global_load_ushort v41, v{T}, s[{S_AIM}:{S_AIM+1}]')
        a(f'global_load_ushort v42, v{T}, s[{S_CRE}:{S_CRE+1}]')
        a(f'global_load_ushort v43, v{T}, s[{S_CIM}:{S_CIM+1}]')
        a(f'v_lshrrev_b32 v{T+1}, 7, v{V_TID}')
        a(f'v_add_u32 v{T+1}, s{S_C0}, v{T+1}')
        a(f'v_lshlrev_b32 v{T+1}, 1, v{T+1}')
        a(f'global_load_ushort v44, v{T+1}, s[{S_LOGDT}:{S_LOGDT+1}]')
        a(f's_lshl_b32 s{S_T0}, s{S_C0}, 1')
        a(f's_add_u32 s{S_T0+2}, s{S_DSK}, s{S_T0}')
        a(f's_addc_u32 s{S_T0+3}, s{S_DSK+1}, 0')
        a(f's_load_dword s{S_DSKV}, s[{S_T0+2}:{S_T0+3}], 0')

    def kgen_a(self):
        a = self.a; o = self.o
        a.c('================ K generation: power tables ================')
        T = V_P
        LA, AI, CR, CI, LD = 56, 57, 58, 59, 60
        for i, r in enumerate((LA, AI, CR, CI, LD)): a(f'v_mov_b32 v{r}, v{40+i}')
        for r in (LA, AI, CR, CI, LD): a(f'v_lshlrev_b32 v{r}, 16, v{r}')
        DT, EA = 62, 63
        self.exp_acc(DT, LD, T); self.rbf(DT, DT)
        self.exp_acc(EA, LA, T); self.rbf(EA, EA)
        AR2, REV = 64, 65
        a(f'v_mul_f32 v{AR2}, v{EA}, v{DT}')
        a(f'v_mul_f32 v{AR2}, {hex(LOG2E ^ 0x80000000)}, v{AR2}')
        a(f'v_mul_f32 v{REV}, v{AI}, v{DT}')
        a(f'v_mul_f32 v{REV}, 0.15915494, v{REV}')
        MX = 66
        a(f'v_max_f32 v{MX}, |v{CR}|, |v{CI}|')
        for ctrl in ('row_ror:1', 'row_ror:2', 'row_ror:4', 'row_ror:8'):
            a(f'v_mov_b32_dpp v{T}, v{MX} {ctrl} row_mask:0xf bank_mask:0xf')
            a(f'v_max_f32 v{MX}, v{MX}, v{T}')
        a(f'v_mov_b32 v{T}, v{MX}')
        a(f'v_permlane16_swap_b32 v{MX}, v{T}')
        a(f'v_max_f32 v{MX}, v{MX}, v{T}')
        a(f'v_mov_b32 v{T}, v{MX}')
        a(f'v_permlane32_swap_b32 v{MX}, v{T}')
        a(f'v_max_f32 v{MX}, v{MX}, v{T}')
        a(f's_lshl_b32 s{S_T0}, s{S_W}, 2')
        a(f's_add_u32 s{S_T0}, s{S_T0}, {self.KG_MX}')
        a(f'v_mov_b32 v{T}, s{S_T0}')
        a(f'ds_write_b32 v{T}, v{MX}')
        a('s_waitcnt lgkmcnt(0)')
        a('s_barrier')
        a(f's_lshl_b32 s{S_T0}, s{S_RHALF}, 3')
        a(f's_add_u32 s{S_T0}, s{S_T0}, {self.KG_MX}')
        a(f'v_mov_b32 v{T}, s{S_T0}')
        a(f'ds_read_b64 v[{T+2}:{T+3}], v{T}')
        a('s_waitcnt lgkmcnt(0)')
        a(f'v_max_f32 v{MX}, v{T+2}, v{T+3}')
        a(f'v_lshrrev_b32 v{MX}, 23, v{MX}')
        a(f'v_max_u32 v{MX}, 1, v{MX}')
        a(f'v_min_u32 v{MX}, 253, v{MX}')
        SCL = 67
        a(f'v_sub_u32 v{SCL}, 254, v{MX}')
        a(f'v_lshlrev_b32 v{SCL}, 23, v{SCL}')
        a(f'v_lshlrev_b32 v{T}, 23, v{MX}')
        a(f'v_mul_f32 v{T}, v{T}, v{DT}')
        a(f'v_mul_f32 v{T}, 0x3d000000, v{T}')
        a(f's_lshl_b32 s{S_T0}, s{S_RHALF}, 2')
        a(f's_add_u32 s{S_T0}, s{S_T0}, {self.KG_MX + 32}')
        a(f'v_mov_b32 v{T+1}, s{S_T0}')
        a(f'ds_write_b32 v{T+1}, v{T}')
        C = 58
        a(f'v_pk_mul_f32 v[{C}:{C+1}], v[{C}:{C+1}], v[{SCL-1}:{SCL}] op_sel:[0,1] op_sel_hi:[1,1]')
        Z1, Z8, Z256 = 68, 70, 72
        self.cis_pow(Z1, AR2, REV, 1, T)
        self.cis_pow(Z8, AR2, REV, 8, T)
        self.cis_pow(Z256, AR2, REV, 256, T)
        TA, TB = 74, 75
        a(f'v_lshrrev_b32 v{T}, 7, v{V_TID}')
        a(f'v_and_b32 v{T+1}, 127, v{V_TID}')
        a(f'v_lshlrev_b32 v{T+1}, 2, v{T+1}')
        a(f'v_mul_u32_u24 v{TA}, 16896, v{T}')
        a(f'v_add_u32 v{TA}, v{TA}, v{T+1}')
        a(f'v_mul_u32_u24 v{TB}, 11088, v{T}')
        a(f'v_add3_u32 v{TB}, v{TB}, v{T+1}, 0')
        a(f'v_add_u32 v{TB}, {self.KG_B}, v{TB}')
        P0, P1 = 76, 78
        H = 80
        a(f'v_mov_b32 v{P0}, 1.0'); a(f'v_mov_b32 v{P0+1}, 0')
        cur, nxt = P0, P1
        for b in range(32):
            a(f'v_cvt_pkrtz_f16_f32 v{H + (b & 1)}, v{cur}, -v{cur+1}')
            a(f'ds_write_b32 v{TA}, v{H + (b & 1)} offset:{self.KG_A + b * 528}')
            if b < 31:
                self.cmul(nxt, cur, Z8); cur, nxt = nxt, cur
        def putB(col, r):
            a(f'v_cvt_pkrtz_f16_f32 v{H + (col & 1)}, v{r}, v{r+1}')
            a(f'ds_write_b32 v{TB}, v{H + (col & 1)} offset:{col * 528}')
        Z2, Z4, Z6 = 82, 84, 86
        self.cmul(Z2, Z1, Z1); self.cmul(Z4, Z2, Z2); self.cmul(Z6, Z4, Z2)
        putB(0, C)
        cur, nxt = P0, P1
        self.cmul(cur, C, Z1); putB(1, cur)
        for k in range(2, 8):
            self.cmul(nxt, cur, Z1); cur, nxt = nxt, cur; putB(k, cur)
        G, G2, W1 = 88, 90, 92
        self.cmul(G, C, Z256)
        putB(8, G)
        for k, zz in ((9, Z2), (10, Z4), (11, Z6)):
            self.cmul(W1, G, zz); putB(k, W1)
        self.cmul(G2, G, Z256)
        putB(12, G2); self.cmul(W1, G2, Z4); putB(13, W1)
        self.cmul(G, G2, Z256)
        putB(14, G); self.cmul(W1, G, Z4); putB(15, W1)
        self.cmul(G2, G, Z256); putB(16, G2)
        self.cmul(G, G2, Z256); putB(17, G)
        self.cmul(G2, G, Z256); putB(18, G2)
        self.cmul(G, G2, Z256); putB(19, G)
        self.cmul(G2, G, Z256); putB(20, G2)
        a('s_waitcnt lgkmcnt(0)')

    def kgen_b(self):
        a = self.a; o = self.o
        a.c('================ K generation: contraction over modes ================')
        T = V_P
        a('s_barrier')
        AA, BA = T, T + 1
        a(f'v_and_b32 v{T+2}, 15, v{V_LANE}')
        a(f'v_lshrrev_b32 v{T+3}, 4, v{V_LANE}')
        a(f'v_lshlrev_b32 v{T+3}, 4, v{T+3}')
        a(f'v_mul_u32_u24 v{AA}, 528, v{T+2}')
        a(f'v_add_u32 v{AA}, v{AA}, v{T+3}')
        a(f's_mul_i32 s{S_T0}, s{S_HSEL}, 16896')
        a(f'v_add_u32 v{AA}, s{S_T0}, v{AA}')
        a(f's_lshl_b32 s{S_T0+1}, s{S_RHALF}, 4')
        a(f'v_add_u32 v{BA}, s{S_T0+1}, v{T+2}')
        a(f'v_min_u32 v{BA}, 20, v{BA}')
        a(f'v_mul_u32_u24 v{BA}, 528, v{BA}')
        a(f'v_add_u32 v{BA}, v{BA}, v{T+3}')
        a(f's_mul_i32 s{S_T0}, s{S_HSEL}, 11088')
        a(f's_add_u32 s{S_T0}, s{S_T0}, {self.KG_B}')
        a(f'v_add_u32 v{BA}, s{S_T0}, v{BA}')
        FA, FB, DD = 56, 88, 104
        def rdk(ks):
            st = ks & 1
            a(f'ds_read_b128 v[{FA+8*st}:{FA+8*st+3}], v{AA} offset:{self.KG_A + ks * 64}')
            a(f'ds_read_b128 v[{FA+8*st+4}:{FA+8*st+7}], v{AA} offset:{self.KG_A + 16 * 528 + ks * 64}')
            a(f'ds_read_b128 v[{FB+4*st}:{FB+4*st+3}], v{BA} offset:{ks * 64}')
        rdk(0)
        for ks in range(8):
            if ks + 1 < 8:
                rdk(ks + 1); a('s_waitcnt lgkmcnt(3)')
            else:
                a('s_waitcnt lgkmcnt(0)')
            st = ks & 1
            for mb in range(2):
                c = '0' if ks == 0 else f'v[{DD+4*mb}:{DD+4*mb+3}]'
                a(f'v_mfma_f32_16x16x32_f16 v[{DD+4*mb}:{DD+4*mb+3}], v[{FA+8*st+4*mb}:{FA+8*st+4*mb+3}], v[{FB+4*st}:{FB+4*st+3}], {c}')
        COL, P2 = T, T + 1
        a(f'v_and_b32 v{COL}, 15, v{V_LANE}')
        a(f's_lshl_b32 s{S_T0}, s{S_RHALF}, 4')
        a(f'v_add_u32 v{COL}, s{S_T0}, v{COL}')
        t2, t3 = T + 2, T + 3
        a(f'v_mov_b32 v{P2}, v{COL}')
        a(f'v_lshlrev_b32 v{t2}, 1, v{COL}'); a(f'v_add_u32 v{t2}, {256 - 16}, v{t2}')
        a(f'v_cmp_le_u32 vcc, 8, v{COL}'); a(f'v_cndmask_b32 v{P2}, v{P2}, v{t2}, vcc')
        a(f'v_and_b32 v{t2}, 1, v{COL}'); a(f'v_lshlrev_b32 v{t2}, 2, v{t2}')
        a(f'v_bfe_u32 v{t3}, v{COL}, 1, 1'); a(f'v_lshlrev_b32 v{t3}, 8, v{t3}')
        a(f'v_add3_u32 v{t2}, v{t2}, v{t3}, 0'); a(f'v_add_u32 v{t2}, 512, v{t2}')
        a(f'v_cmp_le_u32 vcc, 12, v{COL}'); a(f'v_cndmask_b32 v{P2}, v{P2}, v{t2}, vcc')
        a(f'v_lshlrev_b32 v{t2}, 8, v{COL}'); a(f'v_add_u32 v{t2}, {1024 - 4096 + 0x100000}, v{t2}'); a(f'v_and_b32 v{t2}, 0xfffff, v{t2}')
        a(f'v_cmp_le_u32 vcc, 16, v{COL}'); a(f'v_cndmask_b32 v{P2}, v{P2}, v{t2}, vcc')
        a(f'v_lshrrev_b32 v{t2}, 4, v{V_LANE}')
        a(f'v_lshl_add_u32 v{t2}, v{t2}, 5, v{P2}')
        a(f'v_lshlrev_b32 v{t2}, 1, v{t2}')
        a(f's_mul_i32 s{S_T0}, s{S_HSEL}, 4112')
        a(f's_add_u32 s{S_T0}, s{S_T0}, {self.KG_D}')
        a(f'v_add_u32 v{t2}, s{S_T0}, v{t2}')
        for i in range(8):
            a(f'v_mul_f32 v{DD+i}, 0x42800000, v{DD+i}')
            a(f'v_cvt_f16_f32 v{DD+i}, v{DD+i}')
        a(f'v_cmp_gt_u32 vcc, 20, v{COL}')
        a(f's_and_saveexec_b64 s[{S_T0+2}:{S_T0+3}], vcc')
        for mb in range(2):
            for r in range(4):
                a(f'ds_write_b16 v{t2}, v{DD+4*mb+r} offset:{(128*mb + 8*r) * 2}')
        a(f's_mov_b64 exec, s[{S_T0+2}:{S_T0+3}]')
        a(f'v_cmp_eq_u32 vcc, 20, v{COL}')
        a(f'v_lshrrev_b32 v{t3}, 4, v{V_LANE}')
        a(f'v_cmp_eq_u32 s[{S_T0+4}:{S_T0+5}], 0, v{t3}')
        a(f's_and_b64 vcc, vcc, s[{S_T0+4}:{S_T0+5}]')
        a(f's_and_saveexec_b64 s[{S_T0+2}:{S_T0+3}], vcc')
        a(f'ds_write_b16 v{t2}, v{DD}')
        a(f's_mov_b64 exec, s[{S_T0+2}:{S_T0+3}]')
        a('s_waitcnt lgkmcnt(0)')
        a('s_barrier')
        LL = 56
        for i in range(12):
            a(f'v_lshlrev_b32 v{T}, 3, v{V_TID}')
            a(f'v_add_u32 v{T}, {i - 4 + 0}, v{T}') if i >= 4 else a(f'v_subrev_u32 v{T}, {4 - i}, v{T}')
            a(f'v_max_i32 v{T}, 0, v{T}')
            a(f'v_cvt_f32_u32 v{T}, v{T}')
            self.rbf(T, T)
            a(f'v_cvt_u32_f32 v{T}, v{T}')
            a(f'v_lshlrev_b32 v{LL+i}, 1, v{T}')
            a(f'v_add_u32 v{LL+i}, {self.KG_D}, v{LL+i}')
        GT = 72
        for ch in range(2):
            for i in range(12):
                a(f'ds_read_u16 v{GT + 12*ch + i}, v{LL+i} offset:{ch * 4112}')
        a('s_waitcnt lgkmcnt(0)')
        for ch in range(2):
            for i in range(6):
                a(f'v_lshl_or_b32 v{V_K + 6*ch + i}, v{GT + 12*ch + 2*i + 1}, 16, v{GT + 12*ch + 2*i}')
        a(f'v_mov_b32 v{T}, {self.KG_MX + 32}')
        a(f'ds_read_b64 v[{T+2}:{T+3}], v{T}')
        a('s_waitcnt lgkmcnt(0)')
        a(f'v_readfirstlane_b32 s{S_KSC}, v{T+2}')
        a(f'v_readfirstlane_b32 s{S_KSC+1}, v{T+3}')
        a(f'v_cmp_eq_u32 vcc, 0, v{V_TID}')
        for ch in range(2):
            for i in range(2):
                a(f'v_cndmask_b32 v{V_K+6*ch+i}, v{V_K+6*ch+i}, 0, vcc') if False else a(f'v_cndmask_b32 v{V_K+6*ch+i}, v{V_K+6*ch+i}, v{self.zero_reg()}, vcc')
        a('s_waitcnt lgkmcnt(0)')
        a('s_barrier')
        if o.dump == 'kgen': self.dump(V_K, 12, 0)

    def zero_reg(self):
        self.a(f'v_mov_b32 v119, 0')
        return 119

    CV_KC = LDS_KC
    CV_U = 512
    CV_X1 = 9728
    CV_EX = 17920
    def k_copies(self):
        a = self.a
        a.c('K shifted copies -> LDS')
        T = V_P
        AD = T
        a(f'v_lshlrev_b32 v{AD}, 4, v{V_TID}')
        a(f'v_add_u32 v{AD}, {self.CV_KC + 32}, v{AD}')
        W = 56
        for ch in range(2):
            d = V_K + 6 * ch
            base = ch * 16640
            a(f'ds_write_b128 v{AD}, v[{d+2}:{d+5}] offset:{base}')
            for i in range(4): a(f'v_mov_b32 v{W+i}, v{d+1+i}')
            a(f'ds_write_b128 v{AD}, v[{W}:{W+3}] offset:{base + 2*4160}')
            for i in range(5): a(f'v_alignbit_b32 v{W+4+i}, v{d+i+1}, v{d+i}, 16')
            a(f'ds_write_b128 v{AD}, v[{W+4}:{W+7}] offset:{base + 3*4160}')
            for i in range(4): a(f'v_mov_b32 v{W+10+i}, v{W+5+i}')
            a(f'ds_write_b128 v{AD}, v[{W+10}:{W+13}] offset:{base + 1*4160}')
        for i in range(4): a(f'v_mov_b32 v{W+i}, 0')
        a(f'v_lshrrev_b32 v{T+1}, 1, v{V_TID}')
        a(f'v_mul_u32_u24 v{T+1}, 4160, v{T+1}')
        a(f'v_and_b32 v{T+2}, 1, v{V_TID}')
        a(f'v_lshl_add_u32 v{T+1}, v{T+2}, 4, v{T+1}')
        a(f'v_add_u32 v{T+1}, {self.CV_KC}, v{T+1}')
        a(f'v_cmp_gt_u32 vcc, 16, v{V_TID}')
        a(f's_and_saveexec_b64 s[{S_T0+2}:{S_T0+3}], vcc')
        a(f'ds_write_b128 v{T+1}, v[{W}:{W+3}]')
        a(f's_mov_b64 exec, s[{S_T0+2}:{S_T0+3}]')

    def u_pad_zero(self):
        a = self.a
        T, W = V_P, 56
        for i in range(4): a(f'v_mov_b32 v{W+i}, 0')
        a(f'v_lshrrev_b32 v{T+1}, 5, v{V_TID}')
        a(f'v_mul_u32_u24 v{T+1}, 4608, v{T+1}')
        a(f'v_and_b32 v{T+2}, 31, v{V_TID}')
        a(f'v_lshl_add_u32 v{T+1}, v{T+2}, 4, v{T+1}')
        a(f'v_add_u32 v{T+1}, {self.CV_U}, v{T+1}')
        l = self.lab('up')
        a(f's_cmp_lg_u32 s{S_W}, 0')
        a(f's_cbranch_scc1 {l}')
        a(f'ds_write_b128 v{T+1}, v[{W}:{W+3}]')
        a.label(l)

    def conv(self, L):
        a = self.a; o = self.o
        a.c(f'================ conv layer {L} ================')
        if L == 0:
            self.kgen_b()
            self.k_copies()
        self.u_pad_zero()
        T = V_P
        XR, SM, SQ = 48, 56, 64
        GA = 112
        a(f's_lshl_b32 s{S_T0}, s{S_C0}, 12')
        a(f's_add_u32 s{S_T0}, s{S_T0}, {WS_X1T + L * 0x200000}')
        a(f'v_lshlrev_b32 v{GA}, 4, v{V_TID}')
        a(f'v_add_u32 v{GA}, s{S_T0}, v{GA}')
        a(f'v_add_u32 v{GA+1}, 4096, v{GA}')
        a(f'v_lshlrev_b32 v{GA+2}, 5, v{V_TID}')
        a(f'v_add_u32 v{GA+2}, {WS_STATS + L * 0x4000}, v{GA+2}')
        a(f'v_add_u32 v{GA+3}, 8192, v{GA+2}')
        AA, BA = 24, 25
        a(f'v_bfe_u32 v{T+2}, v{V_LANE}, 2, 2')
        a(f'v_mul_u32_u24 v{AA}, 4160, v{T+2}')
        a(f'v_lshrrev_b32 v{T+2}, 4, v{V_LANE}')
        a(f'v_lshlrev_b32 v{T+3}, 4, v{T+2}')
        a(f'v_sub_u32 v{AA}, v{AA}, v{T+3}')
        a(f'v_and_b32 v{T+4}, 3, v{V_LANE}')
        a(f'v_lshl_add_u32 v{AA}, v{T+4}, 3, v{AA}')
        a(f's_mul_i32 s{S_T0}, s{S_HSEL}, 16640')
        a(f's_lshl_b32 s{S_T0+1}, s{S_RHALF}, 8')
        a(f's_add_u32 s{S_T0}, s{S_T0}, s{S_T0+1}')
        a(f's_add_u32 s{S_T0}, s{S_T0}, {self.CV_KC + 32}')
        a(f'v_add_u32 v{AA}, s{S_T0}, v{AA}')
        a(f'v_and_b32 v{BA}, 15, v{V_LANE}')
        a(f'v_lshlrev_b32 v{BA}, 5, v{BA}')
        a(f'v_add_u32 v{BA}, v{BA}, v{T+3}')
        a(f's_mul_i32 s{S_T0}, s{S_HSEL}, 4608')
        a(f's_add_u32 s{S_T0}, s{S_T0}, {self.CV_U}')
        a(f's_lshl_b32 s{S_T0+1}, s{S_RHALF}, 8')
        a(f's_sub_u32 s{S_T0}, s{S_T0}, s{S_T0+1}')
        a(f'v_add_u32 v{BA}, s{S_T0}, v{BA}')
        K5, EP = 72, 74
        a(f'v_mov_b32 v{K5}, 0x3b000000'); a(f'v_mov_b32 v{K5+1}, 0x3b000000')
        a(f'v_mov_b32 v{EP}, 0x3727c5ac'); a(f'v_mov_b32 v{EP+1}, 0x3727c5ac')
        a('s_waitcnt lgkmcnt(0)')
        self.wait(4 * L + 2, None, 256, slp0=(0 if L == 0 else o.slp0))
        self.stamp(11 + 16 * L)
        a(f'global_load_dwordx4 v[{SM}:{SM+3}], v{GA+2}, {WSB} sc1')
        a(f'global_load_dwordx4 v[{SQ}:{SQ+3}], v{GA+3}, {WSB} sc1')
        a(f'global_load_dwordx4 v[{SM+4}:{SM+7}], v{GA+2}, {WSB} offset:16 sc1')
        a(f'global_load_dwordx4 v[{SQ+4}:{SQ+7}], v{GA+3}, {WSB} offset:16 sc1')
        a(f'global_load_dwordx4 v[{XR}:{XR+3}], v{GA}, {WSB} sc1')
        a(f'global_load_dwordx4 v[{XR+4}:{XR+7}], v{GA+1}, {WSB} sc1')
        if L == 0:
            l = self.lab('nonce')
            a(f's_add_u32 s{S_T0}, s{S_WG}, s{S_W}')
            a(f's_cmp_lg_u32 s{S_T0}, 0')
            a(f's_cbranch_scc1 {l}')
            a(f'v_mov_b32 v126, {WS_NONCE}')
            a(f'v_mov_b32 v127, s{S_NONCE}')
            a('s_mov_b64 exec, 1')
            a(f'global_store_dword v126, v127, {WSB} sc1')
            a('s_mov_b64 exec, -1')
            a.label(l)
        def rb2(r, u):
            a = self.a
            a(f'v_cvt_pk_bf16_f32 v{u}, v{r}, v{r+1}')
            a(f'v_lshlrev_b32 v{r}, 16, v{u}')
            a(f'v_and_b32 v{r+1}, 0xffff0000, v{u}')
        def fin(p, u):
            a = self.a
            m, q = SM + p, SQ + p
            a(f'v_pk_mul_f32 v[{m}:{m+1}], v[{m}:{m+1}], v[{K5}:{K5+1}]')
            a(f'v_pk_mul_f32 v[{q}:{q+1}], v[{q}:{q+1}], v[{K5}:{K5+1}]')
            a(f'v_pk_fma_f32 v[{q}:{q+1}], v[{m}:{m+1}], v[{m}:{m+1}], v[{q}:{q+1}] neg_lo:[1,0,0] neg_hi:[1,0,0]')
            a(f'v_max_f32 v{q}, 0, v{q}'); a(f'v_max_f32 v{q+1}, 0, v{q+1}')
            rb2(m, u); rb2(q, u)
            a(f'v_pk_add_f32 v[{q}:{q+1}], v[{q}:{q+1}], v[{EP}:{EP+1}]')
            rb2(q, u)
            a(f'v_sqrt_f32 v{q}, v{q}'); a(f'v_sqrt_f32 v{q+1}, v{q+1}')
            rb2(q, u)
            a(f'v_rcp_f32 v{q}, v{q}'); a(f'v_rcp_f32 v{q+1}, v{q+1}')
        a('s_waitcnt vmcnt(4)') if L == 1 else a('s_waitcnt vmcnt(4)')
        self.merge(self.cap(lambda: fin(0, 76)), self.cap(lambda: fin(2, 77)))
        a('s_waitcnt vmcnt(2)') if L == 1 else a('s_waitcnt vmcnt(0)')
        self.merge(self.cap(lambda: fin(4, 76)), self.cap(lambda: fin(6, 77)))
        a('s_waitcnt vmcnt(0)')
        UO, E = 80, 88
        def elem(ch, p, e, u):
            a = self.a
            x = XR + 4 * ch + p
            m, q = SM + 2 * p, SQ + 2 * p
            a(f'v_lshlrev_b32 v{e}, 16, v{x}')
            a(f'v_and_b32 v{e+1}, 0xffff0000, v{x}')
            a(f'v_pk_add_f32 v[{e}:{e+1}], v[{e}:{e+1}], v[{m}:{m+1}] neg_lo:[0,1] neg_hi:[0,1]')
            rb2(e, u)
            a(f'v_pk_mul_f32 v[{e}:{e+1}], v[{e}:{e+1}], v[{q}:{q+1}]')
            rb2(e, u)
            a(f'v_cvt_pkrtz_f16_f32 v{UO+4*ch+p}, v{e}, v{e+1}')
        a(f'v_lshlrev_b32 v{GA}, 4, v{V_TID}')
        for ch in range(2):
            a(f'ds_write_b128 v{GA}, v[{XR+4*ch}:{XR+4*ch+3}] offset:{self.CV_X1 + ch*4096}')
        for ch in range(2):
            for p in range(0, 4, 2):
                self.merge(self.cap(lambda: elem(ch, p, E, 76)), self.cap(lambda: elem(ch, p + 1, E + 2, 77)))
            a(f'ds_write_b128 v{GA}, v[{UO+4*ch}:{UO+4*ch+3}] offset:{self.CV_U + ch*4608 + 512}')
        a('s_waitcnt lgkmcnt(0)')
        a('s_barrier')
        self.stamp(12 + 16 * L)
        ACC, BF, AF = 48, 80, [12, 16, 20]
        self.lg = []
        def readB(ee, m):
            e = 1 + 2 * ee
            d = BF + 4 * m
            self.lg_op(f'ds_read_b128 v[{d}:{d+3}], v{BA} offset:{512 + 512*m - 32*e}', f'B{ee}_{m}')
        def readA(idx):
            ee, g = seq[idx]
            e = 1 + 2 * ee
            sl = AF[idx % 3]
            for x in range(2):
                self.lg_op(f'ds_read_b64_tr_b16 v[{sl+2*x}:{sl+2*x+1}], v{AA} offset:{32*e + 512*g - 8*x}', f'A{idx}')
        seq = [(ee, g) for ee in range(4) for g in range(8)]
        readA(0)
        for m in range(7, -1, -1): readB(0, m)
        readA(1)
        first = set()
        for idx, (ee, g) in enumerate(seq):
            if idx + 2 < len(seq): readA(idx + 2)
            self.wait_lg(f'A{idx}')
            sl = AF[idx % 3]
            for n in range(7, g - 1, -1):
                m = n - g
                if g == 0: self.wait_lg(f'B{ee}_{m}')
                acc = ACC + 4 * n
                c = f'v[{acc}:{acc+3}]' if n in first else '0'
                first.add(n)
                a(f'v_mfma_f32_16x16x32_f16 v[{acc}:{acc+3}], v[{sl}:{sl+3}], v[{BF+4*m}:{BF+4*m+3}], {c}')
                if n == 7 and ee + 1 < 4: readB(ee + 1, m)
        self.stamp(13 + 16 * L)
        T = 12
        a(f'v_lshlrev_b32 v{T}, 4, v{V_LANE}')
        a(f's_lshl_b32 s{S_T0}, s{S_W}, 13')
        a(f's_add_u32 s{S_T0}, s{S_T0}, {self.CV_EX}')
        a(f'v_add_u32 v{T+1}, s{S_T0}, v{T}')
        for n in range(7, -1, -1):
            a(f'ds_write_b128 v{T+1}, v[{ACC+4*n}:{ACC+4*n+3}] offset:{n*1024}')
        a(f's_lshl_b32 s{S_T0}, s{S_W}, 11')
        a(f's_add_u32 s{S_T0}, s{S_T0}, {self.CV_EX}')
        a(f'v_add_u32 v{T+1}, s{S_T0}, v{T}')
        a(f'v_and_b32 v{T+2}, 15, v{V_LANE}')
        a(f'v_lshlrev_b32 v{T+2}, 4, v{T+2}')
        a(f'v_lshrrev_b32 v{T+3}, 4, v{V_LANE}')
        a(f'v_lshl_add_u32 v{T+2}, v{T+3}, 2, v{T+2}')
        a(f's_lshl_b32 s{S_T0}, s{S_W}, 9')
        a(f'v_add_u32 v{T+2}, s{S_T0}, v{T+2}')
        a(f'v_lshlrev_b32 v{T+3}, 1, v{T+2}')
        XX, UU = 80, 88
        for nn in range(2):
            for ch in range(2):
                a(f'ds_read_b64 v[{XX+4*nn+2*ch}:{XX+4*nn+2*ch+1}], v{T+3} offset:{self.CV_X1 + ch*4096 + nn*512}')
                a(f'ds_read_b64 v[{UU+4*nn+2*ch}:{UU+4*nn+2*ch+1}], v{T+3} offset:{self.CV_U + ch*4608 + 512 + nn*512}')
        a(f's_lshl_b32 s{S_T0}, s{S_DSKV}, 16')
        a(f's_and_b32 s{S_T0+1}, s{S_DSKV}, 0xffff0000')
        if L == 0:
            a(f's_lshl_b32 s{S_T0+2}, s{S_C0}, 12')
            a(f's_add_u32 s{S_T0+2}, s{S_T0+2}, {WS_X2T}')
            a(f'v_add_u32 v{T+4}, s{S_T0+2}, v{T+3}')
            a(f'v_add_u32 v{T+5}, 4096, v{T+4}')
        else:
            a(f's_lshl_b32 s{S_T0+2}, s{S_C0}, 1')
            a(f'v_lshlrev_b32 v{T+4}, 10, v{T+2}')
            a(f'v_add_u32 v{T+4}, s{S_T0+2}, v{T+4}')
        a('s_waitcnt lgkmcnt(0)')
        a('s_barrier')
        Y = 48
        for nn in range(2):
            for ch in range(2):
                for eh in range(2):
                    a(f'ds_read_b128 v[{Y+16*nn+8*ch+4*eh}:{Y+16*nn+8*ch+4*eh+3}], v{T+1} offset:{(ch + 2*eh) * 8192 + nn * 1024}')
        R = 96
        def pre(nn, ch, h, e):
            a = self.a
            res = R + 8*nn + 4*ch + 2*h
            xr, ur = XX + 4*nn + 2*ch + h, UU + 4*nn + 2*ch + h
            a(f'v_cvt_f32_f16 v{e}, v{ur}')
            a(f'v_cvt_f32_f16_sdwa v{e+1}, v{ur} dst_sel:DWORD dst_unused:UNUSED_PAD src0_sel:WORD_1')
            a(f'v_lshlrev_b32 v{res}, 16, v{xr}')
            a(f'v_and_b32 v{res+1}, 0xffff0000, v{xr}')
            a(f'v_fmac_f32 v{res}, s{S_T0+ch}, v{e}')
            a(f'v_fmac_f32 v{res+1}, s{S_T0+ch}, v{e+1}')
        for nn in range(2):
            for ch in range(2):
                self.merge(self.cap(lambda: pre(nn, ch, 0, 112)), self.cap(lambda: pre(nn, ch, 1, 114)))
        E = 116
        for nn in range(2):
            a(f's_waitcnt lgkmcnt({4 - 4*nn})')
            for ch in range(2):
                y0, y1 = Y + 16*nn + 8*ch, Y + 16*nn + 8*ch + 4
                res = R + 8*nn + 4*ch
                for h in range(2):
                    a(f'v_pk_add_f32 v[{y0+2*h}:{y0+2*h+1}], v[{y0+2*h}:{y0+2*h+1}], v[{y1+2*h}:{y1+2*h+1}]')
                for i in range(4):
                    a(f'v_fmac_f32 v{res+i}, s{S_KSC+ch}, v{y0+i}')
                if L == 0:
                    e = E + 2 * (ch & 1)
                    a(f'v_cvt_pk_bf16_f32 v{e}, v{res}, v{res+1}')
                    a(f'v_cvt_pk_bf16_f32 v{e+1}, v{res+2}, v{res+3}')
                    a(f'global_store_dwordx2 v{T+4+ch}, v[{e}:{e+1}], {WSB} offset:{nn*512} sc1')
            if L == 1:
                for r in range(4):
                    a(f'v_cvt_pk_bf16_f32 v{E+(r&3)}, v{R+8*nn+r}, v{R+8*nn+4+r}')
                    a(f'v_add_u32 v{T+6+(r&1)}, {(256*nn + r) * 1024}, v{T+4}')
                    a(f'global_store_dword v{T+6+(r&1)}, v{E+(r&3)}, s[{S_OUT}:{S_OUT+1}]')
        if L == 0: self.signal_wg(4 * L + 3, S_WG)
        self.stamp(14 + 16 * L)

    def kvt_zero(self, T):
        a = self.a
        for i in range(4): a(f'v_mov_b32 v{T+4+i}, 0')
        a(f'v_lshlrev_b32 v{T}, 4, v{V_TID}')
        a(f'v_add_u32 v{T}, {SC_KVT}, v{T}')
        a(f'ds_write_b128 v{T}, v[{T+4}:{T+7}]')
        a(f'ds_write_b128 v{T}, v[{T+4}:{T+7}] offset:4096')
        l = self.lab('kz')
        a(f's_cmp_gt_u32 s{S_W}, 1')
        a(f's_cbranch_scc1 {l}')
        a(f'ds_write_b128 v{T}, v[{T+4}:{T+7}] offset:8192')
        a.label(l)

    def stats_zero(self, T):
        a = self.a
        a(f'v_bfe_u32 v{T}, v{V_LANE}, 2, 1')
        a(f'v_lshlrev_b32 v{T}, 14, v{T}')
        a(f'v_bfe_u32 v{T+1}, v{V_LANE}, 1, 1')
        a(f'v_lshl_add_u32 v{T}, v{T+1}, 13, v{T}')
        a(f'v_and_b32 v{T+1}, 1, v{V_LANE}')
        a(f'v_lshl_add_u32 v{T}, v{T+1}, 2, v{T}')
        a(f's_lshl_b32 s{S_T0}, s{S_RB}, 8')
        a(f's_lshl_b32 s{S_T0+1}, s{S_HSEL}, 7')
        a(f's_add_u32 s{S_T0}, s{S_T0}, s{S_T0+1}')
        a(f's_lshl_b32 s{S_T0+1}, s{S_HB}, 4')
        a(f's_add_u32 s{S_T0}, s{S_T0}, s{S_T0+1}')
        a(f's_lshl_b32 s{S_T0+1}, s{S_RHALF}, 3')
        a(f's_add_u32 s{S_T0}, s{S_T0}, s{S_T0+1}')
        a(f's_add_u32 s{S_T0}, s{S_T0}, {WS_STATS}')
        a(f'v_add_u32 v{T}, s{S_T0}, v{T}')
        a(f'v_mov_b32 v{T+1}, 0')
        a('s_mov_b64 exec, 0xff')
        a(f'global_store_dword v{T}, v{T+1}, {WSB} sc1')
        a('s_mov_b64 exec, -1')

    def build(self):
        a = self.a; o = self.o
        self.trk_reset()
        self.prologue()
        self.stamp(0)
        stop = o.stop
        def chk(name):
            if stop == name:
                a('s_waitcnt vmcnt(0) lgkmcnt(0)')
                a('s_branch L_end')
                return True
            return False
        if o.pt:
            sh = o.pt
            a(f'v_lshlrev_b32 v122, {sh}, v{V_TID}')
            a(f'v_min_u32 v122, {0x1000000 - 4}, v122')
            a(f'v_cmp_gt_u32 vcc, {min((0x1000000 >> sh), 256)}, v{V_TID}')
            a(f's_and_saveexec_b64 s[{S_T0+2}:{S_T0+3}], vcc')
            l = self.lab('pt')
            a(f's_cbranch_execz {l}')
            a(f'global_load_dword a250, v122, {WSB}')
            a.label(l)
            a(f's_mov_b64 exec, s[{S_T0+2}:{S_T0+3}]')
            a(f'v_mov_b32 v122, 0')
            a(f's_mov_b64 exec, 1')
            a(f'global_load_dword a249, v122, s[{S_OUT}:{S_OUT+1}]')
            a(f'global_load_dword a248, v122, s[{S_WO}:{S_WO+1}]')
            a(f's_mov_b64 exec, -1')
        WB = 148
        self.w_dma_setup(WB)
        self.XD = 36
        self.x_dma_setup(0, self.XD)
        self.vm = []
        self.w_dma(1, 0, WB, 'kva'); self.w_dma(2, 0, WB, 'kva')
        self.x_slice_prefetch(0); self.vm.append('pf')
        for c in range(8):
            for i in range(2): self.dma_x(0, c, i)
        self.w_dma(0, 0, WB, 'qa')
        self.stats_zero(54); self.vm.append('sz')
        self.wphi_load(54); self.vm += ['wphi'] * 16
        self.kgen_loads(); self.vm += ['kg'] * 5
        KVA, QA = 45, 47
        self.wfrag_addr(KVA, QA, 56)
        self.cs_sel(self.SELR)
        self.bfrag_setup(0, self.XB)
        self.st_setup(0)
        a('s_waitcnt lgkmcnt(0)')
        a(f's_add_u32 s{S_NONCE}, s{S_NONCE}, 0x9e3779b9')
        a(f's_getreg_b32 s{S_XCC}, hwreg(HW_REG_XCC_ID)')
        a(f's_and_b32 s{S_XCC}, s{S_XCC}, 15')
        l = self.lab('xt')
        a(f's_cmp_lg_u32 s{S_W}, 0')
        a(f's_cbranch_scc1 {l}')
        a(f's_lshl_b32 s{S_T0}, s{S_RB}, 6')
        a(f's_lshl_b32 s{S_T0+1}, s{S_HB}, 3')
        a(f's_add_u32 s{S_T0}, s{S_T0}, s{S_T0+1}')
        a(f's_add_u32 s{S_T0}, s{S_T0}, {WS_XT}')
        a(f'v_mov_b32 v54, s{S_T0}')
        a(f'v_mov_b32 v56, s{S_XCC}')
        a(f'v_mov_b32 v57, s{S_NONCE}')
        a('s_mov_b64 exec, 1')
        a(f'global_store_dwordx2 v54, v[56:57], {WSB} sc1')
        a('s_mov_b64 exec, -1')
        a.label(l)
        self.stamp(16)
        CSKV = 28
        for L in range(2):
            self.lg = []
            if L == 0:
                self.kv_pass0(WB, KVA, QA, self.SELR, CSKV)
            else:
                self.XD = 28
                self.x_dma_setup(1, self.XD)
                self.bfrag_setup(1, self.XB)
                self.st_setup(1)
                self.wait(3, None, 256, slp0=o.slp0)
                self.stamp(15)
                self.vm = []
                self.x_slice_prefetch(1); self.vm.append('pf')
                for c in range(4):
                    for i in range(2): self.dma_x(1, c, i)
                self.kv_pass1()
            self.kv_epilogue(L, cs_kv_reg=CSKV)
            self.q_pass(L)
            if chk(f'p1_{L}'): break
            self.o_stage(L)
            if chk(f'o_{L}'): break
            if L == 0:
                self.wo_stage()
                a('s_barrier')
                self.kgen_a()
            self.p2b(L)
            if chk(f'p2b_{L}'): break
            self.conv(L)
            if chk(f'conv_{L}'): break
        a.label('L_end')
        a('s_endpgm')

HEADER = open('cdna_kernels/' + KNAME + '.s.ref').read().split('; Override launch geometry')[0]

def main():
    ap = argparse.ArgumentParser()
    ap.add_argument('--out', default='cdna_kernels/' + KNAME + '.s')
    ap.add_argument('--stop', default='')
    ap.add_argument('--dump', default='')
    ap.add_argument('--stamps', action='store_true')
    ap.add_argument('--spin', type=int, default=40000)
    ap.add_argument('--pt', type=int, default=0)
    ap.add_argument('--fast2', action='store_true')
    ap.add_argument('--fsh', type=int, default=6)
    ap.add_argument('--slp', type=int, default=0)
    ap.add_argument('--slp0', type=int, default=0)
    ap.add_argument('--slph', type=int, default=0)
    o = ap.parse_args()
    g = Gen(o)
    g.build()
    body = g.a.text()
    txt = HEADER
    txt += '; Persistent fused kernel: 256 workgroups (one per CU), generated by gen/gen2.py\n'
    txt += '; @launch grid=(256,1,1) block=(256,1,1) lds=163840\n'
    txt += '.amdgcn_target "amdgcn-amd-amdhsa--gfx950"\n.text\n'
    txt += f'.globl {KNAME}_kernel\n.p2align 8\n.type {KNAME}_kernel,@function\n{KNAME}_kernel:\n'
    txt += body
    txt += f'''.section .rodata,"a"
.p2align 6
.amdhsa_kernel {KNAME}_kernel
  .amdhsa_next_free_vgpr 512
  .amdhsa_next_free_sgpr 96
  .amdhsa_accum_offset 256
  .amdhsa_group_segment_fixed_size 0
  .amdhsa_kernarg_size 112
  .amdhsa_user_sgpr_count 2
  .amdhsa_user_sgpr_kernarg_segment_ptr 1
  .amdhsa_system_sgpr_workgroup_id_x 1
  .amdhsa_float_denorm_mode_32 3
.end_amdhsa_kernel
'''
    open(o.out, 'w').write(txt)
    print('wrote', o.out, len(txt), 'bytes;', body.count('\n'), 'lines')

if __name__ == '__main__':
    main()
```

```python
import re

REG_RE = re.compile(r'^(-|\|)?(abs\()?([vas])(\d+|\[(\d+):(\d+)\])\)?\|?$')

def parse_reg(tok):
    t = tok.strip()
    if t in ('vcc', 'exec', 'm0', 'scc', 'vcc_lo', 'vcc_hi', 'exec_lo', 'exec_hi'):
        base = t.split('_')[0]
        return [(base, 0)]
    m = REG_RE.match(t)
    if not m:
        return []
    kind = m.group(3)
    if m.group(5) is not None:
        return [(kind, i) for i in range(int(m.group(5)), int(m.group(6)) + 1)]
    return [(kind, int(m.group(4)))]

def split_ops(s):
    out, depth, cur = [], 0, ''
    for ch in s:
        if ch in '[(': depth += 1
        if ch in '])': depth -= 1
        if ch == ',' and depth == 0:
            out.append(cur.strip()); cur = ''
        else:
            cur += ch
    if cur.strip(): out.append(cur.strip())
    return out

TRANS = ('v_exp_f32', 'v_log_f32', 'v_rcp_f32', 'v_rsq_f32', 'v_sqrt_f32', 'v_sin_f32', 'v_cos_f32', 'v_rcp_iflag_f32',
         'v_exp_f16', 'v_rcp_f16', 'v_sqrt_f16', 'v_rsq_f16')

class Ins:
    def __init__(self, text):
        self.text = text
        t = text.split(';')[0].split('//')[0].strip()
        self.is_label = t.endswith(':')
        self.is_dir = t.startswith('.')
        self.defs = set(); self.uses = set()
        self.kind = 'other'
        self.mn = ''
        if self.is_label or self.is_dir or not t:
            self.kind = 'meta'; return
        parts = t.split(None, 1)
        mn = parts[0]; self.mn = mn
        rest = parts[1] if len(parts) > 1 else ''
        ops = split_ops(rest)
        clean = []
        for o in ops:
            toks = o.split()
            clean.append(toks[0] if toks else '')
        self.ops = clean
        R = [parse_reg(o) for o in clean]
        base = re.sub(r'_(e32|e64|dpp|sdwa)$', '', mn)
        self.base = base
        self.dpp = ('row_' in t or 'quad_perm' in t or 'wave_' in t or mn.endswith('_dpp') or 'row_bcast' in t)
        self.sdwa = mn.endswith('_sdwa')
        def U(*idx):
            for i in idx:
                if i < len(R): self.uses.update(R[i])
        def D(*idx):
            for i in idx:
                if i < len(R): self.defs.update(R[i])
        n = len(R)
        if base.startswith('v_mfma') or base.startswith('v_smfma'):
            self.kind = 'mfma'
            D(0); U(1, 2, 3)
            self.srcc = set(R[3]) if n > 3 else set()
            self.srca = set(R[1]); self.srcb = set(R[2])
            self.dst = R[0]
            if '32x32x16' in base or '32x32x8' in base: self.passes = 8
            elif '16x16x32' in base or '16x16x16' in base: self.passes = 4
            elif '32x32x2_f32' in base: self.passes = 16
            elif '16x16x4_f32' in base: self.passes = 8
            else: raise ValueError('unknown mfma ' + text)
        elif base.startswith('ds_'):
            self.kind = 'ds'
            if base.startswith('ds_read') or base.startswith('ds_bpermute') or base.startswith('ds_permute') or base.startswith('ds_swizzle'):
                D(0); U(*range(1, n))
                if 'd16' in base: U(0)
            else:
                U(*range(n))
        elif base.startswith('global_') or base.startswith('buffer_') or base.startswith('flat_'):
            self.kind = 'vmem'
            if base.startswith('buffer_inv') or base.startswith('buffer_wbl2'):
                pass
            elif '_lds_' in base or t.endswith(' lds'):
                U(*range(n)); self.uses.add(('m0', 0)); self.ldsdma = True
            elif 'load' in base:
                D(0); U(*range(1, n))
            elif 'atomic' in base and ' sc0' in t:
                D(0); U(*range(1, n))
            else:
                U(*range(n))
                self.widestore = ('x4' in base or 'x3' in base)
                if self.widestore:
                    self.stdata = set(R[1]) if base.startswith('global_') else set(R[0])
        elif base.startswith('s_'):
            self.kind = 'salu'
            if base in ('s_waitcnt', 's_barrier', 's_nop', 's_sleep', 's_endpgm', 's_setprio', 's_branch') or base.startswith('s_cbranch'):
                if base == 's_cbranch_vccnz' or base == 's_cbranch_vccz': self.uses.add(('vcc', 0))
                if base.startswith('s_cbranch_exec'): self.uses.add(('exec', 0))
            elif base.startswith('s_cmp') or base.startswith('s_bitcmp'):
                U(*range(n))
            elif base.startswith('s_load') or base.startswith('s_memtime') or base.startswith('s_memrealtime'):
                self.kind = 'smem'; D(0); U(*range(1, n))
            elif 'saveexec' in base:
                D(0); U(*range(1, n)); self.defs.add(('exec', 0)); self.uses.add(('exec', 0))
            else:
                D(0); U(*range(1, n))
                if base in ('s_addc_u32', 's_subb_u32', 's_cselect_b32', 's_cselect_b64'): pass
        elif base.startswith('v_'):
            self.kind = 'valu'
            if base.startswith('v_cmpx'):
                D(0); U(*range(1, n)); self.defs.add(('exec', 0))
            elif base.startswith('v_cmp'):
                D(0); U(*range(1, n))
            elif base in ('v_permlane32_swap_b32', 'v_permlane16_swap_b32', 'v_swap_b32'):
                D(0, 1); U(0, 1)
            elif base in ('v_add_co_u32', 'v_sub_co_u32', 'v_subrev_co_u32', 'v_addc_co_u32', 'v_subb_co_u32'):
                D(0, 1); U(*range(2, n))
            elif base in ('v_fmac_f32', 'v_dot2c_f32_bf16', 'v_dot2c_f32_f16', 'v_pk_fmac_f16', 'v_writelane_b32', 'v_mac_f32'):
                D(0); U(*range(0, n))
            elif base == 'v_cvt_f16_f32' or base == 'v_cvt_f32_f16':
                D(0); U(*range(1, n))
            else:
                D(0); U(*range(1, n))
            if base == 'v_cndmask_b32' and n == 3: self.uses.add(('vcc', 0))
            if self.dpp or 'op_sel' in t and base.startswith('v_cvt') or self.sdwa:
                pass
            self.trans = base in TRANS
            self.dot = base.startswith('v_dot')
        else:
            raise ValueError('cannot parse: ' + text)

def isv(r): return r[0] in ('v', 'a')

def fix_hazards(lines, verbose=False):
    ins = [Ins(l) for l in lines]
    out = []
    hist = []
    pos = 0
    def need(cur):
        req = 0
        for (p, ppos) in reversed(hist):
            dist = pos - ppos - 1
            if dist >= 20: break
            w = hazard(p, cur)
            if w > dist: req = max(req, w - dist)
        return req
    for I in ins:
        if I.kind == 'meta':
            out.append(I.text); continue
        r = need(I)
        if I.kind == 'salu' and (I.base.startswith('s_cbranch') or I.base == 's_branch') and getattr(I, 'flush', True):
            if 'FENCE' in I.text:
                for (p, ppos) in hist:
                    dist = pos - ppos - 1
                    w = 12 if p.kind == 'mfma' else (5 if p.kind == 'valu' else 0)
                    if p.kind == 'mfma': w = {2:5,4:8,8:12,16:20}[p.passes]
                    if w > dist: r = max(r, w - dist)
        while r > 0:
            k = min(r, 16)
            out.append(f'  s_nop {k-1}')
            pos += k
            r -= k
        out.append(I.text)
        if I.base == 's_nop':
            pos += int(I.ops[0], 0) + 1
        else:
            pos += 1
        hist.append((I, pos - 1))
        if len(hist) > 24: hist.pop(0)
    return out

def hazard(p, c):
    w = 0
    pv = {r for r in p.defs if isv(r)}
    psg = {r for r in p.defs if r[0] in ('s', 'vcc')}
    if p.kind == 'valu':
        if c.kind == 'mfma' and pv & c.uses: w = max(w, 2)
        if c.kind == 'mfma' and ('exec', 0) in p.defs: w = max(w, 4)
        if c.kind == 'valu':
            if c.dpp and pv & c.uses: w = max(w, 2)
            if c.dpp and ('exec', 0) in p.defs: w = max(w, 5)
            if c.base.startswith('v_permlane') and pv & c.uses: w = max(w, 2)
            if c.base.startswith('v_permlane') and ('exec', 0) in p.defs: w = max(w, 4)
            if c.base in ('v_readlane_b32', 'v_readfirstlane_b32') and pv & c.uses: w = max(w, 1)
            if c.base in ('v_readlane_b32', 'v_readfirstlane_b32', 'v_writelane_b32') and ('exec', 0) in p.defs: w = max(w, 4)
            if psg & c.uses:
                w = max(w, 4 if c.base in ('v_readlane_b32', 'v_writelane_b32', 'v_div_fmas_f32') else 2)
            if getattr(p, 'trans', False) and not getattr(c, 'trans', False) and pv & (c.uses | c.defs): w = max(w, 1)
            if getattr(p, 'dot', False) and pv & (c.uses | c.defs):
                if p.base == c.base:
                    ab = set()
                    for o in c.ops[1:3]: ab.update(parse_reg(o))
                    if pv & ab: w = max(w, 3)
                else:
                    w = max(w, 3)
            if (p.sdwa or ('op_sel' in p.text and p.base.startswith('v_cvt'))) and pv & (c.uses | c.defs): w = max(w, 1)
            if ('exec', 0) in p.defs and ('exec', 0) in c.uses: w = max(w, 2)
        if getattr(p, 'dot', False) and c.kind in ('mfma', 'ds', 'vmem') and pv & (c.uses | c.defs): w = max(w, 3)
        if getattr(p, 'trans', False) and c.kind in ('mfma',) and pv & c.uses: w = max(w, 2)
        if c.kind == 'vmem' and psg & c.uses: w = max(w, 5)
        if c.kind == 'salu' and psg & c.uses: w = max(w, 3)
        if c.kind == 'smem' and psg & c.uses: w = max(w, 5)
        if c.kind == 'salu' and c.base.startswith('s_cbranch_vcc') and ('vcc', 0) in p.defs: w = max(w, 5)
        if c.kind == 'salu' and c.base.startswith('s_cbranch_exec') and ('exec', 0) in p.defs: w = max(w, 5)
    if p.kind == 'mfma':
        D = set(p.dst)
        full = {2: 5, 4: 8, 8: 12, 16: 20}[p.passes]
        if c.kind == 'mfma':
            if D & (c.srca | c.srcb): w = max(w, full)
            if D & c.srcc:
                exact = (set(c.srcc) == D and c.passes == p.passes)
                if exact: w = max(w, 2 if p.passes == 2 else 0)
                else: w = max(w, {2: 4, 4: 6, 8: 10, 16: 18}[p.passes])
            if D & set(c.dst) and not (D & c.srcc): w = max(w, full)
        elif c.kind in ('valu', 'ds', 'vmem'):
            if D & (c.uses | c.defs): w = max(w, full)
        if c.kind == 'valu' and p.srcc & c.defs:
            w = max(w, {2: 1, 4: 3, 8: 7, 16: 15}[p.passes])
        if c.kind in ('ds', 'vmem') and p.srcc & c.defs:
            w = max(w, {2: 1, 4: 3, 8: 7, 16: 15}[p.passes])
    if p.kind == 'vmem' and getattr(p, 'widestore', False):
        if c.kind == 'valu' and p.stdata & c.defs: w = max(w, 2)
        elif c.kind in ('ds', 'vmem', 'mfma') and p.stdata & c.defs: w = max(w, 1)
    if p.kind == 'ds' and p.base in ('ds_write_b128', 'ds_write_b96', 'ds_write_b64', 'ds_write2_b64', 'ds_write2_b32'):
        data = set()
        for o in p.ops[1:]: data.update(parse_reg(o))
        if c.kind == 'valu' and data & c.defs: w = max(w, 1)
    if p.kind == 'salu' and ('m0', 0) in p.defs and ('m0', 0) in c.uses: w = max(w, 1)
    if p.kind == 'salu' and ('exec', 0) in p.defs:
        if c.kind == 'valu' and (c.dpp or c.base.startswith('v_permlane') or c.base.startswith('v_readlane') or c.base.startswith('v_readfirstlane')): w = max(w, 1)
    return w

class Asm:
    def __init__(self):
        self.lines = []
    def __call__(self, s, *a):
        for l in s.strip('\n').split('\n'):
            l = l.rstrip()
            if not l.strip(): continue
            self.lines.append('  ' + l.strip() if not (l.strip().endswith(':') or l.strip().startswith('.')) else l.strip())
    def c(self, s):
        self.lines.append('  ; ' + s)
    def label(self, s):
        self.lines.append(s + ':')
    def text(self):
        real = []
        for l in self.lines:
            real.append(l)
        fixed = fix_hazards_keep_comments(real)
        return '\n'.join(fixed) + '\n'

def fix_hazards_keep_comments(lines):
    res = []
    ins_lines = []
    for l in lines:
        ins_lines.append(l)
    class Dummy: pass
    return fix_hazards(ins_lines)

def vr(a, n=1):
    return f'v{a}' if n == 1 else f'v[{a}:{a+n-1}]'
def ar(a, n=1):
    return f'a{a}' if n == 1 else f'a[{a}:{a+n-1}]'
def sr(a, n=1):
    return f's{a}' if n == 1 else f's[{a}:{a+n-1}]'


def to_buffer(lines, gbase, srd):
    out = []
    for l in lines:
        t = l.strip()
        if t.startswith('global_') and gbase in t:
            mn, rest = t.split(None, 1)
            ops = split_ops(rest.split(';')[0])
            last = ops[-1].split()
            mods = ' '.join(last[1:])
            assert last[0] == gbase, l
            if mn.startswith('global_load_lds'):
                v = ops[0]
                out.append(f'  buffer_load_{mn.split("_")[-1]} {v}, {srd}, 0 offen {mods} lds'.rstrip())
            elif mn.startswith('global_load'):
                d, v = ops[0], ops[1]
                out.append(f'  buffer_load_{mn[len("global_load_"):]} {d}, {v}, {srd}, 0 offen {mods}'.rstrip())
            elif mn.startswith('global_store'):
                v, d = ops[0], ops[1]
                out.append(f'  buffer_store_{mn[len("global_store_"):]} {d}, {v}, {srd}, 0 offen {mods}'.rstrip())
            elif mn.startswith('global_atomic'):
                v, d = ops[0], ops[1]
                out.append(f'  buffer_atomic_{mn[len("global_atomic_"):]} {d}, {v}, {srd}, 0 offen {mods}'.rstrip())
            else: raise ValueError(l)
        else:
            out.append(l)
    return out
```

```python
import sys, argparse, struct
sys.path.insert(0, 'gen')
from asmlib import Asm, to_buffer

KNAME = 'interleave_layers__linear_kernel_hedgehog__ssm_conv_s4d__prompt'

WS_NONCE = 0
WS_FLAGS = 0x80000
WS_STATS = 0x40000
WS_KVR   = 0x50000
WS_XT    = 0x78000
WS_KVP   = 0x100000
KVP_L    = 0x240000
KVB      = 9216
WS_O     = 0x600000
WS_X1T   = 0xA00000
WS_X2T   = 0xE00000
WS_DBG   = 0x2000000

LDS_WK, LDS_WV, LDS_WQ = 65536, 98304, 131072
SC_PHI   = 65536
PHI_W    = 4352
SC_V     = SC_PHI + 4 * PHI_W
SC_ST    = SC_V + 8192
SC_RED   = SC_ST + 1024
SC_KVT   = SC_RED + 2048
KVT_ROW  = 80
KVT_HEAD = 32 * KVT_ROW
SC_CS    = SC_KVT + 4 * KVT_HEAD
SC_END   = SC_CS + 768
LDS_KC   = 106496
assert SC_END <= LDS_KC, SC_END
LDS_FREE = LDS_KC + 33280

S_X, S_WQKV, S_WPHI, S_WO = 4, 6, 8, 10
S_LOGA, S_AIM, S_CRE, S_CIM = 12, 14, 16, 18
S_LOGDT, S_DSK, S_OUT, S_WS, S_DBG = 20, 22, 24, 26, 28
S_W, S_XCD, S_JL, S_RB, S_HB, S_T, S_CB, S_C0, S_NONCE = 30, 31, 32, 33, 34, 35, 36, 37, 38
S_W1024, S_HSEL, S_RHALF, S_WG = 39, 40, 41, 42
S_T0 = 44
S_KSC = 64
S_DSKV = 66
S_SLOT1 = 67
S_FAST = 68
S_XCC = 69
S_WSRD = 88
S_OSRD = 92
S_ROT = 70

V_TID, V_LANE, V_HH, V_J = 0, 1, 2, 3
V_WPHI = 4
V_RESID = 12
V_PHIQ = 20
V_K = 36
V_P = 48
LOG2E = 0x3fb8aa3b
WSB = f's[{S_WS}:{S_WS+1}]'

def f2h(x): return hex(struct.unpack('<I', struct.pack('<f', float(x)))[0])

class Gen:
    def __init__(self, opts):
        self.a = Asm(); self.o = opts; self.uid = 0
    def lab(self, s):
        self.uid += 1
        return f'L_{s}_{self.uid}'
    def cap(self, fn):
        old = self.a; self.a = Asm(); fn(); lines = self.a.lines; self.a = old
        return lines
    def merge(self, *streams):
        n = max(len(s) for s in streams)
        pos = [0] * len(streams)
        for i in range(n):
            for k, s in enumerate(streams):
                want = (i + 1) * len(s) // n
                while pos[k] < want:
                    self.a.lines.append(s[pos[k]]); pos[k] += 1

    def dump(self, reg, n, slot, tmp=126):
        a = self.a
        a(f's_lshl_b32 s60, s{S_WG}, 10')
        a(f'v_lshlrev_b32 v{tmp}, 2, v{V_TID}')
        a(f'v_add_u32 v{tmp}, s60, v{tmp}')
        for i in range(n):
            a(f'v_add_u32 v{tmp+1}, {WS_DBG + (slot + i) * 256 * 256 * 4}, v{tmp}')
            a(f'global_store_dword v{tmp+1}, v{reg+i}, {WSB}')
        a('s_waitcnt vmcnt(0)')

    def stamp(self, idx):
        if not self.o.stamps: return
        a = self.a
        a('s_memrealtime s[60:61]')
        a('s_memtime s[58:59]')
        a('s_waitcnt lgkmcnt(0)')
        a('v_mov_b32 v124, s60'); a('v_mov_b32 v125, s61'); a('v_mov_b32 v126, s58'); a('v_mov_b32 v127, s59')
        a(f's_lshl_b32 s62, s{S_WG}, 12')
        a(f's_lshl_b32 s63, s{S_W}, 10')
        a('s_add_u32 s62, s62, s63')
        a(f's_add_u32 s62, s62, {WS_DBG + 0x4000000 + idx * 16}')
        a('v_mov_b32 v123, s62')
        a('s_mov_b64 s[56:57], exec')
        a('s_mov_b64 exec, 1')
        a(f'global_store_dwordx4 v123, v[124:127], {WSB}')
        a('s_mov_b64 exec, s[56:57]')
        self.nstamp_vm = 1

    def prologue(self):
        a = self.a
        a('s_cmp_ge_u32 s2, 256')
        a('s_cbranch_scc1 L_end')
        a('s_load_dwordx8 s[4:11], s[0:1], 0')
        a('s_load_dwordx2 s[26:27], s[0:1], 104')
        a('s_load_dwordx8 s[12:19], s[0:1], 40')
        a('s_load_dwordx4 s[20:23], s[0:1], 72')
        a('s_load_dwordx2 s[24:25], s[0:1], 88')
        a(f's_mov_b32 s{S_WG}, s2')
        a(f'v_and_b32 v{V_LANE}, 63, v0')
        a('s_getpc_b64 s[56:57]')
        a.label('L_pc')
        a('s_lshr_b32 s58, s2, 3')
        a('s_mul_i32 s58, s58, (L_end-L_pc)/32+128')
        a(f'v_lshlrev_b32 v4, 3, v0')
        a('v_add_u32 v4, s58, v4')
        a('v_min_u32 v4, L_end-L_pc-8, v4')
        a('global_load_dwordx2 a[252:253], v4, s[56:57]')
        a(f'v_lshrrev_b32 v{V_HH}, 6, v0')
        a('s_nop 0')
        a(f'v_readfirstlane_b32 s{S_W}, v{V_HH}')
        a(f'v_lshrrev_b32 v{V_HH}, 5, v{V_LANE}')
        a(f'v_and_b32 v{V_J}, 31, v{V_LANE}')
        a(f's_and_b32 s{S_XCD}, s2, 7')
        a(f's_lshr_b32 s{S_JL}, s2, 3')
        a(f's_and_b32 s{S_T0}, s{S_JL}, 3')
        a(f's_lshl_b32 s{S_RB}, s{S_XCD}, 2')
        a(f's_add_u32 s{S_RB}, s{S_RB}, s{S_T0}')
        a(f's_lshr_b32 s{S_HB}, s{S_JL}, 2')
        a(f's_and_b32 s{S_T0}, s{S_HB}, 1')
        a(f's_lshl_b32 s{S_T}, s{S_RB}, 1')
        a(f's_add_u32 s{S_T}, s{S_T}, s{S_T0}')
        a(f's_lshr_b32 s{S_CB}, s{S_HB}, 1')
        a(f's_lshl_b32 s{S_C0}, s{S_XCD}, 6')
        a(f's_lshl_b32 s{S_T0}, s{S_JL}, 1')
        a(f's_add_u32 s{S_C0}, s{S_C0}, s{S_T0}')
        a(f's_lshl_b32 s{S_W1024}, s{S_W}, 10')
        a(f's_and_b32 s{S_HSEL}, s{S_W}, 1')
        a(f's_lshr_b32 s{S_RHALF}, s{S_W}, 1')
        a(f's_lshl_b32 s{S_SLOT1}, s{S_HB}, 5')
        a(f's_add_u32 s{S_SLOT1}, s{S_SLOT1}, s{S_RB}')
    def prologue2(self):
        a = self.a
        a('s_waitcnt lgkmcnt(0)')
        a(f's_load_dword s{S_NONCE}, {WSB}, {WS_NONCE}')
        a(f's_mov_b32 s{S_WSRD}, s{S_WS}')
        a(f's_and_b32 s{S_WSRD+1}, s{S_WS+1}, 0xffff')
        a(f's_mov_b32 s{S_WSRD+2}, 0x10000000')
        a(f's_mov_b32 s{S_WSRD+3}, 0x20000')
        a(f's_mov_b32 s{S_OSRD}, s{S_OUT}')
        a(f's_and_b32 s{S_OSRD+1}, s{S_OUT+1}, 0xffff')
        a(f's_mov_b32 s{S_OSRD+2}, 0x200000')
        a(f's_mov_b32 s{S_OSRD+3}, 0x20000')

    def x_slice_prefetch(self, L):
        a = self.a
        if L == 0:
            a(f's_lshl_b32 s{S_T0}, s{S_RB}, 16')
            a(f's_lshl_b32 s{S_T0+1}, s{S_HB}, 13')
            a(f's_add_u32 s{S_T0}, s{S_T0}, s{S_T0+1}')
            a(f'v_lshlrev_b32 v123, 5, v{V_TID}')
            a(f'v_add_u32 v123, s{S_T0}, v123')
            a(f'global_load_dword a251, v123, s[{S_X}:{S_X+1}]')
        else:
            a(f'v_lshrrev_b32 v123, 2, v{V_TID}')
            a(f's_lshl_b32 s{S_T0}, s{S_HB}, 6')
            a(f'v_add_u32 v123, s{S_T0}, v123')
            a(f'v_lshlrev_b32 v123, 12, v123')
            a(f'v_and_b32 v122, 3, v{V_TID}')
            a(f'v_lshl_add_u32 v123, v122, 5, v123')
            a(f's_lshl_b32 s{S_T0}, s{S_RB}, 7')
            a(f's_add_u32 s{S_T0}, s{S_T0}, {WS_X2T}')
            a(f'v_add_u32 v123, s{S_T0}, v123')
            a(f'global_load_dword v122, v123, {WSB} sc1')

    def w_dma_setup(self, b):
        a = self.a
        t = b + 2
        a(f'v_lshrrev_b32 v{b}, 3, v{V_LANE}')
        a(f's_lshl_b32 s{S_T0}, s{S_W}, 3')
        a(f'v_add_u32 v{b}, s{S_T0}, v{b}')
        a(f'v_mul_u32_u24 v{b}, 3072, v{b}')
        a(f's_lshl_b32 s{S_T0}, s{S_HB}, 7')
        a(f'v_add_u32 v{b}, s{S_T0}, v{b}')
        a(f'v_bfe_u32 v{t}, v{V_LANE}, 4, 1')
        a(f'v_lshlrev_b32 v{t}, 2, v{t}')
        a(f'v_and_b32 v{t+1}, 7, v{V_LANE}')
        a(f'v_xor_b32 v{t}, v{t}, v{t+1}')
        a(f'v_xor_b32 v{t+1}, 2, v{t}')
        a(f'v_lshl_add_u32 v{b+1}, v{t+1}, 4, v{b}')
        a(f'v_lshl_add_u32 v{b}, v{t}, 4, v{b}')

    def rot_setup(self):
        a = self.a
        a(f's_and_b32 s{S_T0}, s{S_RB}, 3')
        a(f's_lshl_b32 s{S_T0}, s{S_T0}, 1')
        for i in range(8):
            a(f's_add_u32 s{S_T0+1}, s{S_T0}, {i}')
            a(f's_and_b32 s{S_T0+1}, s{S_T0+1}, 7')
            a(f's_mul_i32 s{S_ROT+i}, s{S_T0+1}, {32 * 3072}')
            a(f's_lshl_b32 s{S_T0+1}, s{S_T0+1}, 12')
            a(f's_add_u32 s{S_ROT+8+i}, s{S_T0+1}, s{S_W1024}')
    def w_dma_one(self, p, hf, i, b, tag):
        a = self.a
        dst = {(1, 0): LDS_WK, (2, 0): LDS_WV, (1, 1): LDS_WQ, (2, 1): LDS_WK, (0, 0): LDS_WV, (0, 1): LDS_WQ}[(p, hf)]
        src = b + 1 if p == 2 else b
        if self.o.rot:
            a(f'v_add_u32 v{b+2}, {p * 1024 + 256 * hf * 3072}, v{src}')
            a(f'v_add_u32 v{b+2}, s{S_ROT+i}, v{b+2}')
            a(f's_add_u32 m0, s{S_ROT+8+i}, {dst}')
        else:
            a(f'v_add_u32 v{b+2}, {p * 1024 + (256 * hf + 32 * i) * 3072}, v{src}')
            a(f's_add_u32 m0, s{S_W1024}, {dst + i * 4096}')
        self.vm_op(f'global_load_lds_dwordx4 v{b+2}, s[{S_WQKV}:{S_WQKV+1}]', tag)

    def w_dma(self, p, hf, b, tag):
        for i in range(8): self.w_dma_one(p, hf, i, b, tag)

    def x_dma_setup(self, L, b):
        a = self.a
        t = b + 1
        if L == 0:
            a(f'v_lshrrev_b32 v{b}, 3, v{V_LANE}')
            a(f'v_lshrrev_b32 v{t}, 1, v{b}')
            a(f's_lshl_b32 s{S_T0}, s{S_HSEL}, 2')
            a(f'v_add_u32 v{t}, s{S_T0}, v{t}')
            a(f'v_and_b32 v{t+1}, 7, v{V_LANE}')
            a(f'v_xor_b32 v{t}, v{t}, v{t+1}')
            a(f'v_lshlrev_b32 v{t}, 4, v{t}')
            a(f's_lshl_b32 s{S_T0}, s{S_RB}, 6')
            a(f's_lshl_b32 s{S_T0+1}, s{S_W}, 3')
            a(f's_add_u32 s{S_T0}, s{S_T0}, s{S_T0+1}')
            a(f'v_add_u32 v{b}, s{S_T0}, v{b}')
            a(f'v_lshlrev_b32 v{b}, 10, v{b}')
            a(f'v_add_u32 v{b}, v{b}, v{t}')
        else:
            a(f'v_bfe_u32 v{b}, v{V_LANE}, 2, 2')
            a(f'v_lshl_add_u32 v{b}, v{V_HH}, 2, v{b}')
            a(f's_lshl_b32 s{S_T0}, s{S_W}, 3')
            a(f'v_add_u32 v{b}, s{S_T0}, v{b}')
            a(f'v_lshlrev_b32 v{b}, 12, v{b}')
            a(f'v_bfe_u32 v{t}, v{V_LANE}, 4, 1')
            a(f'v_lshlrev_b32 v{t}, 6, v{t}')
            a(f'v_and_b32 v{t+1}, 3, v{V_LANE}')
            a(f'v_lshlrev_b32 v{t+1}, 4, v{t+1}')
            a(f'v_add3_u32 v{b}, v{b}, v{t}, v{t+1}')
            a(f's_lshl_b32 s{S_T0}, s{S_RB}, 7')
            a(f's_add_u32 s{S_T0}, s{S_T0}, {WS_X2T}')
            a(f'v_add_u32 v{b}, s{S_T0}, v{b}')

    def _unused(self): pass

    def wfrag_addr(self, kv, q, t):
        a = self.a
        a(f'v_bfe_u32 v{t}, v{V_LANE}, 2, 2')
        a(f'v_lshl_add_u32 v{t+1}, v{V_HH}, 3, v{t}')
        a(f'v_lshlrev_b32 v{t+1}, 7, v{t+1}')
        a(f'v_and_b32 v{t+2}, 1, v{V_LANE}')
        a(f'v_lshl_add_u32 v{t+1}, v{t+2}, 3, v{t+1}')
        a(f'v_bfe_u32 v{t}, v{V_LANE}, 3, 1')
        a(f'v_lshlrev_b32 v{t}, 2, v{t}')
        a(f'v_bfe_u32 v{t+2}, v{V_LANE}, 4, 1')
        a(f'v_bfe_u32 v{t+3}, v{V_LANE}, 1, 1')
        a(f's_lshl_b32 s{S_T0}, s{S_W}, 1')
        a(f'v_add_u32 v{kv}, s{S_T0}, v{t+3}')
        a(f'v_lshl_add_u32 v{q}, v{t+2}, 1, v{t}')
        a(f'v_xor_b32 v{kv}, v{kv}, v{q}')
        a(f'v_lshl_add_u32 v{kv}, v{kv}, 4, v{t+1}')
        a(f'v_sub_u32 v{kv+1}, 1, v{t+2}')
        a(f'v_lshlrev_b32 v{kv+1}, 16, v{kv+1}')
        a(f'v_add3_u32 v{kv+1}, v{kv+1}, v{kv}, 0')
        a(f'v_add_u32 v{kv+1}, {LDS_WK}, v{kv+1}')
        a(f'v_lshl_add_u32 v{kv}, v{t+2}, 15, v{kv}')
        a(f'v_add_u32 v{kv}, {LDS_WK}, v{kv}')
        a(f's_lshl_b32 s{S_T0}, s{S_RHALF}, 2')
        a(f'v_lshl_add_u32 v{q}, v{t+2}, 1, v{t+3}')
        a(f'v_add_u32 v{q}, s{S_T0}, v{q}')
        a(f'v_xor_b32 v{q}, v{q}, v{t}')
        a(f'v_lshl_add_u32 v{q}, v{q}, 4, v{t+1}')
        a(f'v_add_u32 v{q}, {LDS_WV}, v{q}')

    def cs_sel(self, r):
        a = self.a
        a(f'v_and_b32 v{r}, 15, v{V_LANE}')
        a(f'v_bfe_u32 v{r+1}, v{V_LANE}, 4, 1')
        a(f'v_cmp_eq_u32 vcc, v{r}, v{r+1}')
        a(f'v_mov_b32 v{r+1}, 0x3f803f80')
        a(f'v_cndmask_b32 v{r}, 0, v{r+1}, vcc')
        for i in range(1, 4): a(f'v_mov_b32 v{r+i}, v{r}')
    def cs_mfma(self, abase, sel, dst):
        a = self.a
        for ks in range(32):
            c = '0' if ks == 0 else f'v[{dst}:{dst+3}]'
            a(f'v_mfma_f32_16x16x32_bf16 v[{dst}:{dst+3}], a[{abase+4*ks}:{abase+4*ks+3}], v[{sel}:{sel+3}], {c}')
    def cs_write(self, src, sgpr_off, const, t):
        a = self.a
        a(f'v_and_b32 v{t}, 15, v{V_LANE}')
        a(f'v_lshlrev_b32 v{t}, 6, v{t}')
        a(f'v_lshrrev_b32 v{t+1}, 4, v{V_LANE}')
        a(f'v_lshl_add_u32 v{t}, v{t+1}, 4, v{t}')
        a(f'v_add_u32 v{t}, {SC_CS + const}, v{t}')
        if sgpr_off is not None: a(f'v_add_u32 v{t}, s{sgpr_off}, v{t}')
        a(f's_mov_b32 exec_lo, 0x00030003')
        a(f's_mov_b32 exec_hi, 0x00030003')
        a(f'ds_write_b128 v{t}, v[{src}:{src+3}]')
        a(f's_mov_b64 exec, -1')
    def cs_read(self, dst, sgpr_off, const, t):
        a = self.a
        a(f'v_lshlrev_b32 v{t}, 4, v{V_HH}')
        a(f'v_add_u32 v{t}, {SC_CS + const}, v{t}')
        if sgpr_off is not None: a(f'v_add_u32 v{t}, s{sgpr_off}, v{t}')
        for g in range(4):
            a(f'ds_read_b128 v[{dst+4*g}:{dst+4*g+3}], v{t} offset:{32*g}')

    WPT = 128
    def wphi_load(self, b):
        a = self.a
        t = b + 1
        a(f'v_lshrrev_b32 v{b}, 3, v{V_J}')
        a(f'v_lshlrev_b32 v{b}, 2, v{b}')
        a(f'v_and_b32 v{t}, 3, v{V_J}')
        a(f'v_add_u32 v{b}, v{b}, v{t}')
        a(f'v_lshlrev_b32 v{b}, 1, v{b}')
        a(f'v_lshl_add_u32 v{b}, v{V_HH}, 7, v{b}')
        a(f's_lshl_b32 s{S_T0}, s{S_HB}, 11')
        a(f's_lshl_b32 s{S_T0+1}, s{S_RHALF}, 10')
        a(f's_add_u32 s{S_T0}, s{S_T0}, s{S_T0+1}')
        a(f'v_add_u32 v{b}, s{S_T0}, v{b}')
        for hd in range(2):
            for jj in range(8):
                d = 8 * (jj >> 2) + (jj & 3)
                a(f'global_load_ushort v{self.WPT + 8*hd + jj}, v{b}, s[{S_WPHI}:{S_WPHI+1}] offset:{hd * 512 + d * 32}')
    def wphi_finish(self, t):
        a = self.a
        for i in range(8):
            a(f'v_lshl_or_b32 v{V_WPHI+i}, v{self.WPT+2*i+1}, 16, v{self.WPT+2*i}')
        a(f'v_bfe_u32 v{t}, v{V_J}, 2, 1')
        a(f'v_mul_u32_u24 v{t}, 0x8000, v{t}')
        a(f'v_lshl_or_b32 v{t}, v{t}, 16, v{t}')
        for i in range(8): a(f'v_xor_b32 v{V_WPHI+i}, v{V_WPHI+i}, v{t}')

    def rbf(self, dst, src):
        a = self.a
        a(f'v_cvt_pk_bf16_f32 v{dst}, v{src}, v{src}')
        a(f'v_lshlrev_b32 v{dst}, 16, v{dst}')
    def ln_finalize(self, S, Q, m, rs, t):
        a = self.a
        a(f'v_mul_f32 v{m}, 0x3b000000, v{S}')
        a(f'v_mul_f32 v{t}, 0x3b000000, v{Q}')
        a(f'v_fma_f32 v{t}, -v{m}, v{m}, v{t}')
        a(f'v_max_f32 v{t}, 0, v{t}')
        a(f'v_cvt_pk_bf16_f32 v{m}, v{m}, v{t}')
        a(f'v_and_b32 v{t}, 0xffff0000, v{m}')
        a(f'v_lshlrev_b32 v{m}, 16, v{m}')
        a(f'v_add_f32 v{t}, 0x3727c5ac, v{t}')
        self.rbf(t, t)
        a(f'v_sqrt_f32 v{t}, v{t}')
        self.rbf(t, t)
        a(f'v_rcp_f32 v{rs}, v{t}')

    def softmax16(self, D, out, t):
        a = self.a
        mx = t
        a(f'v_max3_f32 v{mx}, v{D}, v{D+1}, v{D+2}')
        a(f'v_max3_f32 v{mx+1}, v{D+3}, v{D+4}, v{D+5}')
        a(f'v_max3_f32 v{mx}, v{mx}, v{D+6}, v{D+7}')
        a(f'v_max3_f32 v{mx+1}, v{mx+1}, v{D+8}, v{D+9}')
        a(f'v_max3_f32 v{mx}, v{mx}, v{D+10}, v{D+11}')
        a(f'v_max3_f32 v{mx+1}, v{mx+1}, v{D+12}, v{D+13}')
        a(f'v_max3_f32 v{mx}, v{mx}, v{D+14}, v{D+15}')
        a(f'v_mov_b32 v{t+2}, {hex(LOG2E)}')
        a(f'v_max_f32 v{mx}, v{mx}, v{mx+1}')
        a(f'v_mul_f32 v{mx}, v{t+2}, v{mx}')
        for r in range(0, 16, 2):
            a(f'v_pk_fma_f32 v[{D+r}:{D+r+1}], v[{D+r}:{D+r+1}], v[{t+2}:{t+3}], v[{mx}:{mx+1}] op_sel_hi:[1,0,0] neg_lo:[0,0,1] neg_hi:[0,0,1]')
        for r in range(16): a(f'v_exp_f32 v{D+r}, v{D+r}')
        s = t + 2
        a(f'v_pk_add_f32 v[{s}:{s+1}], v[{D}:{D+1}], v[{D+2}:{D+3}]')
        a(f'v_pk_add_f32 v[{mx}:{mx+1}], v[{D+4}:{D+5}], v[{D+6}:{D+7}]')
        a(f'v_pk_add_f32 v[{s}:{s+1}], v[{s}:{s+1}], v[{D+8}:{D+9}]')
        a(f'v_pk_add_f32 v[{mx}:{mx+1}], v[{mx}:{mx+1}], v[{D+10}:{D+11}]')
        a(f'v_pk_add_f32 v[{s}:{s+1}], v[{s}:{s+1}], v[{D+12}:{D+13}]')
        a(f'v_pk_add_f32 v[{mx}:{mx+1}], v[{mx}:{mx+1}], v[{D+14}:{D+15}]')
        a(f'v_pk_add_f32 v[{s}:{s+1}], v[{s}:{s+1}], v[{mx}:{mx+1}]')
        a(f'v_add_f32 v{s}, v{s}, v{s+1}')
        a(f'v_rcp_f32 v{s}, v{s}')
        for r in range(0, 16, 2):
            a(f'v_pk_mul_f32 v[{D+r}:{D+r+1}], v[{D+r}:{D+r+1}], v[{s}:{s+1}] op_sel_hi:[1,0]')
        for r in range(0, 16, 2):
            a(f'v_cvt_pk_bf16_f32 v{out + r//2}, v{D+r}, v{D+r+1}')

    def ln_apply16(self, A, cs, m, out):
        a = self.a
        for r in range(0, 16, 2):
            a(f'v_pk_fma_f32 v[{A+r}:{A+r+1}], v[{cs+r}:{cs+r+1}], v[{m}:{m+1}], v[{A+r}:{A+r+1}] op_sel_hi:[1,0,1] neg_lo:[0,1,0] neg_hi:[0,1,0]')
        for r in range(0, 16, 2):
            a(f'v_pk_mul_f32 v[{A+r}:{A+r+1}], v[{A+r}:{A+r+1}], v[{m}:{m+1}] op_sel:[0,1] op_sel_hi:[1,1]')
        for r in range(0, 16, 2):
            a(f'v_cvt_pk_bf16_f32 v{out + r//2}, v{A+r}, v{A+r+1}')

    def flag_store(self, sync, slot_sgpr, sc=' sc1'):
        a = self.a
        a(f's_lshl_b32 s{S_T0}, s{slot_sgpr}, {self.o.fsh}')
        a(f's_add_u32 s{S_T0}, s{S_T0}, {WS_FLAGS + sync * 0x10000}')
        a(f'v_mov_b32 v126, s{S_T0}')
        a(f'v_mov_b32 v127, s{S_NONCE}')
        a('s_mov_b64 exec, 1')
        a(f'global_store_dword v126, v127, {WSB}{sc}')
        a('s_mov_b64 exec, -1')
    def signal_wg(self, sync, slot_sgpr):
        a = self.a
        a.c(f'signal sync {sync}')
        a('s_waitcnt vmcnt(0)')
        a('s_barrier')
        l = self.lab('sig')
        a(f's_cmp_lg_u32 s{S_W}, 0')
        a(f's_cbranch_scc1 {l}')
        self.flag_store(sync, slot_sgpr)
        a.label(l)
    def wait(self, sync, first_slot_sgpr, nflags, slp0=0):
        a = self.a
        fsh = self.o.fsh
        a.c(f'wait sync {sync}')
        l, lp, ld = self.lab('wait'), self.lab('poll'), self.lab('pdone')
        a(f's_cmp_lg_u32 s{S_W}, 0')
        a(f's_cbranch_scc1 {l}')
        if nflags == 16:
            a(f'v_and_b32 v126, 15, v{V_LANE}')
            a(f'v_lshlrev_b32 v126, {fsh}, v126')
            a(f's_lshl_b32 s{S_T0}, s{first_slot_sgpr}, {fsh}')
            a(f's_add_u32 s{S_T0}, s{S_T0}, {WS_FLAGS + sync * 0x10000}')
            a(f'v_add_u32 v126, s{S_T0}, v126')
        else:
            a(f'v_lshlrev_b32 v126, {fsh}, v{V_LANE}')
            a(f'v_add_u32 v126, {WS_FLAGS + sync * 0x10000}, v126')
            for i in range(1, 4): a(f'v_add_u32 v{126-i}, {i * (64 << fsh)}, v126')
        a(f's_mov_b32 s{S_T0+1}, 0')
        if self.o.pmode == 0:
            a('s_waitcnt vmcnt(0)')
            if slp0: a(f's_sleep {slp0}')
        a.label(lp)
        a(f'global_load_dword v127, v126, {WSB} sc1')
        if nflags != 16:
            a(f'global_load_dword v122, v125, {WSB} sc1')
            a(f'global_load_dword v121, v124, {WSB} sc1')
            a(f'global_load_dword v120, v123, {WSB} sc1')
        a(f's_add_u32 s{S_T0+1}, s{S_T0+1}, 1')
        a(f's_cmp_gt_u32 s{S_T0+1}, {self.o.spin}')
        a(f's_cbranch_scc1 {ld}')
        a('s_waitcnt vmcnt(0)')
        if nflags != 16:
            a(f'v_sad_u32 v127, v127, s{S_NONCE}, 0')
            a(f'v_sad_u32 v127, v122, s{S_NONCE}, v127')
            a(f'v_sad_u32 v127, v121, s{S_NONCE}, v127')
            a(f'v_sad_u32 v127, v120, s{S_NONCE}, v127')
            a('v_cmp_ne_u32 vcc, 0, v127')
        else:
            a(f'v_cmp_ne_u32 vcc, s{S_NONCE}, v127')
        a(f's_cbranch_vccz {ld}')
        if self.o.pmode == 1 and slp0:
            l2 = self.lab('p2')
            a(f's_cmp_lg_u32 s{S_T0+1}, 1')
            a(f's_cbranch_scc1 {l2}')
            a(f's_sleep {slp0}')
            a(f's_branch {lp}')
            a.label(l2)
        if self.o.slp: a(f's_sleep {self.o.slp}')
        a(f's_branch {lp}')
        a.label(ld)
        a('s_waitcnt vmcnt(0)')
        a.label(l)
        a('s_barrier')

    def trk_reset(self):
        self.vm = []; self.lg = []
    def vm_op(self, line, tag):
        self.a(line); self.vm.append(tag)
    def lg_op(self, line, tag):
        self.a(line); self.lg.append(tag)
    def wait_vm(self, tag):
        c = [i for i, t in enumerate(self.vm) if t == tag]
        if not c: return False
        idx = max(c)
        n = len(self.vm) - 1 - idx
        assert n <= 63
        self.a(f's_waitcnt vmcnt({n})')
        self.vm = self.vm[idx + 1:]
        return True

    def wait_lg(self, tag):
        c = [i for i, t in enumerate(self.lg) if t == tag]
        if not c: return
        idx = max(c)
        n = len(self.lg) - 1 - idx
        self.a(f's_waitcnt lgkmcnt({min(n, 15)})')
        if n <= 15: self.lg = self.lg[idx + 1:]
        else: self.lg = self.lg[len(self.lg) - 15:]
    def dma_x(self, L, c, i):
        a = self.a
        b, t = self.XD, self.XD + 1
        if L == 0:
            off = i * 32 * 1024 + c * 128; base = f's[{S_X}:{S_X+1}]'; sc = ''
        else:
            off = (64 * c + 32 * i) * 4096; base = WSB; sc = ' sc1'
        a(f'v_add_u32 v{t}, {off}, v{b}')
        a(f's_add_u32 m0, s{S_W1024}, {c * 8192 + i * 4096}')
        self.vm_op(f'global_load_lds_dwordx4 v{t}, {base}{sc}', f'x{c}')

    SELR = 144
    XD = 36

    def bfrag_setup(self, L, base, own_only=False):
        a = self.a
        t = 24
        a(f's_xor_b32 s{S_T0+1}, s{S_HSEL}, 1')
        if L == 0:
            a(f'v_bfe_u32 v{t}, v{V_J}, 1, 3')
            a(f'v_lshlrev_b32 v{t+1}, 7, v{V_J}')
            a(f's_lshl_b32 s{S_T0}, s{S_HSEL}, 12')
            a(f's_lshl_b32 s{S_T0+1}, s{S_T0+1}, 12')
            for k in range(4):
                a(f'v_add_u32 v{t+2}, {2*k}, v{V_HH}')
                a(f'v_xor_b32 v{t+2}, v{t+2}, v{t}')
                a(f'v_lshl_add_u32 v{t+2}, v{t+2}, 4, v{t+1}')
                a(f'v_add_u32 v{base+k}, s{S_T0}, v{t+2}')
                if not own_only: a(f'v_add_u32 v{base+4+k}, s{S_T0+1}, v{t+2}')
        else:
            a(f'v_bfe_u32 v{t}, v{V_LANE}, 2, 2')
            a(f'v_lshlrev_b32 v{t}, 6, v{t}')
            a(f'v_lshl_add_u32 v{t}, v{V_HH}, 10, v{t}')
            a(f'v_bfe_u32 v{t+1}, v{V_LANE}, 4, 1')
            a(f'v_lshl_add_u32 v{t}, v{t+1}, 5, v{t}')
            a(f'v_and_b32 v{t+1}, 3, v{V_LANE}')
            a(f'v_lshl_add_u32 v{t}, v{t+1}, 3, v{t}')
            a(f's_lshl_b32 s{S_T0}, s{S_HSEL}, 8')
            a(f's_lshl_b32 s{S_T0+1}, s{S_T0+1}, 8')
            a(f'v_add_u32 v{base}, s{S_T0}, v{t}')
            if not own_only: a(f'v_add_u32 v{base+4}, s{S_T0+1}, v{t}')

    def bfrag_read(self, L, base, ks, dst, tag):
        if L == 0:
            c, k = ks >> 2, ks & 3
            self.lg_op(f'ds_read_b128 v[{dst}:{dst+3}], v{base+k} offset:{c * 8192}', tag)
        else:
            for x in range(2):
                self.lg_op(f'ds_read_b64_tr_b16 v[{dst+2*x}:{dst+2*x+1}], v{base} offset:{ks * 2048 + x * 512}', tag)

    def _unused2(self): pass

    ACC0, ACC1, FR, XB = 48, 64, 80, 112
    SS, SQ, ONES = 20, 21, 22
    M, M1 = 32, 34
    STF, XS = 104, 24
    def fr(self, k): return self.FR + 8 * (k % 3)
    def st_read(self, L, ks):
        d = self.STF + 4 * ((ks >> 1) & 1)
        if L == 0:
            self.lg_op(f'ds_read_b128 v[{d}:{d+3}], v{self.XS + ((ks >> 1) & 1)} offset:{(ks >> 2) * 8192}', f's{ks}')
        else:
            for x in range(2):
                self.lg_op(f'ds_read_b64_tr_b16 v[{d+2*x}:{d+2*x+1}], v{self.XS} offset:{ks * 2048 + x * 512}', f's{ks}')
    def st_setup(self, L):
        a = self.a
        XB, XS = self.XB, self.XS
        if L == 0:
            a(f'v_mov_b32 v{XS}, s{S_RHALF}')
            a(f'v_cmp_eq_u32 vcc, 0, v{XS}')
            a(f'v_cndmask_b32 v{XS}, v{XB+1}, v{XB}, vcc')
            a(f'v_cndmask_b32 v{XS+1}, v{XB+3}, v{XB+2}, vcc')
        else:
            a(f's_lshl_b32 s{S_T0}, s{S_RHALF}, 11')
            a(f'v_add_u32 v{XS}, s{S_T0}, v{XB}')
    def kv_pair(self, L, ks, hook=None, last=32):
        a = self.a
        ACC0, ACC1, XB = self.ACC0, self.ACC1, self.XB
        SS, SQ, ONES = self.SS, self.SQ, self.ONES
        for k in (ks, ks + 1):
            st = self.fr(k)
            self.wait_lg(f'f{k}a')
            c0 = '0' if k == 0 else f'v[{ACC0}:{ACC0+15}]'
            c1 = '0' if k == 0 else f'v[{ACC1}:{ACC1+15}]'
            a(f'v_mfma_f32_32x32x16_bf16 v[{ACC0}:{ACC0+15}], a[{4*k}:{4*k+3}], v[{st}:{st+3}], {c0}')
            if k == ks and ks + 2 < last: self.st_read(L, ks + 2)
            if hook: hook(k, 0)
            self.wait_lg(f'f{k}b')
            a(f'v_mfma_f32_32x32x16_bf16 v[{ACC1}:{ACC1+15}], a[{4*k}:{4*k+3}], v[{st+4}:{st+7}], {c1}')
            if k + 2 < last:
                self.bfrag_read(L, XB, k + 2, self.fr(k + 2), f'f{k+2}a')
                self.bfrag_read(L, XB + 4, k + 2, self.fr(k + 2) + 4, f'f{k+2}b')
            if hook: hook(k, 1)
        self.wait_lg(f's{ks}')
        d = self.STF + 4 * ((ks >> 1) & 1)
        for i in range(4):
            a(f'v_dot2c_f32_bf16 v{SS}, v{d+i}, v{ONES}')
            a(f'v_dot2c_f32_bf16 v{SQ}, v{d+i}, v{d+i}')

    def kv_rd(self, L, ks):
        st = self.fr(ks)
        self.bfrag_read(L, self.XB, ks, st, f'f{ks}a')
        self.bfrag_read(L, self.XB + 4, ks, st + 4, f'f{ks}b')

    def kv_init(self):
        a = self.a
        a(f'v_mov_b32 v{self.SS}, 0'); a(f'v_mov_b32 v{self.SQ}, 0'); a(f'v_mov_b32 v{self.ONES}, 0x3f803f80')

    def kv_pass1(self):
        a = self.a
        L = 1
        self.kv_init()
        self.wait_vm('x0'); a('s_barrier')
        self.stamp(18)
        self.st_read(L, 0); self.kv_rd(L, 0); self.kv_rd(L, 1)
        def hook(k, h):
            c = (k >> 2) + 4
            if h == 0 and (k & 1) == 0 and c < 8: self.dma_x(1, c, (k >> 1) & 1)
        for ks in range(0, 32, 2):
            c = ks >> 2
            if (ks & 3) == 2 and c + 1 < 8:
                self.wait_vm(f'x{c+1}'); a('s_barrier')
            self.kv_pair(L, ks, hook)

    def kv_pass0(self, WB, KVA, QA, SEL, CSKV):
        a = self.a
        L = 0
        def trW(abase, addr, ks, tag, extra=0):
            for x in range(2):
                self.lg_op(f'ds_read_b64_tr_b16 a[{abase+4*ks+2*x}:{abase+4*ks+2*x+1}], v{addr} offset:{(ks & 15)*2048 + x*512 + extra}', tag)
        self.kv_init()
        self.wait_vm('kva'); a('s_barrier')
        self.stamp(17)
        for ks in range(16): trW(0, KVA, ks, 'w')
        self.wait_vm('x0')
        a('s_waitcnt lgkmcnt(0)'); self.lg = []
        a('s_barrier')
        self.stamp(31)
        self.st_read(L, 0); self.kv_rd(L, 0); self.kv_rd(L, 1)
        q1 = [lambda i=i: self.w_dma_one(2, 1, i, WB, 'vb') for i in range(8)]
        q1 += [lambda i=i: self.w_dma_one(0, 0, i, WB, 'qa') for i in range(8)]
        csn = [0]
        def hook_a(k, h):
            if q1 and (h == 0 or k < 4): q1.pop(0)()
            if h == 1:
                ks_ = csn[0]; csn[0] += 1
                c = '0' if ks_ == 0 else f'v[{CSKV}:{CSKV+3}]'
                a(f'v_mfma_f32_16x16x32_bf16 v[{CSKV}:{CSKV+3}], a[{4*ks_}:{4*ks_+3}], v[{SEL}:{SEL+3}], {c}')
        for ks in range(0, 16, 2):
            c = ks >> 2
            if (ks & 3) == 2 and c + 1 < 4:
                if self.wait_vm(f'x{c+1}'): a('s_barrier')
            self.kv_pair(L, ks, hook_a, last=16)
        while q1: q1.pop(0)()
        self.stamp(1)
        self.wait_vm('vb')
        a('s_waitcnt lgkmcnt(0)'); self.lg = []
        a('s_barrier')
        for ks in range(16, 32): trW(0, KVA + 1, ks, 'w')
        self.st_read(L, 16); self.kv_rd(L, 16); self.kv_rd(L, 17)
        a('s_waitcnt lgkmcnt(0)'); self.lg = []
        self.wait_vm('qa')
        a('s_barrier')
        self.stamp(2)
        q2 = [lambda i=i: self.w_dma_one(0, 1, i, WB, 'qb') for i in range(8)]
        for ks in range(16, 32):
            a(f'v_mfma_f32_16x16x32_bf16 v[{CSKV}:{CSKV+3}], a[{4*ks}:{4*ks+3}], v[{SEL}:{SEL+3}], v[{CSKV}:{CSKV+3}]')
            if ks % 2 == 0 and q2: q2.pop(0)()
        qn = [0]
        def hook_b(k, h):
            if 16 <= k < 24:
                trW(128, QA, qn[0], 'wq'); qn[0] += 1
        for ks in range(16, 32, 2):
            self.kv_pair(L, ks, hook_b)
        self.wait_vm('qb')
        a('s_waitcnt lgkmcnt(0)'); self.lg = []
        a('s_barrier')
        for ks in range(16, 32): trW(128, QA, ks, 'wq', extra=32768)

    def resid_read(self, L, T):
        a = self.a
        a(f's_and_b32 s{S_T0}, s{S_HB}, 1')
        if L == 0:
            a(f's_lshl_b32 s{S_T0+1}, s{S_CB}, 1')
            a(f's_add_u32 s{S_T0+1}, s{S_T0+1}, s{S_RHALF}')
            a(f's_lshl_b32 s{S_T0+1}, s{S_T0+1}, 13')
            a(f's_lshl_b32 s{S_T0}, s{S_T0}, 12')
            a(f's_add_u32 s{S_T0}, s{S_T0}, s{S_T0+1}')
            a(f'v_lshlrev_b32 v{T}, 7, v{V_J}')
            a(f'v_lshl_add_u32 v{T}, v{V_HH}, 3, v{T}')
            a(f'v_add_u32 v{T}, s{S_T0}, v{T}')
            a(f'v_bfe_u32 v{T+1}, v{V_J}, 1, 3')
            a(f's_lshl_b32 s{S_T0+1}, s{S_HSEL}, 2')
            for g in range(4):
                a(f's_add_u32 s{S_T0+2}, s{S_T0+1}, {g}')
                a(f'v_xor_b32 v{T+2}, s{S_T0+2}, v{T+1}')
                a(f'v_lshl_add_u32 v{T+2}, v{T+2}, 4, v{T}')
                a(f'ds_read_b64 v[{V_RESID+2*g}:{V_RESID+2*g+1}], v{T+2}')
        else:
            a(f's_lshl_b32 s{S_T0+1}, s{S_CB}, 5')
            a(f's_lshl_b32 s{S_T0+2}, s{S_W}, 3')
            a(f's_add_u32 s{S_T0+1}, s{S_T0+1}, s{S_T0+2}')
            a(f's_lshl_b32 s{S_T0+1}, s{S_T0+1}, 9')
            a(f's_lshl_b32 s{S_T0}, s{S_T0}, 8')
            a(f's_add_u32 s{S_T0}, s{S_T0}, s{S_T0+1}')
            a(f'v_bfe_u32 v{T}, v{V_LANE}, 2, 2')
            a(f'v_lshlrev_b32 v{T}, 6, v{T}')
            a(f'v_lshl_add_u32 v{T}, v{V_HH}, 9, v{T}')
            a(f'v_bfe_u32 v{T+1}, v{V_LANE}, 4, 1')
            a(f'v_lshl_add_u32 v{T}, v{T+1}, 5, v{T}')
            a(f'v_and_b32 v{T+1}, 3, v{V_LANE}')
            a(f'v_lshl_add_u32 v{T}, v{T+1}, 3, v{T}')
            a(f'v_add_u32 v{T}, s{S_T0}, v{T}')
            for g in range(4):
                a(f'ds_read_b64_tr_b16 v[{V_RESID+2*g}:{V_RESID+2*g+1}], v{T} offset:{g*1024}')

    R_STW, R_STO, R_STP, R_PA, R_VA, R_AA, R_BA0, R_BA1, R_KVS, R_ZS, R_CS = 12, 13, 14, 15, 17, 19, 23, 26, 27, 120, 121
    def kv_addr_setup(self, L):
        a = self.a
        T = 96
        a(f'v_lshlrev_b32 v{T}, 3, v{V_J}')
        a(f's_lshl_b32 s{S_T0}, s{S_W}, 8')
        a(f's_add_u32 s{S_T0}, s{S_T0}, {SC_ST}')
        a(f'v_add_u32 v{self.R_STW}, s{S_T0}, v{T}')
        a(f's_lshl_b32 s{S_T0}, s{S_HSEL}, 8')
        a(f's_add_u32 s{S_T0+1}, s{S_T0}, {SC_ST}')
        a(f's_xor_b32 s{S_T0}, s{S_T0}, 256')
        a(f's_add_u32 s{S_T0}, s{S_T0}, {SC_ST}')
        a(f'v_add_u32 v{self.R_STO}, s{S_T0+1}, v{T}')
        a(f'v_add_u32 v{self.R_STP}, s{S_T0}, v{T}')
        PA, VA = self.R_PA, self.R_VA
        a(f'v_lshrrev_b32 v{T+1}, 3, v{V_J}')
        a(f'v_add_u32 v{T+1}, v{T+1}, v{V_HH}')
        a(f'v_lshlrev_b32 v{T+1}, 5, v{T+1}')
        a(f'v_lshl_add_u32 v{T+1}, v{V_J}, 6, v{T+1}')
        a(f's_mul_i32 s{S_T0}, s{S_W}, {PHI_W}')
        a(f's_add_u32 s{S_T0}, s{S_T0}, {SC_PHI}')
        a(f's_mul_i32 s{S_T0+1}, s{S_HSEL}, 2176')
        a(f's_xor_b32 s{S_T0+2}, s{S_HSEL}, 1')
        a(f's_mul_i32 s{S_T0+3}, s{S_T0+2}, 2176')
        a(f's_add_u32 s{S_T0+1}, s{S_T0+1}, s{S_T0}')
        a(f's_add_u32 s{S_T0+3}, s{S_T0+3}, s{S_T0}')
        a(f'v_add_u32 v{PA}, s{S_T0+1}, v{T+1}')
        a(f'v_add_u32 v{PA+1}, s{S_T0+3}, v{T+1}')
        a(f'v_bfe_u32 v{T+1}, v{V_J}, 3, 1')
        a(f'v_lshlrev_b32 v{T+1}, 2, v{T+1}')
        a(f'v_xor_b32 v{T+1}, v{V_J}, v{T+1}')
        a(f'v_lshlrev_b32 v{T+1}, 5, v{T+1}')
        a(f'v_lshl_add_u32 v{T+1}, v{V_HH}, 3, v{T+1}')
        a(f's_lshl_b32 s{S_T0}, s{S_W}, 11')
        a(f's_add_u32 s{S_T0}, s{S_T0}, {SC_V}')
        a(f's_lshl_b32 s{S_T0+1}, s{S_HSEL}, 10')
        a(f's_lshl_b32 s{S_T0+2}, s{S_T0+2}, 10')
        a(f's_add_u32 s{S_T0+1}, s{S_T0+1}, s{S_T0}')
        a(f's_add_u32 s{S_T0+2}, s{S_T0+2}, s{S_T0}')
        a(f'v_add_u32 v{VA}, s{S_T0+1}, v{T+1}')
        a(f'v_add_u32 v{VA+1}, s{S_T0+2}, v{T+1}')
        AA = self.R_AA
        a(f'v_lshrrev_b32 v{T}, 4, v{V_LANE}')
        a(f'v_bfe_u32 v{T+1}, v{V_LANE}, 2, 2')
        a(f'v_lshl_add_u32 v{T+2}, v{T}, 3, v{T+1}')
        a(f'v_lshlrev_b32 v{AA}, 6, v{T+2}')
        a(f'v_lshl_add_u32 v{AA}, v{T}, 5, v{AA}')
        a(f'v_and_b32 v{T+3}, 3, v{V_LANE}')
        a(f'v_lshl_add_u32 v{AA}, v{T+3}, 3, v{AA}')
        a(f's_mul_i32 s{S_T0}, s{S_W}, {PHI_W}')
        a(f's_add_u32 s{S_T0}, s{S_T0}, {SC_PHI}')
        a(f'v_add_u32 v{AA}, s{S_T0}, v{AA}')
        a(f'v_and_b32 v{T+4}, 1, v{T}')
        a(f'v_lshlrev_b32 v{T+4}, 2, v{T+4}')
        a(f'v_xor_b32 v{T+1}, v{T+2}, v{T+4}')
        a(f'v_xor_b32 v{T+2}, 4, v{T+1}')
        a(f'v_lshlrev_b32 v{T+1}, 5, v{T+1}')
        a(f'v_lshlrev_b32 v{T+2}, 5, v{T+2}')
        a(f'v_lshl_add_u32 v{T+1}, v{T+3}, 3, v{T+1}')
        a(f'v_lshl_add_u32 v{T+2}, v{T+3}, 3, v{T+2}')
        a(f's_lshl_b32 s{S_T0}, s{S_W}, 11')
        a(f's_add_u32 s{S_T0}, s{S_T0}, {SC_V}')
        a(f'v_add_u32 v{self.R_BA0}, s{S_T0}, v{T+1}')
        a(f'v_add_u32 v{self.R_BA1}, s{S_T0}, v{T+2}')
        a(f's_mul_i32 s{S_T0+1}, s{S_SLOT1}, {KVB}')
        a(f's_add_u32 s{S_T0+1}, s{S_T0+1}, {WS_KVP + L * KVP_L}')
        a(f's_lshl_b32 s{S_T0+2}, s{S_W}, 11')
        a(f's_add_u32 s{S_T0+2}, s{S_T0+2}, s{S_T0+1}')
        a(f'v_and_b32 v{T+1}, 15, v{V_LANE}')
        a(f'v_lshlrev_b32 v{T+1}, 7, v{T+1}')
        a(f'v_lshl_add_u32 v{T+1}, v{T}, 4, v{T+1}')
        a(f'v_add_u32 v{self.R_KVS}, s{S_T0+2}, v{T+1}')
        a(f's_lshl_b32 s{S_T0+2}, s{S_W}, 8')
        a(f's_add_u32 s{S_T0+2}, s{S_T0+2}, s{S_T0+1}')
        a(f's_add_u32 s{S_T0+2}, s{S_T0+2}, 8192')
        a(f'v_lshlrev_b32 v{T+1}, 3, v{V_LANE}')
        a(f'v_add_u32 v{self.R_ZS}, s{S_T0+2}, v{T+1}')
        a(f'v_lshlrev_b32 v{T+1}, 4, v{V_HH}')
        a(f's_lshl_b32 s{S_T0}, s{S_W}, 7')
        a(f's_add_u32 s{S_T0}, s{S_T0}, {SC_CS}')
        a(f'v_add_u32 v{self.R_CS}, s{S_T0}, v{T+1}')

    def kv_epilogue(self, L, cs_kv_reg=None):
        a = self.a; o = self.o
        ACC0, ACC1 = self.ACC0, self.ACC1
        SS, SQ, ONES = self.SS, self.SQ, self.ONES
        M, M1 = self.M, self.M1
        T = 24
        self.stamp(3 + 16 * L)
        a(f'v_mov_b32 v{T}, v{SS}')
        a(f'v_mov_b32 v{T+1}, v{SQ}')
        a(f'v_permlane32_swap_b32 v{SS}, v{T}')
        a(f'v_permlane32_swap_b32 v{SQ}, v{T+1}')
        a(f'v_add_f32 v{SS}, v{SS}, v{T}')
        a(f'v_add_f32 v{SQ}, v{SQ}, v{T+1}')
        a(f'ds_write_b64 v{self.R_STW}, v[{SS}:{SQ}]')
        if L == 0:
            a(f's_lshl_b32 s{S_T0+4}, s{S_W}, 7')
            self.cs_write(cs_kv_reg, S_T0 + 4, 0, 96)
            self.wait_vm('wphi')
            self.wphi_finish(96)
            self.kvt_zero(96)
        a('s_waitcnt lgkmcnt(0)')
        a('s_barrier')
        CS = 80
        SA = 96
        a(f'ds_read_b64 v[{SA}:{SA+1}], v{self.R_STO}')
        a(f'ds_read_b64 v[{SA+2}:{SA+3}], v{self.R_STO} offset:512')
        a(f'ds_read_b64 v[{SA+4}:{SA+5}], v{self.R_STP}')
        a(f'ds_read_b64 v[{SA+6}:{SA+7}], v{self.R_STP} offset:512')
        for g in range(4): a(f'ds_read_b128 v[{CS+4*g}:{CS+4*g+3}], v{self.R_CS} offset:{32*g}')
        a('s_waitcnt lgkmcnt(4)')
        a(f'v_pk_add_f32 v[{SA}:{SA+1}], v[{SA}:{SA+1}], v[{SA+2}:{SA+3}]')
        a(f'v_pk_add_f32 v[{SA+4}:{SA+5}], v[{SA+4}:{SA+5}], v[{SA+6}:{SA+7}]')
        self.merge(self.cap(lambda: self.ln_finalize(SA, SA + 1, M, M + 1, SA + 2)),
                   self.cap(lambda: self.ln_finalize(SA + 4, SA + 5, M1, M1 + 1, SA + 6)))
        KB0, KB1 = 96, 104
        a('s_waitcnt lgkmcnt(0)')
        self.ln_apply16(ACC0, CS, M, KB0)
        WK = 112
        a(f's_cmp_eq_u32 s{S_HSEL}, 0')
        a(f's_cselect_b64 vcc, -1, 0')
        for i in range(4): a(f'v_cndmask_b32 v{WK+i}, v{V_WPHI+4+i}, v{V_WPHI+i}, vcc')
        a(f'v_mfma_f32_32x32x16_bf16 v[{ACC0}:{ACC0+15}], v[{WK}:{WK+3}], v[{KB0}:{KB0+3}], 0')
        self.ln_apply16(ACC1, CS, M1, KB1)
        a(f'v_mfma_f32_32x32x16_bf16 v[{ACC1}:{ACC1+15}], v[{WK}:{WK+3}], v[{KB1}:{KB1+3}], 0')
        for tt, kb in enumerate((KB0, KB1)):
            a(f'ds_write_b64 v{self.R_VA+tt}, v[{kb+4}:{kb+5}]')
            a(f'ds_write_b64 v{self.R_VA+tt}, v[{kb+6}:{kb+7}] offset:16')
        PH0, PH1 = 80, 88
        s0 = self.cap(lambda: self.softmax16(ACC0, PH0, 112))
        s1 = self.cap(lambda: self.softmax16(ACC1, PH1, 116))
        if L == 0:
            SEL = self.SELR
            cs = [f'  v_mfma_f32_16x16x32_bf16 v[28:31], a[{128+4*ks}:{128+4*ks+3}], v[{SEL}:{SEL+3}], ' + ('0' if ks == 0 else 'v[28:31]') for ks in range(32)]
            for st in (s0, s1):
                k = 0
                while k < len(st):
                    if 'v_exp_f32' in st[k] and cs: st.insert(k + 1, cs.pop(0)); k += 1
                    k += 1
        a.lines += s0[:10]
        self.merge(s0[10:], s1)
        for tt, ph in enumerate((PH0, PH1)):
            a(f'ds_write_b128 v{self.R_PA+tt}, v[{ph}:{ph+3}]')
            a(f'ds_write_b128 v{self.R_PA+tt}, v[{ph+4}:{ph+7}] offset:16')
        FA, FB, KV, ZS = 48, 64, 80, 88
        BAx = (self.R_BA0, self.R_BA1)
        for kk in range(2):
            for x in range(2):
                a(f'ds_read_b64_tr_b16 v[{FB+4*kk+2*x}:{FB+4*kk+2*x+1}], v{BAx[x]} offset:{kk*1024}')
        a(f'v_mov_b32 v{ZS}, 0'); a(f'v_mov_b32 v{ZS+1}, 0')
        a(f'v_mov_b32 v{ONES}, 0x3f803f80')
        for kk in range(2):
            for mt in range(2):
                for x in range(2):
                    a(f'ds_read_b64_tr_b16 v[{FA+8*mt+4*kk+2*x}:{FA+8*mt+4*kk+2*x+1}], v{self.R_AA} offset:{kk*2176 + x*256 + mt*32}')
        G = 96
        for mt in range(2):
            a(f'v_mov_b32 v{G+4*mt+1}, s{S_NONCE}')
            a(f'v_mov_b32 v{G+4*mt+3}, s{S_NONCE}')
        for kk in range(2):
            a(f's_waitcnt lgkmcnt({4 - 4*kk})')
            for mt in range(2):
                c = '0' if kk == 0 else f'v[{KV+4*mt}:{KV+4*mt+3}]'
                a(f'v_mfma_f32_16x16x32_bf16 v[{KV+4*mt}:{KV+4*mt+3}], v[{FA+8*mt+4*kk}:{FA+8*mt+4*kk+3}], v[{FB+4*kk}:{FB+4*kk+3}], {c}')
        for i in range(8):
            a(f'v_dot2c_f32_bf16 v{ZS}, v{FA+i}, v{ONES}')
            a(f'v_dot2c_f32_bf16 v{ZS+1}, v{FA+8+i}, v{ONES}')
        for mt in range(2):
            g = G + 4 * mt
            a(f'v_cvt_pk_bf16_f32 v{g}, v{KV+4*mt}, v{KV+4*mt+1}')
            a(f'v_cvt_pk_bf16_f32 v{g+2}, v{KV+4*mt+2}, v{KV+4*mt+3}')
            a(f'global_store_dwordx4 v{self.R_KVS}, v[{g}:{g+3}], {WSB} offset:{mt*64} sc1')
        for zz in (ZS, ZS + 1):
            a(f'v_mov_b32 v{ZS+2}, v{zz}')
            a(f'v_permlane32_swap_b32 v{zz}, v{ZS+2}')
            a(f'v_add_f32 v{zz}, v{zz}, v{ZS+2}')
            a(f'v_mov_b32 v{ZS+2}, v{zz}')
            a(f'v_permlane16_swap_b32 v{zz}, v{ZS+2}')
            a(f'v_add_f32 v{zz}, v{zz}, v{ZS+2}')
        a(f'v_and_b32 v{ZS+2}, 16, v{V_LANE}')
        a(f'v_cmp_eq_u32 vcc, 0, v{ZS+2}')
        a(f'v_cndmask_b32 v{ZS}, v{ZS+1}, v{ZS}, vcc')
        a(f'v_cvt_pk_bf16_f32 v{ZS}, v{ZS}, 0')
        a(f'v_mov_b32 v{ZS+1}, s{S_NONCE}')
        a('s_mov_b32 exec_lo, -1'); a('s_mov_b32 exec_hi, 0')
        a(f'global_store_dwordx2 v{self.R_ZS}, v[{ZS}:{ZS+1}], {WSB} sc1')
        a('s_mov_b64 exec, -1')
        self.stamp(4 + 16 * L)

    def q_pass(self, L):
        a = self.a; o = self.o
        ACC, FR, XB = 48, 80, 112
        M = self.M
        self.lg = []
        self.bfrag_setup(L, XB, own_only=True)
        if L == 0:
            a(f's_lshl_b32 s{S_T0+4}, s{S_RHALF}, 7')
            self.cs_write(28, S_T0 + 4, 512, 104)
            a('s_barrier')
            a(f'v_and_b32 v117, 7, v{V_LANE}')
            a('v_lshlrev_b32 v117, 3, v117')
            a(f's_lshl_b32 s{S_T0}, s{S_RB}, 6')
            a(f's_add_u32 s{S_T0}, s{S_T0}, {WS_XT}')
            a(f'v_add_u32 v250, s{S_T0}, v117')
            a(f'global_load_dwordx2 v[118:119], v250, {WSB} sc1')
            self.wo_setup()
            self.vm = []
        for ks in range(3): self.bfrag_read(L, XB, ks, FR + 4 * (ks & 3), f'f{ks}')
        a(f's_lshl_b32 s{S_T0+4}, s{S_RHALF}, 7')
        for ks in range(32):
            if ks + 3 < 32:
                self.bfrag_read(L, XB, ks + 3, FR + 4 * ((ks + 3) & 3), f'f{ks+3}')
            self.wait_lg(f'f{ks}')
            c0 = '0' if ks == 0 else f'v[{ACC}:{ACC+15}]'
            st = FR + 4 * (ks & 3)
            a(f'v_mfma_f32_32x32x16_bf16 v[{ACC}:{ACC+15}], a[{128+4*ks}:{128+4*ks+3}], v[{st}:{st+3}], {c0}')
            if ks == 2:
                self.resid_read(L, 104); self.lg += ['rs'] * 4
            if L == 0 and ks % 2 == 0: self.wo_dma(16 + ks // 2, self.WOB, self.WOB + 1)
            if ks == 24:
                self.cs_read(64, S_T0 + 4, 512, 104)
                self.lg += ['cs'] * 4
        H1A, H1 = 116, 80
        a(f's_lshl_b32 s{S_T0}, s{S_HB}, 5')
        a(f's_lshl_b32 s{S_T0+1}, s{S_W}, 3')
        a(f's_add_u32 s{S_T0}, s{S_T0}, s{S_T0+1}')
        a(f's_mul_i32 s{S_T0}, s{S_T0}, {KVB}')
        a(f's_mul_i32 s{S_T0+1}, s{S_RB}, 288')
        a(f's_add_u32 s{S_T0}, s{S_T0}, s{S_T0+1}')
        a(f's_add_u32 s{S_T0}, s{S_T0}, {WS_KVP + L * KVP_L}')
        a(f'v_min_u32 v{H1A}, 35, v{V_LANE}')
        a(f'v_lshlrev_b32 v{H1A}, 3, v{H1A}')
        a(f'v_add_u32 v{H1A}, s{S_T0}, v{H1A}')
        a('s_waitcnt lgkmcnt(0)'); self.lg = []
        KB = 96
        self.ln_apply16(ACC, 64, M, KB)
        D = (48, 64)
        for hd in range(2):
            a(f'v_mfma_f32_32x32x16_bf16 v[{D[hd]}:{D[hd]+15}], v[{V_WPHI+4*hd}:{V_WPHI+4*hd+3}], v[{KB+4*hd}:{KB+4*hd+3}], 0')
        def h1_loads():
            a = self.a
            for p in range(8):
                a(f'v_add_u32 v{H1A+1}, {p * KVB}, v{H1A}')
                a(f'global_load_dwordx2 v[{H1+2*p}:{H1+2*p+1}], v{H1A+1}, {WSB} sc1')
        h1_loads()
        s0 = self.cap(lambda: self.softmax16(D[0], V_PHIQ, 104))
        s1 = self.cap(lambda: self.softmax16(D[1], V_PHIQ + 8, 108))
        self.merge(s0, s1)
        self.stamp(5 + 16 * L)
        lp, ld = self.lab('h1poll'), self.lab('h1done')
        T = 48
        a(f's_mov_b32 s{S_T0+2}, 0')
        a.label(lp)
        a('s_waitcnt vmcnt(0)')
        a(f'v_mov_b32 v{T}, 0')
        for p in range(8): a(f'v_sad_u32 v{T}, v{H1+2*p+1}, s{S_NONCE}, v{T}')
        a(f's_add_u32 s{S_T0+2}, s{S_T0+2}, 1')
        a(f's_cmp_gt_u32 s{S_T0+2}, {self.o.spin}')
        a(f's_cbranch_scc1 {ld}')
        a(f'v_cmp_ne_u32 vcc, 0, v{T}')
        a(f's_cbranch_vccz {ld}')
        if self.o.slp: a(f's_sleep {self.o.slp}')
        h1_loads()
        a(f's_branch {lp}')
        a.label(ld)
        if L == 0:
            lp2, ld2 = self.lab('xtpoll'), self.lab('xtdone')
            a(f's_mov_b32 s{S_T0+2}, 0')
            a(f's_mov_b32 s{S_FAST}, 0')
            a.label(lp2)
            a(f'v_cmp_ne_u32 vcc, s{S_NONCE}, v119')
            a(f's_cbranch_vccz {ld2}')
            a(f's_add_u32 s{S_T0+2}, s{S_T0+2}, 1')
            a(f's_cmp_gt_u32 s{S_T0+2}, {self.o.spin}')
            a(f's_cbranch_scc1 {ld2}x')
            a(f'global_load_dwordx2 v[118:119], v250, {WSB} sc1')
            a('s_waitcnt vmcnt(0)')
            a(f's_branch {lp2}')
            a.label(ld2)
            a(f'v_cmp_ne_u32 vcc, s{S_XCC}, v118')
            a(f's_cmp_eq_u64 vcc, 0')
            a(f's_cselect_b32 s{S_FAST}, 1, 0')
            a.label(ld2 + 'x')
        CL, CH = 52, 53
        a(f'v_mov_b32 v{CL}, 0x00003f80'); a(f'v_mov_b32 v{CH}, 0x3f800000')
        a(f'v_mov_b32 v{T}, 0'); a(f'v_mov_b32 v{T+1}, 0')
        for p in range(8):
            a(f'v_dot2c_f32_bf16 v{T}, v{H1+2*p}, v{CL}')
            a(f'v_dot2c_f32_bf16 v{T+1}, v{H1+2*p}, v{CH}')
        a(f'v_lshlrev_b32 v{T+2}, 3, v{V_LANE}')
        a(f's_lshl_b32 s{S_T0}, s{S_W}, 9')
        a(f's_add_u32 s{S_T0}, s{S_T0}, {SC_RED}')
        a(f'v_add_u32 v{T+3}, s{S_T0}, v{T+2}')
        a(f'ds_write_b64 v{T+3}, v[{T}:{T+1}]')
        a('s_waitcnt lgkmcnt(0)')
        a('s_barrier')
        l = self.lab('h1pub')
        a(f's_cmp_lg_u32 s{S_W}, 0')
        a(f's_cbranch_scc1 {l}')
        a(f'v_add_u32 v{T+3}, {SC_RED}, v{T+2}')
        for w in range(4): a(f'ds_read_b64 v[{T+4+2*w}:{T+5+2*w}], v{T+3} offset:{w*512}')
        a(f's_mul_i32 s{S_T0}, s{S_HB}, {KVB}')
        a(f's_mul_i32 s{S_T0+1}, s{S_RB}, 288')
        a(f's_add_u32 s{S_T0}, s{S_T0}, s{S_T0+1}')
        a(f's_add_u32 s{S_T0}, s{S_T0}, {WS_KVR + L * 0x12000}')
        a(f'v_add_u32 v{T+2}, s{S_T0}, v{T+2}')
        a('s_waitcnt lgkmcnt(0)')
        a(f'v_pk_add_f32 v[{T+4}:{T+5}], v[{T+4}:{T+5}], v[{T+6}:{T+7}]')
        a(f'v_pk_add_f32 v[{T+8}:{T+9}], v[{T+8}:{T+9}], v[{T+10}:{T+11}]')
        a(f'v_pk_add_f32 v[{T+4}:{T+5}], v[{T+4}:{T+5}], v[{T+8}:{T+9}]')
        a(f'v_cvt_pk_bf16_f32 v{T+4}, v{T+4}, v{T+5}')
        a(f'v_mov_b32 v{T+5}, s{S_NONCE}')
        a('s_mov_b32 exec_lo, -1'); a('s_mov_b32 exec_hi, 0xf')
        a(f'global_store_dwordx2 v{T+2}, v[{T+4}:{T+5}], {WSB} sc1')
        a('s_mov_b64 exec, -1')
        a.label(l)
        if L == 0:
            self.stamp(32)
            self.kgen_tables_to_lds()
            self.stamp(33)
            self.wo_tr_addr(112)
            self.kgen_b()
            self.stamp(34)

    def o_stage(self, L):
        a = self.a; o = self.o
        a.c(f'================ o stage layer {L} ================')
        T = 120
        PB = 48
        lp, ld = self.lab('h2poll'), self.lab('h2done')
        a(f's_mul_i32 s{S_T0}, s{S_HB}, {KVB}')
        a(f's_add_u32 s{S_T0}, s{S_T0}, {WS_KVR + L * 0x12000}')
        a(f'v_lshlrev_b32 v{T}, 4, v{V_TID}')
        a(f'v_add_u32 v{T}, s{S_T0}, v{T}')
        a(f'v_min_u32 v{T+1}, 63, v{V_TID}')
        a(f'v_lshlrev_b32 v{T+1}, 4, v{T+1}')
        a(f'v_add_u32 v{T+1}, s{S_T0}, v{T+1}')
        a(f'v_add_u32 v{T+1}, 8192, v{T+1}')
        a(f'v_add_u32 v{T+2}, 4096, v{T}')
        W = 60
        a(f'v_lshrrev_b32 v{W}, 7, v{V_TID}')
        a(f'v_mul_u32_u24 v{W}, {KVT_HEAD}, v{W}')
        a(f'v_bfe_u32 v{W+1}, v{V_TID}, 3, 4')
        a(f'v_mul_u32_u24 v{W+1}, {KVT_ROW}, v{W+1}')
        a(f'v_and_b32 v{W+2}, 7, v{V_TID}')
        a(f'v_lshlrev_b32 v{W+2}, 3, v{W+2}')
        a(f'v_add3_u32 v{W}, v{W}, v{W+1}, v{W+2}')
        a(f'v_add_u32 v{W}, {SC_KVT}, v{W}')
        a(f'v_bfe_u32 v{W+1}, v{V_TID}, 4, 2')
        a(f'v_mul_u32_u24 v{W+1}, {KVT_HEAD}, v{W+1}')
        a(f'v_and_b32 v{W+2}, 15, v{V_TID}')
        a(f'v_lshl_add_u32 v{W+1}, v{W+2}, 2, v{W+1}')
        a(f'v_add_u32 v{W+1}, {SC_KVT + 16 * KVT_ROW}, v{W+1}')
        a(f'v_mul_u32_u24 v{W+2}, {KVT_ROW}, v{V_J}')
        a(f'v_lshl_add_u32 v{W+2}, v{V_HH}, 5, v{W+2}')
        a(f's_mul_i32 s{S_T0+1}, s{S_RHALF}, {2 * KVT_HEAD}')
        a(f's_add_u32 s{S_T0+1}, s{S_T0+1}, {SC_KVT}')
        a(f'v_add_u32 v{W+2}, s{S_T0+1}, v{W+2}')
        a(f's_lshl_b32 s{S_T0+1}, s{S_RB}, 1')
        a(f's_add_u32 s{S_T0+1}, s{S_T0+1}, s{S_HSEL}')
        a(f's_lshl_b32 s{S_T0+8}, s{S_T0+1}, 4')
        a(f's_lshl_b32 s{S_T0+3}, s{S_HB}, 1')
        a(f's_add_u32 s{S_T0+8}, s{S_T0+8}, s{S_T0+3}')
        a(f's_add_u32 s{S_T0+8}, s{S_T0+8}, s{S_RHALF}')
        a(f's_lshl_b32 s{S_T0+1}, s{S_T0+1}, 15')
        a(f's_lshl_b32 s{S_T0+3}, s{S_HB}, 12')
        a(f's_add_u32 s{S_T0+1}, s{S_T0+1}, s{S_T0+3}')
        a(f's_lshl_b32 s{S_T0+3}, s{S_RHALF}, 11')
        a(f's_add_u32 s{S_T0+1}, s{S_T0+1}, s{S_T0+3}')
        a(f's_add_u32 s{S_T0+1}, s{S_T0+1}, {WS_O + L * 0x200000}')
        a(f'v_lshlrev_b32 v{W+3}, 4, v{V_LANE}')
        a(f'v_add_u32 v{W+3}, s{S_T0+1}, v{W+3}')
        a(f's_mov_b32 s{S_T0+2}, 0')
        if o.slph and L == 1: a(f's_sleep {o.slph}')
        a.label(lp)
        a(f'global_load_dwordx4 v[{PB}:{PB+3}], v{T}, {WSB} sc1')
        a(f'global_load_dwordx4 v[{PB+4}:{PB+7}], v{T+2}, {WSB} sc1')
        a(f'global_load_dwordx4 v[{PB+8}:{PB+11}], v{T+1}, {WSB} sc1')
        a(f's_add_u32 s{S_T0+2}, s{S_T0+2}, 1')
        a(f's_cmp_gt_u32 s{S_T0+2}, {self.o.spin}')
        a(f's_cbranch_scc1 {ld}')
        a('s_waitcnt vmcnt(0)')
        a(f'v_sad_u32 v{T+3}, v{PB+1}, s{S_NONCE}, 0')
        for r in (3, 5, 7, 9, 11): a(f'v_sad_u32 v{T+3}, v{PB+r}, s{S_NONCE}, v{T+3}')
        a(f'v_cmp_ne_u32 vcc, 0, v{T+3}')
        a(f's_cbranch_vccz {ld}')
        if o.slp: a(f's_sleep {o.slp}')
        a(f's_branch {lp}')
        a.label(ld)
        a('s_waitcnt vmcnt(0)')
        self.stamp(6 + 16 * L)
        a(f'v_mov_b32 v{PB+1}, v{PB+2}')
        a(f'v_mov_b32 v{PB+5}, v{PB+6}')
        a(f'v_lshl_or_b32 v{PB+8}, v{PB+10}, 16, v{PB+8}')
        a(f'ds_write_b64 v{W}, v[{PB}:{PB+1}]')
        a(f'ds_write_b64 v{W}, v[{PB+4}:{PB+5}] offset:{2 * KVT_HEAD}')
        l = self.lab('zw')
        a(f's_cmp_lg_u32 s{S_W}, 0')
        a(f's_cbranch_scc1 {l}')
        a(f'ds_write_b32 v{W+1}, v{PB+8}')
        a(f'ds_write_b32 v{W+1}, v{PB+8} offset:{4 * KVT_ROW}')
        a.label(l)
        a('s_waitcnt lgkmcnt(0)')
        a('s_barrier')
        AF = 72
        for hd in range(2):
            for m in range(2):
                a(f'ds_read_b128 v[{AF+8*hd+4*m}:{AF+8*hd+4*m+3}], v{W+2} offset:{hd * KVT_HEAD + 16 * m}')
        D = [88, 104]
        for hd in range(2):
            a(f's_waitcnt lgkmcnt({2 - 2*hd})')
            a(f'v_mfma_f32_32x32x16_bf16 v[{D[hd]}:{D[hd]+15}], v[{AF+8*hd}:{AF+8*hd+3}], v[{V_PHIQ+8*hd}:{V_PHIQ+8*hd+3}], 0')
            a(f'v_mfma_f32_32x32x16_bf16 v[{D[hd]}:{D[hd]+15}], v[{AF+8*hd+4}:{AF+8*hd+7}], v[{V_PHIQ+8*hd+4}:{V_PHIQ+8*hd+7}], v[{D[hd]}:{D[hd]+15}]')
        OB = 48
        for hd in range(2):
            d = D[hd]
            a(f'v_add_f32 v{d+8}, 0x358637bd, v{d+8}')
            a(f'v_rcp_f32 v{d+8}, v{d+8}')
            for r in range(0, 8, 2):
                a(f'v_pk_mul_f32 v[{d+r}:{d+r+1}], v[{d+r}:{d+r+1}], v[{d+8}:{d+9}] op_sel_hi:[1,0]')
            for r in range(0, 8, 2):
                a(f'v_cvt_pk_bf16_f32 v{OB+4*hd+r//2}, v{d+r}, v{d+r+1}')
        lf, le = self.lab('ofast'), self.lab('oend')
        a(f's_cmp_eq_u32 s{S_FAST}, 1')
        a(f's_cbranch_scc1 {lf}')
        for hd in range(2):
            a(f'global_store_dwordx4 v{W+3}, v[{OB+4*hd}:{OB+4*hd+3}], {WSB} offset:{hd*1024} sc1')
        a('s_waitcnt vmcnt(0)')
        self.flag_store(4 * L + 1, S_T0 + 8)
        a(f's_branch {le}')
        a.label(lf)
        for hd in range(2):
            a(f'global_store_dwordx4 v{W+3}, v[{OB+4*hd}:{OB+4*hd+3}], {WSB} offset:{hd*1024}')
        a('s_waitcnt vmcnt(0)')
        self.flag_store(4 * L + 1, S_T0 + 8, sc='')
        a.label(le)
        if L == 0:
            self.vm = []
            self.wo_setup(52, 53)
            for i in range(16): self.wo_dma(i, 52, 53)
        self.stamp(7 + 16 * L)

    WOB = 214
    @staticmethod
    def wo_blk(i): return i * 4096 if i < 22 else LDS_KC + (i - 22) * 4096
    def wo_setup(self, b=None, t=158):
        a = self.a
        if b is None: b = self.WOB
        a(f'v_lshrrev_b32 v{b}, 4, v{V_LANE}')
        a(f'v_lshlrev_b32 v{t}, 2, v{b}')
        a(f'v_and_b32 v{t+1}, 15, v{V_LANE}')
        a(f'v_xor_b32 v{t}, v{t}, v{t+1}')
        a(f'v_lshlrev_b32 v{t}, 4, v{t}')
        a(f's_lshl_b32 s{S_T0}, s{S_W}, 2')
        a(f'v_add_u32 v{b}, s{S_T0}, v{b}')
        a(f'v_lshl_add_u32 v{b}, v{b}, 10, v{t}')
        a(f's_lshl_b32 s{S_T0}, s{S_CB}, 8')
        a(f'v_add_u32 v{b}, s{S_T0}, v{b}')
    def wo_dma(self, i, base, tmp):
        a = self.a
        a(f'v_add_u32 v{tmp}, {i * 16 * 1024}, v{base}')
        a(f's_add_u32 m0, s{S_W1024}, {self.wo_blk(i)}')
        self.vm_op(f'global_load_lds_dwordx4 v{tmp}, s[{S_WO}:{S_WO+1}]', f'wo{i >> 4}')
    def wo_tr_addr(self, b):
        a = self.a
        t = b + 3
        a(f'v_bfe_u32 v{t}, v{V_LANE}, 2, 2')
        a(f'v_lshl_add_u32 v{b}, v{V_HH}, 2, v{t}')
        a(f'v_lshlrev_b32 v{b}, 8, v{b}')
        a(f'v_lshlrev_b32 v{t}, 2, v{t}')
        a(f'v_bfe_u32 v{t+1}, v{V_LANE}, 4, 1')
        a(f'v_lshlrev_b32 v{t+1}, 1, v{t+1}')
        a(f'v_bfe_u32 v{t+2}, v{V_LANE}, 1, 1')
        a(f's_lshl_b32 s{S_T0}, s{S_W}, 2')
        a(f'v_add3_u32 v{t+1}, v{t+1}, v{t+2}, s{S_T0}')
        a(f'v_xor_b32 v{t+1}, v{t+1}, v{t}')
        a(f'v_lshl_add_u32 v{b}, v{t+1}, 4, v{b}')
        a(f'v_and_b32 v{t+1}, 1, v{V_LANE}')
        a(f'v_lshl_add_u32 v{b}, v{t+1}, 3, v{b}')
        a(f'v_add_u32 v{b+1}, 65536, v{b}')
        a(f'v_add_u32 v{b+2}, {LDS_KC}, v{b}')
    def wo_tr(self, hg, b, tag=None):
        if hg < 16: r, off = b, hg * 4096
        elif hg < 22: r, off = b + 1, (hg - 16) * 4096
        else: r, off = b + 2, (hg - 22) * 4096
        for x in range(2):
            line = f'ds_read_b64_tr_b16 v[{128+4*hg+2*x}:{128+4*hg+2*x+1}], v{r} offset:{off + x * 2048}'
            if tag: self.lg_op(line, tag)
            else: self.a(line)

    def p2b(self, L):
        a = self.a; o = self.o
        a.c(f'================ P2b layer {L} ================')
        OT = LDS_KC if L == 0 else 0
        order = list(range(16, 32)) + list(range(16)) if L == 0 else list(range(32))
        a(f's_lshl_b32 s{S_T0+9}, s{S_T}, 4')
        T = V_P
        a(f's_lshl_b32 s{S_T0+4}, s{S_T}, 15')
        a(f's_add_u32 s{S_T0+4}, s{S_T0+4}, s{S_W1024}')
        a(f's_add_u32 s{S_T0+4}, s{S_T0+4}, {WS_O + L * 0x200000}')
        a(f'v_lshlrev_b32 v{T+2}, 4, v{V_LANE}')
        a(f'v_add_u32 v{T}, s{S_T0+4}, v{T+2}')
        if OT: a(f'v_add_u32 v{T+2}, {OT}, v{T+2}')
        TT = 88
        TR = 65536
        W1, R1, G1, A1 = 52, 53, 54, 55
        a(f'v_lshlrev_b32 v{W1}, 6, v{V_J}')
        a(f'v_lshl_add_u32 v{W1}, v{V_HH}, 3, v{W1}')
        a(f's_lshl_b32 s{S_T0}, s{S_W}, 11')
        a(f's_add_u32 s{S_T0}, s{S_T0}, {TR}')
        a(f'v_add_u32 v{W1}, s{S_T0}, v{W1}')
        a(f'v_lshrrev_b32 v{TT}, 4, v{V_LANE}')
        a(f'v_bfe_u32 v{R1}, v{V_LANE}, 2, 2')
        a(f'v_lshl_add_u32 v{R1}, v{TT}, 3, v{R1}')
        a(f'v_lshlrev_b32 v{R1}, 6, v{R1}')
        a(f'v_and_b32 v{TT+1}, 3, v{V_LANE}')
        a(f'v_lshl_add_u32 v{R1}, v{TT+1}, 3, v{R1}')
        a(f'v_add_u32 v{R1}, s{S_T0}, v{R1}')
        a(f's_lshl_b32 s{S_T0}, s{S_CB}, 7')
        a(f's_lshl_b32 s{S_T0+1}, s{S_W}, 5')
        a(f's_add_u32 s{S_T0}, s{S_T0}, s{S_T0+1}')
        a(f's_lshl_b32 s{S_T0}, s{S_T0}, 12')
        a(f's_lshl_b32 s{S_T0+1}, s{S_T}, 6')
        a(f's_add_u32 s{S_T0}, s{S_T0}, s{S_T0+1}')
        a(f's_add_u32 s{S_T0}, s{S_T0}, {WS_X1T + L * 0x200000}')
        a(f'v_and_b32 v{G1}, 15, v{V_LANE}')
        a(f'v_lshlrev_b32 v{G1}, 12, v{G1}')
        a(f'v_lshl_add_u32 v{G1}, v{TT}, 4, v{G1}')
        a(f'v_add_u32 v{G1}, s{S_T0}, v{G1}')
        a(f's_lshl_b32 s{S_T0}, s{S_T}, 7')
        a(f's_add_u32 s{S_T0}, s{S_T0}, {WS_STATS + L * 0x4000}')
        a(f'v_lshlrev_b32 v{A1}, 2, v{V_J}')
        a(f'v_lshl_add_u32 v{A1}, v{V_HH}, 13, v{A1}')
        a(f'v_add_u32 v{A1}, s{S_T0}, v{A1}')
        if L == 0: self.wo_tr_addr(112)
        if L == 0:
            pass
        self.wait(4 * L + 1, S_T0 + 9, 16, slp0=0)
        self.stamp(8 + 16 * L)
        pieces = [4, 5, 6, 7, 0, 1, 2, 3] if L == 0 else list(range(8))
        for i in pieces:
            a(f'v_add_u32 v{T+1}, {i * 4096}, v{T}')
            a(f's_add_u32 m0, s{S_W1024}, {OT + i * 4096}')
            self.vm_op(f'global_load_lds_dwordx4 v{T+1}, {WSB} sc1', f'o{pieces.index(i) >> 1}')
        FR, ACC, NB = 56, 72, 4
        self.lg = []
        def rd(n):
            hg = order[n]
            self.lg_op(f'ds_read_b128 v[{FR+4*(n%NB)}:{FR+4*(n%NB)+3}], v{T+2} offset:{hg*1024}', f'o{n}')
        self.wait_vm('o0'); a('s_barrier')
        for n in range(3): rd(n)
        woq = list(range(16)) if L == 0 else []
        for n in range(32):
            if n % 8 == 5 and n < 24:
                self.wait_vm(f'o{n // 8 + 1}'); a('s_barrier')
            if n + 3 < 32: rd(n + 3)
            if L == 0 and 6 <= n < 14:
                for _ in range(2): self.wo_tr(woq.pop(0), 112, 'wo')
            self.wait_lg(f'o{n}')
            hg = order[n]
            if L == 0 and n >= 16: self.wait_lg('wo')
            c = '0' if n == 0 else f'v[{ACC}:{ACC+15}]'
            a(f'v_mfma_f32_32x32x16_bf16 v[{ACC}:{ACC+15}], v[{128+4*hg}:{128+4*hg+3}], v[{FR+4*(n%NB)}:{FR+4*(n%NB)+3}], {c}')
        self.stamp(9 + 16 * L)
        X, U = 88, 96
        SS, SQ, ONES = 112 + 4, 113 + 4, 114 + 4
        a(f'v_mov_b32 v{SS}, 0'); a(f'v_mov_b32 v{SQ}, 0'); a(f'v_mov_b32 v{ONES}, 0x3f803f80')
        for g in range(8):
            u = U + 2 * (g & 1)
            a(f'v_lshlrev_b32 v{u}, 16, v{V_RESID+g}')
            a(f'v_and_b32 v{u+1}, 0xffff0000, v{V_RESID+g}')
            a(f'v_pk_add_f32 v[{ACC+2*g}:{ACC+2*g+1}], v[{ACC+2*g}:{ACC+2*g+1}], v[{u}:{u+1}]')
            a(f'v_cvt_pk_bf16_f32 v{X+g}, v{ACC+2*g}, v{ACC+2*g+1}')
            if g & 1: a(f'ds_write_b64 v{W1}, v[{X+g-1}:{X+g}] offset:{8*(g-1)}')
        for g in range(8):
            a(f'v_dot2c_f32_bf16 v{SS}, v{X+g}, v{ONES}')
            a(f'v_dot2c_f32_bf16 v{SQ}, v{X+g}, v{X+g}')
        Y = 104
        a('s_waitcnt lgkmcnt(0)')
        for m in range(2):
            for x in range(2):
                a(f'ds_read_b64_tr_b16 v[{Y+4*m+2*x}:{Y+4*m+2*x+1}], v{R1} offset:{m*32 + x*256}')
        a(f'v_mov_b32 v{U}, v{SS}')
        a(f'v_mov_b32 v{U+1}, v{SQ}')
        a(f'v_permlane32_swap_b32 v{SS}, v{U}')
        a(f'v_permlane32_swap_b32 v{SQ}, v{U+1}')
        a(f'v_add_f32 v{SS}, v{SS}, v{U}')
        a(f'v_add_f32 v{SQ}, v{SQ}, v{U+1}')
        a(f'v_cmp_eq_u32 vcc, 0, v{V_HH}')
        a(f'v_cndmask_b32 v{SS}, v{SQ}, v{SS}, vcc')
        a(f'v_lshlrev_b32 v{U}, 2, v{V_LANE}')
        a(f's_lshl_b32 s{S_T0}, s{S_W}, 8')
        a(f's_add_u32 s{S_T0}, s{S_T0}, {SC_RED}')
        a(f'v_add_u32 v{U+1}, s{S_T0}, v{U}')
        a(f'ds_write_b32 v{U+1}, v{SS}')
        a(f'v_add_u32 v{T}, {16 * 4096}, v{G1}')
        a('s_waitcnt lgkmcnt(3)')
        a(f'global_store_dwordx4 v{G1}, v[{Y}:{Y+3}], {WSB} sc1')
        a('s_waitcnt lgkmcnt(1)')
        a(f'global_store_dwordx4 v{T}, v[{Y+4}:{Y+7}], {WSB} sc1')
        a('s_waitcnt lgkmcnt(0)')
        a('s_barrier')
        l = self.lab('at')
        a(f's_cmp_lg_u32 s{S_W}, 0')
        a(f's_cbranch_scc1 {l}')
        a(f'v_add_u32 v{U}, {SC_RED}, v{U}')
        for w in range(4): a(f'ds_read_b32 v{U+2+w}, v{U} offset:{w*256}')
        a('s_waitcnt lgkmcnt(0)')
        a(f'v_add_f32 v{U+2}, v{U+2}, v{U+3}')
        a(f'v_add_f32 v{U+4}, v{U+4}, v{U+5}')
        a(f'v_add_f32 v{U+2}, v{U+2}, v{U+4}')
        a(f'global_atomic_add_f32 v{A1}, v{U+2}, {WSB}')
        a.label(l)
        self.signal_wg(4 * L + 2, S_WG)
        self.stamp(10 + 16 * L)

    def exp_acc(self, dst, src, t):
        a = self.a
        a(f'v_mul_f32 v{t}, {hex(LOG2E)}, v{src}')
        a(f'v_mov_b32 v{t+1}, {hex(LOG2E)}')
        a(f'v_fma_f32 v{t+1}, v{src}, v{t+1}, -v{t}')
        a(f'v_fmac_f32 v{t+1}, 0x32a57060, v{src}')
        a(f'v_exp_f32 v{dst}, v{t}')
        a(f'v_mul_f32 v{t+1}, 0x3f317218, v{t+1}')
        a(f'v_fmac_f32 v{dst}, v{dst}, v{t+1}')

    def cis_pow(self, dst, ar2, rev, p, t):
        a = self.a
        import struct
        pf = hex(struct.unpack('<I', struct.pack('<f', float(p)))[0])
        a(f'v_mul_f32 v{t}, {pf}, v{ar2}')
        a(f'v_exp_f32 v{t}, v{t}')
        a(f'v_mul_f32 v{t+1}, {pf}, v{rev}')
        a(f'v_fract_f32 v{t+1}, v{t+1}')
        a(f'v_cos_f32 v{dst}, v{t+1}')
        a(f'v_sin_f32 v{dst+1}, v{t+1}')
        a(f'v_mul_f32 v{dst}, v{dst}, v{t}')
        a(f'v_mul_f32 v{dst+1}, v{dst+1}, v{t}')

    def cmul(self, d, x, y):
        a = self.a
        a(f'v_pk_mul_f32 v[{d}:{d+1}], v[{x}:{x+1}], v[{y}:{y+1}] op_sel_hi:[0,1]')
        a(f'v_pk_fma_f32 v[{d}:{d+1}], v[{x}:{x+1}], v[{y}:{y+1}], v[{d}:{d+1}] op_sel:[1,1,0] op_sel_hi:[1,0,1] neg_lo:[0,1,0]')

    KG_A = 0
    KG_B = 33792
    KG_MX = 55968
    KG_D = 148480
    KP = 36
    def kgen_loads(self):
        a = self.a
        T, KP = 54, self.KP
        a(f's_lshl_b32 s{S_T0}, s{S_C0}, 8')
        a(f'v_lshlrev_b32 v{T}, 1, v{V_TID}')
        a(f'v_add_u32 v{T}, s{S_T0}, v{T}')
        a(f'global_load_ushort v{KP}, v{T}, s[{S_LOGA}:{S_LOGA+1}]')
        a(f'global_load_ushort v{KP+1}, v{T}, s[{S_AIM}:{S_AIM+1}]')
        a(f'global_load_ushort v{KP+2}, v{T}, s[{S_CRE}:{S_CRE+1}]')
        a(f'global_load_ushort v{KP+3}, v{T}, s[{S_CIM}:{S_CIM+1}]')
        a(f'v_lshrrev_b32 v{T+1}, 7, v{V_TID}')
        a(f'v_add_u32 v{T+1}, s{S_C0}, v{T+1}')
        a(f'v_lshlrev_b32 v{T+1}, 1, v{T+1}')
        a(f'global_load_ushort v{KP+4}, v{T+1}, s[{S_LOGDT}:{S_LOGDT+1}]')
        a(f'v_xor_b32 v{T}, 128, v{T}')
        a(f'global_load_ushort v{KP+5}, v{T}, s[{S_CRE}:{S_CRE+1}]')
        a(f'global_load_ushort v{KP+6}, v{T}, s[{S_CIM}:{S_CIM+1}]')
        a(f's_lshl_b32 s{S_T0}, s{S_C0}, 1')
        a(f's_add_u32 s{S_T0+2}, s{S_DSK}, s{S_T0}')
        a(f's_addc_u32 s{S_T0+3}, s{S_DSK+1}, 0')
        a(f's_load_dword s{S_DSKV}, s[{S_T0+2}:{S_T0+3}], 0')

    KT = 160
    def cmul_p(self, d, x, y):
        a = self.a
        a(f'v_mul_f32 v{d}, v{x}, v{y}')
        a(f'v_mul_f32 v{d+1}, v{x}, v{y+1}')
        a(f'v_fma_f32 v{d}, -v{x+1}, v{y+1}, v{d}')
        a(f'v_fmac_f32 v{d+1}, v{x+1}, v{y}')
    def kgen_a(self):
        a = self.a
        KP, KT = self.KP, self.KT
        T = 216
        LA, AI, CR, CI, LD, DT, EA, AR2, REV, MX = 218, 219, 220, 221, 222, 223, 224, 225, 226, 227
        for i, r in enumerate((LA, AI, CR, CI, LD)): a(f'v_lshlrev_b32 v{r}, 16, v{KP+i}')
        self.exp_acc(DT, LD, T); self.rbf(DT, DT)
        self.exp_acc(EA, LA, T); self.rbf(EA, EA)
        a(f'v_mul_f32 v{AR2}, v{EA}, v{DT}')
        a(f'v_mul_f32 v{AR2}, {hex(LOG2E ^ 0x80000000)}, v{AR2}')
        a(f'v_mul_f32 v{REV}, v{AI}, v{DT}')
        a(f'v_mul_f32 v{REV}, 0.15915494, v{REV}')
        a(f'v_lshlrev_b32 v{T}, 16, v{KP+5}')
        a(f'v_lshlrev_b32 v{T+1}, 16, v{KP+6}')
        a(f'v_max_f32 v{MX}, |v{CR}|, |v{CI}|')
        a(f'v_max3_f32 v{MX}, |v{T}|, |v{T+1}|, v{MX}')
        for ctrl in ('row_ror:1', 'row_ror:2', 'row_ror:4', 'row_ror:8'):
            a(f'v_mov_b32_dpp v{T}, v{MX} {ctrl} row_mask:0xf bank_mask:0xf')
            a(f'v_max_f32 v{MX}, v{MX}, v{T}')
        a(f'v_mov_b32 v{T}, v{MX}')
        a(f'v_permlane16_swap_b32 v{MX}, v{T}')
        a(f'v_max_f32 v{MX}, v{MX}, v{T}')
        a(f'v_mov_b32 v{T}, v{MX}')
        a(f'v_permlane32_swap_b32 v{MX}, v{T}')
        a(f'v_max_f32 v{MX}, v{MX}, v{T}')
        a(f'v_lshrrev_b32 v{MX}, 23, v{MX}')
        a(f'v_max_u32 v{MX}, 1, v{MX}')
        a(f'v_min_u32 v{MX}, 253, v{MX}')
        a(f'v_sub_u32 v{T+1}, 254, v{MX}')
        a(f'v_lshlrev_b32 v{T+1}, 23, v{T+1}')
        a(f'v_lshlrev_b32 v{T}, 23, v{MX}')
        a(f'v_mul_f32 v{T}, v{T}, v{DT}')
        a(f'v_mul_f32 v{KT+53}, 0x3d000000, v{T}')
        C = CR
        a(f'v_mul_f32 v{C}, v{C}, v{T+1}')
        a(f'v_mul_f32 v{C+1}, v{C+1}, v{T+1}')
        Z1, Z8, Z256 = 228, 230, 232
        self.cis_pow(Z1, AR2, REV, 1, T)
        self.cis_pow(Z8, AR2, REV, 8, T)
        self.cis_pow(Z256, AR2, REV, 256, T)
        P0, P1 = 234, 236
        cmul = self.cmul
        a(f'v_mov_b32 v{P0}, 1.0'); a(f'v_mov_b32 v{P0+1}, 0')
        cur, nxt = P0, P1
        for b in range(32):
            a(f'v_cvt_pkrtz_f16_f32 v{KT+b}, v{cur}, -v{cur+1}')
            if b < 31:
                cmul(nxt, cur, Z8); cur, nxt = nxt, cur
        def putB(col, r): a(f'v_cvt_pkrtz_f16_f32 v{KT+32+col}, v{r}, v{r+1}')
        Z2, Z4, Z6 = 238, 240, 242
        cmul(Z2, Z1, Z1); cmul(Z4, Z2, Z2); cmul(Z6, Z4, Z2)
        putB(0, C)
        cur, nxt = P0, P1
        cmul(cur, C, Z1); putB(1, cur)
        for k in range(2, 8):
            cmul(nxt, cur, Z1); cur, nxt = nxt, cur; putB(k, cur)
        G, G2, W1 = 244, 246, 248
        cmul(G, C, Z256); putB(8, G)
        for k, zz in ((9, Z2), (10, Z4), (11, Z6)):
            cmul(W1, G, zz); putB(k, W1)
        cmul(G2, G, Z256)
        putB(12, G2); cmul(W1, G2, Z4); putB(13, W1)
        cmul(G, G2, Z256)
        putB(14, G); cmul(W1, G, Z4); putB(15, W1)
        cmul(G2, G, Z256); putB(16, G2)
        cmul(G, G2, Z256); putB(17, G)
        cmul(G2, G, Z256); putB(18, G2)
        cmul(G, G2, Z256); putB(19, G)
        cmul(G2, G, Z256); putB(20, G2)

    def kgen_tables_to_lds(self):
        a = self.a
        T, KT = V_P, self.KT
        TA, TB = T + 2, T + 3
        a(f'v_lshrrev_b32 v{T}, 7, v{V_TID}')
        a(f'v_and_b32 v{T+1}, 127, v{V_TID}')
        a(f'v_lshlrev_b32 v{T+1}, 2, v{T+1}')
        a(f'v_mul_u32_u24 v{TA}, 16896, v{T}')
        a(f'v_add_u32 v{TA}, v{TA}, v{T+1}')
        a(f'v_mul_u32_u24 v{TB}, 11088, v{T}')
        a(f'v_add3_u32 v{TB}, v{TB}, v{T+1}, 0')
        for b in range(0, 32, 2):
            a(f'v_add_u32 v{T+1}, {self.KG_A + b * 528}, v{TA}')
            a(f'ds_write2_b32 v{T+1}, v{KT+b}, v{KT+b+1} offset0:0 offset1:132')
        for c in range(0, 20, 2):
            a(f'v_add_u32 v{T+1}, {self.KG_B + c * 528}, v{TB}')
            a(f'ds_write2_b32 v{T+1}, v{KT+32+c}, v{KT+32+c+1} offset0:0 offset1:132')
        a(f'ds_write_b32 v{TB}, v{KT+32+20} offset:{self.KG_B + 20 * 528}')
        a(f'v_lshlrev_b32 v{T}, 2, v{T}')
        a(f'ds_write_b32 v{T}, v{KT+53} offset:{self.KG_MX + 32}')
        a('s_waitcnt lgkmcnt(0)')

    def kgen_b(self):
        a = self.a; o = self.o
        a.c('================ K generation: contraction over modes ================')
        T = V_P
        a('s_barrier')
        AA, BA = T, T + 1
        a(f'v_and_b32 v{T+2}, 15, v{V_LANE}')
        a(f'v_lshrrev_b32 v{T+3}, 4, v{V_LANE}')
        a(f'v_lshlrev_b32 v{T+3}, 4, v{T+3}')
        a(f'v_mul_u32_u24 v{AA}, 528, v{T+2}')
        a(f'v_add_u32 v{AA}, v{AA}, v{T+3}')
        a(f's_mul_i32 s{S_T0}, s{S_HSEL}, 16896')
        a(f'v_add_u32 v{AA}, s{S_T0}, v{AA}')
        a(f's_lshl_b32 s{S_T0+1}, s{S_RHALF}, 4')
        a(f'v_add_u32 v{BA}, s{S_T0+1}, v{T+2}')
        a(f'v_min_u32 v{BA}, 20, v{BA}')
        a(f'v_mul_u32_u24 v{BA}, 528, v{BA}')
        a(f'v_add_u32 v{BA}, v{BA}, v{T+3}')
        a(f's_mul_i32 s{S_T0}, s{S_HSEL}, 11088')
        a(f's_add_u32 s{S_T0}, s{S_T0}, {self.KG_B}')
        a(f'v_add_u32 v{BA}, s{S_T0}, v{BA}')
        FA, FB, DD = 56, 88, 104
        def rdk(ks):
            st = ks & 1
            a(f'ds_read_b128 v[{FA+8*st}:{FA+8*st+3}], v{AA} offset:{self.KG_A + ks * 64}')
            a(f'ds_read_b128 v[{FA+8*st+4}:{FA+8*st+7}], v{AA} offset:{self.KG_A + 16 * 528 + ks * 64}')
            a(f'ds_read_b128 v[{FB+4*st}:{FB+4*st+3}], v{BA} offset:{ks * 64}')
        rdk(0)
        for ks in range(8):
            if ks + 1 < 8:
                rdk(ks + 1); a('s_waitcnt lgkmcnt(3)')
            else:
                a('s_waitcnt lgkmcnt(0)')
            st = ks & 1
            for mb in range(2):
                c = '0' if ks == 0 else f'v[{DD+4*mb}:{DD+4*mb+3}]'
                a(f'v_mfma_f32_16x16x32_f16 v[{DD+4*mb}:{DD+4*mb+3}], v[{FA+8*st+4*mb}:{FA+8*st+4*mb+3}], v[{FB+4*st}:{FB+4*st+3}], {c}')
        for hg in range(16, 32): self.wo_tr(hg, 112)
        COL, P2 = T, T + 1
        a(f'v_and_b32 v{COL}, 15, v{V_LANE}')
        a(f's_lshl_b32 s{S_T0}, s{S_RHALF}, 4')
        a(f'v_add_u32 v{COL}, s{S_T0}, v{COL}')
        t2, t3 = T + 2, T + 3
        a(f'v_mov_b32 v{P2}, v{COL}')
        a(f'v_lshlrev_b32 v{t2}, 1, v{COL}'); a(f'v_add_u32 v{t2}, {256 - 16}, v{t2}')
        a(f'v_cmp_le_u32 vcc, 8, v{COL}'); a(f'v_cndmask_b32 v{P2}, v{P2}, v{t2}, vcc')
        a(f'v_and_b32 v{t2}, 1, v{COL}'); a(f'v_lshlrev_b32 v{t2}, 2, v{t2}')
        a(f'v_bfe_u32 v{t3}, v{COL}, 1, 1'); a(f'v_lshlrev_b32 v{t3}, 8, v{t3}')
        a(f'v_add3_u32 v{t2}, v{t2}, v{t3}, 0'); a(f'v_add_u32 v{t2}, 512, v{t2}')
        a(f'v_cmp_le_u32 vcc, 12, v{COL}'); a(f'v_cndmask_b32 v{P2}, v{P2}, v{t2}, vcc')
        a(f'v_lshlrev_b32 v{t2}, 8, v{COL}'); a(f'v_add_u32 v{t2}, {1024 - 4096 + 0x100000}, v{t2}'); a(f'v_and_b32 v{t2}, 0xfffff, v{t2}')
        a(f'v_cmp_le_u32 vcc, 16, v{COL}'); a(f'v_cndmask_b32 v{P2}, v{P2}, v{t2}, vcc')
        a(f'v_lshrrev_b32 v{t2}, 4, v{V_LANE}')
        a(f'v_lshl_add_u32 v{t2}, v{t2}, 5, v{P2}')
        a(f'v_lshlrev_b32 v{t2}, 1, v{t2}')
        a(f's_mul_i32 s{S_T0}, s{S_HSEL}, 4112')
        a(f's_add_u32 s{S_T0}, s{S_T0}, {self.KG_D}')
        a(f'v_add_u32 v{t2}, s{S_T0}, v{t2}')
        for i in range(8):
            a(f'v_mul_f32 v{DD+i}, 0x42800000, v{DD+i}')
            a(f'v_cvt_f16_f32 v{DD+i}, v{DD+i}')
        a(f'v_cmp_gt_u32 vcc, 20, v{COL}')
        a(f's_and_saveexec_b64 s[{S_T0+2}:{S_T0+3}], vcc')
        for mb in range(2):
            for r in range(4):
                a(f'ds_write_b16 v{t2}, v{DD+4*mb+r} offset:{(128*mb + 8*r) * 2}')
        a(f's_mov_b64 exec, s[{S_T0+2}:{S_T0+3}]')
        a(f'v_cmp_eq_u32 vcc, 20, v{COL}')
        a(f'v_lshrrev_b32 v{t3}, 4, v{V_LANE}')
        a(f'v_cmp_eq_u32 s[{S_T0+4}:{S_T0+5}], 0, v{t3}')
        a(f's_and_b64 vcc, vcc, s[{S_T0+4}:{S_T0+5}]')
        a(f's_and_saveexec_b64 s[{S_T0+2}:{S_T0+3}], vcc')
        a(f'ds_write_b16 v{t2}, v{DD}')
        a(f's_mov_b64 exec, s[{S_T0+2}:{S_T0+3}]')
        a(f'v_mov_b32 v{T}, {self.KG_MX + 32}')
        a(f'ds_read_b64 v[{T+2}:{T+3}], v{T}')
        a('s_waitcnt lgkmcnt(0)')
        a(f'v_readfirstlane_b32 s{S_KSC}, v{T+2}')
        a(f'v_readfirstlane_b32 s{S_KSC+1}, v{T+3}')
        a('s_barrier')

    def kgen_b2(self):
        a = self.a; o = self.o
        T = V_P
        LL = 56
        for i in range(12):
            a(f'v_lshlrev_b32 v{T}, 3, v{V_TID}')
            a(f'v_add_u32 v{T}, {i - 4 + 0}, v{T}') if i >= 4 else a(f'v_subrev_u32 v{T}, {4 - i}, v{T}')
            a(f'v_max_i32 v{T}, 0, v{T}')
            a(f'v_cvt_f32_u32 v{T}, v{T}')
            self.rbf(T, T)
            a(f'v_cvt_u32_f32 v{T}, v{T}')
            a(f'v_lshlrev_b32 v{LL+i}, 1, v{T}')
            a(f'v_add_u32 v{LL+i}, {self.KG_D}, v{LL+i}')
        GT = 72
        for ch in range(2):
            for i in range(12):
                a(f'ds_read_u16 v{GT + 12*ch + i}, v{LL+i} offset:{ch * 4112}')
        a('s_waitcnt lgkmcnt(0)')
        for ch in range(2):
            for i in range(6):
                a(f'v_lshl_or_b32 v{V_K + 6*ch + i}, v{GT + 12*ch + 2*i + 1}, 16, v{GT + 12*ch + 2*i}')
        a(f'v_cmp_eq_u32 vcc, 0, v{V_TID}')
        for ch in range(2):
            for i in range(2):
                a(f'v_cndmask_b32 v{V_K+6*ch+i}, v{V_K+6*ch+i}, 0, vcc') if False else a(f'v_cndmask_b32 v{V_K+6*ch+i}, v{V_K+6*ch+i}, v{self.zero_reg()}, vcc')
        if o.dump == 'kgen': self.dump(V_K, 12, 0)

    def zero_reg(self):
        self.a(f'v_mov_b32 v119, 0')
        return 119

    CV_KC = LDS_KC
    CV_U = 512
    CV_X1 = 9728
    CV_EX = 17920
    def k_copies(self):
        a = self.a
        a.c('K shifted copies -> LDS')
        T = V_P
        AD = T
        a(f'v_lshlrev_b32 v{AD}, 4, v{V_TID}')
        a(f'v_add_u32 v{AD}, {self.CV_KC + 32}, v{AD}')
        W = 56
        for ch in range(2):
            d = V_K + 6 * ch
            base = ch * 16640
            a(f'ds_write_b128 v{AD}, v[{d+2}:{d+5}] offset:{base}')
            for i in range(4): a(f'v_mov_b32 v{W+i}, v{d+1+i}')
            a(f'ds_write_b128 v{AD}, v[{W}:{W+3}] offset:{base + 2*4160}')
            for i in range(5): a(f'v_alignbit_b32 v{W+4+i}, v{d+i+1}, v{d+i}, 16')
            a(f'ds_write_b128 v{AD}, v[{W+4}:{W+7}] offset:{base + 3*4160}')
            for i in range(4): a(f'v_mov_b32 v{W+10+i}, v{W+5+i}')
            a(f'ds_write_b128 v{AD}, v[{W+10}:{W+13}] offset:{base + 1*4160}')
        for i in range(4): a(f'v_mov_b32 v{W+i}, 0')
        a(f'v_lshrrev_b32 v{T+1}, 1, v{V_TID}')
        a(f'v_mul_u32_u24 v{T+1}, 4160, v{T+1}')
        a(f'v_and_b32 v{T+2}, 1, v{V_TID}')
        a(f'v_lshl_add_u32 v{T+1}, v{T+2}, 4, v{T+1}')
        a(f'v_add_u32 v{T+1}, {self.CV_KC}, v{T+1}')
        a(f'v_cmp_gt_u32 vcc, 16, v{V_TID}')
        a(f's_and_saveexec_b64 s[{S_T0+2}:{S_T0+3}], vcc')
        a(f'ds_write_b128 v{T+1}, v[{W}:{W+3}]')
        a(f's_mov_b64 exec, s[{S_T0+2}:{S_T0+3}]')

    def u_pad_zero(self):
        a = self.a
        T, W = V_P, 56
        for i in range(4): a(f'v_mov_b32 v{W+i}, 0')
        a(f'v_lshrrev_b32 v{T+1}, 5, v{V_TID}')
        a(f'v_mul_u32_u24 v{T+1}, 4608, v{T+1}')
        a(f'v_and_b32 v{T+2}, 31, v{V_TID}')
        a(f'v_lshl_add_u32 v{T+1}, v{T+2}, 4, v{T+1}')
        a(f'v_add_u32 v{T+1}, {self.CV_U}, v{T+1}')
        l = self.lab('up')
        a(f's_cmp_lg_u32 s{S_W}, 0')
        a(f's_cbranch_scc1 {l}')
        a(f'ds_write_b128 v{T+1}, v[{W}:{W+3}]')
        a.label(l)

    def conv(self, L):
        a = self.a; o = self.o
        a.c(f'================ conv layer {L} ================')
        if L == 0:
            self.kgen_b2()
            self.k_copies()
        self.u_pad_zero()
        T = V_P
        XR, SM, SQ = 48, 56, 64
        GA = 112
        a(f's_lshl_b32 s{S_T0}, s{S_C0}, 12')
        a(f's_add_u32 s{S_T0}, s{S_T0}, {WS_X1T + L * 0x200000}')
        a(f'v_lshlrev_b32 v{GA}, 4, v{V_TID}')
        a(f'v_add_u32 v{GA}, s{S_T0}, v{GA}')
        a(f'v_add_u32 v{GA+1}, 4096, v{GA}')
        a(f'v_lshlrev_b32 v{GA+2}, 5, v{V_TID}')
        a(f'v_add_u32 v{GA+2}, {WS_STATS + L * 0x4000}, v{GA+2}')
        a(f'v_add_u32 v{GA+3}, 8192, v{GA+2}')
        AA, BA = 24, 25
        a(f'v_bfe_u32 v{T+2}, v{V_LANE}, 2, 2')
        a(f'v_mul_u32_u24 v{AA}, 4160, v{T+2}')
        a(f'v_lshrrev_b32 v{T+2}, 4, v{V_LANE}')
        a(f'v_lshlrev_b32 v{T+3}, 4, v{T+2}')
        a(f'v_sub_u32 v{AA}, v{AA}, v{T+3}')
        a(f'v_and_b32 v{T+4}, 3, v{V_LANE}')
        a(f'v_lshl_add_u32 v{AA}, v{T+4}, 3, v{AA}')
        a(f's_mul_i32 s{S_T0}, s{S_HSEL}, 16640')
        a(f's_lshl_b32 s{S_T0+1}, s{S_RHALF}, 8')
        a(f's_add_u32 s{S_T0}, s{S_T0}, s{S_T0+1}')
        a(f's_add_u32 s{S_T0}, s{S_T0}, {self.CV_KC + 32}')
        a(f'v_add_u32 v{AA}, s{S_T0}, v{AA}')
        a(f'v_and_b32 v{BA}, 15, v{V_LANE}')
        a(f'v_lshlrev_b32 v{BA}, 5, v{BA}')
        a(f'v_add_u32 v{BA}, v{BA}, v{T+3}')
        a(f's_mul_i32 s{S_T0}, s{S_HSEL}, 4608')
        a(f's_add_u32 s{S_T0}, s{S_T0}, {self.CV_U}')
        a(f's_lshl_b32 s{S_T0+1}, s{S_RHALF}, 8')
        a(f's_sub_u32 s{S_T0}, s{S_T0}, s{S_T0+1}')
        a(f'v_add_u32 v{BA}, s{S_T0}, v{BA}')
        K5, EP = 72, 74
        a(f'v_mov_b32 v{K5}, 0x3b000000'); a(f'v_mov_b32 v{K5+1}, 0x3b000000')
        a(f'v_mov_b32 v{EP}, 0x3727c5ac'); a(f'v_mov_b32 v{EP+1}, 0x3727c5ac')
        a('s_waitcnt lgkmcnt(0)')
        self.wait(4 * L + 2, None, 256, slp0=(0 if L == 0 else o.slp0))
        self.stamp(11 + 16 * L)
        a(f'global_load_dwordx4 v[{SM}:{SM+3}], v{GA+2}, {WSB} sc1')
        a(f'global_load_dwordx4 v[{SQ}:{SQ+3}], v{GA+3}, {WSB} sc1')
        a(f'global_load_dwordx4 v[{SM+4}:{SM+7}], v{GA+2}, {WSB} offset:16 sc1')
        a(f'global_load_dwordx4 v[{SQ+4}:{SQ+7}], v{GA+3}, {WSB} offset:16 sc1')
        a(f'global_load_dwordx4 v[{XR}:{XR+3}], v{GA}, {WSB} sc1')
        a(f'global_load_dwordx4 v[{XR+4}:{XR+7}], v{GA+1}, {WSB} sc1')
        if L == 0:
            l = self.lab('nonce')
            a(f's_add_u32 s{S_T0}, s{S_WG}, s{S_W}')
            a(f's_cmp_lg_u32 s{S_T0}, 0')
            a(f's_cbranch_scc1 {l}')
            a(f'v_mov_b32 v126, {WS_NONCE}')
            a(f'v_mov_b32 v127, s{S_NONCE}')
            a('s_mov_b64 exec, 1')
            a(f'global_store_dword v126, v127, {WSB} sc1')
            a('s_mov_b64 exec, -1')
            a.label(l)
        def rb2(r, u):
            a = self.a
            a(f'v_cvt_pk_bf16_f32 v{u}, v{r}, v{r+1}')
            a(f'v_lshlrev_b32 v{r}, 16, v{u}')
            a(f'v_and_b32 v{r+1}, 0xffff0000, v{u}')
        def fin(p, u):
            a = self.a
            m, q = SM + p, SQ + p
            a(f'v_pk_mul_f32 v[{m}:{m+1}], v[{m}:{m+1}], v[{K5}:{K5+1}]')
            a(f'v_pk_mul_f32 v[{q}:{q+1}], v[{q}:{q+1}], v[{K5}:{K5+1}]')
            a(f'v_pk_fma_f32 v[{q}:{q+1}], v[{m}:{m+1}], v[{m}:{m+1}], v[{q}:{q+1}] neg_lo:[1,0,0] neg_hi:[1,0,0]')
            a(f'v_max_f32 v{q}, 0, v{q}'); a(f'v_max_f32 v{q+1}, 0, v{q+1}')
            rb2(m, u); rb2(q, u)
            a(f'v_pk_add_f32 v[{q}:{q+1}], v[{q}:{q+1}], v[{EP}:{EP+1}]')
            rb2(q, u)
            a(f'v_sqrt_f32 v{q}, v{q}'); a(f'v_sqrt_f32 v{q+1}, v{q+1}')
            rb2(q, u)
            a(f'v_rcp_f32 v{q}, v{q}'); a(f'v_rcp_f32 v{q+1}, v{q+1}')
        a('s_waitcnt vmcnt(4)') if L == 1 else a('s_waitcnt vmcnt(4)')
        self.merge(self.cap(lambda: fin(0, 76)), self.cap(lambda: fin(2, 77)))
        a('s_waitcnt vmcnt(2)') if L == 1 else a('s_waitcnt vmcnt(0)')
        self.merge(self.cap(lambda: fin(4, 76)), self.cap(lambda: fin(6, 77)))
        a('s_waitcnt vmcnt(0)')
        UO, E = 80, 88
        def elem(ch, p, e, u):
            a = self.a
            x = XR + 4 * ch + p
            m, q = SM + 2 * p, SQ + 2 * p
            a(f'v_lshlrev_b32 v{e}, 16, v{x}')
            a(f'v_and_b32 v{e+1}, 0xffff0000, v{x}')
            a(f'v_pk_add_f32 v[{e}:{e+1}], v[{e}:{e+1}], v[{m}:{m+1}] neg_lo:[0,1] neg_hi:[0,1]')
            if not o.trim: rb2(e, u)
            a(f'v_pk_mul_f32 v[{e}:{e+1}], v[{e}:{e+1}], v[{q}:{q+1}]')
            if not o.trim: rb2(e, u)
            if o.trim:
                a(f'v_cvt_f16_f32 v{e}, v{e}')
                a(f'v_cvt_f16_f32 v{e+1}, v{e+1}')
                a(f'v_lshl_or_b32 v{UO+4*ch+p}, v{e+1}, 16, v{e}')
            else:
                a(f'v_cvt_pkrtz_f16_f32 v{UO+4*ch+p}, v{e}, v{e+1}')
        a(f'v_lshlrev_b32 v{GA}, 4, v{V_TID}')
        for ch in range(2):
            a(f'ds_write_b128 v{GA}, v[{XR+4*ch}:{XR+4*ch+3}] offset:{self.CV_X1 + ch*4096}')
        for ch in range(2):
            for p in range(0, 4, 2):
                self.merge(self.cap(lambda: elem(ch, p, E, 76)), self.cap(lambda: elem(ch, p + 1, E + 2, 77)))
            a(f'ds_write_b128 v{GA}, v[{UO+4*ch}:{UO+4*ch+3}] offset:{self.CV_U + ch*4608 + 512}')
        a('s_waitcnt lgkmcnt(0)')
        a('s_barrier')
        self.stamp(12 + 16 * L)
        ACC, BF, AF = 48, 80, [12, 16, 20]
        self.lg = []
        def readB(ee, m):
            e = 1 + 2 * ee
            d = BF + 4 * m
            self.lg_op(f'ds_read_b128 v[{d}:{d+3}], v{BA} offset:{512 + 512*m - 32*e}', f'B{ee}_{m}')
        def readA(idx):
            ee, g = seq[idx]
            e = 1 + 2 * ee
            sl = AF[idx % 3]
            for x in range(2):
                self.lg_op(f'ds_read_b64_tr_b16 v[{sl+2*x}:{sl+2*x+1}], v{AA} offset:{32*e + 512*g - 8*x}', f'A{idx}')
        seq = [(ee, g) for ee in range(4) for g in range(8)]
        readA(0)
        for m in range(7, -1, -1): readB(0, m)
        readA(1)
        first = set()
        for idx, (ee, g) in enumerate(seq):
            if idx + 2 < len(seq): readA(idx + 2)
            self.wait_lg(f'A{idx}')
            sl = AF[idx % 3]
            for n in range(7, g - 1, -1):
                m = n - g
                if g == 0: self.wait_lg(f'B{ee}_{m}')
                acc = ACC + 4 * n
                c = f'v[{acc}:{acc+3}]' if n in first else '0'
                first.add(n)
                a(f'v_mfma_f32_16x16x32_f16 v[{acc}:{acc+3}], v[{sl}:{sl+3}], v[{BF+4*m}:{BF+4*m+3}], {c}')
                if n == 7 and ee + 1 < 4: readB(ee + 1, m)
        self.stamp(13 + 16 * L)
        T = 12
        a(f'v_lshlrev_b32 v{T}, 4, v{V_LANE}')
        a(f's_lshl_b32 s{S_T0}, s{S_W}, 13')
        a(f's_add_u32 s{S_T0}, s{S_T0}, {self.CV_EX}')
        a(f'v_add_u32 v{T+1}, s{S_T0}, v{T}')
        for n in range(7, -1, -1):
            a(f'ds_write_b128 v{T+1}, v[{ACC+4*n}:{ACC+4*n+3}] offset:{n*1024}')
        a(f's_lshl_b32 s{S_T0}, s{S_W}, 11')
        a(f's_add_u32 s{S_T0}, s{S_T0}, {self.CV_EX}')
        a(f'v_add_u32 v{T+1}, s{S_T0}, v{T}')
        a(f'v_and_b32 v{T+2}, 15, v{V_LANE}')
        a(f'v_lshlrev_b32 v{T+2}, 4, v{T+2}')
        a(f'v_lshrrev_b32 v{T+3}, 4, v{V_LANE}')
        a(f'v_lshl_add_u32 v{T+2}, v{T+3}, 2, v{T+2}')
        a(f's_lshl_b32 s{S_T0}, s{S_W}, 9')
        a(f'v_add_u32 v{T+2}, s{S_T0}, v{T+2}')
        a(f'v_lshlrev_b32 v{T+3}, 1, v{T+2}')
        XX, UU = 80, 88
        for nn in range(2):
            for ch in range(2):
                a(f'ds_read_b64 v[{XX+4*nn+2*ch}:{XX+4*nn+2*ch+1}], v{T+3} offset:{self.CV_X1 + ch*4096 + nn*512}')
                a(f'ds_read_b64 v[{UU+4*nn+2*ch}:{UU+4*nn+2*ch+1}], v{T+3} offset:{self.CV_U + ch*4608 + 512 + nn*512}')
        a(f's_lshl_b32 s{S_T0}, s{S_DSKV}, 16')
        a(f's_and_b32 s{S_T0+1}, s{S_DSKV}, 0xffff0000')
        if L == 0:
            a(f's_lshl_b32 s{S_T0+2}, s{S_C0}, 12')
            a(f's_add_u32 s{S_T0+2}, s{S_T0+2}, {WS_X2T}')
            a(f'v_add_u32 v{T+4}, s{S_T0+2}, v{T+3}')
            a(f'v_add_u32 v{T+5}, 4096, v{T+4}')
        else:
            a(f's_lshl_b32 s{S_T0+2}, s{S_C0}, 1')
            a(f'v_lshlrev_b32 v{T+4}, 10, v{T+2}')
            a(f'v_add_u32 v{T+4}, s{S_T0+2}, v{T+4}')
        a('s_waitcnt lgkmcnt(0)')
        a('s_barrier')
        Y = 48
        for nn in range(2):
            for ch in range(2):
                for eh in range(2):
                    a(f'ds_read_b128 v[{Y+16*nn+8*ch+4*eh}:{Y+16*nn+8*ch+4*eh+3}], v{T+1} offset:{(ch + 2*eh) * 8192 + nn * 1024}')
        R = 96
        def pre(nn, ch, h, e):
            a = self.a
            res = R + 8*nn + 4*ch + 2*h
            xr, ur = XX + 4*nn + 2*ch + h, UU + 4*nn + 2*ch + h
            a(f'v_cvt_f32_f16 v{e}, v{ur}')
            a(f'v_cvt_f32_f16_sdwa v{e+1}, v{ur} dst_sel:DWORD dst_unused:UNUSED_PAD src0_sel:WORD_1')
            a(f'v_lshlrev_b32 v{res}, 16, v{xr}')
            a(f'v_and_b32 v{res+1}, 0xffff0000, v{xr}')
            a(f'v_fmac_f32 v{res}, s{S_T0+ch}, v{e}')
            a(f'v_fmac_f32 v{res+1}, s{S_T0+ch}, v{e+1}')
        for nn in range(2):
            for ch in range(2):
                self.merge(self.cap(lambda: pre(nn, ch, 0, 112)), self.cap(lambda: pre(nn, ch, 1, 114)))
        E = 116
        for nn in range(2):
            a(f's_waitcnt lgkmcnt({4 - 4*nn})')
            for ch in range(2):
                y0, y1 = Y + 16*nn + 8*ch, Y + 16*nn + 8*ch + 4
                res = R + 8*nn + 4*ch
                for h in range(2):
                    a(f'v_pk_add_f32 v[{y0+2*h}:{y0+2*h+1}], v[{y0+2*h}:{y0+2*h+1}], v[{y1+2*h}:{y1+2*h+1}]')
                for i in range(4):
                    a(f'v_fmac_f32 v{res+i}, s{S_KSC+ch}, v{y0+i}')
                if L == 0:
                    e = E + 2 * (ch & 1)
                    a(f'v_cvt_pk_bf16_f32 v{e}, v{res}, v{res+1}')
                    a(f'v_cvt_pk_bf16_f32 v{e+1}, v{res+2}, v{res+3}')
                    a(f'global_store_dwordx2 v{T+4+ch}, v[{e}:{e+1}], {WSB} offset:{nn*512} sc1')
            if L == 1:
                for r in range(4):
                    a(f'v_cvt_pk_bf16_f32 v{E+(r&3)}, v{R+8*nn+r}, v{R+8*nn+4+r}')
                    a(f'v_add_u32 v{T+6+(r&1)}, {(256*nn + r) * 1024}, v{T+4}')
                    a(f'global_store_dword v{T+6+(r&1)}, v{E+(r&3)}, s[{S_OUT}:{S_OUT+1}]')
        if L == 0: self.signal_wg(4 * L + 3, S_WG)
        self.stamp(14 + 16 * L)

    def kvt_zero(self, T):
        a = self.a
        for i in range(4): a(f'v_mov_b32 v{T+4+i}, 0')
        a(f'v_lshlrev_b32 v{T}, 4, v{V_TID}')
        a(f'v_add_u32 v{T}, {SC_KVT}, v{T}')
        a(f'ds_write_b128 v{T}, v[{T+4}:{T+7}]')
        a(f'ds_write_b128 v{T}, v[{T+4}:{T+7}] offset:4096')
        l = self.lab('kz')
        a(f's_cmp_gt_u32 s{S_W}, 1')
        a(f's_cbranch_scc1 {l}')
        a(f'ds_write_b128 v{T}, v[{T+4}:{T+7}] offset:8192')
        a.label(l)

    def stats_zero(self, T):
        a = self.a
        a(f'v_bfe_u32 v{T}, v{V_LANE}, 2, 1')
        a(f'v_lshlrev_b32 v{T}, 14, v{T}')
        a(f'v_bfe_u32 v{T+1}, v{V_LANE}, 1, 1')
        a(f'v_lshl_add_u32 v{T}, v{T+1}, 13, v{T}')
        a(f'v_and_b32 v{T+1}, 1, v{V_LANE}')
        a(f'v_lshl_add_u32 v{T}, v{T+1}, 2, v{T}')
        a(f's_lshl_b32 s{S_T0}, s{S_RB}, 8')
        a(f's_lshl_b32 s{S_T0+1}, s{S_HSEL}, 7')
        a(f's_add_u32 s{S_T0}, s{S_T0}, s{S_T0+1}')
        a(f's_lshl_b32 s{S_T0+1}, s{S_HB}, 4')
        a(f's_add_u32 s{S_T0}, s{S_T0}, s{S_T0+1}')
        a(f's_lshl_b32 s{S_T0+1}, s{S_RHALF}, 3')
        a(f's_add_u32 s{S_T0}, s{S_T0}, s{S_T0+1}')
        a(f's_add_u32 s{S_T0}, s{S_T0}, {WS_STATS}')
        a(f'v_add_u32 v{T}, s{S_T0}, v{T}')
        a(f'v_mov_b32 v{T+1}, 0')
        a('s_mov_b64 exec, 0xff')
        a(f'global_store_dword v{T}, v{T+1}, {WSB} sc1')
        a('s_mov_b64 exec, -1')

    def build(self):
        a = self.a; o = self.o
        self.trk_reset()
        self.prologue()
        stop = o.stop
        def chk(name):
            if stop == name:
                a('s_waitcnt vmcnt(0) lgkmcnt(0)')
                a('s_branch L_end')
                return True
            return False
        WB = 148
        KVA, QA = 44, 47
        self.w_dma_setup(WB)
        if o.rot: self.rot_setup()
        self.XD = 152
        self.x_dma_setup(0, self.XD)
        self.prologue2()
        self.stamp(0)
        self.vm = []
        self.kgen_loads(); self.vm += ['kg'] * 7
        self.x_slice_prefetch(0); self.vm.append('pf')
        self.w_dma(1, 0, WB, 'kva')
        for i in range(4): self.w_dma_one(2, 0, i, WB, 'kva')
        if o.pt:
            sh = o.pt
            a(f'v_lshlrev_b32 v122, {sh}, v{V_TID}')
            a(f'v_min_u32 v122, {0x1000000 - 4}, v122')
            a(f'v_cmp_gt_u32 vcc, {min((0x1000000 >> sh), 256)}, v{V_TID}')
            a(f's_and_saveexec_b64 s[{S_T0+2}:{S_T0+3}], vcc')
            l = self.lab('pt')
            a(f's_cbranch_execz {l}')
            a(f'global_load_dword a250, v122, {WSB}')
            a.label(l)
            a(f's_mov_b64 exec, s[{S_T0+2}:{S_T0+3}]')
            a(f'v_mov_b32 v122, 0')
            a(f's_mov_b64 exec, 1')
            a(f'global_load_dword a249, v122, s[{S_OUT}:{S_OUT+1}]')
            a(f'global_load_dword a248, v122, s[{S_WO}:{S_WO+1}]')
            a(f's_mov_b64 exec, -1')
        self.stats_zero(54); self.vm.append('sz')
        a('s_waitcnt lgkmcnt(0)')
        a(f's_add_u32 s{S_NONCE}, s{S_NONCE}, 0x9e3779b9')
        a(f's_getreg_b32 s{S_XCC}, hwreg(HW_REG_XCC_ID)')
        a(f's_and_b32 s{S_XCC}, s{S_XCC}, 15')
        a(f's_lshl_b32 s{S_T0}, s{S_RB}, 6')
        a(f's_lshl_b32 s{S_T0+1}, s{S_HB}, 3')
        a(f's_add_u32 s{S_T0}, s{S_T0}, s{S_T0+1}')
        a(f's_add_u32 s{S_T0}, s{S_T0}, {WS_XT}')
        a(f'v_mov_b32 v54, s{S_T0}')
        a(f'v_mov_b32 v126, s{S_XCC}')
        a(f'v_mov_b32 v127, s{S_NONCE}')
        a('s_mov_b64 exec, 1')
        self.vm_op(f'global_store_dwordx2 v54, v[126:127], {WSB} sc1', 'xt')
        a('s_mov_b64 exec, -1')
        self.wait_vm('kg')
        def rest():
            for i in range(4, 8): self.w_dma_one(2, 0, i, WB, 'kva')
            for c in range(4):
                for i in range(2): self.dma_x(0, c, i)
            self.w_dma(1, 1, WB, 'kvb')
            for c in range(4, 8):
                for i in range(2): self.dma_x(0, c, i)
        s_dma = self.cap(rest)
        def other():
            self.wfrag_addr(KVA, QA, 56)
            self.cs_sel(self.SELR)
            self.bfrag_setup(0, self.XB)
            self.st_setup(0)
            self.kv_addr_setup(0)
            self.kgen_a()
        s_kg = self.cap(other)
        grp, cur = [], []
        for l in s_dma:
            cur.append(l)
            if 'global_load_lds' in l: grp.append(cur); cur = []
        per = (len(s_kg) + len(grp) - 1) // len(grp)
        for i, t3 in enumerate(grp):
            a.lines += t3
            a.lines += s_kg[i * per:(i + 1) * per]
        self.wphi_load(156); self.vm += ['wphi'] * 16
        self.stamp(16)
        CSKV = 28
        for L in range(2):
            self.lg = []
            if L == 0:
                self.kv_pass0(WB, KVA, QA, self.SELR, CSKV)
            else:
                self.XD = 28
                self.x_dma_setup(1, self.XD)
                self.bfrag_setup(1, self.XB)
                self.st_setup(1)
                self.wait(3, None, 256, slp0=o.slp0)
                self.stamp(15)
                self.vm = []
                self.x_slice_prefetch(1); self.vm.append('pf')
                for c in range(4):
                    for i in range(2): self.dma_x(1, c, i)
                self.kv_addr_setup(1)
                self.kv_pass1()
            self.kv_epilogue(L, cs_kv_reg=CSKV)
            self.q_pass(L)
            if chk(f'p1_{L}'): break
            self.o_stage(L)
            if chk(f'o_{L}'): break
            self.p2b(L)
            if chk(f'p2b_{L}'): break
            self.conv(L)
            if chk(f'conv_{L}'): break
        a.label('L_end')
        a('s_endpgm')

HEADER = open('cdna_kernels/' + KNAME + '.s.ref').read().split('; Override launch geometry')[0]

def main():
    ap = argparse.ArgumentParser()
    ap.add_argument('--out', default='cdna_kernels/' + KNAME + '.s')
    ap.add_argument('--stop', default='')
    ap.add_argument('--dump', default='')
    ap.add_argument('--stamps', action='store_true')
    ap.add_argument('--spin', type=int, default=40000)
    ap.add_argument('--pt', type=int, default=0)
    ap.add_argument('--fast2', action='store_true')
    ap.add_argument('--wpf', action='store_true')
    ap.add_argument('--pmode', type=int, default=0)
    ap.add_argument('--trim', action='store_true')
    ap.add_argument('--rot', action='store_true')
    ap.add_argument('--fsh', type=int, default=6)
    ap.add_argument('--slp', type=int, default=0)
    ap.add_argument('--slp0', type=int, default=0)
    ap.add_argument('--slph', type=int, default=0)
    o = ap.parse_args()
    g = Gen(o)
    g.build()
    g.a.lines = to_buffer(g.a.lines, WSB, f's[{S_WSRD}:{S_WSRD+3}]')
    g.a.lines = to_buffer(g.a.lines, f's[{S_OUT}:{S_OUT+1}]', f's[{S_OSRD}:{S_OSRD+3}]')
    body = g.a.text()
    txt = HEADER
    txt += '; Persistent fused kernel: 256 workgroups (one per CU), generated by gen/gen2.py\n'
    txt += '; @launch grid=(256,1,1) block=(256,1,1) lds=163840\n'
    txt += '.amdgcn_target "amdgcn-amd-amdhsa--gfx950"\n.text\n'
    txt += f'.globl {KNAME}_kernel\n.p2align 8\n.type {KNAME}_kernel,@function\n{KNAME}_kernel:\n'
    txt += body
    txt += f'''.section .rodata,"a"
.p2align 6
.amdhsa_kernel {KNAME}_kernel
  .amdhsa_next_free_vgpr 512
  .amdhsa_next_free_sgpr 100
  .amdhsa_accum_offset 256
  .amdhsa_group_segment_fixed_size 0
  .amdhsa_kernarg_size 112
  .amdhsa_user_sgpr_count 2
  .amdhsa_user_sgpr_kernarg_segment_ptr 1
  .amdhsa_system_sgpr_workgroup_id_x 1
  .amdhsa_float_denorm_mode_32 3
.end_amdhsa_kernel
'''
    open(o.out, 'w').write(txt)
    print('wrote', o.out, len(txt), 'bytes;', body.count('\n'), 'lines')

if __name__ == '__main__':
    main()
```

```python
import sys, argparse, struct
sys.path.insert(0, 'gen')
from asmlib import Asm, to_buffer

KNAME = 'interleave_layers__linear_kernel_hedgehog__ssm_conv_s4d__prompt'

WS_NONCE = 0
WS_FLAGS = 0x80000
WS_STATS = 0x40000
WS_KVR   = 0x50000
WS_ST4   = 0x580000
WS_X1G   = (0xA00000, 0x1000000)
WS_XT    = 0x78000
WS_KVP   = 0x100000
KVP_L    = 0x240000
KVB      = 9216
WS_O     = 0x600000
WS_X1T   = 0xA00000
WS_X2T   = 0xE00000
WS_DBG   = 0x2000000

LDS_WK, LDS_WV, LDS_WQ = 65536, 98304, 131072
SC_PHI   = 65536
PHI_W    = 4352
SC_V     = SC_PHI + 4 * PHI_W
SC_ST    = SC_V + 8192
SC_RED   = SC_ST + 1024
SC_KVT   = SC_RED + 2048
KVT_ROW  = 80
KVT_HEAD = 32 * KVT_ROW
SC_CS    = SC_KVT + 4 * KVT_HEAD
SC_END   = SC_CS + 768
LDS_KC   = 106496
assert SC_END <= LDS_KC, SC_END
LDS_FREE = LDS_KC + 33280

S_X, S_WQKV, S_WPHI, S_WO = 4, 6, 8, 10
S_LOGA, S_AIM, S_CRE, S_CIM = 12, 14, 16, 18
S_LOGDT, S_DSK, S_OUT, S_WS, S_DBG = 20, 22, 24, 26, 28
S_W, S_XCD, S_JL, S_RB, S_HB, S_T, S_CB, S_C0, S_NONCE = 30, 31, 32, 33, 34, 35, 36, 37, 38
S_W1024, S_HSEL, S_RHALF, S_WG = 39, 40, 41, 42
S_T0 = 44
S_KSC = 64
S_DSKV = 66
S_SLOT1 = 67
S_FAST = 68
S_XCC = 69
S_WSRD = 88
S_OSRD = 92
S_ROT = 70

V_TID, V_LANE, V_HH, V_J = 0, 1, 2, 3
V_WPHI = 4
V_RESID = 12
V_PHIQ = 20
V_K = 36
V_P = 48
LOG2E = 0x3fb8aa3b
WSB = f's[{S_WS}:{S_WS+1}]'

def f2h(x): return hex(struct.unpack('<I', struct.pack('<f', float(x)))[0])

class Gen:
    def __init__(self, opts):
        self.a = Asm(); self.o = opts; self.uid = 0
    def lab(self, s):
        self.uid += 1
        return f'L_{s}_{self.uid}'
    def cap(self, fn):
        old = self.a; self.a = Asm(); fn(); lines = self.a.lines; self.a = old
        return lines
    def merge(self, *streams):
        n = max(len(s) for s in streams)
        pos = [0] * len(streams)
        for i in range(n):
            for k, s in enumerate(streams):
                want = (i + 1) * len(s) // n
                while pos[k] < want:
                    self.a.lines.append(s[pos[k]]); pos[k] += 1

    def dump(self, reg, n, slot, tmp=126):
        a = self.a
        a(f's_lshl_b32 s60, s{S_WG}, 10')
        a(f'v_lshlrev_b32 v{tmp}, 2, v{V_TID}')
        a(f'v_add_u32 v{tmp}, s60, v{tmp}')
        for i in range(n):
            a(f'v_add_u32 v{tmp+1}, {WS_DBG + (slot + i) * 256 * 256 * 4}, v{tmp}')
            a(f'global_store_dword v{tmp+1}, v{reg+i}, {WSB}')
        a('s_waitcnt vmcnt(0)')

    def stamp(self, idx):
        if self.o.lite and idx not in (0, 30): return
        if not (self.o.stamps or self.o.lite): return
        a = self.a
        a('s_memrealtime s[60:61]')
        a('s_memtime s[58:59]')
        a('s_waitcnt lgkmcnt(0)')
        a('v_mov_b32 v124, s60'); a('v_mov_b32 v125, s61'); a('v_mov_b32 v126, s58'); a('v_mov_b32 v127, s59')
        a(f's_lshl_b32 s62, s{S_WG}, 12')
        a(f's_lshl_b32 s63, s{S_W}, 10')
        a('s_add_u32 s62, s62, s63')
        a(f's_add_u32 s62, s62, {WS_DBG + 0x4000000 + idx * 16}')
        a('v_mov_b32 v123, s62')
        a('s_mov_b64 s[56:57], exec')
        a('s_mov_b64 exec, 1')
        a(f'global_store_dwordx4 v123, v[124:127], {WSB}')
        a('s_mov_b64 exec, s[56:57]')
        self.nstamp_vm = 1

    def dbgval(self, idx, sgpr):
        if not self.o.stamps: return
        a = self.a
        a(f'v_mov_b32 v124, s{sgpr}'); a('v_mov_b32 v125, 0'); a('v_mov_b32 v126, 0'); a('v_mov_b32 v127, 0')
        a(f's_lshl_b32 s62, s{S_WG}, 12')
        a(f's_lshl_b32 s63, s{S_W}, 10')
        a('s_add_u32 s62, s62, s63')
        a(f's_add_u32 s62, s62, {WS_DBG + 0x4000000 + idx * 16}')
        a('v_mov_b32 v123, s62')
        a('s_mov_b64 s[56:57], exec')
        a('s_mov_b64 exec, 1')
        a(f'global_store_dwordx4 v123, v[124:127], {WSB}')
        a('s_mov_b64 exec, s[56:57]')

    def prologue(self):
        a = self.a
        a('s_cmp_ge_u32 s2, 256')
        a('s_cbranch_scc1 L_end')
        a('s_load_dwordx8 s[4:11], s[0:1], 0')
        a('s_load_dwordx2 s[26:27], s[0:1], 104')
        a('s_load_dwordx8 s[12:19], s[0:1], 40')
        a('s_load_dwordx4 s[20:23], s[0:1], 72')
        a('s_load_dwordx2 s[24:25], s[0:1], 88')
        a(f's_mov_b32 s{S_WG}, s2')
        a(f'v_and_b32 v{V_LANE}, 63, v0')
        a('s_getpc_b64 s[56:57]')
        a.label('L_pc')
        a('s_lshr_b32 s58, s2, 3')
        a('s_mul_i32 s58, s58, (L_end-L_pc)/32+128')
        a(f'v_lshlrev_b32 v4, 3, v0')
        a('v_add_u32 v4, s58, v4')
        a('v_min_u32 v4, L_end-L_pc-8, v4')
        a('global_load_dwordx2 a[252:253], v4, s[56:57]')
        a(f'v_lshrrev_b32 v{V_HH}, 6, v0')
        a('s_nop 0')
        a(f'v_readfirstlane_b32 s{S_W}, v{V_HH}')
        a(f'v_lshrrev_b32 v{V_HH}, 5, v{V_LANE}')
        a(f'v_and_b32 v{V_J}, 31, v{V_LANE}')
        a(f's_and_b32 s{S_XCD}, s2, 7')
        a(f's_lshr_b32 s{S_JL}, s2, 3')
        a(f's_and_b32 s{S_T0}, s{S_JL}, 3')
        a(f's_lshl_b32 s{S_RB}, s{S_XCD}, 2')
        a(f's_add_u32 s{S_RB}, s{S_RB}, s{S_T0}')
        a(f's_lshr_b32 s{S_HB}, s{S_JL}, 2')
        a(f's_and_b32 s{S_T0}, s{S_HB}, 1')
        a(f's_lshl_b32 s{S_T}, s{S_RB}, 1')
        a(f's_add_u32 s{S_T}, s{S_T}, s{S_T0}')
        a(f's_lshr_b32 s{S_CB}, s{S_HB}, 1')
        a(f's_lshl_b32 s{S_C0}, s{S_XCD}, 6')
        a(f's_lshl_b32 s{S_T0}, s{S_JL}, 1')
        a(f's_add_u32 s{S_C0}, s{S_C0}, s{S_T0}')
        a(f's_lshl_b32 s{S_W1024}, s{S_W}, 10')
        a(f's_and_b32 s{S_HSEL}, s{S_W}, 1')
        a(f's_lshr_b32 s{S_RHALF}, s{S_W}, 1')
        a(f's_lshl_b32 s{S_SLOT1}, s{S_HB}, 5')
        a(f's_add_u32 s{S_SLOT1}, s{S_SLOT1}, s{S_RB}')
    def prologue2(self):
        a = self.a
        a('s_waitcnt lgkmcnt(0)')
        a(f's_load_dword s{S_NONCE}, {WSB}, {WS_NONCE}')
        a(f's_mov_b32 s{S_WSRD}, s{S_WS}')
        a(f's_and_b32 s{S_WSRD+1}, s{S_WS+1}, 0xffff')
        a(f's_mov_b32 s{S_WSRD+2}, 0x10000000')
        a(f's_mov_b32 s{S_WSRD+3}, 0x20000')
        a(f's_mov_b32 s{S_OSRD}, s{S_OUT}')
        a(f's_and_b32 s{S_OSRD+1}, s{S_OUT+1}, 0xffff')
        a(f's_mov_b32 s{S_OSRD+2}, 0x200000')
        a(f's_mov_b32 s{S_OSRD+3}, 0x20000')

    def x_slice_prefetch(self, L):
        a = self.a
        if L == 0:
            a(f's_lshl_b32 s{S_T0}, s{S_RB}, 16')
            a(f's_lshl_b32 s{S_T0+1}, s{S_HB}, 13')
            a(f's_add_u32 s{S_T0}, s{S_T0}, s{S_T0+1}')
            a(f'v_lshlrev_b32 v123, 5, v{V_TID}')
            a(f'v_add_u32 v123, s{S_T0}, v123')
            a(f'global_load_dword a251, v123, s[{S_X}:{S_X+1}]')
        else:
            a(f'v_lshrrev_b32 v123, 2, v{V_TID}')
            a(f's_lshl_b32 s{S_T0}, s{S_HB}, 6')
            a(f'v_add_u32 v123, s{S_T0}, v123')
            a(f'v_lshlrev_b32 v123, 12, v123')
            a(f'v_and_b32 v122, 3, v{V_TID}')
            a(f'v_lshl_add_u32 v123, v122, 5, v123')
            a(f's_lshl_b32 s{S_T0}, s{S_RB}, 7')
            a(f's_add_u32 s{S_T0}, s{S_T0}, {WS_X2T}')
            a(f'v_add_u32 v123, s{S_T0}, v123')
            a(f'global_load_dword v122, v123, {WSB} sc1')

    def w_dma_setup(self, b):
        a = self.a
        t = b + 2
        a(f'v_lshrrev_b32 v{b}, 3, v{V_LANE}')
        a(f's_lshl_b32 s{S_T0}, s{S_W}, 3')
        a(f'v_add_u32 v{b}, s{S_T0}, v{b}')
        a(f'v_mul_u32_u24 v{b}, 3072, v{b}')
        a(f's_lshl_b32 s{S_T0}, s{S_HB}, 7')
        a(f'v_add_u32 v{b}, s{S_T0}, v{b}')
        a(f'v_bfe_u32 v{t}, v{V_LANE}, 4, 1')
        a(f'v_lshlrev_b32 v{t}, 2, v{t}')
        a(f'v_and_b32 v{t+1}, 7, v{V_LANE}')
        a(f'v_xor_b32 v{t}, v{t}, v{t+1}')
        a(f'v_xor_b32 v{t+1}, 2, v{t}')
        a(f'v_lshl_add_u32 v{b+1}, v{t+1}, 4, v{b}')
        a(f'v_lshl_add_u32 v{b}, v{t}, 4, v{b}')

    def rot_setup(self):
        a = self.a
        a(f's_and_b32 s{S_T0}, s{S_RB}, 3')
        a(f's_lshl_b32 s{S_T0}, s{S_T0}, 1')
        for i in range(8):
            a(f's_add_u32 s{S_T0+1}, s{S_T0}, {i}')
            a(f's_and_b32 s{S_T0+1}, s{S_T0+1}, 7')
            a(f's_mul_i32 s{S_ROT+i}, s{S_T0+1}, {32 * 3072}')
            a(f's_lshl_b32 s{S_T0+1}, s{S_T0+1}, 12')
            a(f's_add_u32 s{S_ROT+8+i}, s{S_T0+1}, s{S_W1024}')
    def w_dma_one(self, p, hf, i, b, tag):
        a = self.a
        dst = {(1, 0): LDS_WK, (2, 0): LDS_WV, (1, 1): LDS_WQ, (2, 1): LDS_WK, (0, 0): LDS_WV, (0, 1): LDS_WQ}[(p, hf)]
        src = b + 1 if p == 2 else b
        if self.o.rot:
            a(f'v_add_u32 v{b+2}, {p * 1024 + 256 * hf * 3072}, v{src}')
            a(f'v_add_u32 v{b+2}, s{S_ROT+i}, v{b+2}')
            a(f's_add_u32 m0, s{S_ROT+8+i}, {dst}')
        else:
            a(f'v_add_u32 v{b+2}, {p * 1024 + (256 * hf + 32 * i) * 3072}, v{src}')
            a(f's_add_u32 m0, s{S_W1024}, {dst + i * 4096}')
        self.vm_op(f'global_load_lds_dwordx4 v{b+2}, s[{S_WQKV}:{S_WQKV+1}]', tag)

    def w_dma(self, p, hf, b, tag):
        for i in range(8): self.w_dma_one(p, hf, i, b, tag)

    def x_dma_setup(self, L, b):
        a = self.a
        t = b + 1
        if L == 0:
            a(f'v_lshrrev_b32 v{b}, 3, v{V_LANE}')
            a(f'v_lshrrev_b32 v{t}, 1, v{b}')
            a(f's_lshl_b32 s{S_T0}, s{S_HSEL}, 2')
            a(f'v_add_u32 v{t}, s{S_T0}, v{t}')
            a(f'v_and_b32 v{t+1}, 7, v{V_LANE}')
            a(f'v_xor_b32 v{t}, v{t}, v{t+1}')
            a(f'v_lshlrev_b32 v{t}, 4, v{t}')
            a(f's_lshl_b32 s{S_T0}, s{S_RB}, 6')
            a(f's_lshl_b32 s{S_T0+1}, s{S_W}, 3')
            a(f's_add_u32 s{S_T0}, s{S_T0}, s{S_T0+1}')
            a(f'v_add_u32 v{b}, s{S_T0}, v{b}')
            a(f'v_lshlrev_b32 v{b}, 10, v{b}')
            a(f'v_add_u32 v{b}, v{b}, v{t}')
        else:
            a(f'v_bfe_u32 v{b}, v{V_LANE}, 2, 2')
            a(f'v_lshl_add_u32 v{b}, v{V_HH}, 2, v{b}')
            a(f's_lshl_b32 s{S_T0}, s{S_W}, 3')
            a(f'v_add_u32 v{b}, s{S_T0}, v{b}')
            a(f'v_lshlrev_b32 v{b}, 12, v{b}')
            a(f'v_bfe_u32 v{t}, v{V_LANE}, 4, 1')
            a(f'v_lshlrev_b32 v{t}, 6, v{t}')
            a(f'v_and_b32 v{t+1}, 3, v{V_LANE}')
            a(f'v_lshlrev_b32 v{t+1}, 4, v{t+1}')
            a(f'v_add3_u32 v{b}, v{b}, v{t}, v{t+1}')
            a(f's_lshl_b32 s{S_T0}, s{S_RB}, 7')
            a(f's_add_u32 s{S_T0}, s{S_T0}, {WS_X2T}')
            a(f'v_add_u32 v{b}, s{S_T0}, v{b}')

    def _unused(self): pass

    def wfrag_addr(self, kv, q, t):
        a = self.a
        a(f'v_bfe_u32 v{t}, v{V_LANE}, 2, 2')
        a(f'v_lshl_add_u32 v{t+1}, v{V_HH}, 3, v{t}')
        a(f'v_lshlrev_b32 v{t+1}, 7, v{t+1}')
        a(f'v_and_b32 v{t+2}, 1, v{V_LANE}')
        a(f'v_lshl_add_u32 v{t+1}, v{t+2}, 3, v{t+1}')
        a(f'v_bfe_u32 v{t}, v{V_LANE}, 3, 1')
        a(f'v_lshlrev_b32 v{t}, 2, v{t}')
        a(f'v_bfe_u32 v{t+2}, v{V_LANE}, 4, 1')
        a(f'v_bfe_u32 v{t+3}, v{V_LANE}, 1, 1')
        a(f's_lshl_b32 s{S_T0}, s{S_W}, 1')
        a(f'v_add_u32 v{kv}, s{S_T0}, v{t+3}')
        a(f'v_lshl_add_u32 v{q}, v{t+2}, 1, v{t}')
        a(f'v_xor_b32 v{kv}, v{kv}, v{q}')
        a(f'v_lshl_add_u32 v{kv}, v{kv}, 4, v{t+1}')
        a(f'v_sub_u32 v{kv+1}, 1, v{t+2}')
        a(f'v_lshlrev_b32 v{kv+1}, 16, v{kv+1}')
        a(f'v_add3_u32 v{kv+1}, v{kv+1}, v{kv}, 0')
        a(f'v_add_u32 v{kv+1}, {LDS_WK}, v{kv+1}')
        a(f'v_lshl_add_u32 v{kv}, v{t+2}, 15, v{kv}')
        a(f'v_add_u32 v{kv}, {LDS_WK}, v{kv}')
        a(f's_lshl_b32 s{S_T0}, s{S_RHALF}, 2')
        a(f'v_lshl_add_u32 v{q}, v{t+2}, 1, v{t+3}')
        a(f'v_add_u32 v{q}, s{S_T0}, v{q}')
        a(f'v_xor_b32 v{q}, v{q}, v{t}')
        a(f'v_lshl_add_u32 v{q}, v{q}, 4, v{t+1}')
        a(f'v_add_u32 v{q}, {LDS_WV}, v{q}')

    def cs_sel(self, r):
        a = self.a
        a(f'v_and_b32 v{r}, 15, v{V_LANE}')
        a(f'v_bfe_u32 v{r+1}, v{V_LANE}, 4, 1')
        a(f'v_cmp_eq_u32 vcc, v{r}, v{r+1}')
        a(f'v_mov_b32 v{r+1}, 0x3f803f80')
        a(f'v_cndmask_b32 v{r}, 0, v{r+1}, vcc')
        for i in range(1, 4): a(f'v_mov_b32 v{r+i}, v{r}')
    def cs_mfma(self, abase, sel, dst):
        a = self.a
        for ks in range(32):
            c = '0' if ks == 0 else f'v[{dst}:{dst+3}]'
            a(f'v_mfma_f32_16x16x32_bf16 v[{dst}:{dst+3}], a[{abase+4*ks}:{abase+4*ks+3}], v[{sel}:{sel+3}], {c}')
    def cs_write(self, src, sgpr_off, const, t):
        a = self.a
        a(f'v_and_b32 v{t}, 15, v{V_LANE}')
        a(f'v_lshlrev_b32 v{t}, 6, v{t}')
        a(f'v_lshrrev_b32 v{t+1}, 4, v{V_LANE}')
        a(f'v_lshl_add_u32 v{t}, v{t+1}, 4, v{t}')
        a(f'v_add_u32 v{t}, {SC_CS + const}, v{t}')
        if sgpr_off is not None: a(f'v_add_u32 v{t}, s{sgpr_off}, v{t}')
        a(f's_mov_b32 exec_lo, 0x00030003')
        a(f's_mov_b32 exec_hi, 0x00030003')
        a(f'ds_write_b128 v{t}, v[{src}:{src+3}]')
        a(f's_mov_b64 exec, -1')
    def cs_read(self, dst, sgpr_off, const, t):
        a = self.a
        a(f'v_lshlrev_b32 v{t}, 4, v{V_HH}')
        a(f'v_add_u32 v{t}, {SC_CS + const}, v{t}')
        if sgpr_off is not None: a(f'v_add_u32 v{t}, s{sgpr_off}, v{t}')
        for g in range(4):
            a(f'ds_read_b128 v[{dst+4*g}:{dst+4*g+3}], v{t} offset:{32*g}')

    WPT = 128
    def wphi_load(self, b):
        a = self.a
        t = b + 1
        a(f'v_lshrrev_b32 v{b}, 3, v{V_J}')
        a(f'v_lshlrev_b32 v{b}, 2, v{b}')
        a(f'v_and_b32 v{t}, 3, v{V_J}')
        a(f'v_add_u32 v{b}, v{b}, v{t}')
        a(f'v_lshlrev_b32 v{b}, 1, v{b}')
        a(f'v_lshl_add_u32 v{b}, v{V_HH}, 7, v{b}')
        a(f's_lshl_b32 s{S_T0}, s{S_HB}, 11')
        a(f's_lshl_b32 s{S_T0+1}, s{S_RHALF}, 10')
        a(f's_add_u32 s{S_T0}, s{S_T0}, s{S_T0+1}')
        a(f'v_add_u32 v{b}, s{S_T0}, v{b}')
        for hd in range(2):
            for jj in range(8):
                d = 8 * (jj >> 2) + (jj & 3)
                a(f'global_load_ushort v{self.WPT + 8*hd + jj}, v{b}, s[{S_WPHI}:{S_WPHI+1}] offset:{hd * 512 + d * 32}')
    def wphi_finish(self, t):
        a = self.a
        for i in range(8):
            a(f'v_lshl_or_b32 v{V_WPHI+i}, v{self.WPT+2*i+1}, 16, v{self.WPT+2*i}')
        a(f'v_bfe_u32 v{t}, v{V_J}, 2, 1')
        a(f'v_mul_u32_u24 v{t}, 0x8000, v{t}')
        a(f'v_lshl_or_b32 v{t}, v{t}, 16, v{t}')
        for i in range(8): a(f'v_xor_b32 v{V_WPHI+i}, v{V_WPHI+i}, v{t}')

    def rbf(self, dst, src):
        a = self.a
        a(f'v_cvt_pk_bf16_f32 v{dst}, v{src}, v{src}')
        a(f'v_lshlrev_b32 v{dst}, 16, v{dst}')
    def ln_finalize(self, S, Q, m, rs, t):
        a = self.a
        a(f'v_mul_f32 v{m}, 0x3b000000, v{S}')
        a(f'v_mul_f32 v{t}, 0x3b000000, v{Q}')
        a(f'v_fma_f32 v{t}, -v{m}, v{m}, v{t}')
        a(f'v_max_f32 v{t}, 0, v{t}')
        a(f'v_cvt_pk_bf16_f32 v{m}, v{m}, v{t}')
        a(f'v_and_b32 v{t}, 0xffff0000, v{m}')
        a(f'v_lshlrev_b32 v{m}, 16, v{m}')
        a(f'v_add_f32 v{t}, 0x3727c5ac, v{t}')
        self.rbf(t, t)
        a(f'v_sqrt_f32 v{t}, v{t}')
        self.rbf(t, t)
        a(f'v_rcp_f32 v{rs}, v{t}')

    def softmax16(self, D, out, t):
        a = self.a
        mx = t
        a(f'v_max3_f32 v{mx}, v{D}, v{D+1}, v{D+2}')
        a(f'v_max3_f32 v{mx+1}, v{D+3}, v{D+4}, v{D+5}')
        a(f'v_max3_f32 v{mx}, v{mx}, v{D+6}, v{D+7}')
        a(f'v_max3_f32 v{mx+1}, v{mx+1}, v{D+8}, v{D+9}')
        a(f'v_max3_f32 v{mx}, v{mx}, v{D+10}, v{D+11}')
        a(f'v_max3_f32 v{mx+1}, v{mx+1}, v{D+12}, v{D+13}')
        a(f'v_max3_f32 v{mx}, v{mx}, v{D+14}, v{D+15}')
        a(f'v_mov_b32 v{t+2}, {hex(LOG2E)}')
        a(f'v_max_f32 v{mx}, v{mx}, v{mx+1}')
        a(f'v_mul_f32 v{mx}, v{t+2}, v{mx}')
        for r in range(0, 16, 2):
            a(f'v_pk_fma_f32 v[{D+r}:{D+r+1}], v[{D+r}:{D+r+1}], v[{t+2}:{t+3}], v[{mx}:{mx+1}] op_sel_hi:[1,0,0] neg_lo:[0,0,1] neg_hi:[0,0,1]')
        for r in range(16): a(f'v_exp_f32 v{D+r}, v{D+r}')
        s = t + 2
        a(f'v_pk_add_f32 v[{s}:{s+1}], v[{D}:{D+1}], v[{D+2}:{D+3}]')
        a(f'v_pk_add_f32 v[{mx}:{mx+1}], v[{D+4}:{D+5}], v[{D+6}:{D+7}]')
        a(f'v_pk_add_f32 v[{s}:{s+1}], v[{s}:{s+1}], v[{D+8}:{D+9}]')
        a(f'v_pk_add_f32 v[{mx}:{mx+1}], v[{mx}:{mx+1}], v[{D+10}:{D+11}]')
        a(f'v_pk_add_f32 v[{s}:{s+1}], v[{s}:{s+1}], v[{D+12}:{D+13}]')
        a(f'v_pk_add_f32 v[{mx}:{mx+1}], v[{mx}:{mx+1}], v[{D+14}:{D+15}]')
        a(f'v_pk_add_f32 v[{s}:{s+1}], v[{s}:{s+1}], v[{mx}:{mx+1}]')
        a(f'v_add_f32 v{s}, v{s}, v{s+1}')
        a(f'v_rcp_f32 v{s}, v{s}')
        for r in range(0, 16, 2):
            a(f'v_pk_mul_f32 v[{D+r}:{D+r+1}], v[{D+r}:{D+r+1}], v[{s}:{s+1}] op_sel_hi:[1,0]')
        for r in range(0, 16, 2):
            a(f'v_cvt_pk_bf16_f32 v{out + r//2}, v{D+r}, v{D+r+1}')

    def ln_apply16(self, A, cs, m, out):
        a = self.a
        for r in range(0, 16, 2):
            a(f'v_pk_fma_f32 v[{A+r}:{A+r+1}], v[{cs+r}:{cs+r+1}], v[{m}:{m+1}], v[{A+r}:{A+r+1}] op_sel_hi:[1,0,1] neg_lo:[0,1,0] neg_hi:[0,1,0]')
        for r in range(0, 16, 2):
            a(f'v_pk_mul_f32 v[{A+r}:{A+r+1}], v[{A+r}:{A+r+1}], v[{m}:{m+1}] op_sel:[0,1] op_sel_hi:[1,1]')
        for r in range(0, 16, 2):
            a(f'v_cvt_pk_bf16_f32 v{out + r//2}, v{A+r}, v{A+r+1}')

    def flag_store(self, sync, slot_sgpr, sc=' sc1'):
        a = self.a
        a(f's_lshl_b32 s{S_T0}, s{slot_sgpr}, {self.o.fsh}')
        a(f's_add_u32 s{S_T0}, s{S_T0}, {WS_FLAGS + sync * 0x10000}')
        a(f'v_mov_b32 v126, s{S_T0}')
        a(f'v_mov_b32 v127, s{S_NONCE}')
        a('s_mov_b64 exec, 1')
        a(f'global_store_dword v126, v127, {WSB}{sc}')
        a('s_mov_b64 exec, -1')
    def signal_wg(self, sync, slot_sgpr):
        a = self.a
        a.c(f'signal sync {sync}')
        a('s_waitcnt vmcnt(0)')
        a('s_barrier')
        l = self.lab('sig')
        a(f's_cmp_lg_u32 s{S_W}, 0')
        a(f's_cbranch_scc1 {l}')
        self.flag_store(sync, slot_sgpr)
        a.label(l)
    def wait(self, sync, first_slot_sgpr, nflags, slp0=0):
        a = self.a
        fsh = self.o.fsh
        a.c(f'wait sync {sync}')
        l, lp, ld = self.lab('wait'), self.lab('poll'), self.lab('pdone')
        a(f's_cmp_lg_u32 s{S_W}, 0')
        a(f's_cbranch_scc1 {l}')
        if nflags == 16:
            a(f'v_and_b32 v126, 15, v{V_LANE}')
            a(f'v_lshlrev_b32 v126, {fsh}, v126')
            a(f's_lshl_b32 s{S_T0}, s{first_slot_sgpr}, {fsh}')
            a(f's_add_u32 s{S_T0}, s{S_T0}, {WS_FLAGS + sync * 0x10000}')
            a(f'v_add_u32 v126, s{S_T0}, v126')
        else:
            a(f'v_lshlrev_b32 v126, {fsh}, v{V_LANE}')
            a(f'v_add_u32 v126, {WS_FLAGS + sync * 0x10000}, v126')
            for i in range(1, 4): a(f'v_add_u32 v{126-i}, {i * (64 << fsh)}, v126')
        a(f's_mov_b32 s{S_T0+1}, 0')
        if self.o.pmode == 0:
            a('s_waitcnt vmcnt(0)')
            if slp0: a(f's_sleep {slp0}')
        a.label(lp)
        a(f'global_load_dword v127, v126, {WSB} sc1')
        if nflags != 16:
            a(f'global_load_dword v122, v125, {WSB} sc1')
            a(f'global_load_dword v121, v124, {WSB} sc1')
            a(f'global_load_dword v120, v123, {WSB} sc1')
        a(f's_add_u32 s{S_T0+1}, s{S_T0+1}, 1')
        a(f's_cmp_gt_u32 s{S_T0+1}, {self.o.spin}')
        a(f's_cbranch_scc1 {ld}')
        a('s_waitcnt vmcnt(0)')
        if nflags != 16:
            a(f'v_sad_u32 v127, v127, s{S_NONCE}, 0')
            a(f'v_sad_u32 v127, v122, s{S_NONCE}, v127')
            a(f'v_sad_u32 v127, v121, s{S_NONCE}, v127')
            a(f'v_sad_u32 v127, v120, s{S_NONCE}, v127')
            a('v_cmp_ne_u32 vcc, 0, v127')
        else:
            a(f'v_cmp_ne_u32 vcc, s{S_NONCE}, v127')
        a(f's_cbranch_vccz {ld}')
        if self.o.pmode == 1 and slp0:
            l2 = self.lab('p2')
            a(f's_cmp_lg_u32 s{S_T0+1}, 1')
            a(f's_cbranch_scc1 {l2}')
            a(f's_sleep {slp0}')
            a(f's_branch {lp}')
            a.label(l2)
        if self.o.slp: a(f's_sleep {self.o.slp}')
        a(f's_branch {lp}')
        a.label(ld)
        a('s_waitcnt vmcnt(0)')
        self.dbgval(44 + sync, S_T0 + 1)
        a.label(l)
        a('s_barrier')

    def trk_reset(self):
        self.vm = []; self.lg = []
    def vm_op(self, line, tag):
        self.a(line); self.vm.append(tag)
    def lg_op(self, line, tag):
        self.a(line); self.lg.append(tag)
    def wait_vm(self, tag):
        c = [i for i, t in enumerate(self.vm) if t == tag]
        if not c: return False
        idx = max(c)
        n = len(self.vm) - 1 - idx
        assert n <= 63
        self.a(f's_waitcnt vmcnt({n})')
        self.vm = self.vm[idx + 1:]
        return True

    def wait_lg(self, tag):
        c = [i for i, t in enumerate(self.lg) if t == tag]
        if not c: return
        idx = max(c)
        n = len(self.lg) - 1 - idx
        self.a(f's_waitcnt lgkmcnt({min(n, 15)})')
        if n <= 15: self.lg = self.lg[idx + 1:]
        else: self.lg = self.lg[len(self.lg) - 15:]
    def dma_x(self, L, c, i):
        a = self.a
        b, t = self.XD, self.XD + 1
        if L == 0:
            off = i * 32 * 1024 + c * 128; base = f's[{S_X}:{S_X+1}]'; sc = ''
        else:
            off = (64 * c + 32 * i) * 4096; base = WSB; sc = ' sc1'
        a(f'v_add_u32 v{t}, {off}, v{b}')
        a(f's_add_u32 m0, s{S_W1024}, {c * 8192 + i * 4096}')
        self.vm_op(f'global_load_lds_dwordx4 v{t}, {base}{sc}', f'x{c}')

    SELR = 144
    XD = 36

    def bfrag_setup(self, L, base, own_only=False):
        a = self.a
        t = 24
        a(f's_xor_b32 s{S_T0+1}, s{S_HSEL}, 1')
        if L == 0:
            a(f'v_bfe_u32 v{t}, v{V_J}, 1, 3')
            a(f'v_lshlrev_b32 v{t+1}, 7, v{V_J}')
            a(f's_lshl_b32 s{S_T0}, s{S_HSEL}, 12')
            a(f's_lshl_b32 s{S_T0+1}, s{S_T0+1}, 12')
            for k in range(4):
                a(f'v_add_u32 v{t+2}, {2*k}, v{V_HH}')
                a(f'v_xor_b32 v{t+2}, v{t+2}, v{t}')
                a(f'v_lshl_add_u32 v{t+2}, v{t+2}, 4, v{t+1}')
                a(f'v_add_u32 v{base+k}, s{S_T0}, v{t+2}')
                if not own_only: a(f'v_add_u32 v{base+4+k}, s{S_T0+1}, v{t+2}')
        else:
            a(f'v_bfe_u32 v{t}, v{V_LANE}, 2, 2')
            a(f'v_lshlrev_b32 v{t}, 6, v{t}')
            a(f'v_lshl_add_u32 v{t}, v{V_HH}, 10, v{t}')
            a(f'v_bfe_u32 v{t+1}, v{V_LANE}, 4, 1')
            a(f'v_lshl_add_u32 v{t}, v{t+1}, 5, v{t}')
            a(f'v_and_b32 v{t+1}, 3, v{V_LANE}')
            a(f'v_lshl_add_u32 v{t}, v{t+1}, 3, v{t}')
            a(f's_lshl_b32 s{S_T0}, s{S_HSEL}, 8')
            a(f's_lshl_b32 s{S_T0+1}, s{S_T0+1}, 8')
            a(f'v_add_u32 v{base}, s{S_T0}, v{t}')
            if not own_only: a(f'v_add_u32 v{base+4}, s{S_T0+1}, v{t}')

    def bfrag_read(self, L, base, ks, dst, tag):
        if L == 0:
            c, k = ks >> 2, ks & 3
            self.lg_op(f'ds_read_b128 v[{dst}:{dst+3}], v{base+k} offset:{c * 8192}', tag)
        else:
            for x in range(2):
                self.lg_op(f'ds_read_b64_tr_b16 v[{dst+2*x}:{dst+2*x+1}], v{base} offset:{ks * 2048 + x * 512}', tag)

    def _unused2(self): pass

    ACC0, ACC1, FR, XB = 48, 64, 80, 112
    SS, SQ, ONES = 20, 21, 22
    M, M1 = 32, 34
    STF, XS = 104, 24
    def fr(self, k): return self.FR + 8 * (k % 3)
    def st_read(self, L, ks):
        d = self.STF + 4 * ((ks >> 1) & 1)
        if L == 0:
            self.lg_op(f'ds_read_b128 v[{d}:{d+3}], v{self.XS + ((ks >> 1) & 1)} offset:{(ks >> 2) * 8192}', f's{ks}')
        else:
            for x in range(2):
                self.lg_op(f'ds_read_b64_tr_b16 v[{d+2*x}:{d+2*x+1}], v{self.XS} offset:{ks * 2048 + x * 512}', f's{ks}')
    def st_setup(self, L):
        a = self.a
        XB, XS = self.XB, self.XS
        if L == 0:
            a(f'v_mov_b32 v{XS}, s{S_RHALF}')
            a(f'v_cmp_eq_u32 vcc, 0, v{XS}')
            a(f'v_cndmask_b32 v{XS}, v{XB+1}, v{XB}, vcc')
            a(f'v_cndmask_b32 v{XS+1}, v{XB+3}, v{XB+2}, vcc')
        else:
            a(f's_lshl_b32 s{S_T0}, s{S_RHALF}, 11')
            a(f'v_add_u32 v{XS}, s{S_T0}, v{XB}')
    def st_dots(self, ks):
        a = self.a
        self.wait_lg(f's{ks}')
        d = self.STF + 4 * ((ks >> 1) & 1)
        for i in range(4):
            a(f'v_dot2c_f32_bf16 v{self.SS}, v{d+i}, v{self.ONES}')
            a(f'v_dot2c_f32_bf16 v{self.SQ}, v{d+i}, v{d+i}')
    def st_exchange_a(self):
        a = self.a
        SS, SQ, T = self.SS, self.SQ, 24
        a(f'v_mov_b32 v{T}, v{SS}')
        a(f'v_mov_b32 v{T+1}, v{SQ}')
        a(f'v_permlane32_swap_b32 v{SS}, v{T}')
        a(f'v_permlane32_swap_b32 v{SQ}, v{T+1}')
        a(f'v_add_f32 v{SS}, v{SS}, v{T}')
        a(f'v_add_f32 v{SQ}, v{SQ}, v{T+1}')
        self.lg_op(f'ds_write_b64 v{self.R_STW}, v[{SS}:{SQ}]', 'stw')
    def st_exchange_b(self):
        SA = self.STF
        self.lg_op(f'ds_read_b64 v[{SA}:{SA+1}], v{self.R_STO}', 'str')
        self.lg_op(f'ds_read_b64 v[{SA+2}:{SA+3}], v{self.R_STO} offset:512', 'str')
        self.lg_op(f'ds_read_b64 v[{SA+4}:{SA+5}], v{self.R_STP}', 'str')
        self.lg_op(f'ds_read_b64 v[{SA+6}:{SA+7}], v{self.R_STP} offset:512', 'str')
    def st_finalize(self):
        SA, M, M1 = self.STF, self.M, self.M1
        a = self.a
        self.wait_lg('str')
        a(f'v_add_f32 v{SA}, v{SA}, v{SA+2}'); a(f'v_add_f32 v{SA+1}, v{SA+1}, v{SA+3}')
        a(f'v_add_f32 v{SA+4}, v{SA+4}, v{SA+6}'); a(f'v_add_f32 v{SA+5}, v{SA+5}, v{SA+7}')
        self.merge(self.cap(lambda: self.ln_finalize(SA, SA + 1, M, M + 1, SA + 2)),
                   self.cap(lambda: self.ln_finalize(SA + 4, SA + 5, M1, M1 + 1, SA + 6)))
    def kv_pair(self, L, ks, hook=None, last=32, first=False):
        a = self.a
        ACC0, ACC1, XB = self.ACC0, self.ACC1, self.XB
        final = (ks == 30)
        if final:
            self.wait_lg('stw'); a('s_barrier')
            self.st_exchange_b()
        for k in (ks, ks + 1):
            st = self.fr(k)
            self.wait_lg(f'f{k}a')
            c0 = '0' if k == 0 else f'v[{ACC0}:{ACC0+15}]'
            c1 = '0' if k == 0 else f'v[{ACC1}:{ACC1+15}]'
            a(f'v_mfma_f32_32x32x16_bf16 v[{ACC0}:{ACC0+15}], a[{4*k}:{4*k+3}], v[{st}:{st+3}], {c0}')
            if k == ks and ks + 2 < last: self.st_read(L, ks + 2)
            if hook: hook(k, 0)
            self.wait_lg(f'f{k}b')
            a(f'v_mfma_f32_32x32x16_bf16 v[{ACC1}:{ACC1+15}], a[{4*k}:{4*k+3}], v[{st+4}:{st+7}], {c1}')
            if k + 2 < last:
                self.bfrag_read(L, XB, k + 2, self.fr(k + 2), f'f{k+2}a')
                self.bfrag_read(L, XB + 4, k + 2, self.fr(k + 2) + 4, f'f{k+2}b')
            if hook: hook(k, 1)
            if final and k == ks: self.st_finalize()
        if first: self.st_dots(ks)
        if ks + 2 < last: self.st_dots(ks + 2)
        if ks == 28: self.st_exchange_a()

    def kv_rd(self, L, ks):
        st = self.fr(ks)
        self.bfrag_read(L, self.XB, ks, st, f'f{ks}a')
        self.bfrag_read(L, self.XB + 4, ks, st + 4, f'f{ks}b')

    def kv_init(self):
        a = self.a
        a(f'v_mov_b32 v{self.SS}, 0'); a(f'v_mov_b32 v{self.SQ}, 0'); a(f'v_mov_b32 v{self.ONES}, 0x3f803f80')

    def kv_pass1(self):
        a = self.a
        L = 1
        self.kv_init()
        self.wait_vm('x0'); a('s_barrier')
        self.stamp(18)
        self.st_read(L, 0); self.kv_rd(L, 0); self.kv_rd(L, 1)
        def hook(k, h):
            c = (k >> 2) + 4
            if h == 0 and (k & 1) == 0 and c < 8: self.dma_x(1, c, (k >> 1) & 1)
        for ks in range(0, 32, 2):
            c = ks >> 2
            if (ks & 3) == 2 and c + 1 < 8:
                self.wait_vm(f'x{c+1}'); a('s_barrier')
            self.kv_pair(L, ks, hook, first=(ks == 0))

    def kv_pass0(self, WB, KVA, QA, SEL, CSKV):
        a = self.a
        L = 0
        def trW(abase, addr, ks, tag, extra=0):
            for x in range(2):
                self.lg_op(f'ds_read_b64_tr_b16 a[{abase+4*ks+2*x}:{abase+4*ks+2*x+1}], v{addr} offset:{(ks & 15)*2048 + x*512 + extra}', tag)
        self.kv_init()
        self.wait_vm('kva'); a('s_barrier')
        self.stamp(17)
        for ks in range(16): trW(0, KVA, ks, 'w')
        self.wait_vm('x0')
        a('s_waitcnt lgkmcnt(0)'); self.lg = []
        a('s_barrier')
        self.stamp(31)
        self.st_read(L, 0); self.kv_rd(L, 0); self.kv_rd(L, 1)
        q1 = [lambda i=i: self.w_dma_one(2, 1, i, WB, 'vb') for i in range(8)]
        q1 += [lambda i=i: self.w_dma_one(0, 0, i, WB, 'qa') for i in range(8)]
        csn = [0]
        def hook_a(k, h):
            if q1 and (h == 0 or k < 4): q1.pop(0)()
            if h == 1:
                ks_ = csn[0]; csn[0] += 1
                c = '0' if ks_ == 0 else f'v[{CSKV}:{CSKV+3}]'
                a(f'v_mfma_f32_16x16x32_bf16 v[{CSKV}:{CSKV+3}], a[{4*ks_}:{4*ks_+3}], v[{SEL}:{SEL+3}], {c}')
        for ks in range(0, 16, 2):
            c = ks >> 2
            if (ks & 3) == 2 and c + 1 < 4:
                if self.wait_vm(f'x{c+1}'): a('s_barrier')
            self.kv_pair(L, ks, hook_a, last=16, first=(ks == 0))
        while q1: q1.pop(0)()
        self.stamp(1)
        self.wait_vm('vb')
        a('s_waitcnt lgkmcnt(0)'); self.lg = []
        a('s_barrier')
        for ks in range(16, 32): trW(0, KVA + 1, ks, 'w')
        self.st_read(L, 16); self.kv_rd(L, 16); self.kv_rd(L, 17)
        a('s_waitcnt lgkmcnt(0)'); self.lg = []
        self.wait_vm('qa')
        a('s_barrier')
        self.stamp(2)
        q2 = [lambda i=i: self.w_dma_one(0, 1, i, WB, 'qb') for i in range(8)]
        for ks in range(16, 32):
            a(f'v_mfma_f32_16x16x32_bf16 v[{CSKV}:{CSKV+3}], a[{4*ks}:{4*ks+3}], v[{SEL}:{SEL+3}], v[{CSKV}:{CSKV+3}]')
            if ks % 2 == 0 and q2: q2.pop(0)()
        qn = [0]
        def hook_b(k, h):
            if 16 <= k < 24:
                trW(128, QA, qn[0], 'wq'); qn[0] += 1
        for ks in range(16, 32, 2):
            self.kv_pair(L, ks, hook_b, first=(ks == 16))
        self.wait_vm('qb')
        a('s_waitcnt lgkmcnt(0)'); self.lg = []
        a('s_barrier')
        for ks in range(16, 32): trW(128, QA, ks, 'wq', extra=32768)

    def resid_read(self, L, T):
        a = self.a
        a(f's_and_b32 s{S_T0}, s{S_HB}, 1')
        if L == 0:
            a(f's_lshl_b32 s{S_T0+1}, s{S_CB}, 1')
            a(f's_add_u32 s{S_T0+1}, s{S_T0+1}, s{S_RHALF}')
            a(f's_lshl_b32 s{S_T0+1}, s{S_T0+1}, 13')
            a(f's_lshl_b32 s{S_T0}, s{S_T0}, 12')
            a(f's_add_u32 s{S_T0}, s{S_T0}, s{S_T0+1}')
            a(f'v_lshlrev_b32 v{T}, 7, v{V_J}')
            a(f'v_lshl_add_u32 v{T}, v{V_HH}, 3, v{T}')
            a(f'v_add_u32 v{T}, s{S_T0}, v{T}')
            a(f'v_bfe_u32 v{T+1}, v{V_J}, 1, 3')
            a(f's_lshl_b32 s{S_T0+1}, s{S_HSEL}, 2')
            for g in range(4):
                a(f's_add_u32 s{S_T0+2}, s{S_T0+1}, {g}')
                a(f'v_xor_b32 v{T+2}, s{S_T0+2}, v{T+1}')
                a(f'v_lshl_add_u32 v{T+2}, v{T+2}, 4, v{T}')
                a(f'ds_read_b64 v[{V_RESID+2*g}:{V_RESID+2*g+1}], v{T+2}')
        else:
            a(f's_lshl_b32 s{S_T0+1}, s{S_CB}, 5')
            a(f's_lshl_b32 s{S_T0+2}, s{S_W}, 3')
            a(f's_add_u32 s{S_T0+1}, s{S_T0+1}, s{S_T0+2}')
            a(f's_lshl_b32 s{S_T0+1}, s{S_T0+1}, 9')
            a(f's_lshl_b32 s{S_T0}, s{S_T0}, 8')
            a(f's_add_u32 s{S_T0}, s{S_T0}, s{S_T0+1}')
            a(f'v_bfe_u32 v{T}, v{V_LANE}, 2, 2')
            a(f'v_lshlrev_b32 v{T}, 6, v{T}')
            a(f'v_lshl_add_u32 v{T}, v{V_HH}, 9, v{T}')
            a(f'v_bfe_u32 v{T+1}, v{V_LANE}, 4, 1')
            a(f'v_lshl_add_u32 v{T}, v{T+1}, 5, v{T}')
            a(f'v_and_b32 v{T+1}, 3, v{V_LANE}')
            a(f'v_lshl_add_u32 v{T}, v{T+1}, 3, v{T}')
            a(f'v_add_u32 v{T}, s{S_T0}, v{T}')
            for g in range(4):
                a(f'ds_read_b64_tr_b16 v[{V_RESID+2*g}:{V_RESID+2*g+1}], v{T} offset:{g*1024}')

    R_STW, R_STO, R_STP, R_PA, R_VA, R_AA, R_BA0, R_BA1, R_KVS, R_ZS, R_CS = 12, 13, 14, 15, 17, 19, 23, 26, 27, 120, 121
    def kv_addr_setup(self, L):
        a = self.a
        T = 96
        a(f'v_lshlrev_b32 v{T}, 3, v{V_J}')
        a(f's_lshl_b32 s{S_T0}, s{S_W}, 8')
        a(f's_add_u32 s{S_T0}, s{S_T0}, {SC_ST}')
        a(f'v_add_u32 v{self.R_STW}, s{S_T0}, v{T}')
        a(f's_lshl_b32 s{S_T0}, s{S_HSEL}, 8')
        a(f's_add_u32 s{S_T0+1}, s{S_T0}, {SC_ST}')
        a(f's_xor_b32 s{S_T0}, s{S_T0}, 256')
        a(f's_add_u32 s{S_T0}, s{S_T0}, {SC_ST}')
        a(f'v_add_u32 v{self.R_STO}, s{S_T0+1}, v{T}')
        a(f'v_add_u32 v{self.R_STP}, s{S_T0}, v{T}')
        PA, VA = self.R_PA, self.R_VA
        a(f'v_lshrrev_b32 v{T+1}, 3, v{V_J}')
        a(f'v_add_u32 v{T+1}, v{T+1}, v{V_HH}')
        a(f'v_lshlrev_b32 v{T+1}, 5, v{T+1}')
        a(f'v_lshl_add_u32 v{T+1}, v{V_J}, 6, v{T+1}')
        a(f's_mul_i32 s{S_T0}, s{S_W}, {PHI_W}')
        a(f's_add_u32 s{S_T0}, s{S_T0}, {SC_PHI}')
        a(f's_mul_i32 s{S_T0+1}, s{S_HSEL}, 2176')
        a(f's_xor_b32 s{S_T0+2}, s{S_HSEL}, 1')
        a(f's_mul_i32 s{S_T0+3}, s{S_T0+2}, 2176')
        a(f's_add_u32 s{S_T0+1}, s{S_T0+1}, s{S_T0}')
        a(f's_add_u32 s{S_T0+3}, s{S_T0+3}, s{S_T0}')
        a(f'v_add_u32 v{PA}, s{S_T0+1}, v{T+1}')
        a(f'v_add_u32 v{PA+1}, s{S_T0+3}, v{T+1}')
        a(f'v_bfe_u32 v{T+1}, v{V_J}, 3, 1')
        a(f'v_lshlrev_b32 v{T+1}, 2, v{T+1}')
        a(f'v_xor_b32 v{T+1}, v{V_J}, v{T+1}')
        a(f'v_lshlrev_b32 v{T+1}, 5, v{T+1}')
        a(f'v_lshl_add_u32 v{T+1}, v{V_HH}, 3, v{T+1}')
        a(f's_lshl_b32 s{S_T0}, s{S_W}, 11')
        a(f's_add_u32 s{S_T0}, s{S_T0}, {SC_V}')
        a(f's_lshl_b32 s{S_T0+1}, s{S_HSEL}, 10')
        a(f's_lshl_b32 s{S_T0+2}, s{S_T0+2}, 10')
        a(f's_add_u32 s{S_T0+1}, s{S_T0+1}, s{S_T0}')
        a(f's_add_u32 s{S_T0+2}, s{S_T0+2}, s{S_T0}')
        a(f'v_add_u32 v{VA}, s{S_T0+1}, v{T+1}')
        a(f'v_add_u32 v{VA+1}, s{S_T0+2}, v{T+1}')
        AA = self.R_AA
        a(f'v_lshrrev_b32 v{T}, 4, v{V_LANE}')
        a(f'v_bfe_u32 v{T+1}, v{V_LANE}, 2, 2')
        a(f'v_lshl_add_u32 v{T+2}, v{T}, 3, v{T+1}')
        a(f'v_lshlrev_b32 v{AA}, 6, v{T+2}')
        a(f'v_lshl_add_u32 v{AA}, v{T}, 5, v{AA}')
        a(f'v_and_b32 v{T+3}, 3, v{V_LANE}')
        a(f'v_lshl_add_u32 v{AA}, v{T+3}, 3, v{AA}')
        a(f's_mul_i32 s{S_T0}, s{S_W}, {PHI_W}')
        a(f's_add_u32 s{S_T0}, s{S_T0}, {SC_PHI}')
        a(f'v_add_u32 v{AA}, s{S_T0}, v{AA}')
        a(f'v_and_b32 v{T+4}, 1, v{T}')
        a(f'v_lshlrev_b32 v{T+4}, 2, v{T+4}')
        a(f'v_xor_b32 v{T+1}, v{T+2}, v{T+4}')
        a(f'v_xor_b32 v{T+2}, 4, v{T+1}')
        a(f'v_lshlrev_b32 v{T+1}, 5, v{T+1}')
        a(f'v_lshlrev_b32 v{T+2}, 5, v{T+2}')
        a(f'v_lshl_add_u32 v{T+1}, v{T+3}, 3, v{T+1}')
        a(f'v_lshl_add_u32 v{T+2}, v{T+3}, 3, v{T+2}')
        a(f's_lshl_b32 s{S_T0}, s{S_W}, 11')
        a(f's_add_u32 s{S_T0}, s{S_T0}, {SC_V}')
        a(f'v_add_u32 v{self.R_BA0}, s{S_T0}, v{T+1}')
        a(f'v_add_u32 v{self.R_BA1}, s{S_T0}, v{T+2}')
        a(f's_mul_i32 s{S_T0+1}, s{S_SLOT1}, {KVB}')
        a(f's_add_u32 s{S_T0+1}, s{S_T0+1}, {WS_KVP + L * KVP_L}')
        a(f's_lshl_b32 s{S_T0+2}, s{S_W}, 11')
        a(f's_add_u32 s{S_T0+2}, s{S_T0+2}, s{S_T0+1}')
        a(f'v_and_b32 v{T+1}, 15, v{V_LANE}')
        a(f'v_lshlrev_b32 v{T+1}, 7, v{T+1}')
        a(f'v_lshl_add_u32 v{T+1}, v{T}, 4, v{T+1}')
        a(f'v_add_u32 v{self.R_KVS}, s{S_T0+2}, v{T+1}')
        a(f's_lshl_b32 s{S_T0+2}, s{S_W}, 8')
        a(f's_add_u32 s{S_T0+2}, s{S_T0+2}, s{S_T0+1}')
        a(f's_add_u32 s{S_T0+2}, s{S_T0+2}, 8192')
        a(f'v_lshlrev_b32 v{T+1}, 3, v{V_LANE}')
        a(f'v_add_u32 v{self.R_ZS}, s{S_T0+2}, v{T+1}')
        a(f'v_lshlrev_b32 v{T+1}, 4, v{V_HH}')
        a(f's_lshl_b32 s{S_T0}, s{S_W}, 7')
        a(f's_add_u32 s{S_T0}, s{S_T0}, {SC_CS}')
        a(f'v_add_u32 v{self.R_CS}, s{S_T0}, v{T+1}')

    def kv_epilogue(self, L, cs_kv_reg=None):
        a = self.a; o = self.o
        ACC0, ACC1 = self.ACC0, self.ACC1
        SS, SQ, ONES = self.SS, self.SQ, self.ONES
        M, M1 = self.M, self.M1
        T = 24
        self.stamp(3 + 16 * L)
        CS = 80
        if L == 0:
            a(f's_lshl_b32 s{S_T0+4}, s{S_W}, 7')
            self.cs_write(cs_kv_reg, S_T0 + 4, 0, 96)
            self.wait_vm('wphi')
            self.wphi_finish(96)
            self.kvt_zero(96)
        for g in range(4): a(f'ds_read_b128 v[{CS+4*g}:{CS+4*g+3}], v{self.R_CS} offset:{32*g}')
        KB0, KB1 = 96, 104
        a('s_waitcnt lgkmcnt(0)')
        self.ln_apply16(ACC0, CS, M, KB0)
        WK = 112
        a(f's_cmp_eq_u32 s{S_HSEL}, 0')
        a(f's_cselect_b64 vcc, -1, 0')
        for i in range(4): a(f'v_cndmask_b32 v{WK+i}, v{V_WPHI+4+i}, v{V_WPHI+i}, vcc')
        a(f'v_mfma_f32_32x32x16_bf16 v[{ACC0}:{ACC0+15}], v[{WK}:{WK+3}], v[{KB0}:{KB0+3}], 0')
        self.ln_apply16(ACC1, CS, M1, KB1)
        a(f'v_mfma_f32_32x32x16_bf16 v[{ACC1}:{ACC1+15}], v[{WK}:{WK+3}], v[{KB1}:{KB1+3}], 0')
        for tt, kb in enumerate((KB0, KB1)):
            a(f'ds_write_b64 v{self.R_VA+tt}, v[{kb+4}:{kb+5}]')
            a(f'ds_write_b64 v{self.R_VA+tt}, v[{kb+6}:{kb+7}] offset:16')
        PH0, PH1 = 80, 88
        s0 = self.cap(lambda: self.softmax16(ACC0, PH0, 112))
        s1 = self.cap(lambda: self.softmax16(ACC1, PH1, 116))
        if L == 0:
            SEL = self.SELR
            cs = [f'  v_mfma_f32_16x16x32_bf16 v[28:31], a[{128+4*ks}:{128+4*ks+3}], v[{SEL}:{SEL+3}], ' + ('0' if ks == 0 else 'v[28:31]') for ks in range(32)]
            for st in (s0, s1):
                k = 0
                while k < len(st):
                    if 'v_exp_f32' in st[k] and cs: st.insert(k + 1, cs.pop(0)); k += 1
                    k += 1
        a.lines += s0[:10]
        self.merge(s0[10:], s1)
        for tt, ph in enumerate((PH0, PH1)):
            a(f'ds_write_b128 v{self.R_PA+tt}, v[{ph}:{ph+3}]')
            a(f'ds_write_b128 v{self.R_PA+tt}, v[{ph+4}:{ph+7}] offset:16')
        FA, FB, KV, ZS = 48, 64, 80, 88
        BAx = (self.R_BA0, self.R_BA1)
        for kk in range(2):
            for x in range(2):
                a(f'ds_read_b64_tr_b16 v[{FB+4*kk+2*x}:{FB+4*kk+2*x+1}], v{BAx[x]} offset:{kk*1024}')
        a(f'v_mov_b32 v{ZS}, 0'); a(f'v_mov_b32 v{ZS+1}, 0')
        a(f'v_mov_b32 v{ONES}, 0x3f803f80')
        for kk in range(2):
            for mt in range(2):
                for x in range(2):
                    a(f'ds_read_b64_tr_b16 v[{FA+8*mt+4*kk+2*x}:{FA+8*mt+4*kk+2*x+1}], v{self.R_AA} offset:{kk*2176 + x*256 + mt*32}')
        G = 96
        for mt in range(2):
            a(f'v_mov_b32 v{G+4*mt+1}, s{S_NONCE}')
            a(f'v_mov_b32 v{G+4*mt+3}, s{S_NONCE}')
        for kk in range(2):
            a(f's_waitcnt lgkmcnt({4 - 4*kk})')
            for mt in range(2):
                c = '0' if kk == 0 else f'v[{KV+4*mt}:{KV+4*mt+3}]'
                a(f'v_mfma_f32_16x16x32_bf16 v[{KV+4*mt}:{KV+4*mt+3}], v[{FA+8*mt+4*kk}:{FA+8*mt+4*kk+3}], v[{FB+4*kk}:{FB+4*kk+3}], {c}')
        for i in range(8):
            a(f'v_dot2c_f32_bf16 v{ZS}, v{FA+i}, v{ONES}')
            a(f'v_dot2c_f32_bf16 v{ZS+1}, v{FA+8+i}, v{ONES}')
        for mt in range(2):
            g = G + 4 * mt
            a(f'v_cvt_pk_bf16_f32 v{g}, v{KV+4*mt}, v{KV+4*mt+1}')
            a(f'v_cvt_pk_bf16_f32 v{g+2}, v{KV+4*mt+2}, v{KV+4*mt+3}')
            a(f'global_store_dwordx4 v{self.R_KVS}, v[{g}:{g+3}], {WSB} offset:{mt*64} sc1')
        for zz in (ZS, ZS + 1):
            a(f'v_mov_b32 v{ZS+2}, v{zz}')
            a(f'v_permlane32_swap_b32 v{zz}, v{ZS+2}')
            a(f'v_add_f32 v{zz}, v{zz}, v{ZS+2}')
            a(f'v_mov_b32 v{ZS+2}, v{zz}')
            a(f'v_permlane16_swap_b32 v{zz}, v{ZS+2}')
            a(f'v_add_f32 v{zz}, v{zz}, v{ZS+2}')
        a(f'v_and_b32 v{ZS+2}, 16, v{V_LANE}')
        a(f'v_cmp_eq_u32 vcc, 0, v{ZS+2}')
        a(f'v_cndmask_b32 v{ZS}, v{ZS+1}, v{ZS}, vcc')
        a(f'v_cvt_pk_bf16_f32 v{ZS}, v{ZS}, 0')
        a(f'v_mov_b32 v{ZS+1}, s{S_NONCE}')
        a('s_mov_b32 exec_lo, -1'); a('s_mov_b32 exec_hi, 0')
        a(f'global_store_dwordx2 v{self.R_ZS}, v[{ZS}:{ZS+1}], {WSB} sc1')
        a('s_mov_b64 exec, -1')
        self.stamp(4 + 16 * L)

    def q_pass(self, L):
        a = self.a; o = self.o
        ACC, FR, XB = 48, 80, 112
        M = self.M
        self.lg = []
        self.bfrag_setup(L, XB, own_only=True)
        if L == 0:
            a(f's_lshl_b32 s{S_T0+4}, s{S_RHALF}, 7')
            self.cs_write(28, S_T0 + 4, 512, 104)
            a('s_barrier')
            a(f'v_and_b32 v117, 7, v{V_LANE}')
            a('v_lshlrev_b32 v117, 3, v117')
            a(f's_lshl_b32 s{S_T0}, s{S_RB}, 6')
            a(f's_add_u32 s{S_T0}, s{S_T0}, {WS_XT}')
            a(f'v_add_u32 v250, s{S_T0}, v117')
            a(f'global_load_dwordx2 v[118:119], v250, {WSB} sc1')
            self.wo_setup()
            self.vm = []
        for ks in range(3): self.bfrag_read(L, XB, ks, FR + 4 * (ks & 3), f'f{ks}')
        H1A, H1 = 116, (96 if (o.h1k < 32 and (L == 1 or o.h1l0)) else 80)
        a(f's_lshl_b32 s{S_T0}, s{S_HB}, 5')
        a(f's_lshl_b32 s{S_T0+1}, s{S_W}, 3')
        a(f's_add_u32 s{S_T0}, s{S_T0}, s{S_T0+1}')
        a(f's_mul_i32 s{S_T0}, s{S_T0}, {KVB}')
        a(f's_mul_i32 s{S_T0+1}, s{S_RB}, 288')
        a(f's_add_u32 s{S_T0}, s{S_T0}, s{S_T0+1}')
        a(f's_add_u32 s{S_T0}, s{S_T0}, {WS_KVP + L * KVP_L}')
        a(f'v_min_u32 v{H1A}, 35, v{V_LANE}')
        a(f'v_lshlrev_b32 v{H1A}, 3, v{H1A}')
        a(f'v_add_u32 v{H1A}, s{S_T0}, v{H1A}')
        def h1_loads():
            a = self.a
            for p in range(8):
                a(f'v_add_u32 v{H1A+1}, {p * KVB}, v{H1A}')
                a(f'global_load_dwordx2 v[{H1+2*p}:{H1+2*p+1}], v{H1A+1}, {WSB} sc1')
        a(f's_lshl_b32 s{S_T0+4}, s{S_RHALF}, 7')
        for ks in range(32):
            if ks == o.h1k and (L == 1 or o.h1l0): h1_loads()
            if ks + 3 < 32:
                self.bfrag_read(L, XB, ks + 3, FR + 4 * ((ks + 3) & 3), f'f{ks+3}')
            self.wait_lg(f'f{ks}')
            c0 = '0' if ks == 0 else f'v[{ACC}:{ACC+15}]'
            st = FR + 4 * (ks & 3)
            a(f'v_mfma_f32_32x32x16_bf16 v[{ACC}:{ACC+15}], a[{128+4*ks}:{128+4*ks+3}], v[{st}:{st+3}], {c0}')
            if ks == 2:
                self.resid_read(L, 104); self.lg += ['rs'] * 4
            if L == 0 and ks % 2 == 0: self.wo_dma(16 + ks // 2, self.WOB, self.WOB + 1)
            if ks == 24:
                self.cs_read(64, S_T0 + 4, 512, 104)
                self.lg += ['cs'] * 4
        a('s_waitcnt lgkmcnt(0)'); self.lg = []
        h1k = o.h1k if (L == 1 or o.h1l0) else 32
        early = h1k < 32 and o.early1
        KB = 20 if h1k < 32 else 96
        self.ln_apply16(ACC, 64, M, KB)
        D = (48, 64)
        for hd in range(2):
            a(f'v_mfma_f32_32x32x16_bf16 v[{D[hd]}:{D[hd]+15}], v[{V_WPHI+4*hd}:{V_WPHI+4*hd+3}], v[{KB+4*hd}:{KB+4*hd+3}], 0')
        if h1k >= 32: h1_loads()
        def hop1_section():
            lp, ld = self.lab('h1poll'), self.lab('h1done')
            T = 80 if early else 48
            a(f's_mov_b32 s{S_T0+2}, 0')
            a.label(lp)
            a('s_waitcnt vmcnt(0)')
            a(f'v_mov_b32 v{T}, 0')
            for p in range(8): a(f'v_sad_u32 v{T}, v{H1+2*p+1}, s{S_NONCE}, v{T}')
            a(f's_add_u32 s{S_T0+2}, s{S_T0+2}, 1')
            a(f's_cmp_gt_u32 s{S_T0+2}, {self.o.spin}')
            a(f's_cbranch_scc1 {ld}')
            a(f'v_cmp_ne_u32 vcc, 0, v{T}')
            a(f's_cbranch_vccz {ld}')
            if self.o.slp: a(f's_sleep {self.o.slp}')
            h1_loads()
            a(f's_branch {lp}')
            a.label(ld)
            self.dbgval(40 + L, S_T0 + 2)
            if L == 0:
                lp2, ld2 = self.lab('xtpoll'), self.lab('xtdone')
                a(f's_mov_b32 s{S_T0+2}, 0')
                a(f's_mov_b32 s{S_FAST}, 0')
                a.label(lp2)
                a(f'v_cmp_ne_u32 vcc, s{S_NONCE}, v119')
                a(f's_cbranch_vccz {ld2}')
                a(f's_add_u32 s{S_T0+2}, s{S_T0+2}, 1')
                a(f's_cmp_gt_u32 s{S_T0+2}, {self.o.spin}')
                a(f's_cbranch_scc1 {ld2}x')
                a(f'global_load_dwordx2 v[118:119], v250, {WSB} sc1')
                a('s_waitcnt vmcnt(0)')
                a(f's_branch {lp2}')
                a.label(ld2)
                a(f'v_cmp_ne_u32 vcc, s{S_XCC}, v118')
                a(f's_cmp_eq_u64 vcc, 0')
                a(f's_cselect_b32 s{S_FAST}, 1, 0')
                a.label(ld2 + 'x')
            CL, CH = T + 12, T + 13
            a(f'v_mov_b32 v{CL}, 0x00003f80'); a(f'v_mov_b32 v{CH}, 0x3f800000')
            a(f'v_mov_b32 v{T}, 0'); a(f'v_mov_b32 v{T+1}, 0')
            for p in range(8):
                a(f'v_dot2c_f32_bf16 v{T}, v{H1+2*p}, v{CL}')
                a(f'v_dot2c_f32_bf16 v{T+1}, v{H1+2*p}, v{CH}')
            a(f'v_lshlrev_b32 v{T+2}, 3, v{V_LANE}')
            a(f's_lshl_b32 s{S_T0}, s{S_W}, 9')
            a(f's_add_u32 s{S_T0}, s{S_T0}, {SC_RED}')
            a(f'v_add_u32 v{T+3}, s{S_T0}, v{T+2}')
            a(f'ds_write_b64 v{T+3}, v[{T}:{T+1}]')
            a('s_waitcnt lgkmcnt(0)')
            a('s_barrier')
            l = self.lab('h1pub')
            a(f's_cmp_lg_u32 s{S_W}, 0')
            a(f's_cbranch_scc1 {l}')
            a(f'v_add_u32 v{T+3}, {SC_RED}, v{T+2}')
            for w in range(4): a(f'ds_read_b64 v[{T+4+2*w}:{T+5+2*w}], v{T+3} offset:{w*512}')
            a(f's_mul_i32 s{S_T0}, s{S_HB}, {KVB}')
            a(f's_mul_i32 s{S_T0+1}, s{S_RB}, 288')
            a(f's_add_u32 s{S_T0}, s{S_T0}, s{S_T0+1}')
            a(f's_add_u32 s{S_T0}, s{S_T0}, {WS_KVR + L * 0x12000}')
            a(f'v_add_u32 v{T+2}, s{S_T0}, v{T+2}')
            a('s_waitcnt lgkmcnt(0)')
            a(f'v_pk_add_f32 v[{T+4}:{T+5}], v[{T+4}:{T+5}], v[{T+6}:{T+7}]')
            a(f'v_pk_add_f32 v[{T+8}:{T+9}], v[{T+8}:{T+9}], v[{T+10}:{T+11}]')
            a(f'v_pk_add_f32 v[{T+4}:{T+5}], v[{T+4}:{T+5}], v[{T+8}:{T+9}]')
            a(f'v_cvt_pk_bf16_f32 v{T+4}, v{T+4}, v{T+5}')
            a(f'v_mov_b32 v{T+5}, s{S_NONCE}')
            a('s_mov_b32 exec_lo, -1'); a('s_mov_b32 exec_hi, 0xf')
            a(f'global_store_dwordx2 v{T+2}, v[{T+4}:{T+5}], {WSB} sc1')
            a('s_mov_b64 exec, -1')
            a.label(l)
        if early: hop1_section()
        t0, t1 = (80, 84) if h1k < 32 else (104, 108)
        s0 = self.cap(lambda: self.softmax16(D[0], V_PHIQ, t0))
        s1 = self.cap(lambda: self.softmax16(D[1], V_PHIQ + 8, t1))
        self.merge(s0, s1)
        self.stamp(5 + 16 * L)
        if not early: hop1_section()
        if L == 0:
            self.stamp(32)
            self.kgen_tables_to_lds()
            self.stamp(33)
            self.wo_tr_addr(112)
            self.kgen_b()
            self.stamp(34)

    H2PB = 72
    def hop2_addr(self, L):
        a = self.a
        T = 120
        a(f's_mul_i32 s{S_T0}, s{S_HB}, {KVB}')
        a(f's_add_u32 s{S_T0}, s{S_T0}, {WS_KVR + L * 0x12000}')
        a(f'v_lshlrev_b32 v{T}, 4, v{V_TID}')
        a(f'v_add_u32 v{T}, s{S_T0}, v{T}')
        a(f'v_min_u32 v{T+1}, 63, v{V_TID}')
        a(f'v_lshlrev_b32 v{T+1}, 4, v{T+1}')
        a(f'v_add_u32 v{T+1}, s{S_T0}, v{T+1}')
        a(f'v_add_u32 v{T+1}, 8192, v{T+1}')
        a(f'v_add_u32 v{T+2}, 4096, v{T}')
    def hop2_loads(self):
        a = self.a
        T, PB = 120, self.H2PB
        a(f'global_load_dwordx4 v[{PB}:{PB+3}], v{T}, {WSB} sc1')
        a(f'global_load_dwordx4 v[{PB+4}:{PB+7}], v{T+2}, {WSB} sc1')
        a(f'global_load_dwordx4 v[{PB+8}:{PB+11}], v{T+1}, {WSB} sc1')

    def o_stage(self, L):
        a = self.a; o = self.o
        a.c(f'================ o stage layer {L} ================')
        T = 120
        PB = self.H2PB
        lp, ld = self.lab('h2poll'), self.lab('h2done')
        if L == 1: self.hop2_addr(L)
        W = 60
        a(f'v_lshrrev_b32 v{W}, 7, v{V_TID}')
        a(f'v_mul_u32_u24 v{W}, {KVT_HEAD}, v{W}')
        a(f'v_bfe_u32 v{W+1}, v{V_TID}, 3, 4')
        a(f'v_mul_u32_u24 v{W+1}, {KVT_ROW}, v{W+1}')
        a(f'v_and_b32 v{W+2}, 7, v{V_TID}')
        a(f'v_lshlrev_b32 v{W+2}, 3, v{W+2}')
        a(f'v_add3_u32 v{W}, v{W}, v{W+1}, v{W+2}')
        a(f'v_add_u32 v{W}, {SC_KVT}, v{W}')
        a(f'v_bfe_u32 v{W+1}, v{V_TID}, 4, 2')
        a(f'v_mul_u32_u24 v{W+1}, {KVT_HEAD}, v{W+1}')
        a(f'v_and_b32 v{W+2}, 15, v{V_TID}')
        a(f'v_lshl_add_u32 v{W+1}, v{W+2}, 2, v{W+1}')
        a(f'v_add_u32 v{W+1}, {SC_KVT + 16 * KVT_ROW}, v{W+1}')
        a(f'v_mul_u32_u24 v{W+2}, {KVT_ROW}, v{V_J}')
        a(f'v_lshl_add_u32 v{W+2}, v{V_HH}, 5, v{W+2}')
        a(f's_mul_i32 s{S_T0+1}, s{S_RHALF}, {2 * KVT_HEAD}')
        a(f's_add_u32 s{S_T0+1}, s{S_T0+1}, {SC_KVT}')
        a(f'v_add_u32 v{W+2}, s{S_T0+1}, v{W+2}')
        a(f's_lshl_b32 s{S_T0+1}, s{S_RB}, 1')
        a(f's_add_u32 s{S_T0+1}, s{S_T0+1}, s{S_HSEL}')
        a(f's_lshl_b32 s{S_T0+8}, s{S_T0+1}, 4')
        a(f's_lshl_b32 s{S_T0+3}, s{S_HB}, 1')
        a(f's_add_u32 s{S_T0+8}, s{S_T0+8}, s{S_T0+3}')
        a(f's_add_u32 s{S_T0+8}, s{S_T0+8}, s{S_RHALF}')
        a(f's_lshl_b32 s{S_T0+1}, s{S_T0+1}, 15')
        a(f's_lshl_b32 s{S_T0+3}, s{S_HB}, 12')
        a(f's_add_u32 s{S_T0+1}, s{S_T0+1}, s{S_T0+3}')
        a(f's_lshl_b32 s{S_T0+3}, s{S_RHALF}, 11')
        a(f's_add_u32 s{S_T0+1}, s{S_T0+1}, s{S_T0+3}')
        a(f's_add_u32 s{S_T0+1}, s{S_T0+1}, {WS_O + L * 0x200000}')
        a(f'v_lshlrev_b32 v{W+3}, 4, v{V_LANE}')
        a(f'v_add_u32 v{W+3}, s{S_T0+1}, v{W+3}')
        a(f's_mov_b32 s{S_T0+2}, 0')
        if L == 1:
            if o.slph: a(f's_sleep {o.slph}')
            self.hop2_loads()
        a.label(lp)
        a('s_waitcnt vmcnt(0)')
        a(f'v_sad_u32 v{T+3}, v{PB+1}, s{S_NONCE}, 0')
        for r in (3, 5, 7, 9, 11): a(f'v_sad_u32 v{T+3}, v{PB+r}, s{S_NONCE}, v{T+3}')
        a(f's_add_u32 s{S_T0+2}, s{S_T0+2}, 1')
        a(f's_cmp_gt_u32 s{S_T0+2}, {self.o.spin}')
        a(f's_cbranch_scc1 {ld}')
        a(f'v_cmp_ne_u32 vcc, 0, v{T+3}')
        a(f's_cbranch_vccz {ld}')
        if o.slp: a(f's_sleep {o.slp}')
        self.hop2_loads()
        a(f's_branch {lp}')
        a.label(ld)
        self.dbgval(42 + L, S_T0 + 2)
        self.stamp(6 + 16 * L)
        a(f'v_mov_b32 v{PB+1}, v{PB+2}')
        a(f'v_mov_b32 v{PB+5}, v{PB+6}')
        a(f'v_lshl_or_b32 v{PB+8}, v{PB+10}, 16, v{PB+8}')
        a(f'ds_write_b64 v{W}, v[{PB}:{PB+1}]')
        a(f'ds_write_b64 v{W}, v[{PB+4}:{PB+5}] offset:{2 * KVT_HEAD}')
        l = self.lab('zw')
        a(f's_cmp_lg_u32 s{S_W}, 0')
        a(f's_cbranch_scc1 {l}')
        a(f'ds_write_b32 v{W+1}, v{PB+8}')
        a(f'ds_write_b32 v{W+1}, v{PB+8} offset:{4 * KVT_ROW}')
        a.label(l)
        a('s_waitcnt lgkmcnt(0)')
        a('s_barrier')
        AF = 64
        for hd in range(2):
            for m in range(2):
                a(f'ds_read_b128 v[{AF+8*hd+4*m}:{AF+8*hd+4*m+3}], v{W+2} offset:{hd * KVT_HEAD + 16 * m}')
        D = [88, 104]
        for hd in range(2):
            a(f's_waitcnt lgkmcnt({2 - 2*hd})')
            a(f'v_mfma_f32_32x32x16_bf16 v[{D[hd]}:{D[hd]+15}], v[{AF+8*hd}:{AF+8*hd+3}], v[{V_PHIQ+8*hd}:{V_PHIQ+8*hd+3}], 0')
            a(f'v_mfma_f32_32x32x16_bf16 v[{D[hd]}:{D[hd]+15}], v[{AF+8*hd+4}:{AF+8*hd+7}], v[{V_PHIQ+8*hd+4}:{V_PHIQ+8*hd+7}], v[{D[hd]}:{D[hd]+15}]')
        OB = 48
        for hd in range(2):
            d = D[hd]
            a(f'v_add_f32 v{d+8}, 0x358637bd, v{d+8}')
            a(f'v_rcp_f32 v{d+8}, v{d+8}')
            for r in range(0, 8, 2):
                a(f'v_pk_mul_f32 v[{d+r}:{d+r+1}], v[{d+r}:{d+r+1}], v[{d+8}:{d+9}] op_sel_hi:[1,0]')
            for r in range(0, 8, 2):
                a(f'v_cvt_pk_bf16_f32 v{OB+4*hd+r//2}, v{d+r}, v{d+r+1}')
        lf, le = self.lab('ofast'), self.lab('oend')
        a(f's_cmp_eq_u32 s{S_FAST}, 1')
        a(f's_cbranch_scc1 {lf}')
        for hd in range(2):
            a(f'global_store_dwordx4 v{W+3}, v[{OB+4*hd}:{OB+4*hd+3}], {WSB} offset:{hd*1024} sc1')
        a('s_waitcnt vmcnt(0)')
        self.flag_store(4 * L + 1, S_T0 + 8)
        a(f's_branch {le}')
        a.label(lf)
        for hd in range(2):
            a(f'global_store_dwordx4 v{W+3}, v[{OB+4*hd}:{OB+4*hd+3}], {WSB} offset:{hd*1024}')
        a('s_waitcnt vmcnt(0)')
        self.flag_store(4 * L + 1, S_T0 + 8, sc='')
        a.label(le)
        if L == 0:
            self.vm = []
            self.wo_setup(52, 53)
            for i in range(16): self.wo_dma(i, 52, 53)
        self.stamp(7 + 16 * L)

    WOB = 214
    @staticmethod
    def wo_blk(i): return i * 4096 if i < 22 else LDS_KC + (i - 22) * 4096
    def wo_setup(self, b=None, t=158):
        a = self.a
        if b is None: b = self.WOB
        a(f'v_lshrrev_b32 v{b}, 4, v{V_LANE}')
        a(f'v_lshlrev_b32 v{t}, 2, v{b}')
        a(f'v_and_b32 v{t+1}, 15, v{V_LANE}')
        a(f'v_xor_b32 v{t}, v{t}, v{t+1}')
        a(f'v_lshlrev_b32 v{t}, 4, v{t}')
        a(f's_lshl_b32 s{S_T0}, s{S_W}, 2')
        a(f'v_add_u32 v{b}, s{S_T0}, v{b}')
        a(f'v_lshl_add_u32 v{b}, v{b}, 10, v{t}')
        a(f's_lshl_b32 s{S_T0}, s{S_CB}, 8')
        a(f'v_add_u32 v{b}, s{S_T0}, v{b}')
    def wo_dma(self, i, base, tmp):
        a = self.a
        a(f'v_add_u32 v{tmp}, {i * 16 * 1024}, v{base}')
        a(f's_add_u32 m0, s{S_W1024}, {self.wo_blk(i)}')
        self.vm_op(f'global_load_lds_dwordx4 v{tmp}, s[{S_WO}:{S_WO+1}]', f'wo{i >> 4}')
    def wo_tr_addr(self, b):
        a = self.a
        t = b + 3
        a(f'v_bfe_u32 v{t}, v{V_LANE}, 2, 2')
        a(f'v_lshl_add_u32 v{b}, v{V_HH}, 2, v{t}')
        a(f'v_lshlrev_b32 v{b}, 8, v{b}')
        a(f'v_lshlrev_b32 v{t}, 2, v{t}')
        a(f'v_bfe_u32 v{t+1}, v{V_LANE}, 4, 1')
        a(f'v_lshlrev_b32 v{t+1}, 1, v{t+1}')
        a(f'v_bfe_u32 v{t+2}, v{V_LANE}, 1, 1')
        a(f's_lshl_b32 s{S_T0}, s{S_W}, 2')
        a(f'v_add3_u32 v{t+1}, v{t+1}, v{t+2}, s{S_T0}')
        a(f'v_xor_b32 v{t+1}, v{t+1}, v{t}')
        a(f'v_lshl_add_u32 v{b}, v{t+1}, 4, v{b}')
        a(f'v_and_b32 v{t+1}, 1, v{V_LANE}')
        a(f'v_lshl_add_u32 v{b}, v{t+1}, 3, v{b}')
        a(f'v_add_u32 v{b+1}, 65536, v{b}')
        a(f'v_add_u32 v{b+2}, {LDS_KC}, v{b}')
    def wo_tr(self, hg, b, tag=None):
        if hg < 16: r, off = b, hg * 4096
        elif hg < 22: r, off = b + 1, (hg - 16) * 4096
        else: r, off = b + 2, (hg - 22) * 4096
        for x in range(2):
            line = f'ds_read_b64_tr_b16 v[{128+4*hg+2*x}:{128+4*hg+2*x+1}], v{r} offset:{off + x * 2048}'
            if tag: self.lg_op(line, tag)
            else: self.a(line)

    def p2b(self, L):
        a = self.a; o = self.o
        a.c(f'================ P2b layer {L} ================')
        OT = LDS_KC if L == 0 else 0
        order = list(range(16, 32)) + list(range(16)) if L == 0 else list(range(32))
        a(f's_lshl_b32 s{S_T0+9}, s{S_T}, 4')
        T = V_P
        a(f's_lshl_b32 s{S_T0+4}, s{S_T}, 15')
        a(f's_add_u32 s{S_T0+4}, s{S_T0+4}, s{S_W1024}')
        a(f's_add_u32 s{S_T0+4}, s{S_T0+4}, {WS_O + L * 0x200000}')
        a(f'v_lshlrev_b32 v{T+2}, 4, v{V_LANE}')
        a(f'v_add_u32 v{T}, s{S_T0+4}, v{T+2}')
        if OT: a(f'v_add_u32 v{T+2}, {OT}, v{T+2}')
        TT = 88
        TR = 65536
        W1, R1, G1, A1 = 52, 53, 54, 55
        a(f'v_lshlrev_b32 v{W1}, 6, v{V_J}')
        a(f'v_lshl_add_u32 v{W1}, v{V_HH}, 3, v{W1}')
        a(f's_lshl_b32 s{S_T0}, s{S_W}, 11')
        a(f's_add_u32 s{S_T0}, s{S_T0}, {TR}')
        a(f'v_add_u32 v{W1}, s{S_T0}, v{W1}')
        a(f'v_lshrrev_b32 v{TT}, 4, v{V_LANE}')
        a(f'v_bfe_u32 v{R1}, v{V_LANE}, 2, 2')
        a(f'v_lshl_add_u32 v{R1}, v{TT}, {2 if o.s3t else 3}, v{R1}')
        a(f'v_lshlrev_b32 v{R1}, 6, v{R1}')
        a(f'v_and_b32 v{TT+1}, 3, v{V_LANE}')
        a(f'v_lshl_add_u32 v{R1}, v{TT+1}, 3, v{R1}')
        a(f'v_add_u32 v{R1}, s{S_T0}, v{R1}')
        a(f's_lshl_b32 s{S_T0}, s{S_CB}, 7')
        a(f's_lshl_b32 s{S_T0+1}, s{S_W}, 5')
        a(f's_add_u32 s{S_T0}, s{S_T0}, s{S_T0+1}')
        a(f's_lshl_b32 s{S_T0}, s{S_T0}, 12')
        a(f's_lshl_b32 s{S_T0+1}, s{S_T}, 6')
        a(f's_add_u32 s{S_T0}, s{S_T0}, s{S_T0+1}')
        a(f's_add_u32 s{S_T0}, s{S_T0}, {WS_X1T + L * 0x200000}')
        a(f'v_and_b32 v{G1}, 15, v{V_LANE}')
        a(f'v_lshlrev_b32 v{G1}, 12, v{G1}')
        a(f'v_lshl_add_u32 v{G1}, v{TT}, 4, v{G1}')
        a(f'v_add_u32 v{G1}, s{S_T0}, v{G1}')
        if o.s3t:
            a(f's_lshl_b32 s{S_T0}, s{S_CB}, 7')
            a(f's_lshl_b32 s{S_T0+1}, s{S_W}, 5')
            a(f's_add_u32 s{S_T0}, s{S_T0}, s{S_T0+1}')
            a(f's_lshl_b32 s{S_T0}, s{S_T0}, 13')
            a(f's_lshl_b32 s{S_T0+1}, s{S_T}, 7')
            a(f's_add_u32 s{S_T0}, s{S_T0}, s{S_T0+1}')
            a(f's_add_u32 s{S_T0}, s{S_T0}, {WS_X1G[L]}')
            a(f'v_and_b32 v{G1}, 15, v{V_LANE}')
            a(f'v_lshlrev_b32 v{G1}, 13, v{G1}')
            a(f'v_lshl_add_u32 v{G1}, v{TT}, 4, v{G1}')
            a(f'v_add_u32 v{G1}, s{S_T0}, v{G1}')
            a(f's_lshl_b32 s{S_T0}, s{S_W}, 8')
            a(f's_add_u32 s{S_T0}, s{S_T0}, {SC_RED}')
            a(f'v_lshlrev_b32 v{A1}, 2, v{V_LANE}')
            a(f'v_add_u32 v{A1}, s{S_T0}, v{A1}')
        else:
            a(f's_lshl_b32 s{S_T0}, s{S_T}, 7')
            a(f's_add_u32 s{S_T0}, s{S_T0}, {WS_STATS + L * 0x4000}')
            a(f'v_lshlrev_b32 v{A1}, 2, v{V_J}')
            a(f'v_lshl_add_u32 v{A1}, v{V_HH}, 13, v{A1}')
            a(f'v_add_u32 v{A1}, s{S_T0}, v{A1}')
        if L == 0: self.wo_tr_addr(112)
        if L == 0:
            pass
        self.wait(4 * L + 1, S_T0 + 9, 16, slp0=0)
        self.stamp(8 + 16 * L)
        pieces = [4, 5, 6, 7, 0, 1, 2, 3] if L == 0 else list(range(8))
        for i in pieces:
            a(f'v_add_u32 v{T+1}, {i * 4096}, v{T}')
            a(f's_add_u32 m0, s{S_W1024}, {OT + i * 4096}')
            self.vm_op(f'global_load_lds_dwordx4 v{T+1}, {WSB} sc1', f'o{pieces.index(i) >> 1}')
        FR, ACC, NB = 56, 72, 4
        self.lg = []
        def rd(n):
            hg = order[n]
            self.lg_op(f'ds_read_b128 v[{FR+4*(n%NB)}:{FR+4*(n%NB)+3}], v{T+2} offset:{hg*1024}', f'o{n}')
        self.wait_vm('o0'); a('s_barrier')
        for n in range(3): rd(n)
        woq = list(range(16)) if L == 0 else []
        for n in range(32):
            if n % 8 == 5 and n < 24:
                self.wait_vm(f'o{n // 8 + 1}'); a('s_barrier')
            if n + 3 < 32: rd(n + 3)
            if L == 0 and 6 <= n < 14:
                for _ in range(2): self.wo_tr(woq.pop(0), 112, 'wo')
            self.wait_lg(f'o{n}')
            hg = order[n]
            if L == 0 and n >= 16: self.wait_lg('wo')
            c = '0' if n == 0 else f'v[{ACC}:{ACC+15}]'
            a(f'v_mfma_f32_32x32x16_bf16 v[{ACC}:{ACC+15}], v[{128+4*hg}:{128+4*hg+3}], v[{FR+4*(n%NB)}:{FR+4*(n%NB)+3}], {c}')
        self.stamp(9 + 16 * L)
        X, U = 88, 96
        SS, SQ, ONES = 112 + 4, 113 + 4, 114 + 4
        a(f'v_mov_b32 v{SS}, 0'); a(f'v_mov_b32 v{SQ}, 0'); a(f'v_mov_b32 v{ONES}, 0x3f803f80')
        for g in range(8):
            u = U + 2 * (g & 1)
            a(f'v_lshlrev_b32 v{u}, 16, v{V_RESID+g}')
            a(f'v_and_b32 v{u+1}, 0xffff0000, v{V_RESID+g}')
            a(f'v_pk_add_f32 v[{ACC+2*g}:{ACC+2*g+1}], v[{ACC+2*g}:{ACC+2*g+1}], v[{u}:{u+1}]')
            a(f'v_cvt_pk_bf16_f32 v{X+g}, v{ACC+2*g}, v{ACC+2*g+1}')
            if g & 1: a(f'ds_write_b64 v{W1}, v[{X+g-1}:{X+g}] offset:{8*(g-1)}')
        for g in range(8):
            a(f'v_dot2c_f32_bf16 v{SS}, v{X+g}, v{ONES}')
            a(f'v_dot2c_f32_bf16 v{SQ}, v{X+g}, v{X+g}')
        if o.s3t: return self.p2b_tail_tagged(L, X, U, SS, SQ, R1, G1, A1)
        Y = 104
        a('s_waitcnt lgkmcnt(0)')
        for m in range(2):
            for x in range(2):
                a(f'ds_read_b64_tr_b16 v[{Y+4*m+2*x}:{Y+4*m+2*x+1}], v{R1} offset:{m*32 + x*256}')
        a(f'v_mov_b32 v{U}, v{SS}')
        a(f'v_mov_b32 v{U+1}, v{SQ}')
        a(f'v_permlane32_swap_b32 v{SS}, v{U}')
        a(f'v_permlane32_swap_b32 v{SQ}, v{U+1}')
        a(f'v_add_f32 v{SS}, v{SS}, v{U}')
        a(f'v_add_f32 v{SQ}, v{SQ}, v{U+1}')
        a(f'v_cmp_eq_u32 vcc, 0, v{V_HH}')
        a(f'v_cndmask_b32 v{SS}, v{SQ}, v{SS}, vcc')
        a(f'v_lshlrev_b32 v{U}, 2, v{V_LANE}')
        a(f's_lshl_b32 s{S_T0}, s{S_W}, 8')
        a(f's_add_u32 s{S_T0}, s{S_T0}, {SC_RED}')
        a(f'v_add_u32 v{U+1}, s{S_T0}, v{U}')
        a(f'ds_write_b32 v{U+1}, v{SS}')
        a(f'v_add_u32 v{T}, {16 * 4096}, v{G1}')
        a('s_waitcnt lgkmcnt(3)')
        a(f'global_store_dwordx4 v{G1}, v[{Y}:{Y+3}], {WSB} sc1')
        a('s_waitcnt lgkmcnt(1)')
        a(f'global_store_dwordx4 v{T}, v[{Y+4}:{Y+7}], {WSB} sc1')
        a('s_waitcnt lgkmcnt(0)')
        a('s_barrier')
        l = self.lab('at')
        a(f's_cmp_lg_u32 s{S_W}, 0')
        a(f's_cbranch_scc1 {l}')
        a(f'v_add_u32 v{U}, {SC_RED}, v{U}')
        for w in range(4): a(f'ds_read_b32 v{U+2+w}, v{U} offset:{w*256}')
        a('s_waitcnt lgkmcnt(0)')
        a(f'v_add_f32 v{U+2}, v{U+2}, v{U+3}')
        a(f'v_add_f32 v{U+4}, v{U+4}, v{U+5}')
        a(f'v_add_f32 v{U+2}, v{U+2}, v{U+4}')
        a(f'global_atomic_add_f32 v{A1}, v{U+2}, {WSB}')
        a.label(l)
        self.signal_wg(4 * L + 2, S_WG)
        self.stamp(10 + 16 * L)

    def p2b_tail_tagged(self, L, X, U, SS, SQ, R1, G1, A1):
        a = self.a; o = self.o
        T = V_P
        a(f'v_mov_b32 v{U}, v{SS}')
        a(f'v_mov_b32 v{U+1}, v{SQ}')
        a(f'v_permlane32_swap_b32 v{SS}, v{U}')
        a(f'v_permlane32_swap_b32 v{SQ}, v{U+1}')
        a(f'v_add_f32 v{SS}, v{SS}, v{U}')
        a(f'v_add_f32 v{SQ}, v{SQ}, v{U+1}')
        a(f'v_cmp_eq_u32 vcc, 0, v{V_HH}')
        a(f'v_cndmask_b32 v{SS}, v{SQ}, v{SS}, vcc')
        a(f'ds_write_b32 v{A1}, v{SS}')
        Q = 56
        a('s_waitcnt lgkmcnt(1)')
        for m in range(2):
            for x in range(2):
                q = Q + 8*m + 4*x
                a(f'ds_read_b64_tr_b16 v[{q}:{q+1}], v{R1} offset:{m*32 + x*1024}')
        a('s_waitcnt lgkmcnt(4)')
        a('s_barrier')
        lw, le = self.lab('p2w'), self.lab('p2e')
        def x1_stores():
            a('s_waitcnt lgkmcnt(0)')
            for i in range(4):
                q = Q + 4*i
                a(f'v_mov_b32 v{q+2}, v{q+1}')
                a(f'v_mov_b32 v{q+1}, s{S_NONCE}')
                a(f'v_mov_b32 v{q+3}, s{S_NONCE}')
            a(f'v_add_u32 v{T}, {16 * 8192}, v{G1}')
            a(f'global_store_dwordx4 v{G1}, v[{Q}:{Q+3}], {WSB} sc1')
            a(f'global_store_dwordx4 v{G1}, v[{Q+4}:{Q+7}], {WSB} offset:64 sc1')
            a(f'global_store_dwordx4 v{T}, v[{Q+8}:{Q+11}], {WSB} sc1')
            a(f'global_store_dwordx4 v{T}, v[{Q+12}:{Q+15}], {WSB} offset:64 sc1')
        a(f's_cmp_lg_u32 s{S_W}, 0')
        a(f's_cbranch_scc1 {lw}')
        a(f'v_lshlrev_b32 v{U}, 2, v{V_LANE}')
        a(f'v_add_u32 v{U}, {SC_RED}, v{U}')
        for w in range(4): a(f'ds_read_b32 v{U+2+w}, v{U} offset:{w*256}')
        a(f's_lshl_b32 s{S_T0}, s{S_T}, 11')
        a(f's_add_u32 s{S_T0}, s{S_T0}, {WS_ST4 + L * 0x20000}')
        a(f'v_lshlrev_b32 v{U+1}, 3, v{V_LANE}')
        a(f'v_add_u32 v{U+1}, s{S_T0}, v{U+1}')
        a(f's_lshl_b32 s{S_T0+1}, s{S_CB}, 9')
        a(f'v_add_u32 v{U}, s{S_T0+1}, v{U+1}')
        a('s_waitcnt lgkmcnt(0)')
        a(f'v_add_f32 v{U+2}, v{U+2}, v{U+3}')
        a(f'v_add_f32 v{U+4}, v{U+4}, v{U+5}')
        a(f'v_add_f32 v{U+2}, v{U+2}, v{U+4}')
        lc = self.lab('cbn')
        a(f's_cmp_lg_u32 s{S_CB}, 0')
        a(f's_cbranch_scc0 {lc}')
        a(f'v_mov_b32 v{U+3}, s{S_NONCE}')
        lf, lg = self.lab('stf'), self.lab('stg')
        a(f's_cmp_eq_u32 s{S_FAST}, 1')
        a(f's_cbranch_scc1 {lf}')
        a(f'global_store_dwordx2 v{U}, v[{U+2}:{U+3}], {WSB} sc1')
        a(f's_branch {lg}')
        a.label(lf)
        a(f'global_store_dwordx2 v{U}, v[{U+2}:{U+3}], {WSB}' + (' sc1' if o.x1 == 1 else ''))
        a.label(lg)
        if o.x1 == 2: a('s_waitcnt vmcnt(0)')
        a(f's_branch {lw}')
        a.label(lc)
        lp, ld = self.lab('st4p'), self.lab('st4d')
        P = 72
        a(f's_mov_b32 s{S_T0+2}, 0')
        if o.slp4: a(f's_sleep {o.slp4}')
        a.label(lp)
        for c in range(1, 4):
            a(f'global_load_dwordx2 v[{P+2*c}:{P+2*c+1}], v{U+1}, {WSB} offset:{c*512} sc1')
        a(f's_add_u32 s{S_T0+2}, s{S_T0+2}, 1')
        a(f's_cmp_gt_u32 s{S_T0+2}, {o.spin}')
        a(f's_cbranch_scc1 {ld}')
        a('s_waitcnt vmcnt(0)')
        a(f'v_sad_u32 v{P}, v{P+3}, s{S_NONCE}, 0')
        a(f'v_sad_u32 v{P}, v{P+5}, s{S_NONCE}, v{P}')
        a(f'v_sad_u32 v{P}, v{P+7}, s{S_NONCE}, v{P}')
        a(f'v_cmp_ne_u32 vcc, 0, v{P}')
        a(f's_cbranch_vccz {ld}')
        a(f's_sleep {o.slp}')
        a(f's_branch {lp}')
        a.label(ld)
        a('s_waitcnt vmcnt(0)')
        a(f'v_add_f32 v{U+2}, v{U+2}, v{P+2}')
        a(f'v_add_f32 v{P+4}, v{P+4}, v{P+6}')
        a(f'v_add_f32 v{U+2}, v{U+2}, v{P+4}')
        a(f'v_mov_b32 v{U+3}, v{U+2}')
        a(f'v_permlane32_swap_b32 v{U+2}, v{U+3}')
        a(f'v_mul_f32 v{U+2}, 0x3b000000, v{U+2}')
        a(f'v_mul_f32 v{U+3}, 0x3b000000, v{U+3}')
        a(f'v_fma_f32 v{U+3}, -v{U+2}, v{U+2}, v{U+3}')
        a(f'v_max_f32 v{U+3}, 0, v{U+3}')
        self.rbf(U + 3, U + 3)
        a(f'v_add_f32 v{U+3}, 0x3727c5ac, v{U+3}')
        self.rbf(U + 3, U + 3)
        a(f'v_sqrt_f32 v{U+3}, v{U+3}')
        a(f'v_cvt_pk_bf16_f32 v{U+2}, v{U+2}, v{U+3}')
        a(f'v_mov_b32 v{U+3}, s{S_NONCE}')
        a(f's_lshl_b32 s{S_T0}, s{S_T}, 8')
        a(f's_add_u32 s{S_T0}, s{S_T0}, {WS_STATS + L * 0x4000}')
        a(f'v_lshlrev_b32 v{U}, 3, v{V_J}')
        a(f'v_add_u32 v{U}, s{S_T0}, v{U}')
        a('s_mov_b32 exec_lo, -1'); a('s_mov_b32 exec_hi, 0')
        a(f'global_store_dwordx2 v{U}, v[{U+2}:{U+3}], {WSB} sc1')
        a('s_mov_b64 exec, -1')
        a.label(lw)
        a('s_barrier')
        x1_stores()
        a('s_barrier')
        self.stamp(10 + 16 * L)

    def exp_acc(self, dst, src, t):
        a = self.a
        a(f'v_mul_f32 v{t}, {hex(LOG2E)}, v{src}')
        a(f'v_mov_b32 v{t+1}, {hex(LOG2E)}')
        a(f'v_fma_f32 v{t+1}, v{src}, v{t+1}, -v{t}')
        a(f'v_fmac_f32 v{t+1}, 0x32a57060, v{src}')
        a(f'v_exp_f32 v{dst}, v{t}')
        a(f'v_mul_f32 v{t+1}, 0x3f317218, v{t+1}')
        a(f'v_fmac_f32 v{dst}, v{dst}, v{t+1}')

    def cis_pow(self, dst, ar2, rev, p, t):
        a = self.a
        import struct
        pf = hex(struct.unpack('<I', struct.pack('<f', float(p)))[0])
        a(f'v_mul_f32 v{t}, {pf}, v{ar2}')
        a(f'v_exp_f32 v{t}, v{t}')
        a(f'v_mul_f32 v{t+1}, {pf}, v{rev}')
        a(f'v_fract_f32 v{t+1}, v{t+1}')
        a(f'v_cos_f32 v{dst}, v{t+1}')
        a(f'v_sin_f32 v{dst+1}, v{t+1}')
        a(f'v_mul_f32 v{dst}, v{dst}, v{t}')
        a(f'v_mul_f32 v{dst+1}, v{dst+1}, v{t}')

    def cmul(self, d, x, y):
        a = self.a
        a(f'v_pk_mul_f32 v[{d}:{d+1}], v[{x}:{x+1}], v[{y}:{y+1}] op_sel_hi:[0,1]')
        a(f'v_pk_fma_f32 v[{d}:{d+1}], v[{x}:{x+1}], v[{y}:{y+1}], v[{d}:{d+1}] op_sel:[1,1,0] op_sel_hi:[1,0,1] neg_lo:[0,1,0]')

    KG_A = 0
    KG_B = 33792
    KG_MX = 55968
    KG_D = 148480
    KP = 36
    def kgen_loads(self):
        a = self.a
        T, KP = 54, self.KP
        a(f's_lshl_b32 s{S_T0}, s{S_C0}, 8')
        a(f'v_lshlrev_b32 v{T}, 1, v{V_TID}')
        a(f'v_add_u32 v{T}, s{S_T0}, v{T}')
        a(f'global_load_ushort v{KP}, v{T}, s[{S_LOGA}:{S_LOGA+1}]')
        a(f'global_load_ushort v{KP+1}, v{T}, s[{S_AIM}:{S_AIM+1}]')
        a(f'global_load_ushort v{KP+2}, v{T}, s[{S_CRE}:{S_CRE+1}]')
        a(f'global_load_ushort v{KP+3}, v{T}, s[{S_CIM}:{S_CIM+1}]')
        a(f'v_lshrrev_b32 v{T+1}, 7, v{V_TID}')
        a(f'v_add_u32 v{T+1}, s{S_C0}, v{T+1}')
        a(f'v_lshlrev_b32 v{T+1}, 1, v{T+1}')
        a(f'global_load_ushort v{KP+4}, v{T+1}, s[{S_LOGDT}:{S_LOGDT+1}]')
        a(f'v_xor_b32 v{T}, 128, v{T}')
        a(f'global_load_ushort v{KP+5}, v{T}, s[{S_CRE}:{S_CRE+1}]')
        a(f'global_load_ushort v{KP+6}, v{T}, s[{S_CIM}:{S_CIM+1}]')
        a(f's_lshl_b32 s{S_T0}, s{S_C0}, 1')
        a(f's_add_u32 s{S_T0+2}, s{S_DSK}, s{S_T0}')
        a(f's_addc_u32 s{S_T0+3}, s{S_DSK+1}, 0')
        a(f's_load_dword s{S_DSKV}, s[{S_T0+2}:{S_T0+3}], 0')

    KT = 160
    def cmul_p(self, d, x, y):
        a = self.a
        a(f'v_mul_f32 v{d}, v{x}, v{y}')
        a(f'v_mul_f32 v{d+1}, v{x}, v{y+1}')
        a(f'v_fma_f32 v{d}, -v{x+1}, v{y+1}, v{d}')
        a(f'v_fmac_f32 v{d+1}, v{x+1}, v{y}')
    def kgen_a(self):
        a = self.a
        KP, KT = self.KP, self.KT
        T = 216
        LA, AI, CR, CI, LD, DT, EA, AR2, REV, MX = 218, 219, 220, 221, 222, 223, 224, 225, 226, 227
        for i, r in enumerate((LA, AI, CR, CI, LD)): a(f'v_lshlrev_b32 v{r}, 16, v{KP+i}')
        self.exp_acc(DT, LD, T); self.rbf(DT, DT)
        self.exp_acc(EA, LA, T); self.rbf(EA, EA)
        a(f'v_mul_f32 v{AR2}, v{EA}, v{DT}')
        a(f'v_mul_f32 v{AR2}, {hex(LOG2E ^ 0x80000000)}, v{AR2}')
        a(f'v_mul_f32 v{REV}, v{AI}, v{DT}')
        a(f'v_mul_f32 v{REV}, 0.15915494, v{REV}')
        a(f'v_lshlrev_b32 v{T}, 16, v{KP+5}')
        a(f'v_lshlrev_b32 v{T+1}, 16, v{KP+6}')
        a(f'v_max_f32 v{MX}, |v{CR}|, |v{CI}|')
        a(f'v_max3_f32 v{MX}, |v{T}|, |v{T+1}|, v{MX}')
        for ctrl in ('row_ror:1', 'row_ror:2', 'row_ror:4', 'row_ror:8'):
            a(f'v_mov_b32_dpp v{T}, v{MX} {ctrl} row_mask:0xf bank_mask:0xf')
            a(f'v_max_f32 v{MX}, v{MX}, v{T}')
        a(f'v_mov_b32 v{T}, v{MX}')
        a(f'v_permlane16_swap_b32 v{MX}, v{T}')
        a(f'v_max_f32 v{MX}, v{MX}, v{T}')
        a(f'v_mov_b32 v{T}, v{MX}')
        a(f'v_permlane32_swap_b32 v{MX}, v{T}')
        a(f'v_max_f32 v{MX}, v{MX}, v{T}')
        a(f'v_lshrrev_b32 v{MX}, 23, v{MX}')
        a(f'v_max_u32 v{MX}, 1, v{MX}')
        a(f'v_min_u32 v{MX}, 253, v{MX}')
        a(f'v_sub_u32 v{T+1}, 254, v{MX}')
        a(f'v_lshlrev_b32 v{T+1}, 23, v{T+1}')
        a(f'v_lshlrev_b32 v{T}, 23, v{MX}')
        a(f'v_mul_f32 v{T}, v{T}, v{DT}')
        a(f'v_mul_f32 v{KT+53}, 0x3d000000, v{T}')
        C = CR
        a(f'v_mul_f32 v{C}, v{C}, v{T+1}')
        a(f'v_mul_f32 v{C+1}, v{C+1}, v{T+1}')
        Z1, Z8, Z256 = 228, 230, 232
        self.cis_pow(Z1, AR2, REV, 1, T)
        self.cis_pow(Z8, AR2, REV, 8, T)
        self.cis_pow(Z256, AR2, REV, 256, T)
        P0, P1 = 234, 236
        cmul = self.cmul
        a(f'v_mov_b32 v{P0}, 1.0'); a(f'v_mov_b32 v{P0+1}, 0')
        cur, nxt = P0, P1
        for b in range(32):
            a(f'v_cvt_pkrtz_f16_f32 v{KT+b}, v{cur}, -v{cur+1}')
            if b < 31:
                cmul(nxt, cur, Z8); cur, nxt = nxt, cur
        def putB(col, r): a(f'v_cvt_pkrtz_f16_f32 v{KT+32+col}, v{r}, v{r+1}')
        Z2, Z4, Z6 = 238, 240, 242
        cmul(Z2, Z1, Z1); cmul(Z4, Z2, Z2); cmul(Z6, Z4, Z2)
        putB(0, C)
        cur, nxt = P0, P1
        cmul(cur, C, Z1); putB(1, cur)
        for k in range(2, 8):
            cmul(nxt, cur, Z1); cur, nxt = nxt, cur; putB(k, cur)
        G, G2, W1 = 244, 246, 248
        cmul(G, C, Z256); putB(8, G)
        for k, zz in ((9, Z2), (10, Z4), (11, Z6)):
            cmul(W1, G, zz); putB(k, W1)
        cmul(G2, G, Z256)
        putB(12, G2); cmul(W1, G2, Z4); putB(13, W1)
        cmul(G, G2, Z256)
        putB(14, G); cmul(W1, G, Z4); putB(15, W1)
        cmul(G2, G, Z256); putB(16, G2)
        cmul(G, G2, Z256); putB(17, G)
        cmul(G2, G, Z256); putB(18, G2)
        cmul(G, G2, Z256); putB(19, G)
        cmul(G2, G, Z256); putB(20, G2)

    def kgen_tables_to_lds(self):
        a = self.a
        T, KT = V_P, self.KT
        TA, TB = T + 2, T + 3
        a(f'v_lshrrev_b32 v{T}, 7, v{V_TID}')
        a(f'v_and_b32 v{T+1}, 127, v{V_TID}')
        a(f'v_lshlrev_b32 v{T+1}, 2, v{T+1}')
        a(f'v_mul_u32_u24 v{TA}, 16896, v{T}')
        a(f'v_add_u32 v{TA}, v{TA}, v{T+1}')
        a(f'v_mul_u32_u24 v{TB}, 11088, v{T}')
        a(f'v_add3_u32 v{TB}, v{TB}, v{T+1}, 0')
        for b in range(0, 32, 2):
            a(f'v_add_u32 v{T+1}, {self.KG_A + b * 528}, v{TA}')
            a(f'ds_write2_b32 v{T+1}, v{KT+b}, v{KT+b+1} offset0:0 offset1:132')
        for c in range(0, 20, 2):
            a(f'v_add_u32 v{T+1}, {self.KG_B + c * 528}, v{TB}')
            a(f'ds_write2_b32 v{T+1}, v{KT+32+c}, v{KT+32+c+1} offset0:0 offset1:132')
        a(f'ds_write_b32 v{TB}, v{KT+32+20} offset:{self.KG_B + 20 * 528}')
        a(f'v_lshlrev_b32 v{T}, 2, v{T}')
        a(f'ds_write_b32 v{T}, v{KT+53} offset:{self.KG_MX + 32}')
        a('s_waitcnt lgkmcnt(0)')

    def kgen_b(self):
        a = self.a; o = self.o
        a.c('================ K generation: contraction over modes ================')
        T = V_P
        a('s_barrier')
        AA, BA = T, T + 1
        a(f'v_and_b32 v{T+2}, 15, v{V_LANE}')
        a(f'v_lshrrev_b32 v{T+3}, 4, v{V_LANE}')
        a(f'v_lshlrev_b32 v{T+3}, 4, v{T+3}')
        a(f'v_mul_u32_u24 v{AA}, 528, v{T+2}')
        a(f'v_add_u32 v{AA}, v{AA}, v{T+3}')
        a(f's_mul_i32 s{S_T0}, s{S_HSEL}, 16896')
        a(f'v_add_u32 v{AA}, s{S_T0}, v{AA}')
        a(f's_lshl_b32 s{S_T0+1}, s{S_RHALF}, 4')
        a(f'v_add_u32 v{BA}, s{S_T0+1}, v{T+2}')
        a(f'v_min_u32 v{BA}, 20, v{BA}')
        a(f'v_mul_u32_u24 v{BA}, 528, v{BA}')
        a(f'v_add_u32 v{BA}, v{BA}, v{T+3}')
        a(f's_mul_i32 s{S_T0}, s{S_HSEL}, 11088')
        a(f's_add_u32 s{S_T0}, s{S_T0}, {self.KG_B}')
        a(f'v_add_u32 v{BA}, s{S_T0}, v{BA}')
        FA, FB, DD = 56, 88, 104
        def rdk(ks):
            st = ks & 1
            a(f'ds_read_b128 v[{FA+8*st}:{FA+8*st+3}], v{AA} offset:{self.KG_A + ks * 64}')
            a(f'ds_read_b128 v[{FA+8*st+4}:{FA+8*st+7}], v{AA} offset:{self.KG_A + 16 * 528 + ks * 64}')
            a(f'ds_read_b128 v[{FB+4*st}:{FB+4*st+3}], v{BA} offset:{ks * 64}')
        rdk(0)
        for ks in range(8):
            if ks + 1 < 8:
                rdk(ks + 1); a('s_waitcnt lgkmcnt(3)')
            else:
                a('s_waitcnt lgkmcnt(0)')
            st = ks & 1
            for mb in range(2):
                c = '0' if ks == 0 else f'v[{DD+4*mb}:{DD+4*mb+3}]'
                a(f'v_mfma_f32_16x16x32_f16 v[{DD+4*mb}:{DD+4*mb+3}], v[{FA+8*st+4*mb}:{FA+8*st+4*mb+3}], v[{FB+4*st}:{FB+4*st+3}], {c}')
        self.hop2_addr(0); self.hop2_loads()
        for hg in range(16, 32): self.wo_tr(hg, 112)
        COL, P2 = T, T + 1
        a(f'v_and_b32 v{COL}, 15, v{V_LANE}')
        a(f's_lshl_b32 s{S_T0}, s{S_RHALF}, 4')
        a(f'v_add_u32 v{COL}, s{S_T0}, v{COL}')
        t2, t3 = T + 2, T + 3
        a(f'v_mov_b32 v{P2}, v{COL}')
        a(f'v_lshlrev_b32 v{t2}, 1, v{COL}'); a(f'v_add_u32 v{t2}, {256 - 16}, v{t2}')
        a(f'v_cmp_le_u32 vcc, 8, v{COL}'); a(f'v_cndmask_b32 v{P2}, v{P2}, v{t2}, vcc')
        a(f'v_and_b32 v{t2}, 1, v{COL}'); a(f'v_lshlrev_b32 v{t2}, 2, v{t2}')
        a(f'v_bfe_u32 v{t3}, v{COL}, 1, 1'); a(f'v_lshlrev_b32 v{t3}, 8, v{t3}')
        a(f'v_add3_u32 v{t2}, v{t2}, v{t3}, 0'); a(f'v_add_u32 v{t2}, 512, v{t2}')
        a(f'v_cmp_le_u32 vcc, 12, v{COL}'); a(f'v_cndmask_b32 v{P2}, v{P2}, v{t2}, vcc')
        a(f'v_lshlrev_b32 v{t2}, 8, v{COL}'); a(f'v_add_u32 v{t2}, {1024 - 4096 + 0x100000}, v{t2}'); a(f'v_and_b32 v{t2}, 0xfffff, v{t2}')
        a(f'v_cmp_le_u32 vcc, 16, v{COL}'); a(f'v_cndmask_b32 v{P2}, v{P2}, v{t2}, vcc')
        a(f'v_lshrrev_b32 v{t2}, 4, v{V_LANE}')
        a(f'v_lshl_add_u32 v{t2}, v{t2}, 5, v{P2}')
        a(f'v_lshlrev_b32 v{t2}, 1, v{t2}')
        a(f's_mul_i32 s{S_T0}, s{S_HSEL}, 4112')
        a(f's_add_u32 s{S_T0}, s{S_T0}, {self.KG_D}')
        a(f'v_add_u32 v{t2}, s{S_T0}, v{t2}')
        for i in range(8):
            a(f'v_mul_f32 v{DD+i}, 0x42800000, v{DD+i}')
            a(f'v_cvt_f16_f32 v{DD+i}, v{DD+i}')
        a(f'v_cmp_gt_u32 vcc, 20, v{COL}')
        a(f's_and_saveexec_b64 s[{S_T0+2}:{S_T0+3}], vcc')
        for mb in range(2):
            for r in range(4):
                a(f'ds_write_b16 v{t2}, v{DD+4*mb+r} offset:{(128*mb + 8*r) * 2}')
        a(f's_mov_b64 exec, s[{S_T0+2}:{S_T0+3}]')
        a(f'v_cmp_eq_u32 vcc, 20, v{COL}')
        a(f'v_lshrrev_b32 v{t3}, 4, v{V_LANE}')
        a(f'v_cmp_eq_u32 s[{S_T0+4}:{S_T0+5}], 0, v{t3}')
        a(f's_and_b64 vcc, vcc, s[{S_T0+4}:{S_T0+5}]')
        a(f's_and_saveexec_b64 s[{S_T0+2}:{S_T0+3}], vcc')
        a(f'ds_write_b16 v{t2}, v{DD}')
        a(f's_mov_b64 exec, s[{S_T0+2}:{S_T0+3}]')
        a(f'v_mov_b32 v{T}, {self.KG_MX + 32}')
        a(f'ds_read_b64 v[{T+2}:{T+3}], v{T}')
        a('s_waitcnt lgkmcnt(0)')
        a(f'v_readfirstlane_b32 s{S_KSC}, v{T+2}')
        a(f'v_readfirstlane_b32 s{S_KSC+1}, v{T+3}')
        a('s_barrier')

    def kgen_b2(self):
        a = self.a; o = self.o
        T = V_P
        LL = 56
        for i in range(12):
            a(f'v_lshlrev_b32 v{T}, 3, v{V_TID}')
            a(f'v_add_u32 v{T}, {i - 4 + 0}, v{T}') if i >= 4 else a(f'v_subrev_u32 v{T}, {4 - i}, v{T}')
            a(f'v_max_i32 v{T}, 0, v{T}')
            a(f'v_cvt_f32_u32 v{T}, v{T}')
            self.rbf(T, T)
            a(f'v_cvt_u32_f32 v{T}, v{T}')
            a(f'v_lshlrev_b32 v{LL+i}, 1, v{T}')
            a(f'v_add_u32 v{LL+i}, {self.KG_D}, v{LL+i}')
        GT = 72
        for ch in range(2):
            for i in range(12):
                a(f'ds_read_u16 v{GT + 12*ch + i}, v{LL+i} offset:{ch * 4112}')
        a('s_waitcnt lgkmcnt(0)')
        for ch in range(2):
            for i in range(6):
                a(f'v_lshl_or_b32 v{V_K + 6*ch + i}, v{GT + 12*ch + 2*i + 1}, 16, v{GT + 12*ch + 2*i}')
        a(f'v_cmp_eq_u32 vcc, 0, v{V_TID}')
        for ch in range(2):
            for i in range(2):
                a(f'v_cndmask_b32 v{V_K+6*ch+i}, v{V_K+6*ch+i}, 0, vcc') if False else a(f'v_cndmask_b32 v{V_K+6*ch+i}, v{V_K+6*ch+i}, v{self.zero_reg()}, vcc')
        if o.dump == 'kgen': self.dump(V_K, 12, 0)

    def zero_reg(self):
        self.a(f'v_mov_b32 v119, 0')
        return 119

    CV_KC = LDS_KC
    CV_U = 512
    CV_X1 = 9728
    CV_EX = 17920
    def k_copies(self, T=V_P, W=56):
        a = self.a
        a.c('K shifted copies -> LDS')
        AD = T
        a(f'v_lshlrev_b32 v{AD}, 4, v{V_TID}')
        a(f'v_add_u32 v{AD}, {self.CV_KC + 32}, v{AD}')
        for ch in range(2):
            d = V_K + 6 * ch
            base = ch * 16640
            a(f'ds_write_b128 v{AD}, v[{d+2}:{d+5}] offset:{base}')
            for i in range(4): a(f'v_mov_b32 v{W+i}, v{d+1+i}')
            a(f'ds_write_b128 v{AD}, v[{W}:{W+3}] offset:{base + 2*4160}')
            for i in range(5): a(f'v_alignbit_b32 v{W+4+i}, v{d+i+1}, v{d+i}, 16')
            a(f'ds_write_b128 v{AD}, v[{W+4}:{W+7}] offset:{base + 3*4160}')
            for i in range(4): a(f'v_mov_b32 v{W+10+i}, v{W+5+i}')
            a(f'ds_write_b128 v{AD}, v[{W+10}:{W+13}] offset:{base + 1*4160}')
        for i in range(4): a(f'v_mov_b32 v{W+i}, 0')
        a(f'v_lshrrev_b32 v{T+1}, 1, v{V_TID}')
        a(f'v_mul_u32_u24 v{T+1}, 4160, v{T+1}')
        a(f'v_and_b32 v{T+2}, 1, v{V_TID}')
        a(f'v_lshl_add_u32 v{T+1}, v{T+2}, 4, v{T+1}')
        a(f'v_add_u32 v{T+1}, {self.CV_KC}, v{T+1}')
        a(f'v_cmp_gt_u32 vcc, 16, v{V_TID}')
        a(f's_and_saveexec_b64 s[{S_T0+2}:{S_T0+3}], vcc')
        a(f'ds_write_b128 v{T+1}, v[{W}:{W+3}]')
        a(f's_mov_b64 exec, s[{S_T0+2}:{S_T0+3}]')

    def u_pad_zero(self):
        a = self.a
        T, W = V_P, 56
        for i in range(4): a(f'v_mov_b32 v{W+i}, 0')
        a(f'v_lshrrev_b32 v{T+1}, 5, v{V_TID}')
        a(f'v_mul_u32_u24 v{T+1}, 4608, v{T+1}')
        a(f'v_and_b32 v{T+2}, 31, v{V_TID}')
        a(f'v_lshl_add_u32 v{T+1}, v{T+2}, 4, v{T+1}')
        a(f'v_add_u32 v{T+1}, {self.CV_U}, v{T+1}')
        l = self.lab('up')
        a(f's_cmp_lg_u32 s{S_W}, 0')
        a(f's_cbranch_scc1 {l}')
        a(f'ds_write_b128 v{T+1}, v[{W}:{W+3}]')
        a.label(l)

    def conv(self, L):
        a = self.a; o = self.o
        a.c(f'================ conv layer {L} ================')
        if L == 0:
            self.kgen_b2()
            if o.s3t: self.k_copies()
        self.u_pad_zero()
        T = V_P
        XR, SM, SQ = 48, 56, 64
        GA = 112
        a(f's_lshl_b32 s{S_T0}, s{S_C0}, 12')
        a(f's_add_u32 s{S_T0}, s{S_T0}, {WS_X1T + L * 0x200000}')
        a(f'v_lshlrev_b32 v{GA}, 4, v{V_TID}')
        a(f'v_add_u32 v{GA}, s{S_T0}, v{GA}')
        a(f'v_add_u32 v{GA+1}, 4096, v{GA}')
        a(f'v_lshlrev_b32 v{GA+2}, 5, v{V_TID}')
        a(f'v_add_u32 v{GA+2}, {WS_STATS + L * 0x4000}, v{GA+2}')
        a(f'v_add_u32 v{GA+3}, 8192, v{GA+2}')
        AA, BA = 24, 25
        a(f'v_bfe_u32 v{T+2}, v{V_LANE}, 2, 2')
        a(f'v_mul_u32_u24 v{AA}, 4160, v{T+2}')
        a(f'v_lshrrev_b32 v{T+2}, 4, v{V_LANE}')
        a(f'v_lshlrev_b32 v{T+3}, 4, v{T+2}')
        a(f'v_sub_u32 v{AA}, v{AA}, v{T+3}')
        a(f'v_and_b32 v{T+4}, 3, v{V_LANE}')
        a(f'v_lshl_add_u32 v{AA}, v{T+4}, 3, v{AA}')
        a(f's_mul_i32 s{S_T0}, s{S_HSEL}, 16640')
        a(f's_lshl_b32 s{S_T0+1}, s{S_RHALF}, 8')
        a(f's_add_u32 s{S_T0}, s{S_T0}, s{S_T0+1}')
        a(f's_add_u32 s{S_T0}, s{S_T0}, {self.CV_KC + 32}')
        a(f'v_add_u32 v{AA}, s{S_T0}, v{AA}')
        a(f'v_and_b32 v{BA}, 15, v{V_LANE}')
        a(f'v_lshlrev_b32 v{BA}, 5, v{BA}')
        a(f'v_add_u32 v{BA}, v{BA}, v{T+3}')
        a(f's_mul_i32 s{S_T0}, s{S_HSEL}, 4608')
        a(f's_add_u32 s{S_T0}, s{S_T0}, {self.CV_U}')
        a(f's_lshl_b32 s{S_T0+1}, s{S_RHALF}, 8')
        a(f's_sub_u32 s{S_T0}, s{S_T0}, s{S_T0+1}')
        a(f'v_add_u32 v{BA}, s{S_T0}, v{BA}')
        EXW, EXR, LA2, GS = 26, 27, 28, 29
        a(f'v_lshlrev_b32 v{T+2}, 4, v{V_LANE}')
        a(f's_lshl_b32 s{S_T0}, s{S_W}, 13')
        a(f's_add_u32 s{S_T0}, s{S_T0}, {self.CV_EX}')
        a(f'v_add_u32 v{EXW}, s{S_T0}, v{T+2}')
        a(f's_lshl_b32 s{S_T0}, s{S_W}, 11')
        a(f's_add_u32 s{S_T0}, s{S_T0}, {self.CV_EX}')
        a(f'v_add_u32 v{EXR}, s{S_T0}, v{T+2}')
        a(f'v_and_b32 v{T+2}, 15, v{V_LANE}')
        a(f'v_lshlrev_b32 v{T+2}, 4, v{T+2}')
        a(f'v_lshrrev_b32 v{T+3}, 4, v{V_LANE}')
        a(f'v_lshl_add_u32 v{T+2}, v{T+3}, 2, v{T+2}')
        a(f's_lshl_b32 s{S_T0}, s{S_W}, 9')
        a(f'v_add_u32 v{T+2}, s{S_T0}, v{T+2}')
        a(f'v_lshlrev_b32 v{LA2}, 1, v{T+2}')
        if L == 0:
            a(f's_lshl_b32 s{S_T0+2}, s{S_C0}, 12')
            a(f's_add_u32 s{S_T0+2}, s{S_T0+2}, {WS_X2T}')
            a(f'v_add_u32 v{GS}, s{S_T0+2}, v{LA2}')
            a(f'v_add_u32 v{GS+1}, 4096, v{GS}')
        else:
            a(f's_lshl_b32 s{S_T0+2}, s{S_C0}, 1')
            a(f'v_lshlrev_b32 v{GS}, 10, v{T+2}')
            a(f'v_add_u32 v{GS}, s{S_T0+2}, v{GS}')
        if o.s3t:
            self.conv_pro_tagged(L)
        else:
            self.conv_pro_flag(L, GA, XR, SM, SQ)
        ACC, BF, AF = 48, 80, [12, 16, 20, 112, 116]
        NA = len(AF)
        self.lg = []
        def readB(ee, m):
            e = 1 + 2 * ee
            d = BF + 4 * m
            self.lg_op(f'ds_read_b128 v[{d}:{d+3}], v{BA} offset:{512 + 512*m - 32*e}', f'B{ee}_{m}')
        def readA(idx):
            ee, g = seq[idx]
            e = 1 + 2 * ee
            sl = AF[idx % NA]
            for x in range(2):
                self.lg_op(f'ds_read_b64_tr_b16 v[{sl+2*x}:{sl+2*x+1}], v{AA} offset:{32*e + 512*g - 8*x}', f'A{idx}')
        seq = [(ee, g) for ee in range(4) for g in range(8)]
        readA(0)
        for m in range(7, -1, -1): readB(0, m)
        for i in range(1, NA - 1): readA(i)
        first = set()
        for idx, (ee, g) in enumerate(seq):
            if idx + NA - 1 < len(seq): readA(idx + NA - 1)
            self.wait_lg(f'A{idx}')
            sl = AF[idx % NA]
            for n in range(7, g - 1, -1):
                m = n - g
                if g == 0: self.wait_lg(f'B{ee}_{m}')
                acc = ACC + 4 * n
                c = f'v[{acc}:{acc+3}]' if n in first else '0'
                first.add(n)
                a(f'v_mfma_f32_16x16x32_f16 v[{acc}:{acc+3}], v[{sl}:{sl+3}], v[{BF+4*m}:{BF+4*m+3}], {c}')
                if n == 7 and ee + 1 < 4: readB(ee + 1, m)
        self.stamp(13 + 16 * L)
        T = 12
        EXW, EXR, LA2, GS = 26, 27, 28, 29
        for n in range(7, -1, -1):
            a(f'ds_write_b128 v{EXW}, v[{ACC+4*n}:{ACC+4*n+3}] offset:{n*1024}')
        XX, UU = 80, 88
        for nn in range(2):
            for ch in range(2):
                a(f'ds_read_b64 v[{XX+4*nn+2*ch}:{XX+4*nn+2*ch+1}], v{LA2} offset:{self.CV_X1 + ch*4096 + nn*512}')
                a(f'ds_read_b64 v[{UU+4*nn+2*ch}:{UU+4*nn+2*ch+1}], v{LA2} offset:{self.CV_U + ch*4608 + 512 + nn*512}')
        a(f's_lshl_b32 s{S_T0}, s{S_DSKV}, 16')
        a(f's_and_b32 s{S_T0+1}, s{S_DSKV}, 0xffff0000')
        a('s_waitcnt lgkmcnt(0)')
        a('s_barrier')
        Y = 48
        for nn in range(2):
            for ch in range(2):
                for eh in range(2):
                    a(f'ds_read_b128 v[{Y+16*nn+8*ch+4*eh}:{Y+16*nn+8*ch+4*eh+3}], v{EXR} offset:{(ch + 2*eh) * 8192 + nn * 1024}')
        R = 96
        def pre(nn, ch, h, e):
            a = self.a
            res = R + 8*nn + 4*ch + 2*h
            xr, ur = XX + 4*nn + 2*ch + h, UU + 4*nn + 2*ch + h
            a(f'v_cvt_f32_f16 v{e}, v{ur}')
            a(f'v_cvt_f32_f16_sdwa v{e+1}, v{ur} dst_sel:DWORD dst_unused:UNUSED_PAD src0_sel:WORD_1')
            a(f'v_lshlrev_b32 v{res}, 16, v{xr}')
            a(f'v_and_b32 v{res+1}, 0xffff0000, v{xr}')
            a(f'v_fmac_f32 v{res}, s{S_T0+ch}, v{e}')
            a(f'v_fmac_f32 v{res+1}, s{S_T0+ch}, v{e+1}')
        for nn in range(2):
            for ch in range(2):
                self.merge(self.cap(lambda: pre(nn, ch, 0, 112)), self.cap(lambda: pre(nn, ch, 1, 114)))
        E = 116
        for nn in range(2):
            a(f's_waitcnt lgkmcnt({4 - 4*nn})')
            for ch in range(2):
                y0, y1 = Y + 16*nn + 8*ch, Y + 16*nn + 8*ch + 4
                res = R + 8*nn + 4*ch
                for h in range(2):
                    a(f'v_pk_add_f32 v[{y0+2*h}:{y0+2*h+1}], v[{y0+2*h}:{y0+2*h+1}], v[{y1+2*h}:{y1+2*h+1}]')
                for i in range(4):
                    a(f'v_fmac_f32 v{res+i}, s{S_KSC+ch}, v{y0+i}')
                if L == 0:
                    e = E + 2 * (ch & 1)
                    a(f'v_cvt_pk_bf16_f32 v{e}, v{res}, v{res+1}')
                    a(f'v_cvt_pk_bf16_f32 v{e+1}, v{res+2}, v{res+3}')
                    a(f'global_store_dwordx2 v{GS+ch}, v[{e}:{e+1}], {WSB} offset:{nn*512} sc1')
            if L == 1:
                for r in range(4):
                    a(f'v_cvt_pk_bf16_f32 v{E+(r&3)}, v{R+8*nn+r}, v{R+8*nn+4+r}')
                    a(f'v_add_u32 v{T+6+(r&1)}, {(256*nn + r) * 1024}, v{GS}')
                    a(f'global_store_dword v{T+6+(r&1)}, v{E+(r&3)}, s[{S_OUT}:{S_OUT+1}]{o.osc}')
        if L == 0: self.signal_wg(4 * L + 3, S_WG)
        self.stamp(14 + 16 * L)

    def conv_pro_flag(self, L, GA, XR, SM, SQ):
        a = self.a; o = self.o
        T = V_P
        K5, EP = 72, 74
        a(f'v_mov_b32 v{K5}, 0x3b000000'); a(f'v_mov_b32 v{K5+1}, 0x3b000000')
        a(f'v_mov_b32 v{EP}, 0x3727c5ac'); a(f'v_mov_b32 v{EP+1}, 0x3727c5ac')
        a('s_waitcnt lgkmcnt(0)')
        self.wait(4 * L + 2, None, 256, slp0=(0 if L == 0 else o.s3))
        self.stamp(11 + 16 * L)
        a(f'global_load_dwordx4 v[{SM}:{SM+3}], v{GA+2}, {WSB} sc1')
        a(f'global_load_dwordx4 v[{SQ}:{SQ+3}], v{GA+3}, {WSB} sc1')
        a(f'global_load_dwordx4 v[{SM+4}:{SM+7}], v{GA+2}, {WSB} offset:16 sc1')
        a(f'global_load_dwordx4 v[{SQ+4}:{SQ+7}], v{GA+3}, {WSB} offset:16 sc1')
        a(f'global_load_dwordx4 v[{XR}:{XR+3}], v{GA}, {WSB} sc1')
        a(f'global_load_dwordx4 v[{XR+4}:{XR+7}], v{GA+1}, {WSB} sc1')
        if L == 0: self.k_copies(T=96, W=100)
        if L == 0:
            l = self.lab('nonce')
            a(f's_add_u32 s{S_T0}, s{S_WG}, s{S_W}')
            a(f's_cmp_lg_u32 s{S_T0}, 0')
            a(f's_cbranch_scc1 {l}')
            a(f'v_mov_b32 v126, {WS_NONCE}')
            a(f'v_mov_b32 v127, s{S_NONCE}')
            a('s_mov_b64 exec, 1')
            a(f'global_store_dword v126, v127, {WSB} sc1')
            a('s_mov_b64 exec, -1')
            a.label(l)
        def rb2(r, u):
            a = self.a
            a(f'v_cvt_pk_bf16_f32 v{u}, v{r}, v{r+1}')
            a(f'v_lshlrev_b32 v{r}, 16, v{u}')
            a(f'v_and_b32 v{r+1}, 0xffff0000, v{u}')
        def fin(p, u):
            a = self.a
            m, q = SM + p, SQ + p
            a(f'v_pk_mul_f32 v[{m}:{m+1}], v[{m}:{m+1}], v[{K5}:{K5+1}]')
            a(f'v_pk_mul_f32 v[{q}:{q+1}], v[{q}:{q+1}], v[{K5}:{K5+1}]')
            a(f'v_pk_fma_f32 v[{q}:{q+1}], v[{m}:{m+1}], v[{m}:{m+1}], v[{q}:{q+1}] neg_lo:[1,0,0] neg_hi:[1,0,0]')
            a(f'v_max_f32 v{q}, 0, v{q}'); a(f'v_max_f32 v{q+1}, 0, v{q+1}')
            rb2(m, u); rb2(q, u)
            a(f'v_pk_add_f32 v[{q}:{q+1}], v[{q}:{q+1}], v[{EP}:{EP+1}]')
            rb2(q, u)
            a(f'v_sqrt_f32 v{q}, v{q}'); a(f'v_sqrt_f32 v{q+1}, v{q+1}')
            rb2(q, u)
            a(f'v_rcp_f32 v{q}, v{q}'); a(f'v_rcp_f32 v{q+1}, v{q+1}')
        a('s_waitcnt vmcnt(4)') if L == 1 else a('s_waitcnt vmcnt(4)')
        self.merge(self.cap(lambda: fin(0, 76)), self.cap(lambda: fin(2, 77)))
        a('s_waitcnt vmcnt(2)') if L == 1 else a('s_waitcnt vmcnt(0)')
        self.merge(self.cap(lambda: fin(4, 76)), self.cap(lambda: fin(6, 77)))
        a('s_waitcnt vmcnt(0)')
        UO, E = 80, 88
        def elem(ch, p, e, u):
            a = self.a
            x = XR + 4 * ch + p
            m, q = SM + 2 * p, SQ + 2 * p
            a(f'v_lshlrev_b32 v{e}, 16, v{x}')
            a(f'v_and_b32 v{e+1}, 0xffff0000, v{x}')
            a(f'v_pk_add_f32 v[{e}:{e+1}], v[{e}:{e+1}], v[{m}:{m+1}] neg_lo:[0,1] neg_hi:[0,1]')
            if not o.trim: rb2(e, u)
            a(f'v_pk_mul_f32 v[{e}:{e+1}], v[{e}:{e+1}], v[{q}:{q+1}]')
            if not o.trim: rb2(e, u)
            if o.trim:
                a(f'v_cvt_f16_f32 v{e}, v{e}')
                a(f'v_cvt_f16_f32 v{e+1}, v{e+1}')
                a(f'v_lshl_or_b32 v{UO+4*ch+p}, v{e+1}, 16, v{e}')
            else:
                a(f'v_cvt_pkrtz_f16_f32 v{UO+4*ch+p}, v{e}, v{e+1}')
        a(f'v_lshlrev_b32 v{GA}, 4, v{V_TID}')
        for ch in range(2):
            a(f'ds_write_b128 v{GA}, v[{XR+4*ch}:{XR+4*ch+3}] offset:{self.CV_X1 + ch*4096}')
        for ch in range(2):
            for p in range(0, 4, 2):
                self.merge(self.cap(lambda: elem(ch, p, E, 76)), self.cap(lambda: elem(ch, p + 1, E + 2, 77)))
            a(f'ds_write_b128 v{GA}, v[{UO+4*ch}:{UO+4*ch+3}] offset:{self.CV_U + ch*4608 + 512}')
        a('s_waitcnt lgkmcnt(0)')
        a('s_barrier')
        self.stamp(12 + 16 * L)

    def nonce_handover(self):
        a = self.a
        l = self.lab('nonce')
        a(f's_add_u32 s{S_T0}, s{S_WG}, s{S_W}')
        a(f's_cmp_lg_u32 s{S_T0}, 0')
        a(f's_cbranch_scc1 {l}')
        a(f'v_mov_b32 v126, {WS_NONCE}')
        a(f'v_mov_b32 v127, s{S_NONCE}')
        a('s_mov_b64 exec, 1')
        a(f'global_store_dword v126, v127, {WSB} sc1')
        a('s_mov_b64 exec, -1')
        a.label(l)
    def conv_pro_tagged(self, L):
        a = self.a; o = self.o
        XR, SR, GA = 48, 64, 112
        a(f's_lshl_b32 s{S_T0}, s{S_C0}, 13')
        a(f's_add_u32 s{S_T0}, s{S_T0}, {WS_X1G[L]}')
        a(f'v_lshlrev_b32 v{GA}, 5, v{V_TID}')
        a(f'v_add_u32 v{GA}, s{S_T0}, v{GA}')
        a(f'v_add_u32 v{GA+1}, 8192, v{GA}')
        a(f'v_lshlrev_b32 v{GA+2}, 6, v{V_TID}')
        a(f'v_add_u32 v{GA+2}, {WS_STATS + L * 0x4000}, v{GA+2}')
        a(f'v_lshlrev_b32 v{GA+3}, 4, v{V_TID}')
        a('s_waitcnt lgkmcnt(0)')
        l0, lq, lr = self.lab('s3w'), self.lab('s3q'), self.lab('s3r')
        a(f's_cmp_lg_u32 s{S_W}, 0')
        a(f's_cbranch_scc1 {l0}')
        a(f'v_lshlrev_b32 v126, 8, v{V_LANE}')
        a(f'v_add_u32 v126, {WS_STATS + L * 0x4000 + 31 * 8 + 4}, v126')
        a(f's_mov_b32 s{S_T0+2}, 0')
        a('s_waitcnt vmcnt(0)')
        if o.slp3 and L == 1: a(f's_sleep {o.slp3}')
        a.label(lq)
        a(f'global_load_dword v127, v126, {WSB} sc1')
        a(f's_add_u32 s{S_T0+2}, s{S_T0+2}, 1')
        a(f's_cmp_gt_u32 s{S_T0+2}, {o.spin}')
        a(f's_cbranch_scc1 {lr}')
        a('s_waitcnt vmcnt(0)')
        a(f'v_cmp_ne_u32 vcc, s{S_NONCE}, v127')
        a(f's_cbranch_vccz {lr}')
        if o.slp: a(f's_sleep {o.slp}')
        a(f's_branch {lq}')
        a.label(lr)
        a('s_waitcnt vmcnt(0)')
        a.label(l0)
        a('s_barrier')
        lp, ld = self.lab('s3p'), self.lab('s3d')
        a(f's_mov_b32 s{S_T0+2}, 0')
        a.label(lp)
        for i in range(4): a(f'global_load_dwordx4 v[{SR+4*i}:{SR+4*i+3}], v{GA+2}, {WSB} offset:{16*i} sc1')
        for ch in range(2):
            for i in range(2): a(f'global_load_dwordx4 v[{XR+8*ch+4*i}:{XR+8*ch+4*i+3}], v{GA+ch}, {WSB} offset:{16*i} sc1')
        a(f's_add_u32 s{S_T0+2}, s{S_T0+2}, 1')
        a(f's_cmp_gt_u32 s{S_T0+2}, {o.spin}')
        a(f's_cbranch_scc1 {ld}')
        a('s_waitcnt vmcnt(4)')
        a(f'v_sad_u32 v80, v{SR+1}, s{S_NONCE}, 0')
        for r in range(3, 16, 2): a(f'v_sad_u32 v80, v{SR+r}, s{S_NONCE}, v80')
        a('s_waitcnt vmcnt(0)')
        for r in range(1, 16, 2): a(f'v_sad_u32 v80, v{XR+r}, s{S_NONCE}, v80')
        a('v_cmp_ne_u32 vcc, 0, v80')
        a(f's_cbranch_vccz {ld}')
        if o.slp: a(f's_sleep {o.slp}')
        a(f's_branch {lp}')
        a.label(ld)
        a('s_waitcnt vmcnt(0)')
        self.stamp(11 + 16 * L)
        if L == 0: self.nonce_handover()
        for ch in range(2):
            b = XR + 8 * ch
            a(f'v_mov_b32 v{b+1}, v{b+2}'); a(f'v_mov_b32 v{b+2}, v{b+4}'); a(f'v_mov_b32 v{b+3}, v{b+6}')
            a(f'ds_write_b128 v{GA+3}, v[{b}:{b+3}] offset:{self.CV_X1 + ch*4096}')
        M0, R0 = 80, 88
        for p in range(8):
            a(f'v_and_b32 v{R0+p}, 0xffff0000, v{SR+2*p}')
            a(f'v_lshlrev_b32 v{M0+p}, 16, v{SR+2*p}')
        for p in range(8): a(f'v_rcp_f32 v{R0+p}, v{R0+p}')
        UO = 96
        def elem(ch, p, e):
            a = self.a
            x = XR + 8 * ch + p
            m, q = M0 + 2 * p, R0 + 2 * p
            a(f'v_lshlrev_b32 v{e}, 16, v{x}')
            a(f'v_and_b32 v{e+1}, 0xffff0000, v{x}')
            a(f'v_pk_add_f32 v[{e}:{e+1}], v[{e}:{e+1}], v[{m}:{m+1}] neg_lo:[0,1] neg_hi:[0,1]')
            a(f'v_pk_mul_f32 v[{e}:{e+1}], v[{e}:{e+1}], v[{q}:{q+1}]')
            a(f'v_cvt_f16_f32 v{e}, v{e}')
            a(f'v_cvt_f16_f32 v{e+1}, v{e+1}')
            a(f'v_lshl_or_b32 v{UO+4*ch+p}, v{e+1}, 16, v{e}')
        for ch in range(2):
            for p in range(0, 4, 2):
                self.merge(self.cap(lambda: elem(ch, p, 104)), self.cap(lambda: elem(ch, p + 1, 106)))
            a(f'ds_write_b128 v{GA+3}, v[{UO+4*ch}:{UO+4*ch+3}] offset:{self.CV_U + ch*4608 + 512}')
        a('s_waitcnt lgkmcnt(0)')
        a('s_barrier')
        self.stamp(12 + 16 * L)

    def kvt_zero(self, T):
        a = self.a
        for i in range(4): a(f'v_mov_b32 v{T+4+i}, 0')
        a(f'v_lshlrev_b32 v{T}, 4, v{V_TID}')
        a(f'v_add_u32 v{T}, {SC_KVT}, v{T}')
        a(f'ds_write_b128 v{T}, v[{T+4}:{T+7}]')
        a(f'ds_write_b128 v{T}, v[{T+4}:{T+7}] offset:4096')
        l = self.lab('kz')
        a(f's_cmp_gt_u32 s{S_W}, 1')
        a(f's_cbranch_scc1 {l}')
        a(f'ds_write_b128 v{T}, v[{T+4}:{T+7}] offset:8192')
        a.label(l)

    def stats_zero(self, T):
        a = self.a
        a(f'v_bfe_u32 v{T}, v{V_LANE}, 2, 1')
        a(f'v_lshlrev_b32 v{T}, 14, v{T}')
        a(f'v_bfe_u32 v{T+1}, v{V_LANE}, 1, 1')
        a(f'v_lshl_add_u32 v{T}, v{T+1}, 13, v{T}')
        a(f'v_and_b32 v{T+1}, 1, v{V_LANE}')
        a(f'v_lshl_add_u32 v{T}, v{T+1}, 2, v{T}')
        a(f's_lshl_b32 s{S_T0}, s{S_RB}, 8')
        a(f's_lshl_b32 s{S_T0+1}, s{S_HSEL}, 7')
        a(f's_add_u32 s{S_T0}, s{S_T0}, s{S_T0+1}')
        a(f's_lshl_b32 s{S_T0+1}, s{S_HB}, 4')
        a(f's_add_u32 s{S_T0}, s{S_T0}, s{S_T0+1}')
        a(f's_lshl_b32 s{S_T0+1}, s{S_RHALF}, 3')
        a(f's_add_u32 s{S_T0}, s{S_T0}, s{S_T0+1}')
        a(f's_add_u32 s{S_T0}, s{S_T0}, {WS_STATS}')
        a(f'v_add_u32 v{T}, s{S_T0}, v{T}')
        a(f'v_mov_b32 v{T+1}, 0')
        a('s_mov_b64 exec, 0xff')
        a(f'global_store_dword v{T}, v{T+1}, {WSB} sc1')
        a('s_mov_b64 exec, -1')

    def build(self):
        a = self.a; o = self.o
        self.trk_reset()
        self.prologue()
        stop = o.stop
        def chk(name):
            if stop == name:
                a('s_waitcnt vmcnt(0) lgkmcnt(0)')
                a('s_branch L_end')
                return True
            return False
        WB = 148
        KVA, QA = 44, 47
        self.w_dma_setup(WB)
        if o.rot: self.rot_setup()
        self.XD = 152
        self.x_dma_setup(0, self.XD)
        self.prologue2()
        self.stamp(0)
        self.vm = []
        self.kgen_loads(); self.vm += ['kg'] * 7
        self.x_slice_prefetch(0); self.vm.append('pf')
        self.w_dma(1, 0, WB, 'kva')
        for i in range(4): self.w_dma_one(2, 0, i, WB, 'kva')
        if o.pt:
            sh = o.pt
            a(f'v_lshlrev_b32 v122, {sh}, v{V_TID}')
            a(f'v_min_u32 v122, {0x1400000 - 4}, v122')
            a(f'v_cmp_gt_u32 vcc, {min((0x1400000 >> sh), 256)}, v{V_TID}')
            a(f's_and_saveexec_b64 s[{S_T0+2}:{S_T0+3}], vcc')
            l = self.lab('pt')
            a(f's_cbranch_execz {l}')
            a(f'global_load_dword a250, v122, {WSB}')
            a.label(l)
            a(f's_mov_b64 exec, s[{S_T0+2}:{S_T0+3}]')
            a(f'v_mov_b32 v122, 0')
            a(f's_mov_b64 exec, 1')
            a(f'global_load_dword a249, v122, s[{S_OUT}:{S_OUT+1}]')
            a(f'global_load_dword a248, v122, s[{S_WO}:{S_WO+1}]')
            a(f's_mov_b64 exec, -1')
        if not o.s3t:
            self.stats_zero(54); self.vm.append('sz')
        a('s_waitcnt lgkmcnt(0)')
        a(f's_add_u32 s{S_NONCE}, s{S_NONCE}, 0x9e3779b9')
        a(f's_getreg_b32 s{S_XCC}, hwreg(HW_REG_XCC_ID)')
        a(f's_and_b32 s{S_XCC}, s{S_XCC}, 15')
        a(f's_lshl_b32 s{S_T0}, s{S_RB}, 6')
        a(f's_lshl_b32 s{S_T0+1}, s{S_HB}, 3')
        a(f's_add_u32 s{S_T0}, s{S_T0}, s{S_T0+1}')
        a(f's_add_u32 s{S_T0}, s{S_T0}, {WS_XT}')
        a(f'v_mov_b32 v54, s{S_T0}')
        a(f'v_mov_b32 v126, s{S_XCC}')
        a(f'v_mov_b32 v127, s{S_NONCE}')
        a('s_mov_b64 exec, 1')
        self.vm_op(f'global_store_dwordx2 v54, v[126:127], {WSB} sc1', 'xt')
        a('s_mov_b64 exec, -1')
        self.wait_vm('kg')
        def rest():
            for i in range(4, 8): self.w_dma_one(2, 0, i, WB, 'kva')
            for c in range(4):
                for i in range(2): self.dma_x(0, c, i)
            self.w_dma(1, 1, WB, 'kvb')
            for c in range(4, 8):
                for i in range(2): self.dma_x(0, c, i)
        s_dma = self.cap(rest)
        def other():
            self.wfrag_addr(KVA, QA, 56)
            self.cs_sel(self.SELR)
            self.bfrag_setup(0, self.XB)
            self.st_setup(0)
            self.kv_addr_setup(0)
            self.kgen_a()
        s_kg = self.cap(other)
        grp, cur = [], []
        for l in s_dma:
            cur.append(l)
            if 'global_load_lds' in l: grp.append(cur); cur = []
        per = (len(s_kg) + len(grp) - 1) // len(grp)
        for i, t3 in enumerate(grp):
            a.lines += t3
            a.lines += s_kg[i * per:(i + 1) * per]
        self.wphi_load(156); self.vm += ['wphi'] * 16
        self.stamp(16)
        CSKV = 28
        for L in range(2):
            self.lg = []
            if L == 0:
                self.kv_pass0(WB, KVA, QA, self.SELR, CSKV)
            else:
                self.XD = 28
                self.x_dma_setup(1, self.XD)
                self.bfrag_setup(1, self.XB)
                self.st_setup(1)
                self.wait(3, None, 256, slp0=o.s4)
                self.stamp(15)
                self.vm = []
                self.x_slice_prefetch(1); self.vm.append('pf')
                for c in range(4):
                    for i in range(2): self.dma_x(1, c, i)
                self.kv_addr_setup(1)
                self.kv_pass1()
            self.kv_epilogue(L, cs_kv_reg=CSKV)
            self.q_pass(L)
            if chk(f'p1_{L}'): break
            self.o_stage(L)
            if chk(f'o_{L}'): break
            self.p2b(L)
            if chk(f'p2b_{L}'): break
            self.conv(L)
            if chk(f'conv_{L}'): break
        a.label('L_end')
        a('s_endpgm')

HEADER = open('cdna_kernels/' + KNAME + '.s.ref').read().split('; Override launch geometry')[0]

def main():
    ap = argparse.ArgumentParser()
    ap.add_argument('--out', default='cdna_kernels/' + KNAME + '.s')
    ap.add_argument('--stop', default='')
    ap.add_argument('--dump', default='')
    ap.add_argument('--stamps', action='store_true')
    ap.add_argument('--spin', type=int, default=40000)
    ap.add_argument('--pt', type=int, default=0)
    ap.add_argument('--fast2', action='store_true')
    ap.add_argument('--wpf', action='store_true')
    ap.add_argument('--early1', action='store_true')
    ap.add_argument('--h1l0', action='store_true')
    ap.add_argument('--osc', default='')
    ap.add_argument('--lite', action='store_true')
    ap.add_argument('--s3', type=int, default=12)
    ap.add_argument('--s4', type=int, default=12)
    ap.add_argument('--h1k', type=int, default=32)
    ap.add_argument('--slp4', type=int, default=10)
    ap.add_argument('--x1', type=int, default=0)
    ap.add_argument('--s3t', action='store_true')
    ap.add_argument('--slp3', type=int, default=16)
    ap.add_argument('--pmode', type=int, default=0)
    ap.add_argument('--trim', action='store_true')
    ap.add_argument('--rot', action='store_true')
    ap.add_argument('--fsh', type=int, default=6)
    ap.add_argument('--slp', type=int, default=0)
    ap.add_argument('--slp0', type=int, default=0)
    ap.add_argument('--slph', type=int, default=0)
    o = ap.parse_args()
    g = Gen(o)
    g.build()
    g.a.lines = to_buffer(g.a.lines, WSB, f's[{S_WSRD}:{S_WSRD+3}]')
    g.a.lines = to_buffer(g.a.lines, f's[{S_OUT}:{S_OUT+1}]', f's[{S_OSRD}:{S_OSRD+3}]')
    body = g.a.text()
    txt = HEADER
    txt += '; Persistent fused kernel: 256 workgroups (one per CU), generated by gen/gen2.py\n'
    txt += '; @launch grid=(256,1,1) block=(256,1,1) lds=163840\n'
    txt += '.amdgcn_target "amdgcn-amd-amdhsa--gfx950"\n.text\n'
    txt += f'.globl {KNAME}_kernel\n.p2align 8\n.type {KNAME}_kernel,@function\n{KNAME}_kernel:\n'
    txt += body
    txt += f'''.section .rodata,"a"
.p2align 6
.amdhsa_kernel {KNAME}_kernel
  .amdhsa_next_free_vgpr 512
  .amdhsa_next_free_sgpr 100
  .amdhsa_accum_offset 256
  .amdhsa_group_segment_fixed_size 0
  .amdhsa_kernarg_size 112
  .amdhsa_user_sgpr_count 2
  .amdhsa_user_sgpr_kernarg_segment_ptr 1
  .amdhsa_system_sgpr_workgroup_id_x 1
  .amdhsa_float_denorm_mode_32 3
.end_amdhsa_kernel
'''
    open(o.out, 'w').write(txt)
    print('wrote', o.out, len(txt), 'bytes;', body.count('\n'), 'lines')

if __name__ == '__main__':
    main()
```

```python
import sys, argparse, struct
sys.path.insert(0, 'gen')
from asmlib import Asm, to_buffer

KNAME = 'interleave_layers__linear_kernel_hedgehog__ssm_conv_s4d__prompt'

WS_NONCE = 0
WS_FLAGS = 0x80000
WS_STATS = 0x40000
WS_KVR   = 0x50000
WS_ST4   = 0x580000
WS_X1G   = (0xA00000, 0x1000000)
WS_XT    = 0x78000
WS_KVP   = 0x100000
KVP_L    = 0x240000
KVB      = 9216
WS_O     = 0x600000
WS_X1T   = 0xA00000
WS_X2T   = 0xE00000
WS_DBG   = 0x2000000

LDS_WK, LDS_WV, LDS_WQ = 65536, 98304, 131072
SC_PHI   = 65536
PHI_W    = 4352
SC_V     = SC_PHI + 4 * PHI_W
SC_ST    = SC_V + 8192
SC_RED   = SC_ST + 1024
SC_KVT   = SC_RED + 2048
KVT_ROW  = 80
KVT_HEAD = 32 * KVT_ROW
SC_CS    = SC_KVT + 4 * KVT_HEAD
SC_END   = SC_CS + 768
LDS_KC   = 106496
assert SC_END <= LDS_KC, SC_END
LDS_FREE = LDS_KC + 33280

S_X, S_WQKV, S_WPHI, S_WO = 4, 6, 8, 10
S_LOGA, S_AIM, S_CRE, S_CIM = 12, 14, 16, 18
S_LOGDT, S_DSK, S_OUT, S_WS, S_DBG = 20, 22, 24, 26, 28
S_W, S_XCD, S_JL, S_RB, S_HB, S_T, S_CB, S_C0, S_NONCE = 30, 31, 32, 33, 34, 35, 36, 37, 38
S_W1024, S_HSEL, S_RHALF, S_WG = 39, 40, 41, 42
S_T0 = 44
S_KSC = 64
S_DSKV = 66
S_SLOT1 = 67
S_FAST = 68
S_XCC = 69
S_WSRD = 88
S_OSRD = 92
S_ROT = 70

V_TID, V_LANE, V_HH, V_J = 0, 1, 2, 3
V_WPHI = 4
V_RESID = 12
V_PHIQ = 20
V_K = 36
V_P = 48
LOG2E = 0x3fb8aa3b
WSB = f's[{S_WS}:{S_WS+1}]'

def f2h(x): return hex(struct.unpack('<I', struct.pack('<f', float(x)))[0])

class Gen:
    def __init__(self, opts):
        self.a = Asm(); self.o = opts; self.uid = 0
    def lab(self, s):
        self.uid += 1
        return f'L_{s}_{self.uid}'
    def cap(self, fn):
        old = self.a; self.a = Asm(); fn(); lines = self.a.lines; self.a = old
        return lines
    def merge(self, *streams):
        n = max(len(s) for s in streams)
        pos = [0] * len(streams)
        for i in range(n):
            for k, s in enumerate(streams):
                want = (i + 1) * len(s) // n
                while pos[k] < want:
                    self.a.lines.append(s[pos[k]]); pos[k] += 1

    def dump(self, reg, n, slot, tmp=126):
        a = self.a
        a(f's_lshl_b32 s60, s{S_WG}, 10')
        a(f'v_lshlrev_b32 v{tmp}, 2, v{V_TID}')
        a(f'v_add_u32 v{tmp}, s60, v{tmp}')
        for i in range(n):
            a(f'v_add_u32 v{tmp+1}, {WS_DBG + (slot + i) * 256 * 256 * 4}, v{tmp}')
            a(f'global_store_dword v{tmp+1}, v{reg+i}, {WSB}')
        a('s_waitcnt vmcnt(0)')

    def stamp(self, idx):
        if self.o.lite and idx not in (0, 30): return
        if not (self.o.stamps or self.o.lite): return
        a = self.a
        a('s_memrealtime s[60:61]')
        a('s_memtime s[58:59]')
        a('s_waitcnt lgkmcnt(0)')
        a('v_mov_b32 v124, s60'); a('v_mov_b32 v125, s61'); a('v_mov_b32 v126, s58'); a('v_mov_b32 v127, s59')
        a(f's_lshl_b32 s62, s{S_WG}, 12')
        a(f's_lshl_b32 s63, s{S_W}, 10')
        a('s_add_u32 s62, s62, s63')
        a(f's_add_u32 s62, s62, {WS_DBG + 0x4000000 + idx * 16}')
        a('v_mov_b32 v123, s62')
        a('s_mov_b64 s[56:57], exec')
        a('s_mov_b64 exec, 1')
        a(f'global_store_dwordx4 v123, v[124:127], {WSB}')
        a('s_mov_b64 exec, s[56:57]')
        self.nstamp_vm = 1

    def dbgval(self, idx, sgpr):
        if not self.o.stamps: return
        a = self.a
        a(f'v_mov_b32 v124, s{sgpr}'); a('v_mov_b32 v125, 0'); a('v_mov_b32 v126, 0'); a('v_mov_b32 v127, 0')
        a(f's_lshl_b32 s62, s{S_WG}, 12')
        a(f's_lshl_b32 s63, s{S_W}, 10')
        a('s_add_u32 s62, s62, s63')
        a(f's_add_u32 s62, s62, {WS_DBG + 0x4000000 + idx * 16}')
        a('v_mov_b32 v123, s62')
        a('s_mov_b64 s[56:57], exec')
        a('s_mov_b64 exec, 1')
        a(f'global_store_dwordx4 v123, v[124:127], {WSB}')
        a('s_mov_b64 exec, s[56:57]')

    def prologue(self):
        a = self.a
        a('s_cmp_ge_u32 s2, 256')
        a('s_cbranch_scc1 L_end')
        a('s_load_dwordx8 s[4:11], s[0:1], 0')
        a('s_load_dwordx2 s[26:27], s[0:1], 104')
        a('s_load_dwordx8 s[12:19], s[0:1], 40')
        a('s_load_dwordx4 s[20:23], s[0:1], 72')
        a('s_load_dwordx2 s[24:25], s[0:1], 88')
        a(f's_mov_b32 s{S_WG}, s2')
        a(f'v_and_b32 v{V_LANE}, 63, v0')
        a('s_getpc_b64 s[56:57]')
        a.label('L_pc')
        a('s_lshr_b32 s58, s2, 3')
        a('s_mul_i32 s58, s58, (L_end-L_pc)/32+128')
        a(f'v_lshlrev_b32 v4, 3, v0')
        a('v_add_u32 v4, s58, v4')
        a('v_min_u32 v4, L_end-L_pc-8, v4')
        a('global_load_dwordx2 a[252:253], v4, s[56:57]')
        a(f'v_lshrrev_b32 v{V_HH}, 6, v0')
        a('s_nop 0')
        a(f'v_readfirstlane_b32 s{S_W}, v{V_HH}')
        a(f'v_lshrrev_b32 v{V_HH}, 5, v{V_LANE}')
        a(f'v_and_b32 v{V_J}, 31, v{V_LANE}')
        a(f's_and_b32 s{S_XCD}, s2, 7')
        a(f's_lshr_b32 s{S_JL}, s2, 3')
        a(f's_and_b32 s{S_T0}, s{S_JL}, 3')
        a(f's_lshl_b32 s{S_RB}, s{S_XCD}, 2')
        a(f's_add_u32 s{S_RB}, s{S_RB}, s{S_T0}')
        a(f's_lshr_b32 s{S_HB}, s{S_JL}, 2')
        a(f's_and_b32 s{S_T0}, s{S_HB}, 1')
        a(f's_lshl_b32 s{S_T}, s{S_RB}, 1')
        a(f's_add_u32 s{S_T}, s{S_T}, s{S_T0}')
        a(f's_lshr_b32 s{S_CB}, s{S_HB}, 1')
        a(f's_lshl_b32 s{S_C0}, s{S_XCD}, 6')
        a(f's_lshl_b32 s{S_T0}, s{S_JL}, 1')
        a(f's_add_u32 s{S_C0}, s{S_C0}, s{S_T0}')
        a(f's_lshl_b32 s{S_W1024}, s{S_W}, 10')
        a(f's_and_b32 s{S_HSEL}, s{S_W}, 1')
        a(f's_lshr_b32 s{S_RHALF}, s{S_W}, 1')
        a(f's_lshl_b32 s{S_SLOT1}, s{S_HB}, 5')
        a(f's_add_u32 s{S_SLOT1}, s{S_SLOT1}, s{S_RB}')
    def prologue2(self):
        a = self.a
        a('s_waitcnt lgkmcnt(0)')
        a(f's_load_dword s{S_NONCE}, {WSB}, {WS_NONCE}')
        a(f's_mov_b32 s{S_WSRD}, s{S_WS}')
        a(f's_and_b32 s{S_WSRD+1}, s{S_WS+1}, 0xffff')
        a(f's_mov_b32 s{S_WSRD+2}, 0x10000000')
        a(f's_mov_b32 s{S_WSRD+3}, 0x20000')
        a(f's_mov_b32 s{S_OSRD}, s{S_OUT}')
        a(f's_and_b32 s{S_OSRD+1}, s{S_OUT+1}, 0xffff')
        a(f's_mov_b32 s{S_OSRD+2}, 0x200000')
        a(f's_mov_b32 s{S_OSRD+3}, 0x20000')

    def x_slice_prefetch(self, L):
        a = self.a
        if L == 0:
            a(f's_lshl_b32 s{S_T0}, s{S_RB}, 16')
            a(f's_lshl_b32 s{S_T0+1}, s{S_HB}, 13')
            a(f's_add_u32 s{S_T0}, s{S_T0}, s{S_T0+1}')
            a(f'v_lshlrev_b32 v123, 5, v{V_TID}')
            a(f'v_add_u32 v123, s{S_T0}, v123')
            a(f'global_load_dword a251, v123, s[{S_X}:{S_X+1}]')
        else:
            a(f'v_lshrrev_b32 v123, 2, v{V_TID}')
            a(f's_lshl_b32 s{S_T0}, s{S_HB}, 6')
            a(f'v_add_u32 v123, s{S_T0}, v123')
            a(f'v_lshlrev_b32 v123, 12, v123')
            a(f'v_and_b32 v122, 3, v{V_TID}')
            a(f'v_lshl_add_u32 v123, v122, 5, v123')
            a(f's_lshl_b32 s{S_T0}, s{S_RB}, 7')
            a(f's_add_u32 s{S_T0}, s{S_T0}, {WS_X2T}')
            a(f'v_add_u32 v123, s{S_T0}, v123')
            a(f'global_load_dword v122, v123, {WSB} sc1')

    def w_dma_setup(self, b):
        a = self.a
        t = b + 2
        a(f'v_lshrrev_b32 v{b}, 3, v{V_LANE}')
        a(f's_lshl_b32 s{S_T0}, s{S_W}, 3')
        a(f'v_add_u32 v{b}, s{S_T0}, v{b}')
        a(f'v_mul_u32_u24 v{b}, 3072, v{b}')
        a(f's_lshl_b32 s{S_T0}, s{S_HB}, 7')
        a(f'v_add_u32 v{b}, s{S_T0}, v{b}')
        a(f'v_bfe_u32 v{t}, v{V_LANE}, 4, 1')
        a(f'v_lshlrev_b32 v{t}, 2, v{t}')
        a(f'v_and_b32 v{t+1}, 7, v{V_LANE}')
        a(f'v_xor_b32 v{t}, v{t}, v{t+1}')
        a(f'v_xor_b32 v{t+1}, 2, v{t}')
        a(f'v_lshl_add_u32 v{b+1}, v{t+1}, 4, v{b}')
        a(f'v_lshl_add_u32 v{b}, v{t}, 4, v{b}')

    def rot_setup(self):
        a = self.a
        a(f's_and_b32 s{S_T0}, s{S_RB}, 3')
        a(f's_lshl_b32 s{S_T0}, s{S_T0}, 1')
        for i in range(8):
            a(f's_add_u32 s{S_T0+1}, s{S_T0}, {i}')
            a(f's_and_b32 s{S_T0+1}, s{S_T0+1}, 7')
            a(f's_mul_i32 s{S_ROT+i}, s{S_T0+1}, {32 * 3072}')
            a(f's_lshl_b32 s{S_T0+1}, s{S_T0+1}, 12')
            a(f's_add_u32 s{S_ROT+8+i}, s{S_T0+1}, s{S_W1024}')
    def w_dma_one(self, p, hf, i, b, tag):
        a = self.a
        dst = {(1, 0): LDS_WK, (2, 0): LDS_WV, (1, 1): LDS_WQ, (2, 1): LDS_WK, (0, 0): LDS_WV, (0, 1): LDS_WQ}[(p, hf)]
        src = b + 1 if p == 2 else b
        if self.o.rot:
            a(f'v_add_u32 v{b+2}, {p * 1024 + 256 * hf * 3072}, v{src}')
            a(f's_add_u32 m0, s{S_ROT+8+i}, {dst}')
            a(f'v_add_u32 v{b+2}, s{S_ROT+i}, v{b+2}')
        else:
            a(f's_add_u32 m0, s{S_W1024}, {dst + i * 4096}')
            a(f'v_add_u32 v{b+2}, {p * 1024 + (256 * hf + 32 * i) * 3072}, v{src}')
        self.vm_op(f'global_load_lds_dwordx4 v{b+2}, s[{S_WQKV}:{S_WQKV+1}]', tag)

    def w_dma(self, p, hf, b, tag):
        for i in range(8): self.w_dma_one(p, hf, i, b, tag)

    def x_dma_setup(self, L, b):
        a = self.a
        t = b + 1
        if L == 0:
            a(f'v_lshrrev_b32 v{b}, 3, v{V_LANE}')
            a(f'v_lshrrev_b32 v{t}, 1, v{b}')
            a(f's_lshl_b32 s{S_T0}, s{S_HSEL}, 2')
            a(f'v_add_u32 v{t}, s{S_T0}, v{t}')
            a(f'v_and_b32 v{t+1}, 7, v{V_LANE}')
            a(f'v_xor_b32 v{t}, v{t}, v{t+1}')
            a(f'v_lshlrev_b32 v{t}, 4, v{t}')
            a(f's_lshl_b32 s{S_T0}, s{S_RB}, 6')
            a(f's_lshl_b32 s{S_T0+1}, s{S_W}, 3')
            a(f's_add_u32 s{S_T0}, s{S_T0}, s{S_T0+1}')
            a(f'v_add_u32 v{b}, s{S_T0}, v{b}')
            a(f'v_lshlrev_b32 v{b}, 10, v{b}')
            a(f'v_add_u32 v{b}, v{b}, v{t}')
        else:
            a(f'v_bfe_u32 v{b}, v{V_LANE}, 2, 2')
            a(f'v_lshl_add_u32 v{b}, v{V_HH}, 2, v{b}')
            a(f's_lshl_b32 s{S_T0}, s{S_W}, 3')
            a(f'v_add_u32 v{b}, s{S_T0}, v{b}')
            a(f'v_lshlrev_b32 v{b}, 12, v{b}')
            a(f'v_bfe_u32 v{t}, v{V_LANE}, 4, 1')
            a(f'v_lshlrev_b32 v{t}, 6, v{t}')
            a(f'v_and_b32 v{t+1}, 3, v{V_LANE}')
            a(f'v_lshlrev_b32 v{t+1}, 4, v{t+1}')
            a(f'v_add3_u32 v{b}, v{b}, v{t}, v{t+1}')
            a(f's_lshl_b32 s{S_T0}, s{S_RB}, 7')
            a(f's_add_u32 s{S_T0}, s{S_T0}, {WS_X2T}')
            a(f'v_add_u32 v{b}, s{S_T0}, v{b}')

    def _unused(self): pass

    def wfrag_addr(self, kv, q, t):
        a = self.a
        a(f'v_bfe_u32 v{t}, v{V_LANE}, 2, 2')
        a(f'v_lshl_add_u32 v{t+1}, v{V_HH}, 3, v{t}')
        a(f'v_lshlrev_b32 v{t+1}, 7, v{t+1}')
        a(f'v_and_b32 v{t+2}, 1, v{V_LANE}')
        a(f'v_lshl_add_u32 v{t+1}, v{t+2}, 3, v{t+1}')
        a(f'v_bfe_u32 v{t}, v{V_LANE}, 3, 1')
        a(f'v_lshlrev_b32 v{t}, 2, v{t}')
        a(f'v_bfe_u32 v{t+2}, v{V_LANE}, 4, 1')
        a(f'v_bfe_u32 v{t+3}, v{V_LANE}, 1, 1')
        a(f's_lshl_b32 s{S_T0}, s{S_W}, 1')
        a(f'v_add_u32 v{kv}, s{S_T0}, v{t+3}')
        a(f'v_lshl_add_u32 v{q}, v{t+2}, 1, v{t}')
        a(f'v_xor_b32 v{kv}, v{kv}, v{q}')
        a(f'v_lshl_add_u32 v{kv}, v{kv}, 4, v{t+1}')
        a(f'v_sub_u32 v{kv+1}, 1, v{t+2}')
        a(f'v_lshlrev_b32 v{kv+1}, 16, v{kv+1}')
        a(f'v_add3_u32 v{kv+1}, v{kv+1}, v{kv}, 0')
        a(f'v_add_u32 v{kv+1}, {LDS_WK}, v{kv+1}')
        a(f'v_lshl_add_u32 v{kv}, v{t+2}, 15, v{kv}')
        a(f'v_add_u32 v{kv}, {LDS_WK}, v{kv}')
        a(f's_lshl_b32 s{S_T0}, s{S_RHALF}, 2')
        a(f'v_lshl_add_u32 v{q}, v{t+2}, 1, v{t+3}')
        a(f'v_add_u32 v{q}, s{S_T0}, v{q}')
        a(f'v_xor_b32 v{q}, v{q}, v{t}')
        a(f'v_lshl_add_u32 v{q}, v{q}, 4, v{t+1}')
        a(f'v_add_u32 v{q}, {LDS_WV}, v{q}')

    def cs_sel(self, r):
        a = self.a
        a(f'v_and_b32 v{r}, 15, v{V_LANE}')
        a(f'v_bfe_u32 v{r+1}, v{V_LANE}, 4, 1')
        a(f'v_cmp_eq_u32 vcc, v{r}, v{r+1}')
        a(f'v_mov_b32 v{r+1}, 0x3f803f80')
        a(f'v_cndmask_b32 v{r}, 0, v{r+1}, vcc')
        for i in range(1, 4): a(f'v_mov_b32 v{r+i}, v{r}')
    def cs_mfma(self, abase, sel, dst):
        a = self.a
        for ks in range(32):
            c = '0' if ks == 0 else f'v[{dst}:{dst+3}]'
            a(f'v_mfma_f32_16x16x32_bf16 v[{dst}:{dst+3}], a[{abase+4*ks}:{abase+4*ks+3}], v[{sel}:{sel+3}], {c}')
    def cs_write(self, src, sgpr_off, const, t):
        a = self.a
        a(f'v_and_b32 v{t}, 15, v{V_LANE}')
        a(f'v_lshlrev_b32 v{t}, 6, v{t}')
        a(f'v_lshrrev_b32 v{t+1}, 4, v{V_LANE}')
        a(f'v_lshl_add_u32 v{t}, v{t+1}, 4, v{t}')
        a(f'v_add_u32 v{t}, {SC_CS + const}, v{t}')
        if sgpr_off is not None: a(f'v_add_u32 v{t}, s{sgpr_off}, v{t}')
        a(f's_mov_b32 exec_lo, 0x00030003')
        a(f's_mov_b32 exec_hi, 0x00030003')
        a(f'ds_write_b128 v{t}, v[{src}:{src+3}]')
        a(f's_mov_b64 exec, -1')
    def cs_read(self, dst, sgpr_off, const, t):
        a = self.a
        a(f'v_lshlrev_b32 v{t}, 4, v{V_HH}')
        a(f'v_add_u32 v{t}, {SC_CS + const}, v{t}')
        if sgpr_off is not None: a(f'v_add_u32 v{t}, s{sgpr_off}, v{t}')
        for g in range(4):
            a(f'ds_read_b128 v[{dst+4*g}:{dst+4*g+3}], v{t} offset:{32*g}')

    WPT = 128
    def wphi_load(self, b):
        a = self.a
        t = b + 1
        a(f'v_lshrrev_b32 v{b}, 3, v{V_J}')
        a(f'v_lshlrev_b32 v{b}, 2, v{b}')
        a(f'v_and_b32 v{t}, 3, v{V_J}')
        a(f'v_add_u32 v{b}, v{b}, v{t}')
        a(f'v_lshlrev_b32 v{b}, 1, v{b}')
        a(f'v_lshl_add_u32 v{b}, v{V_HH}, 7, v{b}')
        a(f's_lshl_b32 s{S_T0}, s{S_HB}, 11')
        a(f's_lshl_b32 s{S_T0+1}, s{S_RHALF}, 10')
        a(f's_add_u32 s{S_T0}, s{S_T0}, s{S_T0+1}')
        a(f'v_add_u32 v{b}, s{S_T0}, v{b}')
        for hd in range(2):
            for jj in range(8):
                d = 8 * (jj >> 2) + (jj & 3)
                a(f'global_load_ushort v{self.WPT + 8*hd + jj}, v{b}, s[{S_WPHI}:{S_WPHI+1}] offset:{hd * 512 + d * 32}')
    def wphi_finish(self, t):
        a = self.a
        for i in range(8):
            a(f'v_lshl_or_b32 v{V_WPHI+i}, v{self.WPT+2*i+1}, 16, v{self.WPT+2*i}')
        a(f'v_bfe_u32 v{t}, v{V_J}, 2, 1')
        a(f'v_mul_u32_u24 v{t}, 0x8000, v{t}')
        a(f'v_lshl_or_b32 v{t}, v{t}, 16, v{t}')
        for i in range(8): a(f'v_xor_b32 v{V_WPHI+i}, v{V_WPHI+i}, v{t}')

    def rbf(self, dst, src):
        a = self.a
        a(f'v_cvt_pk_bf16_f32 v{dst}, v{src}, v{src}')
        a(f'v_lshlrev_b32 v{dst}, 16, v{dst}')
    def ln_finalize(self, S, Q, m, rs, t):
        a = self.a
        a(f'v_mul_f32 v{m}, 0x3b000000, v{S}')
        a(f'v_mul_f32 v{t}, 0x3b000000, v{Q}')
        a(f'v_fma_f32 v{t}, -v{m}, v{m}, v{t}')
        a(f'v_max_f32 v{t}, 0, v{t}')
        a(f'v_cvt_pk_bf16_f32 v{m}, v{m}, v{t}')
        a(f'v_and_b32 v{t}, 0xffff0000, v{m}')
        a(f'v_lshlrev_b32 v{m}, 16, v{m}')
        a(f'v_add_f32 v{t}, 0x3727c5ac, v{t}')
        self.rbf(t, t)
        a(f'v_sqrt_f32 v{t}, v{t}')
        self.rbf(t, t)
        a(f'v_rcp_f32 v{rs}, v{t}')

    def softmax16(self, D, out, t):
        a = self.a
        mx = t
        a(f'v_max3_f32 v{mx}, v{D}, v{D+1}, v{D+2}')
        a(f'v_max3_f32 v{mx+1}, v{D+3}, v{D+4}, v{D+5}')
        a(f'v_max3_f32 v{mx}, v{mx}, v{D+6}, v{D+7}')
        a(f'v_max3_f32 v{mx+1}, v{mx+1}, v{D+8}, v{D+9}')
        a(f'v_max3_f32 v{mx}, v{mx}, v{D+10}, v{D+11}')
        a(f'v_max3_f32 v{mx+1}, v{mx+1}, v{D+12}, v{D+13}')
        a(f'v_max3_f32 v{mx}, v{mx}, v{D+14}, v{D+15}')
        a(f'v_mov_b32 v{t+2}, {hex(LOG2E)}')
        a(f'v_max_f32 v{mx}, v{mx}, v{mx+1}')
        a(f'v_mul_f32 v{mx}, v{t+2}, v{mx}')
        for r in range(0, 16, 2):
            a(f'v_pk_fma_f32 v[{D+r}:{D+r+1}], v[{D+r}:{D+r+1}], v[{t+2}:{t+3}], v[{mx}:{mx+1}] op_sel_hi:[1,0,0] neg_lo:[0,0,1] neg_hi:[0,0,1]')
        for r in range(16): a(f'v_exp_f32 v{D+r}, v{D+r}')
        s = t + 2
        a(f'v_pk_add_f32 v[{s}:{s+1}], v[{D}:{D+1}], v[{D+2}:{D+3}]')
        a(f'v_pk_add_f32 v[{mx}:{mx+1}], v[{D+4}:{D+5}], v[{D+6}:{D+7}]')
        a(f'v_pk_add_f32 v[{s}:{s+1}], v[{s}:{s+1}], v[{D+8}:{D+9}]')
        a(f'v_pk_add_f32 v[{mx}:{mx+1}], v[{mx}:{mx+1}], v[{D+10}:{D+11}]')
        a(f'v_pk_add_f32 v[{s}:{s+1}], v[{s}:{s+1}], v[{D+12}:{D+13}]')
        a(f'v_pk_add_f32 v[{mx}:{mx+1}], v[{mx}:{mx+1}], v[{D+14}:{D+15}]')
        a(f'v_pk_add_f32 v[{s}:{s+1}], v[{s}:{s+1}], v[{mx}:{mx+1}]')
        a(f'v_add_f32 v{s}, v{s}, v{s+1}')
        a(f'v_rcp_f32 v{s}, v{s}')
        for r in range(0, 16, 2):
            a(f'v_pk_mul_f32 v[{D+r}:{D+r+1}], v[{D+r}:{D+r+1}], v[{s}:{s+1}] op_sel_hi:[1,0]')
        for r in range(0, 16, 2):
            a(f'v_cvt_pk_bf16_f32 v{out + r//2}, v{D+r}, v{D+r+1}')

    def ln_apply16(self, A, cs, m, out):
        a = self.a
        for r in range(0, 16, 2):
            a(f'v_pk_fma_f32 v[{A+r}:{A+r+1}], v[{cs+r}:{cs+r+1}], v[{m}:{m+1}], v[{A+r}:{A+r+1}] op_sel_hi:[1,0,1] neg_lo:[0,1,0] neg_hi:[0,1,0]')
        for r in range(0, 16, 2):
            a(f'v_pk_mul_f32 v[{A+r}:{A+r+1}], v[{A+r}:{A+r+1}], v[{m}:{m+1}] op_sel:[0,1] op_sel_hi:[1,1]')
        for r in range(0, 16, 2):
            a(f'v_cvt_pk_bf16_f32 v{out + r//2}, v{A+r}, v{A+r+1}')

    def flag_store(self, sync, slot_sgpr, sc=' sc1'):
        a = self.a
        a(f's_lshl_b32 s{S_T0}, s{slot_sgpr}, {self.o.fsh}')
        a(f's_add_u32 s{S_T0}, s{S_T0}, {WS_FLAGS + sync * 0x10000}')
        a(f'v_mov_b32 v126, s{S_T0}')
        a(f'v_mov_b32 v127, s{S_NONCE}')
        a('s_mov_b64 exec, 1')
        a(f'global_store_dword v126, v127, {WSB}{sc}')
        a('s_mov_b64 exec, -1')
    def signal_wg(self, sync, slot_sgpr):
        a = self.a
        a.c(f'signal sync {sync}')
        a('s_waitcnt vmcnt(0)')
        a('s_barrier')
        l = self.lab('sig')
        a(f's_cmp_lg_u32 s{S_W}, 0')
        a(f's_cbranch_scc1 {l}')
        self.flag_store(sync, slot_sgpr)
        a.label(l)
    def wait(self, sync, first_slot_sgpr, nflags, slp0=0):
        a = self.a
        fsh = self.o.fsh
        a.c(f'wait sync {sync}')
        l, lp, ld = self.lab('wait'), self.lab('poll'), self.lab('pdone')
        a(f's_cmp_lg_u32 s{S_W}, 0')
        a(f's_cbranch_scc1 {l}')
        if nflags == 16:
            a(f'v_and_b32 v126, 15, v{V_LANE}')
            a(f'v_lshlrev_b32 v126, {fsh}, v126')
            a(f's_lshl_b32 s{S_T0}, s{first_slot_sgpr}, {fsh}')
            a(f's_add_u32 s{S_T0}, s{S_T0}, {WS_FLAGS + sync * 0x10000}')
            a(f'v_add_u32 v126, s{S_T0}, v126')
        else:
            a(f'v_lshlrev_b32 v126, {fsh}, v{V_LANE}')
            a(f'v_add_u32 v126, {WS_FLAGS + sync * 0x10000}, v126')
            for i in range(1, 4): a(f'v_add_u32 v{126-i}, {i * (64 << fsh)}, v126')
        a(f's_mov_b32 s{S_T0+1}, 0')
        if self.o.pmode == 0:
            a('s_waitcnt vmcnt(0)')
            if slp0: a(f's_sleep {slp0}')
        a.label(lp)
        a(f'global_load_dword v127, v126, {WSB} sc1')
        if nflags != 16:
            a(f'global_load_dword v122, v125, {WSB} sc1')
            a(f'global_load_dword v121, v124, {WSB} sc1')
            a(f'global_load_dword v120, v123, {WSB} sc1')
        a(f's_add_u32 s{S_T0+1}, s{S_T0+1}, 1')
        a(f's_cmp_gt_u32 s{S_T0+1}, {self.o.spin}')
        a(f's_cbranch_scc1 {ld}')
        a('s_waitcnt vmcnt(0)')
        if nflags != 16:
            a(f'v_sad_u32 v127, v127, s{S_NONCE}, 0')
            a(f'v_sad_u32 v127, v122, s{S_NONCE}, v127')
            a(f'v_sad_u32 v127, v121, s{S_NONCE}, v127')
            a(f'v_sad_u32 v127, v120, s{S_NONCE}, v127')
            a('v_cmp_ne_u32 vcc, 0, v127')
        else:
            a(f'v_cmp_ne_u32 vcc, s{S_NONCE}, v127')
        a(f's_cbranch_vccz {ld}')
        if self.o.pmode == 1 and slp0:
            l2 = self.lab('p2')
            a(f's_cmp_lg_u32 s{S_T0+1}, 1')
            a(f's_cbranch_scc1 {l2}')
            a(f's_sleep {slp0}')
            a(f's_branch {lp}')
            a.label(l2)
        if self.o.slp: a(f's_sleep {self.o.slp}')
        a(f's_branch {lp}')
        a.label(ld)
        a('s_waitcnt vmcnt(0)')
        self.dbgval(44 + sync, S_T0 + 1)
        a.label(l)
        a('s_barrier')

    def trk_reset(self):
        self.vm = []; self.lg = []
    def vm_op(self, line, tag):
        self.a(line); self.vm.append(tag)
    def lg_op(self, line, tag):
        self.a(line); self.lg.append(tag)
    def wait_vm(self, tag):
        c = [i for i, t in enumerate(self.vm) if t == tag]
        if not c: return False
        idx = max(c)
        n = len(self.vm) - 1 - idx
        assert n <= 63
        self.a(f's_waitcnt vmcnt({n})')
        self.vm = self.vm[idx + 1:]
        return True

    def wait_lg(self, tag):
        c = [i for i, t in enumerate(self.lg) if t == tag]
        if not c: return
        idx = max(c)
        n = len(self.lg) - 1 - idx
        self.a(f's_waitcnt lgkmcnt({min(n, 15)})')
        if n <= 15: self.lg = self.lg[idx + 1:]
        else: self.lg = self.lg[len(self.lg) - 15:]
    def dma_x(self, L, c, i):
        a = self.a
        b, t = self.XD, self.XD + 1
        if L == 0:
            off = i * 32 * 1024 + c * 128; base = f's[{S_X}:{S_X+1}]'; sc = ''
        else:
            off = (64 * c + 32 * i) * 4096; base = WSB; sc = ' sc1'
        a(f's_add_u32 m0, s{S_W1024}, {c * 8192 + i * 4096}')
        a(f'v_add_u32 v{t}, {off}, v{b}')
        self.vm_op(f'global_load_lds_dwordx4 v{t}, {base}{sc}', f'x{c}')

    SELR = 144
    XD = 36

    def bfrag_setup(self, L, base, own_only=False):
        a = self.a
        t = 24
        a(f's_xor_b32 s{S_T0+1}, s{S_HSEL}, 1')
        if L == 0:
            a(f'v_bfe_u32 v{t}, v{V_J}, 1, 3')
            a(f'v_lshlrev_b32 v{t+1}, 7, v{V_J}')
            a(f's_lshl_b32 s{S_T0}, s{S_HSEL}, 12')
            a(f's_lshl_b32 s{S_T0+1}, s{S_T0+1}, 12')
            for k in range(4):
                a(f'v_add_u32 v{t+2}, {2*k}, v{V_HH}')
                a(f'v_xor_b32 v{t+2}, v{t+2}, v{t}')
                a(f'v_lshl_add_u32 v{t+2}, v{t+2}, 4, v{t+1}')
                a(f'v_add_u32 v{base+k}, s{S_T0}, v{t+2}')
                if not own_only: a(f'v_add_u32 v{base+4+k}, s{S_T0+1}, v{t+2}')
        else:
            a(f'v_bfe_u32 v{t}, v{V_LANE}, 2, 2')
            a(f'v_lshlrev_b32 v{t}, 6, v{t}')
            a(f'v_lshl_add_u32 v{t}, v{V_HH}, 10, v{t}')
            a(f'v_bfe_u32 v{t+1}, v{V_LANE}, 4, 1')
            a(f'v_lshl_add_u32 v{t}, v{t+1}, 5, v{t}')
            a(f'v_and_b32 v{t+1}, 3, v{V_LANE}')
            a(f'v_lshl_add_u32 v{t}, v{t+1}, 3, v{t}')
            a(f's_lshl_b32 s{S_T0}, s{S_HSEL}, 8')
            a(f's_lshl_b32 s{S_T0+1}, s{S_T0+1}, 8')
            a(f'v_add_u32 v{base}, s{S_T0}, v{t}')
            if not own_only: a(f'v_add_u32 v{base+4}, s{S_T0+1}, v{t}')

    def bfrag_read(self, L, base, ks, dst, tag):
        if L == 0:
            c, k = ks >> 2, ks & 3
            self.lg_op(f'ds_read_b128 v[{dst}:{dst+3}], v{base+k} offset:{c * 8192}', tag)
        else:
            for x in range(2):
                self.lg_op(f'ds_read_b64_tr_b16 v[{dst+2*x}:{dst+2*x+1}], v{base} offset:{ks * 2048 + x * 512}', tag)

    def _unused2(self): pass

    ACC0, ACC1, FR, XB = 48, 64, 80, 112
    SS, SQ, ONES = 20, 21, 22
    M, M1 = 32, 34
    STF, XS = 104, 24
    def fr(self, k): return self.FR + 8 * (k % 3)
    def st_read(self, L, ks):
        d = self.STF + 4 * ((ks >> 1) & 1)
        if L == 0:
            self.lg_op(f'ds_read_b128 v[{d}:{d+3}], v{self.XS + ((ks >> 1) & 1)} offset:{(ks >> 2) * 8192}', f's{ks}')
        else:
            for x in range(2):
                self.lg_op(f'ds_read_b64_tr_b16 v[{d+2*x}:{d+2*x+1}], v{self.XS} offset:{ks * 2048 + x * 512}', f's{ks}')
    def st_setup(self, L):
        a = self.a
        XB, XS = self.XB, self.XS
        if L == 0:
            a(f'v_mov_b32 v{XS}, s{S_RHALF}')
            a(f'v_cmp_eq_u32 vcc, 0, v{XS}')
            a(f'v_cndmask_b32 v{XS}, v{XB+1}, v{XB}, vcc')
            a(f'v_cndmask_b32 v{XS+1}, v{XB+3}, v{XB+2}, vcc')
        else:
            a(f's_lshl_b32 s{S_T0}, s{S_RHALF}, 11')
            a(f'v_add_u32 v{XS}, s{S_T0}, v{XB}')
    def st_dots(self, ks):
        a = self.a
        self.wait_lg(f's{ks}')
        d = self.STF + 4 * ((ks >> 1) & 1)
        for i in range(4):
            a(f'v_dot2c_f32_bf16 v{self.SS}, v{d+i}, v{self.ONES}')
            a(f'v_dot2c_f32_bf16 v{self.SQ}, v{d+i}, v{d+i}')
    def st_exchange_a(self):
        a = self.a
        SS, SQ, T = self.SS, self.SQ, 24
        a(f'v_mov_b32 v{T}, v{SS}')
        a(f'v_mov_b32 v{T+1}, v{SQ}')
        a(f'v_permlane32_swap_b32 v{SS}, v{T}')
        a(f'v_permlane32_swap_b32 v{SQ}, v{T+1}')
        a(f'v_add_f32 v{SS}, v{SS}, v{T}')
        a(f'v_add_f32 v{SQ}, v{SQ}, v{T+1}')
        self.lg_op(f'ds_write_b64 v{self.R_STW}, v[{SS}:{SQ}]', 'stw')
    def st_exchange_b(self):
        SA = self.STF
        self.lg_op(f'ds_read_b64 v[{SA}:{SA+1}], v{self.R_STO}', 'str')
        self.lg_op(f'ds_read_b64 v[{SA+2}:{SA+3}], v{self.R_STO} offset:512', 'str')
        self.lg_op(f'ds_read_b64 v[{SA+4}:{SA+5}], v{self.R_STP}', 'str')
        self.lg_op(f'ds_read_b64 v[{SA+6}:{SA+7}], v{self.R_STP} offset:512', 'str')
    def st_finalize(self):
        SA, M, M1 = self.STF, self.M, self.M1
        a = self.a
        self.wait_lg('str')
        a(f'v_add_f32 v{SA}, v{SA}, v{SA+2}'); a(f'v_add_f32 v{SA+1}, v{SA+1}, v{SA+3}')
        a(f'v_add_f32 v{SA+4}, v{SA+4}, v{SA+6}'); a(f'v_add_f32 v{SA+5}, v{SA+5}, v{SA+7}')
        self.merge(self.cap(lambda: self.ln_finalize(SA, SA + 1, M, M + 1, SA + 2)),
                   self.cap(lambda: self.ln_finalize(SA + 4, SA + 5, M1, M1 + 1, SA + 6)))
    def kv_pair(self, L, ks, hook=None, last=32, first=False):
        a = self.a
        ACC0, ACC1, XB = self.ACC0, self.ACC1, self.XB
        final = (ks == 30)
        if final:
            self.wait_lg('stw'); a('s_barrier')
            self.st_exchange_b()
        for k in (ks, ks + 1):
            st = self.fr(k)
            self.wait_lg(f'f{k}a')
            c0 = '0' if k == 0 else f'v[{ACC0}:{ACC0+15}]'
            c1 = '0' if k == 0 else f'v[{ACC1}:{ACC1+15}]'
            a(f'v_mfma_f32_32x32x16_bf16 v[{ACC0}:{ACC0+15}], a[{4*k}:{4*k+3}], v[{st}:{st+3}], {c0}')
            if k == ks and ks + 2 < last: self.st_read(L, ks + 2)
            if hook: hook(k, 0)
            self.wait_lg(f'f{k}b')
            a(f'v_mfma_f32_32x32x16_bf16 v[{ACC1}:{ACC1+15}], a[{4*k}:{4*k+3}], v[{st+4}:{st+7}], {c1}')
            if k + 2 < last:
                self.bfrag_read(L, XB, k + 2, self.fr(k + 2), f'f{k+2}a')
                self.bfrag_read(L, XB + 4, k + 2, self.fr(k + 2) + 4, f'f{k+2}b')
            if hook: hook(k, 1)
            if final and k == ks: self.st_finalize()
        if first: self.st_dots(ks)
        if ks + 2 < last: self.st_dots(ks + 2)
        if ks == 28: self.st_exchange_a()

    def kv_rd(self, L, ks):
        st = self.fr(ks)
        self.bfrag_read(L, self.XB, ks, st, f'f{ks}a')
        self.bfrag_read(L, self.XB + 4, ks, st + 4, f'f{ks}b')

    def kv_init(self):
        a = self.a
        a(f'v_mov_b32 v{self.SS}, 0'); a(f'v_mov_b32 v{self.SQ}, 0'); a(f'v_mov_b32 v{self.ONES}, 0x3f803f80')

    def kv_pass1(self):
        a = self.a
        L = 1
        self.kv_init()
        self.wait_vm('x0'); a('s_barrier')
        self.stamp(18)
        self.st_read(L, 0); self.kv_rd(L, 0); self.kv_rd(L, 1)
        def hook(k, h):
            c = (k >> 2) + 4
            if h == 0 and (k & 1) == 0 and c < 8: self.dma_x(1, c, (k >> 1) & 1)
        for ks in range(0, 32, 2):
            c = ks >> 2
            if (ks & 3) == 2 and c + 1 < 8:
                self.wait_vm(f'x{c+1}'); a('s_barrier')
            self.kv_pair(L, ks, hook, first=(ks == 0))

    def kv_pass0(self, WB, KVA, QA, SEL, CSKV):
        a = self.a
        L = 0
        def trW(abase, addr, ks, tag, extra=0):
            for x in range(2):
                self.lg_op(f'ds_read_b64_tr_b16 a[{abase+4*ks+2*x}:{abase+4*ks+2*x+1}], v{addr} offset:{(ks & 15)*2048 + x*512 + extra}', tag)
        self.kv_init()
        self.wait_vm('kva'); a('s_barrier')
        self.stamp(17)
        for ks in range(16): trW(0, KVA, ks, 'w')
        self.wait_vm('x0')
        a('s_waitcnt lgkmcnt(0)'); self.lg = []
        a('s_barrier')
        self.stamp(31)
        self.st_read(L, 0); self.kv_rd(L, 0); self.kv_rd(L, 1)
        q1 = [lambda i=i: self.w_dma_one(2, 1, i, WB, 'vb') for i in range(8)]
        q1 += [lambda i=i: self.w_dma_one(0, 0, i, WB, 'qa') for i in range(8)]
        csn = [0]
        def hook_a(k, h):
            if q1 and (h == 0 or k < 4): q1.pop(0)()
            if h == 1:
                ks_ = csn[0]; csn[0] += 1
                c = '0' if ks_ == 0 else f'v[{CSKV}:{CSKV+3}]'
                a(f'v_mfma_f32_16x16x32_bf16 v[{CSKV}:{CSKV+3}], a[{4*ks_}:{4*ks_+3}], v[{SEL}:{SEL+3}], {c}')
        for ks in range(0, 16, 2):
            c = ks >> 2
            if (ks & 3) == 2 and c + 1 < 4:
                if self.wait_vm(f'x{c+1}'): a('s_barrier')
            self.kv_pair(L, ks, hook_a, last=16, first=(ks == 0))
        while q1: q1.pop(0)()
        self.stamp(1)
        self.wait_vm('vb')
        a('s_waitcnt lgkmcnt(0)'); self.lg = []
        a('s_barrier')
        for ks in range(16, 32): trW(0, KVA + 1, ks, 'w')
        self.st_read(L, 16); self.kv_rd(L, 16); self.kv_rd(L, 17)
        a('s_waitcnt lgkmcnt(0)'); self.lg = []
        self.wait_vm('qa')
        a('s_barrier')
        self.stamp(2)
        q2 = [lambda i=i: self.w_dma_one(0, 1, i, WB, 'qb') for i in range(8)]
        for ks in range(16, 32):
            a(f'v_mfma_f32_16x16x32_bf16 v[{CSKV}:{CSKV+3}], a[{4*ks}:{4*ks+3}], v[{SEL}:{SEL+3}], v[{CSKV}:{CSKV+3}]')
            if ks % 2 == 0 and q2: q2.pop(0)()
        qn = [0]
        def hook_b(k, h):
            if 16 <= k < 24:
                trW(128, QA, qn[0], 'wq'); qn[0] += 1
        for ks in range(16, 32, 2):
            self.kv_pair(L, ks, hook_b, first=(ks == 16))
        self.wait_vm('qb')
        a('s_waitcnt lgkmcnt(0)'); self.lg = []
        a('s_barrier')
        for ks in range(16, 32): trW(128, QA, ks, 'wq', extra=32768)

    def resid_read(self, L, T):
        a = self.a
        a(f's_and_b32 s{S_T0}, s{S_HB}, 1')
        if L == 0:
            a(f's_lshl_b32 s{S_T0+1}, s{S_CB}, 1')
            a(f's_add_u32 s{S_T0+1}, s{S_T0+1}, s{S_RHALF}')
            a(f's_lshl_b32 s{S_T0+1}, s{S_T0+1}, 13')
            a(f's_lshl_b32 s{S_T0}, s{S_T0}, 12')
            a(f's_add_u32 s{S_T0}, s{S_T0}, s{S_T0+1}')
            a(f'v_lshlrev_b32 v{T}, 7, v{V_J}')
            a(f'v_lshl_add_u32 v{T}, v{V_HH}, 3, v{T}')
            a(f'v_add_u32 v{T}, s{S_T0}, v{T}')
            a(f'v_bfe_u32 v{T+1}, v{V_J}, 1, 3')
            a(f's_lshl_b32 s{S_T0+1}, s{S_HSEL}, 2')
            for g in range(4):
                a(f's_add_u32 s{S_T0+2}, s{S_T0+1}, {g}')
                a(f'v_xor_b32 v{T+2}, s{S_T0+2}, v{T+1}')
                a(f'v_lshl_add_u32 v{T+2}, v{T+2}, 4, v{T}')
                a(f'ds_read_b64 v[{V_RESID+2*g}:{V_RESID+2*g+1}], v{T+2}')
        else:
            a(f's_lshl_b32 s{S_T0+1}, s{S_CB}, 5')
            a(f's_lshl_b32 s{S_T0+2}, s{S_W}, 3')
            a(f's_add_u32 s{S_T0+1}, s{S_T0+1}, s{S_T0+2}')
            a(f's_lshl_b32 s{S_T0+1}, s{S_T0+1}, 9')
            a(f's_lshl_b32 s{S_T0}, s{S_T0}, 8')
            a(f's_add_u32 s{S_T0}, s{S_T0}, s{S_T0+1}')
            a(f'v_bfe_u32 v{T}, v{V_LANE}, 2, 2')
            a(f'v_lshlrev_b32 v{T}, 6, v{T}')
            a(f'v_lshl_add_u32 v{T}, v{V_HH}, 9, v{T}')
            a(f'v_bfe_u32 v{T+1}, v{V_LANE}, 4, 1')
            a(f'v_lshl_add_u32 v{T}, v{T+1}, 5, v{T}')
            a(f'v_and_b32 v{T+1}, 3, v{V_LANE}')
            a(f'v_lshl_add_u32 v{T}, v{T+1}, 3, v{T}')
            a(f'v_add_u32 v{T}, s{S_T0}, v{T}')
            for g in range(4):
                a(f'ds_read_b64_tr_b16 v[{V_RESID+2*g}:{V_RESID+2*g+1}], v{T} offset:{g*1024}')

    R_STW, R_STO, R_STP, R_PA, R_VA, R_AA, R_BA0, R_BA1, R_KVS, R_ZS, R_CS = 12, 13, 14, 15, 17, 19, 23, 26, 27, 120, 121
    def kv_addr_setup(self, L):
        a = self.a
        T = 96
        a(f'v_lshlrev_b32 v{T}, 3, v{V_J}')
        a(f's_lshl_b32 s{S_T0}, s{S_W}, 8')
        a(f's_add_u32 s{S_T0}, s{S_T0}, {SC_ST}')
        a(f'v_add_u32 v{self.R_STW}, s{S_T0}, v{T}')
        a(f's_lshl_b32 s{S_T0}, s{S_HSEL}, 8')
        a(f's_add_u32 s{S_T0+1}, s{S_T0}, {SC_ST}')
        a(f's_xor_b32 s{S_T0}, s{S_T0}, 256')
        a(f's_add_u32 s{S_T0}, s{S_T0}, {SC_ST}')
        a(f'v_add_u32 v{self.R_STO}, s{S_T0+1}, v{T}')
        a(f'v_add_u32 v{self.R_STP}, s{S_T0}, v{T}')
        PA, VA = self.R_PA, self.R_VA
        a(f'v_lshrrev_b32 v{T+1}, 3, v{V_J}')
        a(f'v_add_u32 v{T+1}, v{T+1}, v{V_HH}')
        a(f'v_lshlrev_b32 v{T+1}, 5, v{T+1}')
        a(f'v_lshl_add_u32 v{T+1}, v{V_J}, 6, v{T+1}')
        a(f's_mul_i32 s{S_T0}, s{S_W}, {PHI_W}')
        a(f's_add_u32 s{S_T0}, s{S_T0}, {SC_PHI}')
        a(f's_mul_i32 s{S_T0+1}, s{S_HSEL}, 2176')
        a(f's_xor_b32 s{S_T0+2}, s{S_HSEL}, 1')
        a(f's_mul_i32 s{S_T0+3}, s{S_T0+2}, 2176')
        a(f's_add_u32 s{S_T0+1}, s{S_T0+1}, s{S_T0}')
        a(f's_add_u32 s{S_T0+3}, s{S_T0+3}, s{S_T0}')
        a(f'v_add_u32 v{PA}, s{S_T0+1}, v{T+1}')
        a(f'v_add_u32 v{PA+1}, s{S_T0+3}, v{T+1}')
        a(f'v_bfe_u32 v{T+1}, v{V_J}, 3, 1')
        a(f'v_lshlrev_b32 v{T+1}, 2, v{T+1}')
        a(f'v_xor_b32 v{T+1}, v{V_J}, v{T+1}')
        a(f'v_lshlrev_b32 v{T+1}, 5, v{T+1}')
        a(f'v_lshl_add_u32 v{T+1}, v{V_HH}, 3, v{T+1}')
        a(f's_lshl_b32 s{S_T0}, s{S_W}, 11')
        a(f's_add_u32 s{S_T0}, s{S_T0}, {SC_V}')
        a(f's_lshl_b32 s{S_T0+1}, s{S_HSEL}, 10')
        a(f's_lshl_b32 s{S_T0+2}, s{S_T0+2}, 10')
        a(f's_add_u32 s{S_T0+1}, s{S_T0+1}, s{S_T0}')
        a(f's_add_u32 s{S_T0+2}, s{S_T0+2}, s{S_T0}')
        a(f'v_add_u32 v{VA}, s{S_T0+1}, v{T+1}')
        a(f'v_add_u32 v{VA+1}, s{S_T0+2}, v{T+1}')
        AA = self.R_AA
        a(f'v_lshrrev_b32 v{T}, 4, v{V_LANE}')
        a(f'v_bfe_u32 v{T+1}, v{V_LANE}, 2, 2')
        a(f'v_lshl_add_u32 v{T+2}, v{T}, 3, v{T+1}')
        a(f'v_lshlrev_b32 v{AA}, 6, v{T+2}')
        a(f'v_lshl_add_u32 v{AA}, v{T}, 5, v{AA}')
        a(f'v_and_b32 v{T+3}, 3, v{V_LANE}')
        a(f'v_lshl_add_u32 v{AA}, v{T+3}, 3, v{AA}')
        a(f's_mul_i32 s{S_T0}, s{S_W}, {PHI_W}')
        a(f's_add_u32 s{S_T0}, s{S_T0}, {SC_PHI}')
        a(f'v_add_u32 v{AA}, s{S_T0}, v{AA}')
        a(f'v_and_b32 v{T+4}, 1, v{T}')
        a(f'v_lshlrev_b32 v{T+4}, 2, v{T+4}')
        a(f'v_xor_b32 v{T+1}, v{T+2}, v{T+4}')
        a(f'v_xor_b32 v{T+2}, 4, v{T+1}')
        a(f'v_lshlrev_b32 v{T+1}, 5, v{T+1}')
        a(f'v_lshlrev_b32 v{T+2}, 5, v{T+2}')
        a(f'v_lshl_add_u32 v{T+1}, v{T+3}, 3, v{T+1}')
        a(f'v_lshl_add_u32 v{T+2}, v{T+3}, 3, v{T+2}')
        a(f's_lshl_b32 s{S_T0}, s{S_W}, 11')
        a(f's_add_u32 s{S_T0}, s{S_T0}, {SC_V}')
        a(f'v_add_u32 v{self.R_BA0}, s{S_T0}, v{T+1}')
        a(f'v_add_u32 v{self.R_BA1}, s{S_T0}, v{T+2}')
        a(f's_mul_i32 s{S_T0+1}, s{S_SLOT1}, {KVB}')
        a(f's_add_u32 s{S_T0+1}, s{S_T0+1}, {WS_KVP + L * KVP_L}')
        a(f's_lshl_b32 s{S_T0+2}, s{S_W}, 11')
        a(f's_add_u32 s{S_T0+2}, s{S_T0+2}, s{S_T0+1}')
        a(f'v_and_b32 v{T+1}, 15, v{V_LANE}')
        a(f'v_lshlrev_b32 v{T+1}, 7, v{T+1}')
        a(f'v_lshl_add_u32 v{T+1}, v{T}, 4, v{T+1}')
        a(f'v_add_u32 v{self.R_KVS}, s{S_T0+2}, v{T+1}')
        a(f's_lshl_b32 s{S_T0+2}, s{S_W}, 8')
        a(f's_add_u32 s{S_T0+2}, s{S_T0+2}, s{S_T0+1}')
        a(f's_add_u32 s{S_T0+2}, s{S_T0+2}, 8192')
        a(f'v_lshlrev_b32 v{T+1}, 3, v{V_LANE}')
        a(f'v_add_u32 v{self.R_ZS}, s{S_T0+2}, v{T+1}')
        a(f'v_lshlrev_b32 v{T+1}, 4, v{V_HH}')
        a(f's_lshl_b32 s{S_T0}, s{S_W}, 7')
        a(f's_add_u32 s{S_T0}, s{S_T0}, {SC_CS}')
        a(f'v_add_u32 v{self.R_CS}, s{S_T0}, v{T+1}')

    def kv_epilogue(self, L, cs_kv_reg=None):
        a = self.a; o = self.o
        ACC0, ACC1 = self.ACC0, self.ACC1
        SS, SQ, ONES = self.SS, self.SQ, self.ONES
        M, M1 = self.M, self.M1
        T = 24
        self.stamp(3 + 16 * L)
        CS = 80
        if L == 0:
            a(f's_lshl_b32 s{S_T0+4}, s{S_W}, 7')
            self.cs_write(cs_kv_reg, S_T0 + 4, 0, 96)
            self.wait_vm('wphi')
            self.wphi_finish(96)
            self.kvt_zero(96)
        for g in range(4): a(f'ds_read_b128 v[{CS+4*g}:{CS+4*g+3}], v{self.R_CS} offset:{32*g}')
        KB0, KB1 = 96, 104
        a('s_waitcnt lgkmcnt(0)')
        self.ln_apply16(ACC0, CS, M, KB0)
        WK = 112
        a(f's_cmp_eq_u32 s{S_HSEL}, 0')
        a(f's_cselect_b64 vcc, -1, 0')
        for i in range(4): a(f'v_cndmask_b32 v{WK+i}, v{V_WPHI+4+i}, v{V_WPHI+i}, vcc')
        a(f'v_mfma_f32_32x32x16_bf16 v[{ACC0}:{ACC0+15}], v[{WK}:{WK+3}], v[{KB0}:{KB0+3}], 0')
        self.ln_apply16(ACC1, CS, M1, KB1)
        a(f'v_mfma_f32_32x32x16_bf16 v[{ACC1}:{ACC1+15}], v[{WK}:{WK+3}], v[{KB1}:{KB1+3}], 0')
        for tt, kb in enumerate((KB0, KB1)):
            a(f'ds_write_b64 v{self.R_VA+tt}, v[{kb+4}:{kb+5}]')
            a(f'ds_write_b64 v{self.R_VA+tt}, v[{kb+6}:{kb+7}] offset:16')
        PH0, PH1 = 80, 88
        s0 = self.cap(lambda: self.softmax16(ACC0, PH0, 112))
        s1 = self.cap(lambda: self.softmax16(ACC1, PH1, 116))
        if L == 0:
            SEL = self.SELR
            cs = [f'  v_mfma_f32_16x16x32_bf16 v[28:31], a[{128+4*ks}:{128+4*ks+3}], v[{SEL}:{SEL+3}], ' + ('0' if ks == 0 else 'v[28:31]') for ks in range(32)]
            for st in (s0, s1):
                k = 0
                while k < len(st):
                    if 'v_exp_f32' in st[k] and cs: st.insert(k + 1, cs.pop(0)); k += 1
                    k += 1
        a.lines += s0[:10]
        self.merge(s0[10:], s1)
        for tt, ph in enumerate((PH0, PH1)):
            a(f'ds_write_b128 v{self.R_PA+tt}, v[{ph}:{ph+3}]')
            a(f'ds_write_b128 v{self.R_PA+tt}, v[{ph+4}:{ph+7}] offset:16')
        FA, FB, KV, ZS = 48, 64, 80, 88
        BAx = (self.R_BA0, self.R_BA1)
        for kk in range(2):
            for x in range(2):
                a(f'ds_read_b64_tr_b16 v[{FB+4*kk+2*x}:{FB+4*kk+2*x+1}], v{BAx[x]} offset:{kk*1024}')
        a(f'v_mov_b32 v{ZS}, 0'); a(f'v_mov_b32 v{ZS+1}, 0')
        a(f'v_mov_b32 v{ONES}, 0x3f803f80')
        for kk in range(2):
            for mt in range(2):
                for x in range(2):
                    a(f'ds_read_b64_tr_b16 v[{FA+8*mt+4*kk+2*x}:{FA+8*mt+4*kk+2*x+1}], v{self.R_AA} offset:{kk*2176 + x*256 + mt*32}')
        G = 96
        for mt in range(2):
            a(f'v_mov_b32 v{G+4*mt+1}, s{S_NONCE}')
            a(f'v_mov_b32 v{G+4*mt+3}, s{S_NONCE}')
        for kk in range(2):
            a(f's_waitcnt lgkmcnt({4 - 4*kk})')
            for mt in range(2):
                c = '0' if kk == 0 else f'v[{KV+4*mt}:{KV+4*mt+3}]'
                a(f'v_mfma_f32_16x16x32_bf16 v[{KV+4*mt}:{KV+4*mt+3}], v[{FA+8*mt+4*kk}:{FA+8*mt+4*kk+3}], v[{FB+4*kk}:{FB+4*kk+3}], {c}')
        for i in range(8):
            a(f'v_dot2c_f32_bf16 v{ZS}, v{FA+i}, v{ONES}')
            a(f'v_dot2c_f32_bf16 v{ZS+1}, v{FA+8+i}, v{ONES}')
        for mt in range(2):
            g = G + 4 * mt
            a(f'v_cvt_pk_bf16_f32 v{g}, v{KV+4*mt}, v{KV+4*mt+1}')
            a(f'v_cvt_pk_bf16_f32 v{g+2}, v{KV+4*mt+2}, v{KV+4*mt+3}')
            a(f'global_store_dwordx4 v{self.R_KVS}, v[{g}:{g+3}], {WSB} offset:{mt*64} sc1')
        for zz in (ZS, ZS + 1):
            a(f'v_mov_b32 v{ZS+2}, v{zz}')
            a(f'v_permlane32_swap_b32 v{zz}, v{ZS+2}')
            a(f'v_add_f32 v{zz}, v{zz}, v{ZS+2}')
            a(f'v_mov_b32 v{ZS+2}, v{zz}')
            a(f'v_permlane16_swap_b32 v{zz}, v{ZS+2}')
            a(f'v_add_f32 v{zz}, v{zz}, v{ZS+2}')
        a(f'v_and_b32 v{ZS+2}, 16, v{V_LANE}')
        a(f'v_cmp_eq_u32 vcc, 0, v{ZS+2}')
        a(f'v_cndmask_b32 v{ZS}, v{ZS+1}, v{ZS}, vcc')
        a(f'v_cvt_pk_bf16_f32 v{ZS}, v{ZS}, 0')
        a(f'v_mov_b32 v{ZS+1}, s{S_NONCE}')
        a('s_mov_b32 exec_lo, -1'); a('s_mov_b32 exec_hi, 0')
        a(f'global_store_dwordx2 v{self.R_ZS}, v[{ZS}:{ZS+1}], {WSB} sc1')
        a('s_mov_b64 exec, -1')
        self.stamp(4 + 16 * L)

    def q_pass(self, L):
        a = self.a; o = self.o
        ACC, FR, XB = 48, 80, 112
        M = self.M
        self.lg = []
        self.bfrag_setup(L, XB, own_only=True)
        if L == 0:
            a(f's_lshl_b32 s{S_T0+4}, s{S_RHALF}, 7')
            self.cs_write(28, S_T0 + 4, 512, 104)
            a('s_barrier')
            a(f'v_and_b32 v117, 7, v{V_LANE}')
            a('v_lshlrev_b32 v117, 3, v117')
            a(f's_lshl_b32 s{S_T0}, s{S_RB}, 6')
            a(f's_add_u32 s{S_T0}, s{S_T0}, {WS_XT}')
            a(f'v_add_u32 v250, s{S_T0}, v117')
            a(f'global_load_dwordx2 v[118:119], v250, {WSB} sc1')
            self.wo_setup()
            self.vm = []
        for ks in range(3): self.bfrag_read(L, XB, ks, FR + 4 * (ks & 3), f'f{ks}')
        H1A, H1 = 116, (96 if (o.h1k < 32 and (L == 1 or o.h1l0)) else 80)
        a(f's_lshl_b32 s{S_T0}, s{S_HB}, 5')
        a(f's_lshl_b32 s{S_T0+1}, s{S_W}, 3')
        a(f's_add_u32 s{S_T0}, s{S_T0}, s{S_T0+1}')
        a(f's_mul_i32 s{S_T0}, s{S_T0}, {KVB}')
        a(f's_mul_i32 s{S_T0+1}, s{S_RB}, 288')
        a(f's_add_u32 s{S_T0}, s{S_T0}, s{S_T0+1}')
        a(f's_add_u32 s{S_T0}, s{S_T0}, {WS_KVP + L * KVP_L}')
        a(f'v_min_u32 v{H1A}, 35, v{V_LANE}')
        a(f'v_lshlrev_b32 v{H1A}, 3, v{H1A}')
        a(f'v_add_u32 v{H1A}, s{S_T0}, v{H1A}')
        def h1_loads():
            a = self.a
            for p in range(8):
                a(f'v_add_u32 v{H1A+1}, {p * KVB}, v{H1A}')
                a(f'global_load_dwordx2 v[{H1+2*p}:{H1+2*p+1}], v{H1A+1}, {WSB} sc1')
        a(f's_lshl_b32 s{S_T0+4}, s{S_RHALF}, 7')
        for ks in range(32):
            if ks == o.h1k and (L == 1 or o.h1l0): h1_loads()
            if ks + 3 < 32:
                self.bfrag_read(L, XB, ks + 3, FR + 4 * ((ks + 3) & 3), f'f{ks+3}')
            self.wait_lg(f'f{ks}')
            c0 = '0' if ks == 0 else f'v[{ACC}:{ACC+15}]'
            st = FR + 4 * (ks & 3)
            a(f'v_mfma_f32_32x32x16_bf16 v[{ACC}:{ACC+15}], a[{128+4*ks}:{128+4*ks+3}], v[{st}:{st+3}], {c0}')
            if ks == 2:
                self.resid_read(L, 104); self.lg += ['rs'] * 4
            if L == 0 and ks % 2 == 0: self.wo_dma(16 + ks // 2, self.WOB, self.WOB + 1)
            if ks == 24:
                self.cs_read(64, S_T0 + 4, 512, 104)
                self.lg += ['cs'] * 4
        a('s_waitcnt lgkmcnt(0)'); self.lg = []
        h1k = o.h1k if (L == 1 or o.h1l0) else 32
        early = h1k < 32 and o.early1
        KB = 20 if h1k < 32 else 96
        self.ln_apply16(ACC, 64, M, KB)
        D = (48, 64)
        for hd in range(2):
            a(f'v_mfma_f32_32x32x16_bf16 v[{D[hd]}:{D[hd]+15}], v[{V_WPHI+4*hd}:{V_WPHI+4*hd+3}], v[{KB+4*hd}:{KB+4*hd+3}], 0')
        if h1k >= 32: h1_loads()
        def hop1_section():
            lp, ld = self.lab('h1poll'), self.lab('h1done')
            T = 80 if early else 48
            a(f's_mov_b32 s{S_T0+2}, 0')
            a.label(lp)
            a('s_waitcnt vmcnt(0)')
            a(f'v_mov_b32 v{T}, 0')
            for p in range(8): a(f'v_sad_u32 v{T}, v{H1+2*p+1}, s{S_NONCE}, v{T}')
            a(f's_add_u32 s{S_T0+2}, s{S_T0+2}, 1')
            a(f's_cmp_gt_u32 s{S_T0+2}, {self.o.spin}')
            a(f's_cbranch_scc1 {ld}')
            a(f'v_cmp_ne_u32 vcc, 0, v{T}')
            a(f's_cbranch_vccz {ld}')
            if self.o.slp: a(f's_sleep {self.o.slp}')
            h1_loads()
            a(f's_branch {lp}')
            a.label(ld)
            self.dbgval(40 + L, S_T0 + 2)
            if L == 0:
                lp2, ld2 = self.lab('xtpoll'), self.lab('xtdone')
                a(f's_mov_b32 s{S_T0+2}, 0')
                a(f's_mov_b32 s{S_FAST}, 0')
                a.label(lp2)
                a(f'v_cmp_ne_u32 vcc, s{S_NONCE}, v119')
                a(f's_cbranch_vccz {ld2}')
                a(f's_add_u32 s{S_T0+2}, s{S_T0+2}, 1')
                a(f's_cmp_gt_u32 s{S_T0+2}, {self.o.spin}')
                a(f's_cbranch_scc1 {ld2}x')
                a(f'global_load_dwordx2 v[118:119], v250, {WSB} sc1')
                a('s_waitcnt vmcnt(0)')
                a(f's_branch {lp2}')
                a.label(ld2)
                a(f'v_cmp_ne_u32 vcc, s{S_XCC}, v118')
                a(f's_cmp_eq_u64 vcc, 0')
                a(f's_cselect_b32 s{S_FAST}, 1, 0')
                a.label(ld2 + 'x')
            CL, CH = T + 12, T + 13
            a(f'v_mov_b32 v{CL}, 0x00003f80'); a(f'v_mov_b32 v{CH}, 0x3f800000')
            a(f'v_mov_b32 v{T}, 0'); a(f'v_mov_b32 v{T+1}, 0')
            for p in range(8):
                a(f'v_dot2c_f32_bf16 v{T}, v{H1+2*p}, v{CL}')
                a(f'v_dot2c_f32_bf16 v{T+1}, v{H1+2*p}, v{CH}')
            a(f'v_lshlrev_b32 v{T+2}, 3, v{V_LANE}')
            a(f's_lshl_b32 s{S_T0}, s{S_W}, 9')
            a(f's_add_u32 s{S_T0}, s{S_T0}, {SC_RED}')
            a(f'v_add_u32 v{T+3}, s{S_T0}, v{T+2}')
            a(f'ds_write_b64 v{T+3}, v[{T}:{T+1}]')
            a('s_waitcnt lgkmcnt(0)')
            a('s_barrier')
            l = self.lab('h1pub')
            a(f's_cmp_lg_u32 s{S_W}, 0')
            a(f's_cbranch_scc1 {l}')
            a(f'v_add_u32 v{T+3}, {SC_RED}, v{T+2}')
            for w in range(4): a(f'ds_read_b64 v[{T+4+2*w}:{T+5+2*w}], v{T+3} offset:{w*512}')
            a(f's_mul_i32 s{S_T0}, s{S_HB}, {KVB}')
            a(f's_mul_i32 s{S_T0+1}, s{S_RB}, 288')
            a(f's_add_u32 s{S_T0}, s{S_T0}, s{S_T0+1}')
            a(f's_add_u32 s{S_T0}, s{S_T0}, {WS_KVR + L * 0x12000}')
            a(f'v_add_u32 v{T+2}, s{S_T0}, v{T+2}')
            a('s_waitcnt lgkmcnt(0)')
            a(f'v_pk_add_f32 v[{T+4}:{T+5}], v[{T+4}:{T+5}], v[{T+6}:{T+7}]')
            a(f'v_pk_add_f32 v[{T+8}:{T+9}], v[{T+8}:{T+9}], v[{T+10}:{T+11}]')
            a(f'v_pk_add_f32 v[{T+4}:{T+5}], v[{T+4}:{T+5}], v[{T+8}:{T+9}]')
            a(f'v_cvt_pk_bf16_f32 v{T+4}, v{T+4}, v{T+5}')
            a(f'v_mov_b32 v{T+5}, s{S_NONCE}')
            a('s_mov_b32 exec_lo, -1'); a('s_mov_b32 exec_hi, 0xf')
            a(f'global_store_dwordx2 v{T+2}, v[{T+4}:{T+5}], {WSB} sc1')
            a('s_mov_b64 exec, -1')
            a.label(l)
        if early: hop1_section()
        t0, t1 = (80, 84) if h1k < 32 else (104, 108)
        s0 = self.cap(lambda: self.softmax16(D[0], V_PHIQ, t0))
        s1 = self.cap(lambda: self.softmax16(D[1], V_PHIQ + 8, t1))
        self.merge(s0, s1)
        self.stamp(5 + 16 * L)
        if not early: hop1_section()
        if L == 0:
            self.stamp(32)
            self.kgen_tables_to_lds()
            self.stamp(33)
            self.wo_tr_addr(112)
            self.kgen_b()
            self.stamp(34)

    H2PB = 72
    def hop2_addr(self, L):
        a = self.a
        T = 120
        a(f's_mul_i32 s{S_T0}, s{S_HB}, {KVB}')
        a(f's_add_u32 s{S_T0}, s{S_T0}, {WS_KVR + L * 0x12000}')
        a(f'v_lshlrev_b32 v{T}, 4, v{V_TID}')
        a(f'v_add_u32 v{T}, s{S_T0}, v{T}')
        a(f'v_min_u32 v{T+1}, 63, v{V_TID}')
        a(f'v_lshlrev_b32 v{T+1}, 4, v{T+1}')
        a(f'v_add_u32 v{T+1}, s{S_T0}, v{T+1}')
        a(f'v_add_u32 v{T+1}, 8192, v{T+1}')
        a(f'v_add_u32 v{T+2}, 4096, v{T}')
    def hop2_loads(self):
        a = self.a
        T, PB = 120, self.H2PB
        a(f'global_load_dwordx4 v[{PB}:{PB+3}], v{T}, {WSB} sc1')
        a(f'global_load_dwordx4 v[{PB+4}:{PB+7}], v{T+2}, {WSB} sc1')
        a(f'global_load_dwordx4 v[{PB+8}:{PB+11}], v{T+1}, {WSB} sc1')

    def o_stage(self, L):
        a = self.a; o = self.o
        a.c(f'================ o stage layer {L} ================')
        T = 120
        PB = self.H2PB
        lp, ld = self.lab('h2poll'), self.lab('h2done')
        if L == 1: self.hop2_addr(L)
        W = 60
        a(f'v_lshrrev_b32 v{W}, 7, v{V_TID}')
        a(f'v_mul_u32_u24 v{W}, {KVT_HEAD}, v{W}')
        a(f'v_bfe_u32 v{W+1}, v{V_TID}, 3, 4')
        a(f'v_mul_u32_u24 v{W+1}, {KVT_ROW}, v{W+1}')
        a(f'v_and_b32 v{W+2}, 7, v{V_TID}')
        a(f'v_lshlrev_b32 v{W+2}, 3, v{W+2}')
        a(f'v_add3_u32 v{W}, v{W}, v{W+1}, v{W+2}')
        a(f'v_add_u32 v{W}, {SC_KVT}, v{W}')
        a(f'v_bfe_u32 v{W+1}, v{V_TID}, 4, 2')
        a(f'v_mul_u32_u24 v{W+1}, {KVT_HEAD}, v{W+1}')
        a(f'v_and_b32 v{W+2}, 15, v{V_TID}')
        a(f'v_lshl_add_u32 v{W+1}, v{W+2}, 2, v{W+1}')
        a(f'v_add_u32 v{W+1}, {SC_KVT + 16 * KVT_ROW}, v{W+1}')
        a(f'v_mul_u32_u24 v{W+2}, {KVT_ROW}, v{V_J}')
        a(f'v_lshl_add_u32 v{W+2}, v{V_HH}, 5, v{W+2}')
        a(f's_mul_i32 s{S_T0+1}, s{S_RHALF}, {2 * KVT_HEAD}')
        a(f's_add_u32 s{S_T0+1}, s{S_T0+1}, {SC_KVT}')
        a(f'v_add_u32 v{W+2}, s{S_T0+1}, v{W+2}')
        a(f's_lshl_b32 s{S_T0+1}, s{S_RB}, 1')
        a(f's_add_u32 s{S_T0+1}, s{S_T0+1}, s{S_HSEL}')
        a(f's_lshl_b32 s{S_T0+8}, s{S_T0+1}, 4')
        a(f's_lshl_b32 s{S_T0+3}, s{S_HB}, 1')
        a(f's_add_u32 s{S_T0+8}, s{S_T0+8}, s{S_T0+3}')
        a(f's_add_u32 s{S_T0+8}, s{S_T0+8}, s{S_RHALF}')
        a(f's_lshl_b32 s{S_T0+1}, s{S_T0+1}, 15')
        a(f's_lshl_b32 s{S_T0+3}, s{S_HB}, 12')
        a(f's_add_u32 s{S_T0+1}, s{S_T0+1}, s{S_T0+3}')
        a(f's_lshl_b32 s{S_T0+3}, s{S_RHALF}, 11')
        a(f's_add_u32 s{S_T0+1}, s{S_T0+1}, s{S_T0+3}')
        a(f's_add_u32 s{S_T0+1}, s{S_T0+1}, {WS_O + L * 0x200000}')
        a(f'v_lshlrev_b32 v{W+3}, 4, v{V_LANE}')
        a(f'v_add_u32 v{W+3}, s{S_T0+1}, v{W+3}')
        a(f's_mov_b32 s{S_T0+2}, 0')
        if L == 1:
            if o.slph: a(f's_sleep {o.slph}')
            self.hop2_loads()
        a.label(lp)
        a('s_waitcnt vmcnt(0)')
        a(f'v_sad_u32 v{T+3}, v{PB+1}, s{S_NONCE}, 0')
        for r in (3, 5, 7, 9, 11): a(f'v_sad_u32 v{T+3}, v{PB+r}, s{S_NONCE}, v{T+3}')
        a(f's_add_u32 s{S_T0+2}, s{S_T0+2}, 1')
        a(f's_cmp_gt_u32 s{S_T0+2}, {self.o.spin}')
        a(f's_cbranch_scc1 {ld}')
        a(f'v_cmp_ne_u32 vcc, 0, v{T+3}')
        a(f's_cbranch_vccz {ld}')
        if o.slp: a(f's_sleep {o.slp}')
        self.hop2_loads()
        a(f's_branch {lp}')
        a.label(ld)
        self.dbgval(42 + L, S_T0 + 2)
        self.stamp(6 + 16 * L)
        a(f'v_mov_b32 v{PB+1}, v{PB+2}')
        a(f'v_mov_b32 v{PB+5}, v{PB+6}')
        a(f'v_lshl_or_b32 v{PB+8}, v{PB+10}, 16, v{PB+8}')
        a(f'ds_write_b64 v{W}, v[{PB}:{PB+1}]')
        a(f'ds_write_b64 v{W}, v[{PB+4}:{PB+5}] offset:{2 * KVT_HEAD}')
        l = self.lab('zw')
        a(f's_cmp_lg_u32 s{S_W}, 0')
        a(f's_cbranch_scc1 {l}')
        a(f'ds_write_b32 v{W+1}, v{PB+8}')
        a(f'ds_write_b32 v{W+1}, v{PB+8} offset:{4 * KVT_ROW}')
        a.label(l)
        a('s_waitcnt lgkmcnt(0)')
        a('s_barrier')
        AF = 64
        for hd in range(2):
            for m in range(2):
                a(f'ds_read_b128 v[{AF+8*hd+4*m}:{AF+8*hd+4*m+3}], v{W+2} offset:{hd * KVT_HEAD + 16 * m}')
        D = [88, 104]
        for hd in range(2):
            a(f's_waitcnt lgkmcnt({2 - 2*hd})')
            a(f'v_mfma_f32_32x32x16_bf16 v[{D[hd]}:{D[hd]+15}], v[{AF+8*hd}:{AF+8*hd+3}], v[{V_PHIQ+8*hd}:{V_PHIQ+8*hd+3}], 0')
            a(f'v_mfma_f32_32x32x16_bf16 v[{D[hd]}:{D[hd]+15}], v[{AF+8*hd+4}:{AF+8*hd+7}], v[{V_PHIQ+8*hd+4}:{V_PHIQ+8*hd+7}], v[{D[hd]}:{D[hd]+15}]')
        OB = 48
        for hd in range(2):
            d = D[hd]
            a(f'v_add_f32 v{d+8}, 0x358637bd, v{d+8}')
            a(f'v_rcp_f32 v{d+8}, v{d+8}')
            for r in range(0, 8, 2):
                a(f'v_pk_mul_f32 v[{d+r}:{d+r+1}], v[{d+r}:{d+r+1}], v[{d+8}:{d+9}] op_sel_hi:[1,0]')
            for r in range(0, 8, 2):
                a(f'v_cvt_pk_bf16_f32 v{OB+4*hd+r//2}, v{d+r}, v{d+r+1}')
        lf, le = self.lab('ofast'), self.lab('oend')
        a(f's_cmp_eq_u32 s{S_FAST}, 1')
        a(f's_cbranch_scc1 {lf}')
        for hd in range(2):
            a(f'global_store_dwordx4 v{W+3}, v[{OB+4*hd}:{OB+4*hd+3}], {WSB} offset:{hd*1024} sc1')
        a('s_waitcnt vmcnt(0)')
        self.flag_store(4 * L + 1, S_T0 + 8)
        a(f's_branch {le}')
        a.label(lf)
        for hd in range(2):
            a(f'global_store_dwordx4 v{W+3}, v[{OB+4*hd}:{OB+4*hd+3}], {WSB} offset:{hd*1024}')
        a('s_waitcnt vmcnt(0)')
        self.flag_store(4 * L + 1, S_T0 + 8, sc='')
        a.label(le)
        if L == 0:
            self.vm = []
            self.wo_setup(52, 53)
            for i in range(16): self.wo_dma(i, 52, 53)
        self.stamp(7 + 16 * L)

    WOB = 214
    @staticmethod
    def wo_blk(i): return i * 4096 if i < 22 else LDS_KC + (i - 22) * 4096
    def wo_setup(self, b=None, t=158):
        a = self.a
        if b is None: b = self.WOB
        a(f'v_lshrrev_b32 v{b}, 4, v{V_LANE}')
        a(f'v_lshlrev_b32 v{t}, 2, v{b}')
        a(f'v_and_b32 v{t+1}, 15, v{V_LANE}')
        a(f'v_xor_b32 v{t}, v{t}, v{t+1}')
        a(f'v_lshlrev_b32 v{t}, 4, v{t}')
        a(f's_lshl_b32 s{S_T0}, s{S_W}, 2')
        a(f'v_add_u32 v{b}, s{S_T0}, v{b}')
        a(f'v_lshl_add_u32 v{b}, v{b}, 10, v{t}')
        a(f's_lshl_b32 s{S_T0}, s{S_CB}, 8')
        a(f'v_add_u32 v{b}, s{S_T0}, v{b}')
    def wo_dma(self, i, base, tmp):
        a = self.a
        a(f's_add_u32 m0, s{S_W1024}, {self.wo_blk(i)}')
        a(f'v_add_u32 v{tmp}, {i * 16 * 1024}, v{base}')
        self.vm_op(f'global_load_lds_dwordx4 v{tmp}, s[{S_WO}:{S_WO+1}]', f'wo{i >> 4}')
    def wo_tr_addr(self, b):
        a = self.a
        t = b + 3
        a(f'v_bfe_u32 v{t}, v{V_LANE}, 2, 2')
        a(f'v_lshl_add_u32 v{b}, v{V_HH}, 2, v{t}')
        a(f'v_lshlrev_b32 v{b}, 8, v{b}')
        a(f'v_lshlrev_b32 v{t}, 2, v{t}')
        a(f'v_bfe_u32 v{t+1}, v{V_LANE}, 4, 1')
        a(f'v_lshlrev_b32 v{t+1}, 1, v{t+1}')
        a(f'v_bfe_u32 v{t+2}, v{V_LANE}, 1, 1')
        a(f's_lshl_b32 s{S_T0}, s{S_W}, 2')
        a(f'v_add3_u32 v{t+1}, v{t+1}, v{t+2}, s{S_T0}')
        a(f'v_xor_b32 v{t+1}, v{t+1}, v{t}')
        a(f'v_lshl_add_u32 v{b}, v{t+1}, 4, v{b}')
        a(f'v_and_b32 v{t+1}, 1, v{V_LANE}')
        a(f'v_lshl_add_u32 v{b}, v{t+1}, 3, v{b}')
        a(f'v_add_u32 v{b+1}, 65536, v{b}')
        a(f'v_add_u32 v{b+2}, {LDS_KC}, v{b}')
    def wo_tr(self, hg, b, tag=None):
        if hg < 16: r, off = b, hg * 4096
        elif hg < 22: r, off = b + 1, (hg - 16) * 4096
        else: r, off = b + 2, (hg - 22) * 4096
        for x in range(2):
            line = f'ds_read_b64_tr_b16 v[{128+4*hg+2*x}:{128+4*hg+2*x+1}], v{r} offset:{off + x * 2048}'
            if tag: self.lg_op(line, tag)
            else: self.a(line)

    def p2b(self, L):
        a = self.a; o = self.o
        a.c(f'================ P2b layer {L} ================')
        OT = LDS_KC if L == 0 else 0
        order = list(range(16, 32)) + list(range(16)) if L == 0 else list(range(32))
        a(f's_lshl_b32 s{S_T0+9}, s{S_T}, 4')
        T = V_P
        a(f's_lshl_b32 s{S_T0+4}, s{S_T}, 15')
        a(f's_add_u32 s{S_T0+4}, s{S_T0+4}, s{S_W1024}')
        a(f's_add_u32 s{S_T0+4}, s{S_T0+4}, {WS_O + L * 0x200000}')
        a(f'v_lshlrev_b32 v{T+2}, 4, v{V_LANE}')
        a(f'v_add_u32 v{T}, s{S_T0+4}, v{T+2}')
        if OT: a(f'v_add_u32 v{T+2}, {OT}, v{T+2}')
        TT = 88
        TR = 65536
        W1, R1, G1, A1 = 52, 53, 54, 55
        a(f'v_lshlrev_b32 v{W1}, 6, v{V_J}')
        a(f'v_lshl_add_u32 v{W1}, v{V_HH}, 3, v{W1}')
        a(f's_lshl_b32 s{S_T0}, s{S_W}, 11')
        a(f's_add_u32 s{S_T0}, s{S_T0}, {TR}')
        a(f'v_add_u32 v{W1}, s{S_T0}, v{W1}')
        a(f'v_lshrrev_b32 v{TT}, 4, v{V_LANE}')
        a(f'v_bfe_u32 v{R1}, v{V_LANE}, 2, 2')
        a(f'v_lshl_add_u32 v{R1}, v{TT}, {2 if o.s3t else 3}, v{R1}')
        a(f'v_lshlrev_b32 v{R1}, 6, v{R1}')
        a(f'v_and_b32 v{TT+1}, 3, v{V_LANE}')
        a(f'v_lshl_add_u32 v{R1}, v{TT+1}, 3, v{R1}')
        a(f'v_add_u32 v{R1}, s{S_T0}, v{R1}')
        a(f's_lshl_b32 s{S_T0}, s{S_CB}, 7')
        a(f's_lshl_b32 s{S_T0+1}, s{S_W}, 5')
        a(f's_add_u32 s{S_T0}, s{S_T0}, s{S_T0+1}')
        a(f's_lshl_b32 s{S_T0}, s{S_T0}, 12')
        a(f's_lshl_b32 s{S_T0+1}, s{S_T}, 6')
        a(f's_add_u32 s{S_T0}, s{S_T0}, s{S_T0+1}')
        a(f's_add_u32 s{S_T0}, s{S_T0}, {WS_X1T + L * 0x200000}')
        a(f'v_and_b32 v{G1}, 15, v{V_LANE}')
        a(f'v_lshlrev_b32 v{G1}, 12, v{G1}')
        a(f'v_lshl_add_u32 v{G1}, v{TT}, 4, v{G1}')
        a(f'v_add_u32 v{G1}, s{S_T0}, v{G1}')
        if o.s3t:
            a(f's_lshl_b32 s{S_T0}, s{S_CB}, 7')
            a(f's_lshl_b32 s{S_T0+1}, s{S_W}, 5')
            a(f's_add_u32 s{S_T0}, s{S_T0}, s{S_T0+1}')
            a(f's_lshl_b32 s{S_T0}, s{S_T0}, 13')
            a(f's_lshl_b32 s{S_T0+1}, s{S_T}, 7')
            a(f's_add_u32 s{S_T0}, s{S_T0}, s{S_T0+1}')
            a(f's_add_u32 s{S_T0}, s{S_T0}, {WS_X1G[L]}')
            a(f'v_and_b32 v{G1}, 15, v{V_LANE}')
            a(f'v_lshlrev_b32 v{G1}, 13, v{G1}')
            a(f'v_lshl_add_u32 v{G1}, v{TT}, 4, v{G1}')
            a(f'v_add_u32 v{G1}, s{S_T0}, v{G1}')
            a(f's_lshl_b32 s{S_T0}, s{S_W}, 8')
            a(f's_add_u32 s{S_T0}, s{S_T0}, {SC_RED}')
            a(f'v_lshlrev_b32 v{A1}, 2, v{V_LANE}')
            a(f'v_add_u32 v{A1}, s{S_T0}, v{A1}')
        else:
            a(f's_lshl_b32 s{S_T0}, s{S_T}, 7')
            a(f's_add_u32 s{S_T0}, s{S_T0}, {WS_STATS + L * 0x4000}')
            a(f'v_lshlrev_b32 v{A1}, 2, v{V_J}')
            a(f'v_lshl_add_u32 v{A1}, v{V_HH}, 13, v{A1}')
            a(f'v_add_u32 v{A1}, s{S_T0}, v{A1}')
        if L == 0: self.wo_tr_addr(112)
        if L == 0:
            pass
        self.wait(4 * L + 1, S_T0 + 9, 16, slp0=0)
        self.stamp(8 + 16 * L)
        pieces = [4, 5, 6, 7, 0, 1, 2, 3] if L == 0 else list(range(8))
        for i in pieces:
            a(f's_add_u32 m0, s{S_W1024}, {OT + i * 4096}')
            a(f'v_add_u32 v{T+1}, {i * 4096}, v{T}')
            self.vm_op(f'global_load_lds_dwordx4 v{T+1}, {WSB} sc1', f'o{pieces.index(i) >> 1}')
        FR, ACC, NB = 56, 72, 4
        self.lg = []
        def rd(n):
            hg = order[n]
            self.lg_op(f'ds_read_b128 v[{FR+4*(n%NB)}:{FR+4*(n%NB)+3}], v{T+2} offset:{hg*1024}', f'o{n}')
        self.wait_vm('o0'); a('s_barrier')
        for n in range(3): rd(n)
        woq = list(range(16)) if L == 0 else []
        for n in range(32):
            if n % 8 == 5 and n < 24:
                self.wait_vm(f'o{n // 8 + 1}'); a('s_barrier')
            if n + 3 < 32: rd(n + 3)
            if L == 0 and 6 <= n < 14:
                for _ in range(2): self.wo_tr(woq.pop(0), 112, 'wo')
            self.wait_lg(f'o{n}')
            hg = order[n]
            if L == 0 and n >= 16: self.wait_lg('wo')
            c = '0' if n == 0 else f'v[{ACC}:{ACC+15}]'
            a(f'v_mfma_f32_32x32x16_bf16 v[{ACC}:{ACC+15}], v[{128+4*hg}:{128+4*hg+3}], v[{FR+4*(n%NB)}:{FR+4*(n%NB)+3}], {c}')
        self.stamp(9 + 16 * L)
        X, U = 88, 96
        SS, SQ, ONES = 112 + 4, 113 + 4, 114 + 4
        a(f'v_mov_b32 v{SS}, 0'); a(f'v_mov_b32 v{SQ}, 0'); a(f'v_mov_b32 v{ONES}, 0x3f803f80')
        for g in range(8):
            u = U + 2 * (g & 1)
            a(f'v_lshlrev_b32 v{u}, 16, v{V_RESID+g}')
            a(f'v_and_b32 v{u+1}, 0xffff0000, v{V_RESID+g}')
            a(f'v_pk_add_f32 v[{ACC+2*g}:{ACC+2*g+1}], v[{ACC+2*g}:{ACC+2*g+1}], v[{u}:{u+1}]')
            a(f'v_cvt_pk_bf16_f32 v{X+g}, v{ACC+2*g}, v{ACC+2*g+1}')
            if g & 1: a(f'ds_write_b64 v{W1}, v[{X+g-1}:{X+g}] offset:{8*(g-1)}')
        for g in range(8):
            a(f'v_dot2c_f32_bf16 v{SS}, v{X+g}, v{ONES}')
            a(f'v_dot2c_f32_bf16 v{SQ}, v{X+g}, v{X+g}')
        if o.s3t: return self.p2b_tail_tagged(L, X, U, SS, SQ, R1, G1, A1)
        Y = 104
        a(f'v_mov_b32 v{U}, v{SS}')
        a(f'v_mov_b32 v{U+1}, v{SQ}')
        a(f'v_permlane32_swap_b32 v{SS}, v{U}')
        a(f'v_permlane32_swap_b32 v{SQ}, v{U+1}')
        a(f'v_add_f32 v{SS}, v{SS}, v{U}')
        a(f'v_add_f32 v{SQ}, v{SQ}, v{U+1}')
        a(f'v_cmp_eq_u32 vcc, 0, v{V_HH}')
        a(f'v_cndmask_b32 v{SS}, v{SQ}, v{SS}, vcc')
        a(f'v_lshlrev_b32 v{U}, 2, v{V_LANE}')
        a(f's_lshl_b32 s{S_T0}, s{S_W}, 8')
        a(f's_add_u32 s{S_T0}, s{S_T0}, {SC_RED}')
        a(f'v_add_u32 v{U+1}, s{S_T0}, v{U}')
        a(f'ds_write_b32 v{U+1}, v{SS}')
        for m in range(2):
            for x in range(2):
                a(f'ds_read_b64_tr_b16 v[{Y+4*m+2*x}:{Y+4*m+2*x+1}], v{R1} offset:{m*32 + x*256}')
        a(f'v_add_u32 v{T}, {16 * 4096}, v{G1}')
        a('s_waitcnt lgkmcnt(4)')
        a('s_barrier')
        l = self.lab('at')
        a(f's_cmp_lg_u32 s{S_W}, 0')
        a(f's_cbranch_scc1 {l}')
        a(f'v_add_u32 v{U}, {SC_RED}, v{U}')
        for w in range(4): a(f'ds_read_b32 v{U+2+w}, v{U} offset:{w*256}')
        a('s_waitcnt lgkmcnt(0)')
        a(f'v_add_f32 v{U+2}, v{U+2}, v{U+3}')
        a(f'v_add_f32 v{U+4}, v{U+4}, v{U+5}')
        a(f'v_add_f32 v{U+2}, v{U+2}, v{U+4}')
        a(f'global_atomic_add_f32 v{A1}, v{U+2}, {WSB}')
        a.label(l)
        a('s_waitcnt lgkmcnt(0)')
        a(f'global_store_dwordx4 v{G1}, v[{Y}:{Y+3}], {WSB} sc1')
        a(f'global_store_dwordx4 v{T}, v[{Y+4}:{Y+7}], {WSB} sc1')
        self.signal_wg(4 * L + 2, S_WG)
        self.stamp(10 + 16 * L)

    def p2b_tail_tagged(self, L, X, U, SS, SQ, R1, G1, A1):
        a = self.a; o = self.o
        T = V_P
        a(f'v_mov_b32 v{U}, v{SS}')
        a(f'v_mov_b32 v{U+1}, v{SQ}')
        a(f'v_permlane32_swap_b32 v{SS}, v{U}')
        a(f'v_permlane32_swap_b32 v{SQ}, v{U+1}')
        a(f'v_add_f32 v{SS}, v{SS}, v{U}')
        a(f'v_add_f32 v{SQ}, v{SQ}, v{U+1}')
        a(f'v_cmp_eq_u32 vcc, 0, v{V_HH}')
        a(f'v_cndmask_b32 v{SS}, v{SQ}, v{SS}, vcc')
        a(f'ds_write_b32 v{A1}, v{SS}')
        Q = 56
        a('s_waitcnt lgkmcnt(1)')
        for m in range(2):
            for x in range(2):
                q = Q + 8*m + 4*x
                a(f'ds_read_b64_tr_b16 v[{q}:{q+1}], v{R1} offset:{m*32 + x*1024}')
        a('s_waitcnt lgkmcnt(4)')
        a('s_barrier')
        lw, le = self.lab('p2w'), self.lab('p2e')
        def x1_stores():
            a('s_waitcnt lgkmcnt(0)')
            for i in range(4):
                q = Q + 4*i
                a(f'v_mov_b32 v{q+2}, v{q+1}')
                a(f'v_mov_b32 v{q+1}, s{S_NONCE}')
                a(f'v_mov_b32 v{q+3}, s{S_NONCE}')
            a(f'v_add_u32 v{T}, {16 * 8192}, v{G1}')
            a(f'global_store_dwordx4 v{G1}, v[{Q}:{Q+3}], {WSB} sc1')
            a(f'global_store_dwordx4 v{G1}, v[{Q+4}:{Q+7}], {WSB} offset:64 sc1')
            a(f'global_store_dwordx4 v{T}, v[{Q+8}:{Q+11}], {WSB} sc1')
            a(f'global_store_dwordx4 v{T}, v[{Q+12}:{Q+15}], {WSB} offset:64 sc1')
        a(f's_cmp_lg_u32 s{S_W}, 0')
        a(f's_cbranch_scc1 {lw}')
        a(f'v_lshlrev_b32 v{U}, 2, v{V_LANE}')
        a(f'v_add_u32 v{U}, {SC_RED}, v{U}')
        for w in range(4): a(f'ds_read_b32 v{U+2+w}, v{U} offset:{w*256}')
        a(f's_lshl_b32 s{S_T0}, s{S_T}, 11')
        a(f's_add_u32 s{S_T0}, s{S_T0}, {WS_ST4 + L * 0x20000}')
        a(f'v_lshlrev_b32 v{U+1}, 3, v{V_LANE}')
        a(f'v_add_u32 v{U+1}, s{S_T0}, v{U+1}')
        a(f's_lshl_b32 s{S_T0+1}, s{S_CB}, 9')
        a(f'v_add_u32 v{U}, s{S_T0+1}, v{U+1}')
        a('s_waitcnt lgkmcnt(0)')
        a(f'v_add_f32 v{U+2}, v{U+2}, v{U+3}')
        a(f'v_add_f32 v{U+4}, v{U+4}, v{U+5}')
        a(f'v_add_f32 v{U+2}, v{U+2}, v{U+4}')
        lc = self.lab('cbn')
        a(f's_cmp_lg_u32 s{S_CB}, 0')
        a(f's_cbranch_scc0 {lc}')
        a(f'v_mov_b32 v{U+3}, s{S_NONCE}')
        lf, lg = self.lab('stf'), self.lab('stg')
        a(f's_cmp_eq_u32 s{S_FAST}, 1')
        a(f's_cbranch_scc1 {lf}')
        a(f'global_store_dwordx2 v{U}, v[{U+2}:{U+3}], {WSB} sc1')
        a(f's_branch {lg}')
        a.label(lf)
        a(f'global_store_dwordx2 v{U}, v[{U+2}:{U+3}], {WSB}' + (' sc1' if o.x1 == 1 else ''))
        a.label(lg)
        if o.x1 == 2: a('s_waitcnt vmcnt(0)')
        a(f's_branch {lw}')
        a.label(lc)
        lp, ld = self.lab('st4p'), self.lab('st4d')
        P = 72
        a(f's_mov_b32 s{S_T0+2}, 0')
        if o.slp4: a(f's_sleep {o.slp4}')
        a.label(lp)
        for c in range(1, 4):
            a(f'global_load_dwordx2 v[{P+2*c}:{P+2*c+1}], v{U+1}, {WSB} offset:{c*512} sc1')
        a(f's_add_u32 s{S_T0+2}, s{S_T0+2}, 1')
        a(f's_cmp_gt_u32 s{S_T0+2}, {o.spin}')
        a(f's_cbranch_scc1 {ld}')
        a('s_waitcnt vmcnt(0)')
        a(f'v_sad_u32 v{P}, v{P+3}, s{S_NONCE}, 0')
        a(f'v_sad_u32 v{P}, v{P+5}, s{S_NONCE}, v{P}')
        a(f'v_sad_u32 v{P}, v{P+7}, s{S_NONCE}, v{P}')
        a(f'v_cmp_ne_u32 vcc, 0, v{P}')
        a(f's_cbranch_vccz {ld}')
        a(f's_sleep {o.slp}')
        a(f's_branch {lp}')
        a.label(ld)
        a('s_waitcnt vmcnt(0)')
        a(f'v_add_f32 v{U+2}, v{U+2}, v{P+2}')
        a(f'v_add_f32 v{P+4}, v{P+4}, v{P+6}')
        a(f'v_add_f32 v{U+2}, v{U+2}, v{P+4}')
        a(f'v_mov_b32 v{U+3}, v{U+2}')
        a(f'v_permlane32_swap_b32 v{U+2}, v{U+3}')
        a(f'v_mul_f32 v{U+2}, 0x3b000000, v{U+2}')
        a(f'v_mul_f32 v{U+3}, 0x3b000000, v{U+3}')
        a(f'v_fma_f32 v{U+3}, -v{U+2}, v{U+2}, v{U+3}')
        a(f'v_max_f32 v{U+3}, 0, v{U+3}')
        self.rbf(U + 3, U + 3)
        a(f'v_add_f32 v{U+3}, 0x3727c5ac, v{U+3}')
        self.rbf(U + 3, U + 3)
        a(f'v_sqrt_f32 v{U+3}, v{U+3}')
        a(f'v_cvt_pk_bf16_f32 v{U+2}, v{U+2}, v{U+3}')
        a(f'v_mov_b32 v{U+3}, s{S_NONCE}')
        a(f's_lshl_b32 s{S_T0}, s{S_T}, 8')
        a(f's_add_u32 s{S_T0}, s{S_T0}, {WS_STATS + L * 0x4000}')
        a(f'v_lshlrev_b32 v{U}, 3, v{V_J}')
        a(f'v_add_u32 v{U}, s{S_T0}, v{U}')
        a('s_mov_b32 exec_lo, -1'); a('s_mov_b32 exec_hi, 0')
        a(f'global_store_dwordx2 v{U}, v[{U+2}:{U+3}], {WSB} sc1')
        a('s_mov_b64 exec, -1')
        a.label(lw)
        a('s_barrier')
        x1_stores()
        a('s_barrier')
        self.stamp(10 + 16 * L)

    def exp_acc(self, dst, src, t):
        a = self.a
        a(f'v_mul_f32 v{t}, {hex(LOG2E)}, v{src}')
        a(f'v_mov_b32 v{t+1}, {hex(LOG2E)}')
        a(f'v_fma_f32 v{t+1}, v{src}, v{t+1}, -v{t}')
        a(f'v_fmac_f32 v{t+1}, 0x32a57060, v{src}')
        a(f'v_exp_f32 v{dst}, v{t}')
        a(f'v_mul_f32 v{t+1}, 0x3f317218, v{t+1}')
        a(f'v_fmac_f32 v{dst}, v{dst}, v{t+1}')

    def cis_pow(self, dst, ar2, rev, p, t):
        a = self.a
        import struct
        pf = hex(struct.unpack('<I', struct.pack('<f', float(p)))[0])
        a(f'v_mul_f32 v{t}, {pf}, v{ar2}')
        a(f'v_exp_f32 v{t}, v{t}')
        a(f'v_mul_f32 v{t+1}, {pf}, v{rev}')
        a(f'v_fract_f32 v{t+1}, v{t+1}')
        a(f'v_cos_f32 v{dst}, v{t+1}')
        a(f'v_sin_f32 v{dst+1}, v{t+1}')
        a(f'v_mul_f32 v{dst}, v{dst}, v{t}')
        a(f'v_mul_f32 v{dst+1}, v{dst+1}, v{t}')

    def cmul(self, d, x, y):
        a = self.a
        a(f'v_pk_mul_f32 v[{d}:{d+1}], v[{x}:{x+1}], v[{y}:{y+1}] op_sel_hi:[0,1]')
        a(f'v_pk_fma_f32 v[{d}:{d+1}], v[{x}:{x+1}], v[{y}:{y+1}], v[{d}:{d+1}] op_sel:[1,1,0] op_sel_hi:[1,0,1] neg_lo:[0,1,0]')

    KG_A = 0
    KG_B = 33792
    KG_MX = 55968
    KG_D = 148480
    KP = 36
    def kgen_loads(self):
        a = self.a
        T, KP = 54, self.KP
        a(f's_lshl_b32 s{S_T0}, s{S_C0}, 8')
        a(f'v_lshlrev_b32 v{T}, 1, v{V_TID}')
        a(f'v_add_u32 v{T}, s{S_T0}, v{T}')
        a(f'global_load_ushort v{KP}, v{T}, s[{S_LOGA}:{S_LOGA+1}]')
        a(f'global_load_ushort v{KP+1}, v{T}, s[{S_AIM}:{S_AIM+1}]')
        a(f'global_load_ushort v{KP+2}, v{T}, s[{S_CRE}:{S_CRE+1}]')
        a(f'global_load_ushort v{KP+3}, v{T}, s[{S_CIM}:{S_CIM+1}]')
        a(f'v_lshrrev_b32 v{T+1}, 7, v{V_TID}')
        a(f'v_add_u32 v{T+1}, s{S_C0}, v{T+1}')
        a(f'v_lshlrev_b32 v{T+1}, 1, v{T+1}')
        a(f'global_load_ushort v{KP+4}, v{T+1}, s[{S_LOGDT}:{S_LOGDT+1}]')
        a(f'v_xor_b32 v{T}, 128, v{T}')
        a(f'global_load_ushort v{KP+5}, v{T}, s[{S_CRE}:{S_CRE+1}]')
        a(f'global_load_ushort v{KP+6}, v{T}, s[{S_CIM}:{S_CIM+1}]')
        a(f's_lshl_b32 s{S_T0}, s{S_C0}, 1')
        a(f's_add_u32 s{S_T0+2}, s{S_DSK}, s{S_T0}')
        a(f's_addc_u32 s{S_T0+3}, s{S_DSK+1}, 0')
        a(f's_load_dword s{S_DSKV}, s[{S_T0+2}:{S_T0+3}], 0')

    KT = 160
    def cmul_p(self, d, x, y):
        a = self.a
        a(f'v_mul_f32 v{d}, v{x}, v{y}')
        a(f'v_mul_f32 v{d+1}, v{x}, v{y+1}')
        a(f'v_fma_f32 v{d}, -v{x+1}, v{y+1}, v{d}')
        a(f'v_fmac_f32 v{d+1}, v{x+1}, v{y}')
    def kgen_a(self):
        a = self.a
        KP, KT = self.KP, self.KT
        T = 216
        LA, AI, CR, CI, LD, DT, EA, AR2, REV, MX = 218, 219, 220, 221, 222, 223, 224, 225, 226, 227
        for i, r in enumerate((LA, AI, CR, CI, LD)): a(f'v_lshlrev_b32 v{r}, 16, v{KP+i}')
        self.exp_acc(DT, LD, T); self.rbf(DT, DT)
        self.exp_acc(EA, LA, T); self.rbf(EA, EA)
        a(f'v_mul_f32 v{AR2}, v{EA}, v{DT}')
        a(f'v_mul_f32 v{AR2}, {hex(LOG2E ^ 0x80000000)}, v{AR2}')
        a(f'v_mul_f32 v{REV}, v{AI}, v{DT}')
        a(f'v_mul_f32 v{REV}, 0.15915494, v{REV}')
        a(f'v_lshlrev_b32 v{T}, 16, v{KP+5}')
        a(f'v_lshlrev_b32 v{T+1}, 16, v{KP+6}')
        a(f'v_max_f32 v{MX}, |v{CR}|, |v{CI}|')
        a(f'v_max3_f32 v{MX}, |v{T}|, |v{T+1}|, v{MX}')
        for ctrl in ('row_ror:1', 'row_ror:2', 'row_ror:4', 'row_ror:8'):
            a(f'v_mov_b32_dpp v{T}, v{MX} {ctrl} row_mask:0xf bank_mask:0xf')
            a(f'v_max_f32 v{MX}, v{MX}, v{T}')
        a(f'v_mov_b32 v{T}, v{MX}')
        a(f'v_permlane16_swap_b32 v{MX}, v{T}')
        a(f'v_max_f32 v{MX}, v{MX}, v{T}')
        a(f'v_mov_b32 v{T}, v{MX}')
        a(f'v_permlane32_swap_b32 v{MX}, v{T}')
        a(f'v_max_f32 v{MX}, v{MX}, v{T}')
        a(f'v_lshrrev_b32 v{MX}, 23, v{MX}')
        a(f'v_max_u32 v{MX}, 1, v{MX}')
        a(f'v_min_u32 v{MX}, 253, v{MX}')
        a(f'v_sub_u32 v{T+1}, 254, v{MX}')
        a(f'v_lshlrev_b32 v{T+1}, 23, v{T+1}')
        a(f'v_lshlrev_b32 v{T}, 23, v{MX}')
        a(f'v_mul_f32 v{T}, v{T}, v{DT}')
        a(f'v_mul_f32 v{KT+53}, 0x3d000000, v{T}')
        C = CR
        a(f'v_mul_f32 v{C}, v{C}, v{T+1}')
        a(f'v_mul_f32 v{C+1}, v{C+1}, v{T+1}')
        Z1, Z8, Z256 = 228, 230, 232
        self.cis_pow(Z1, AR2, REV, 1, T)
        self.cis_pow(Z8, AR2, REV, 8, T)
        self.cis_pow(Z256, AR2, REV, 256, T)
        P0, P1 = 234, 236
        cmul = self.cmul
        a(f'v_mov_b32 v{P0}, 1.0'); a(f'v_mov_b32 v{P0+1}, 0')
        cur, nxt = P0, P1
        for b in range(32):
            a(f'v_cvt_pkrtz_f16_f32 v{KT+b}, v{cur}, -v{cur+1}')
            if b < 31:
                cmul(nxt, cur, Z8); cur, nxt = nxt, cur
        def putB(col, r): a(f'v_cvt_pkrtz_f16_f32 v{KT+32+col}, v{r}, v{r+1}')
        Z2, Z4, Z6 = 238, 240, 242
        cmul(Z2, Z1, Z1); cmul(Z4, Z2, Z2); cmul(Z6, Z4, Z2)
        putB(0, C)
        cur, nxt = P0, P1
        cmul(cur, C, Z1); putB(1, cur)
        for k in range(2, 8):
            cmul(nxt, cur, Z1); cur, nxt = nxt, cur; putB(k, cur)
        G, G2, W1 = 244, 246, 248
        cmul(G, C, Z256); putB(8, G)
        for k, zz in ((9, Z2), (10, Z4), (11, Z6)):
            cmul(W1, G, zz); putB(k, W1)
        cmul(G2, G, Z256)
        putB(12, G2); cmul(W1, G2, Z4); putB(13, W1)
        cmul(G, G2, Z256)
        putB(14, G); cmul(W1, G, Z4); putB(15, W1)
        cmul(G2, G, Z256); putB(16, G2)
        cmul(G, G2, Z256); putB(17, G)
        cmul(G2, G, Z256); putB(18, G2)
        cmul(G, G2, Z256); putB(19, G)
        cmul(G2, G, Z256); putB(20, G2)

    def kgen_tables_to_lds(self):
        a = self.a
        T, KT = V_P, self.KT
        TA, TB = T + 2, T + 3
        a(f'v_lshrrev_b32 v{T}, 7, v{V_TID}')
        a(f'v_and_b32 v{T+1}, 127, v{V_TID}')
        a(f'v_lshlrev_b32 v{T+1}, 2, v{T+1}')
        a(f'v_mul_u32_u24 v{TA}, 16896, v{T}')
        a(f'v_add_u32 v{TA}, v{TA}, v{T+1}')
        a(f'v_mul_u32_u24 v{TB}, 11088, v{T}')
        a(f'v_add3_u32 v{TB}, v{TB}, v{T+1}, 0')
        for b in range(0, 32, 2):
            a(f'v_add_u32 v{T+1}, {self.KG_A + b * 528}, v{TA}')
            a(f'ds_write2_b32 v{T+1}, v{KT+b}, v{KT+b+1} offset0:0 offset1:132')
        for c in range(0, 20, 2):
            a(f'v_add_u32 v{T+1}, {self.KG_B + c * 528}, v{TB}')
            a(f'ds_write2_b32 v{T+1}, v{KT+32+c}, v{KT+32+c+1} offset0:0 offset1:132')
        a(f'ds_write_b32 v{TB}, v{KT+32+20} offset:{self.KG_B + 20 * 528}')
        a(f'v_lshlrev_b32 v{T}, 2, v{T}')
        a(f'ds_write_b32 v{T}, v{KT+53} offset:{self.KG_MX + 32}')
        a('s_waitcnt lgkmcnt(0)')

    def kgen_b(self):
        a = self.a; o = self.o
        a.c('================ K generation: contraction over modes ================')
        T = V_P
        a('s_barrier')
        AA, BA = T, T + 1
        a(f'v_and_b32 v{T+2}, 15, v{V_LANE}')
        a(f'v_lshrrev_b32 v{T+3}, 4, v{V_LANE}')
        a(f'v_lshlrev_b32 v{T+3}, 4, v{T+3}')
        a(f'v_mul_u32_u24 v{AA}, 528, v{T+2}')
        a(f'v_add_u32 v{AA}, v{AA}, v{T+3}')
        a(f's_mul_i32 s{S_T0}, s{S_HSEL}, 16896')
        a(f'v_add_u32 v{AA}, s{S_T0}, v{AA}')
        a(f's_lshl_b32 s{S_T0+1}, s{S_RHALF}, 4')
        a(f'v_add_u32 v{BA}, s{S_T0+1}, v{T+2}')
        a(f'v_min_u32 v{BA}, 20, v{BA}')
        a(f'v_mul_u32_u24 v{BA}, 528, v{BA}')
        a(f'v_add_u32 v{BA}, v{BA}, v{T+3}')
        a(f's_mul_i32 s{S_T0}, s{S_HSEL}, 11088')
        a(f's_add_u32 s{S_T0}, s{S_T0}, {self.KG_B}')
        a(f'v_add_u32 v{BA}, s{S_T0}, v{BA}')
        FA, FB, DD = 56, 88, 104
        def rdk(ks):
            st = ks & 1
            a(f'ds_read_b128 v[{FA+8*st}:{FA+8*st+3}], v{AA} offset:{self.KG_A + ks * 64}')
            a(f'ds_read_b128 v[{FA+8*st+4}:{FA+8*st+7}], v{AA} offset:{self.KG_A + 16 * 528 + ks * 64}')
            a(f'ds_read_b128 v[{FB+4*st}:{FB+4*st+3}], v{BA} offset:{ks * 64}')
        rdk(0)
        for ks in range(8):
            if ks + 1 < 8:
                rdk(ks + 1); a('s_waitcnt lgkmcnt(3)')
            else:
                a('s_waitcnt lgkmcnt(0)')
            st = ks & 1
            for mb in range(2):
                c = '0' if ks == 0 else f'v[{DD+4*mb}:{DD+4*mb+3}]'
                a(f'v_mfma_f32_16x16x32_f16 v[{DD+4*mb}:{DD+4*mb+3}], v[{FA+8*st+4*mb}:{FA+8*st+4*mb+3}], v[{FB+4*st}:{FB+4*st+3}], {c}')
        self.hop2_addr(0); self.hop2_loads()
        for hg in range(16, 32): self.wo_tr(hg, 112)
        COL, P2 = T, T + 1
        a(f'v_and_b32 v{COL}, 15, v{V_LANE}')
        a(f's_lshl_b32 s{S_T0}, s{S_RHALF}, 4')
        a(f'v_add_u32 v{COL}, s{S_T0}, v{COL}')
        t2, t3 = T + 2, T + 3
        a(f'v_mov_b32 v{P2}, v{COL}')
        a(f'v_lshlrev_b32 v{t2}, 1, v{COL}'); a(f'v_add_u32 v{t2}, {256 - 16}, v{t2}')
        a(f'v_cmp_le_u32 vcc, 8, v{COL}'); a(f'v_cndmask_b32 v{P2}, v{P2}, v{t2}, vcc')
        a(f'v_and_b32 v{t2}, 1, v{COL}'); a(f'v_lshlrev_b32 v{t2}, 2, v{t2}')
        a(f'v_bfe_u32 v{t3}, v{COL}, 1, 1'); a(f'v_lshlrev_b32 v{t3}, 8, v{t3}')
        a(f'v_add3_u32 v{t2}, v{t2}, v{t3}, 0'); a(f'v_add_u32 v{t2}, 512, v{t2}')
        a(f'v_cmp_le_u32 vcc, 12, v{COL}'); a(f'v_cndmask_b32 v{P2}, v{P2}, v{t2}, vcc')
        a(f'v_lshlrev_b32 v{t2}, 8, v{COL}'); a(f'v_add_u32 v{t2}, {1024 - 4096 + 0x100000}, v{t2}'); a(f'v_and_b32 v{t2}, 0xfffff, v{t2}')
        a(f'v_cmp_le_u32 vcc, 16, v{COL}'); a(f'v_cndmask_b32 v{P2}, v{P2}, v{t2}, vcc')
        a(f'v_lshrrev_b32 v{t2}, 4, v{V_LANE}')
        a(f'v_lshl_add_u32 v{t2}, v{t2}, 5, v{P2}')
        a(f'v_lshlrev_b32 v{t2}, 1, v{t2}')
        a(f's_mul_i32 s{S_T0}, s{S_HSEL}, 4112')
        a(f's_add_u32 s{S_T0}, s{S_T0}, {self.KG_D}')
        a(f'v_add_u32 v{t2}, s{S_T0}, v{t2}')
        for i in range(8):
            a(f'v_mul_f32 v{DD+i}, 0x42800000, v{DD+i}')
            a(f'v_cvt_f16_f32 v{DD+i}, v{DD+i}')
        a(f'v_cmp_gt_u32 vcc, 20, v{COL}')
        a(f's_and_saveexec_b64 s[{S_T0+2}:{S_T0+3}], vcc')
        for mb in range(2):
            for r in range(4):
                a(f'ds_write_b16 v{t2}, v{DD+4*mb+r} offset:{(128*mb + 8*r) * 2}')
        a(f's_mov_b64 exec, s[{S_T0+2}:{S_T0+3}]')
        a(f'v_cmp_eq_u32 vcc, 20, v{COL}')
        a(f'v_lshrrev_b32 v{t3}, 4, v{V_LANE}')
        a(f'v_cmp_eq_u32 s[{S_T0+4}:{S_T0+5}], 0, v{t3}')
        a(f's_and_b64 vcc, vcc, s[{S_T0+4}:{S_T0+5}]')
        a(f's_and_saveexec_b64 s[{S_T0+2}:{S_T0+3}], vcc')
        a(f'ds_write_b16 v{t2}, v{DD}')
        a(f's_mov_b64 exec, s[{S_T0+2}:{S_T0+3}]')
        a(f'v_mov_b32 v{T}, {self.KG_MX + 32}')
        a(f'ds_read_b64 v[{T+2}:{T+3}], v{T}')
        a('s_waitcnt lgkmcnt(0)')
        a(f'v_readfirstlane_b32 s{S_KSC}, v{T+2}')
        a(f'v_readfirstlane_b32 s{S_KSC+1}, v{T+3}')
        a('s_barrier')

    def kgen_b2(self):
        a = self.a; o = self.o
        T = V_P
        LL = 56
        for i in range(12):
            a(f'v_lshlrev_b32 v{T}, 3, v{V_TID}')
            a(f'v_add_u32 v{T}, {i - 4 + 0}, v{T}') if i >= 4 else a(f'v_subrev_u32 v{T}, {4 - i}, v{T}')
            a(f'v_max_i32 v{T}, 0, v{T}')
            a(f'v_cvt_f32_u32 v{T}, v{T}')
            self.rbf(T, T)
            a(f'v_cvt_u32_f32 v{T}, v{T}')
            a(f'v_lshlrev_b32 v{LL+i}, 1, v{T}')
            a(f'v_add_u32 v{LL+i}, {self.KG_D}, v{LL+i}')
        GT = 72
        for ch in range(2):
            for i in range(12):
                a(f'ds_read_u16 v{GT + 12*ch + i}, v{LL+i} offset:{ch * 4112}')
        a('s_waitcnt lgkmcnt(0)')
        for ch in range(2):
            for i in range(6):
                a(f'v_lshl_or_b32 v{V_K + 6*ch + i}, v{GT + 12*ch + 2*i + 1}, 16, v{GT + 12*ch + 2*i}')
        a(f'v_cmp_eq_u32 vcc, 0, v{V_TID}')
        for ch in range(2):
            for i in range(2):
                a(f'v_cndmask_b32 v{V_K+6*ch+i}, v{V_K+6*ch+i}, 0, vcc') if False else a(f'v_cndmask_b32 v{V_K+6*ch+i}, v{V_K+6*ch+i}, v{self.zero_reg()}, vcc')
        if o.dump == 'kgen': self.dump(V_K, 12, 0)

    def zero_reg(self):
        self.a(f'v_mov_b32 v119, 0')
        return 119

    CV_KC = LDS_KC
    CV_U = 512
    CV_X1 = 9728
    CV_EX = 17920
    def k_copies(self, T=V_P, W=56):
        a = self.a
        a.c('K shifted copies -> LDS')
        AD = T
        a(f'v_lshlrev_b32 v{AD}, 4, v{V_TID}')
        a(f'v_add_u32 v{AD}, {self.CV_KC + 32}, v{AD}')
        for ch in range(2):
            d = V_K + 6 * ch
            base = ch * 16640
            a(f'ds_write_b128 v{AD}, v[{d+2}:{d+5}] offset:{base}')
            for i in range(4): a(f'v_mov_b32 v{W+i}, v{d+1+i}')
            a(f'ds_write_b128 v{AD}, v[{W}:{W+3}] offset:{base + 2*4160}')
            for i in range(5): a(f'v_alignbit_b32 v{W+4+i}, v{d+i+1}, v{d+i}, 16')
            a(f'ds_write_b128 v{AD}, v[{W+4}:{W+7}] offset:{base + 3*4160}')
            for i in range(4): a(f'v_mov_b32 v{W+10+i}, v{W+5+i}')
            a(f'ds_write_b128 v{AD}, v[{W+10}:{W+13}] offset:{base + 1*4160}')
        for i in range(4): a(f'v_mov_b32 v{W+i}, 0')
        a(f'v_lshrrev_b32 v{T+1}, 1, v{V_TID}')
        a(f'v_mul_u32_u24 v{T+1}, 4160, v{T+1}')
        a(f'v_and_b32 v{T+2}, 1, v{V_TID}')
        a(f'v_lshl_add_u32 v{T+1}, v{T+2}, 4, v{T+1}')
        a(f'v_add_u32 v{T+1}, {self.CV_KC}, v{T+1}')
        a(f'v_cmp_gt_u32 vcc, 16, v{V_TID}')
        a(f's_and_saveexec_b64 s[{S_T0+2}:{S_T0+3}], vcc')
        a(f'ds_write_b128 v{T+1}, v[{W}:{W+3}]')
        a(f's_mov_b64 exec, s[{S_T0+2}:{S_T0+3}]')

    def u_pad_zero(self):
        a = self.a
        T, W = V_P, 56
        for i in range(4): a(f'v_mov_b32 v{W+i}, 0')
        a(f'v_lshrrev_b32 v{T+1}, 5, v{V_TID}')
        a(f'v_mul_u32_u24 v{T+1}, 4608, v{T+1}')
        a(f'v_and_b32 v{T+2}, 31, v{V_TID}')
        a(f'v_lshl_add_u32 v{T+1}, v{T+2}, 4, v{T+1}')
        a(f'v_add_u32 v{T+1}, {self.CV_U}, v{T+1}')
        l = self.lab('up')
        a(f's_cmp_lg_u32 s{S_W}, 0')
        a(f's_cbranch_scc1 {l}')
        a(f'ds_write_b128 v{T+1}, v[{W}:{W+3}]')
        a.label(l)

    def conv(self, L):
        a = self.a; o = self.o
        a.c(f'================ conv layer {L} ================')
        if L == 0:
            self.kgen_b2()
            if o.s3t: self.k_copies()
        self.u_pad_zero()
        T = V_P
        XR, SM, SQ = 48, 56, 64
        GA = 112
        a(f's_lshl_b32 s{S_T0}, s{S_C0}, 12')
        a(f's_add_u32 s{S_T0}, s{S_T0}, {WS_X1T + L * 0x200000}')
        a(f'v_lshlrev_b32 v{GA}, 4, v{V_TID}')
        a(f'v_add_u32 v{GA}, s{S_T0}, v{GA}')
        a(f'v_add_u32 v{GA+1}, 4096, v{GA}')
        a(f'v_lshlrev_b32 v{GA+2}, 5, v{V_TID}')
        a(f'v_add_u32 v{GA+2}, {WS_STATS + L * 0x4000}, v{GA+2}')
        a(f'v_add_u32 v{GA+3}, 8192, v{GA+2}')
        AA, BA = 24, 25
        a(f'v_bfe_u32 v{T+2}, v{V_LANE}, 2, 2')
        a(f'v_mul_u32_u24 v{AA}, 4160, v{T+2}')
        a(f'v_lshrrev_b32 v{T+2}, 4, v{V_LANE}')
        a(f'v_lshlrev_b32 v{T+3}, 4, v{T+2}')
        a(f'v_sub_u32 v{AA}, v{AA}, v{T+3}')
        a(f'v_and_b32 v{T+4}, 3, v{V_LANE}')
        a(f'v_lshl_add_u32 v{AA}, v{T+4}, 3, v{AA}')
        a(f's_mul_i32 s{S_T0}, s{S_HSEL}, 16640')
        a(f's_lshl_b32 s{S_T0+1}, s{S_RHALF}, 8')
        a(f's_add_u32 s{S_T0}, s{S_T0}, s{S_T0+1}')
        a(f's_add_u32 s{S_T0}, s{S_T0}, {self.CV_KC + 32}')
        a(f'v_add_u32 v{AA}, s{S_T0}, v{AA}')
        a(f'v_and_b32 v{BA}, 15, v{V_LANE}')
        a(f'v_lshlrev_b32 v{BA}, 5, v{BA}')
        a(f'v_add_u32 v{BA}, v{BA}, v{T+3}')
        a(f's_mul_i32 s{S_T0}, s{S_HSEL}, 4608')
        a(f's_add_u32 s{S_T0}, s{S_T0}, {self.CV_U}')
        a(f's_lshl_b32 s{S_T0+1}, s{S_RHALF}, 8')
        a(f's_sub_u32 s{S_T0}, s{S_T0}, s{S_T0+1}')
        a(f'v_add_u32 v{BA}, s{S_T0}, v{BA}')
        EXW, EXR, LA2, GS = 26, 27, 28, 29
        a(f'v_lshlrev_b32 v{T+2}, 4, v{V_LANE}')
        a(f's_lshl_b32 s{S_T0}, s{S_W}, 13')
        a(f's_add_u32 s{S_T0}, s{S_T0}, {self.CV_EX}')
        a(f'v_add_u32 v{EXW}, s{S_T0}, v{T+2}')
        a(f's_lshl_b32 s{S_T0}, s{S_W}, 11')
        a(f's_add_u32 s{S_T0}, s{S_T0}, {self.CV_EX}')
        a(f'v_add_u32 v{EXR}, s{S_T0}, v{T+2}')
        a(f'v_and_b32 v{T+2}, 15, v{V_LANE}')
        a(f'v_lshlrev_b32 v{T+2}, 4, v{T+2}')
        a(f'v_lshrrev_b32 v{T+3}, 4, v{V_LANE}')
        a(f'v_lshl_add_u32 v{T+2}, v{T+3}, 2, v{T+2}')
        a(f's_lshl_b32 s{S_T0}, s{S_W}, 9')
        a(f'v_add_u32 v{T+2}, s{S_T0}, v{T+2}')
        a(f'v_lshlrev_b32 v{LA2}, 1, v{T+2}')
        if L == 0:
            a(f's_lshl_b32 s{S_T0+2}, s{S_C0}, 12')
            a(f's_add_u32 s{S_T0+2}, s{S_T0+2}, {WS_X2T}')
            a(f'v_add_u32 v{GS}, s{S_T0+2}, v{LA2}')
            a(f'v_add_u32 v{GS+1}, 4096, v{GS}')
        else:
            a(f's_lshl_b32 s{S_T0+2}, s{S_C0}, 1')
            a(f'v_lshlrev_b32 v{GS}, 10, v{T+2}')
            a(f'v_add_u32 v{GS}, s{S_T0+2}, v{GS}')
        if o.s3t:
            self.conv_pro_tagged(L)
        else:
            self.conv_pro_flag(L, GA, XR, SM, SQ)
        if L == 1 and o.split: return self.conv_split_final()
        ACC, BF, AF = 48, 80, [12, 16, 20, 112, 116]
        NA = len(AF)
        self.lg = []
        def readB(ee, m):
            e = 1 + 2 * ee
            d = BF + 4 * m
            self.lg_op(f'ds_read_b128 v[{d}:{d+3}], v{BA} offset:{512 + 512*m - 32*e}', f'B{ee}_{m}')
        def readA(idx):
            ee, g = seq[idx]
            e = 1 + 2 * ee
            sl = AF[idx % NA]
            for x in range(2):
                self.lg_op(f'ds_read_b64_tr_b16 v[{sl+2*x}:{sl+2*x+1}], v{AA} offset:{32*e + 512*g - 8*x}', f'A{idx}')
        seq = [(ee, g) for ee in range(4) for g in range(8)]
        readA(0)
        for m in range(7, -1, -1): readB(0, m)
        for i in range(1, NA - 1): readA(i)
        first = set()
        for idx, (ee, g) in enumerate(seq):
            if idx + NA - 1 < len(seq): readA(idx + NA - 1)
            self.wait_lg(f'A{idx}')
            sl = AF[idx % NA]
            for n in range(7, g - 1, -1):
                m = n - g
                if g == 0: self.wait_lg(f'B{ee}_{m}')
                acc = ACC + 4 * n
                c = f'v[{acc}:{acc+3}]' if n in first else '0'
                first.add(n)
                a(f'v_mfma_f32_16x16x32_f16 v[{acc}:{acc+3}], v[{sl}:{sl+3}], v[{BF+4*m}:{BF+4*m+3}], {c}')
                if n == 7 and ee + 1 < 4: readB(ee + 1, m)
        self.stamp(13 + 16 * L)
        T = 12
        EXW, EXR, LA2, GS = 26, 27, 28, 29
        for n in range(7, -1, -1):
            a(f'ds_write_b128 v{EXW}, v[{ACC+4*n}:{ACC+4*n+3}] offset:{n*1024}')
        XX, UU = 80, 88
        for nn in range(2):
            for ch in range(2):
                a(f'ds_read_b64 v[{XX+4*nn+2*ch}:{XX+4*nn+2*ch+1}], v{LA2} offset:{self.CV_X1 + ch*4096 + nn*512}')
                a(f'ds_read_b64 v[{UU+4*nn+2*ch}:{UU+4*nn+2*ch+1}], v{LA2} offset:{self.CV_U + ch*4608 + 512 + nn*512}')
        a(f's_lshl_b32 s{S_T0}, s{S_DSKV}, 16')
        a(f's_and_b32 s{S_T0+1}, s{S_DSKV}, 0xffff0000')
        a('s_waitcnt lgkmcnt(0)')
        a('s_barrier')
        Y = 48
        for nn in range(2):
            for ch in range(2):
                for eh in range(2):
                    a(f'ds_read_b128 v[{Y+16*nn+8*ch+4*eh}:{Y+16*nn+8*ch+4*eh+3}], v{EXR} offset:{(ch + 2*eh) * 8192 + nn * 1024}')
        R = 96
        def pre(nn, ch, h, e):
            a = self.a
            res = R + 8*nn + 4*ch + 2*h
            xr, ur = XX + 4*nn + 2*ch + h, UU + 4*nn + 2*ch + h
            a(f'v_cvt_f32_f16 v{e}, v{ur}')
            a(f'v_cvt_f32_f16_sdwa v{e+1}, v{ur} dst_sel:DWORD dst_unused:UNUSED_PAD src0_sel:WORD_1')
            a(f'v_lshlrev_b32 v{res}, 16, v{xr}')
            a(f'v_and_b32 v{res+1}, 0xffff0000, v{xr}')
            a(f'v_fmac_f32 v{res}, s{S_T0+ch}, v{e}')
            a(f'v_fmac_f32 v{res+1}, s{S_T0+ch}, v{e+1}')
        for nn in range(2):
            for ch in range(2):
                self.merge(self.cap(lambda: pre(nn, ch, 0, 112)), self.cap(lambda: pre(nn, ch, 1, 114)))
        E = 116
        for nn in range(2):
            a(f's_waitcnt lgkmcnt({4 - 4*nn})')
            for ch in range(2):
                y0, y1 = Y + 16*nn + 8*ch, Y + 16*nn + 8*ch + 4
                res = R + 8*nn + 4*ch
                for h in range(2):
                    a(f'v_pk_add_f32 v[{y0+2*h}:{y0+2*h+1}], v[{y0+2*h}:{y0+2*h+1}], v[{y1+2*h}:{y1+2*h+1}]')
                for i in range(4):
                    a(f'v_fmac_f32 v{res+i}, s{S_KSC+ch}, v{y0+i}')
                if L == 0:
                    e = E + 2 * (ch & 1)
                    a(f'v_cvt_pk_bf16_f32 v{e}, v{res}, v{res+1}')
                    a(f'v_cvt_pk_bf16_f32 v{e+1}, v{res+2}, v{res+3}')
                    a(f'global_store_dwordx2 v{GS+ch}, v[{e}:{e+1}], {WSB} offset:{nn*512} sc1')
            if L == 1:
                for r in range(4):
                    a(f'v_cvt_pk_bf16_f32 v{E+(r&3)}, v{R+8*nn+r}, v{R+8*nn+4+r}')
                    a(f'v_add_u32 v{T+6+(r&1)}, {(256*nn + r) * 1024}, v{GS}')
                    a(f'global_store_dword v{T+6+(r&1)}, v{E+(r&3)}, s[{S_OUT}:{S_OUT+1}]{o.osc}')
        if L == 0: self.signal_wg(4 * L + 3, S_WG)
        self.stamp(14 + 16 * L)

    def conv_split_final(self):
        a = self.a; o = self.o
        L = 1
        AA, BA = 24, 25
        ACC, BF = 48, 80
        EXW, EXRA, LAA, GSA = 26, 31, 32, 33
        T = 104
        a(f'v_lshlrev_b32 v{T}, 4, v{V_LANE}')
        a(f's_lshl_b32 s{S_T0}, s{S_W}, 10')
        a(f's_add_u32 s{S_T0}, s{S_T0}, {self.CV_EX}')
        a(f'v_add_u32 v{EXRA}, s{S_T0}, v{T}')
        a(f'v_and_b32 v{T}, 15, v{V_LANE}')
        a(f'v_lshlrev_b32 v{T}, 4, v{T}')
        a(f'v_lshrrev_b32 v{T+1}, 4, v{V_LANE}')
        a(f'v_lshl_add_u32 v{T}, v{T+1}, 2, v{T}')
        a(f's_lshl_b32 s{S_T0}, s{S_W}, 8')
        a(f'v_add_u32 v{T}, s{S_T0}, v{T}')
        a(f'v_lshlrev_b32 v{LAA}, 1, v{T}')
        a(f's_lshl_b32 s{S_T0+2}, s{S_C0}, 1')
        a(f'v_lshlrev_b32 v{GSA}, 10, v{T}')
        a(f'v_add_u32 v{GSA}, s{S_T0+2}, v{GSA}')
        a(f's_lshl_b32 s{S_T0}, s{S_DSKV}, 16')
        a(f's_and_b32 s{S_T0+1}, s{S_DSKV}, 0xffff0000')
        def run_pass(n0, n1, AF):
            NA = len(AF)
            mmax = n1 - 1
            seq = [(ee, g) for ee in range(4) for g in range(n1)]
            def readB(ee, m):
                e = 1 + 2 * ee
                d = BF + 4 * m
                self.lg_op(f'ds_read_b128 v[{d}:{d+3}], v{BA} offset:{512 + 512*m - 32*e}', f'B{ee}_{m}')
            def readA(idx):
                ee, g = seq[idx]
                e = 1 + 2 * ee
                sl = AF[idx % NA]
                for x in range(2):
                    self.lg_op(f'ds_read_b64_tr_b16 v[{sl+2*x}:{sl+2*x+1}], v{AA} offset:{32*e + 512*g - 8*x}', f'A{idx}')
            readA(0)
            for m in range(mmax, -1, -1): readB(0, m)
            for k in range(1, NA - 1): readA(k)
            first = set()
            for idx, (ee, g) in enumerate(seq):
                if idx + NA - 1 < len(seq): readA(idx + NA - 1)
                self.wait_lg(f'A{idx}')
                sl = AF[idx % NA]
                for n in range(n1 - 1, max(g, n0) - 1, -1):
                    m = n - g
                    self.wait_lg(f'B{ee}_{m}')
                    acc = ACC + 4 * n
                    c = f'v[{acc}:{acc+3}]' if n in first else '0'
                    first.add(n)
                    a(f'v_mfma_f32_16x16x32_f16 v[{acc}:{acc+3}], v[{sl}:{sl+3}], v[{BF+4*m}:{BF+4*m+3}], {c}')
                    if n == n1 - 1 and ee + 1 < 4: readB(ee + 1, m)
        def finish(n0, Y, XX, R, E, off):
            for n in range(n0 + 3, n0 - 1, -1):
                a(f'ds_write_b128 v{EXW}, v[{ACC+4*n}:{ACC+4*n+3}] offset:{n*1024}')
            UU = XX + 4
            for ch in range(2):
                a(f'ds_read_b64 v[{XX+2*ch}:{XX+2*ch+1}], v{LAA} offset:{self.CV_X1 + ch*4096 + off*2048}')
                a(f'ds_read_b64 v[{UU+2*ch}:{UU+2*ch+1}], v{LAA} offset:{self.CV_U + ch*4608 + 512 + off*2048}')
            a('s_waitcnt lgkmcnt(0)')
            a('s_barrier')
            for ch in range(2):
                for eh in range(2):
                    a(f'ds_read_b128 v[{Y+8*ch+4*eh}:{Y+8*ch+4*eh+3}], v{EXRA} offset:{(ch + 2*eh) * 8192 + off * 4096}')
            def pre(ch, h, e):
                a = self.a
                res = R + 4*ch + 2*h
                xr, ur = XX + 2*ch + h, UU + 2*ch + h
                a(f'v_cvt_f32_f16 v{e}, v{ur}')
                a(f'v_cvt_f32_f16_sdwa v{e+1}, v{ur} dst_sel:DWORD dst_unused:UNUSED_PAD src0_sel:WORD_1')
                a(f'v_lshlrev_b32 v{res}, 16, v{xr}')
                a(f'v_and_b32 v{res+1}, 0xffff0000, v{xr}')
                a(f'v_fmac_f32 v{res}, s{S_T0+ch}, v{e}')
                a(f'v_fmac_f32 v{res+1}, s{S_T0+ch}, v{e+1}')
            for ch in range(2):
                self.merge(self.cap(lambda: pre(ch, 0, E)), self.cap(lambda: pre(ch, 1, E + 2)))
            a('s_waitcnt lgkmcnt(0)')
            for ch in range(2):
                y0, y1 = Y + 8*ch, Y + 8*ch + 4
                for h in range(2):
                    a(f'v_pk_add_f32 v[{y0+2*h}:{y0+2*h+1}], v[{y0+2*h}:{y0+2*h+1}], v[{y1+2*h}:{y1+2*h+1}]')
                for k in range(4): a(f'v_fmac_f32 v{R+4*ch+k}, s{S_KSC+ch}, v{y0+k}')
            for r in range(4):
                a(f'v_cvt_pk_bf16_f32 v{E+r}, v{R+r}, v{R+4+r}')
                a(f'v_add_u32 v{E+4+(r&1)}, {(1024*off + r) * 1024}, v{GSA}')
                a(f'global_store_dword v{E+4+(r&1)}, v{E+r}, s[{S_OUT}:{S_OUT+1}]')
        self.lg = []
        run_pass(0, 4, [12, 16, 20, 112])
        a('s_waitcnt lgkmcnt(0)'); self.lg = []
        finish(0, 64, 96, 104, 112, 0)
        self.lg = []
        run_pass(4, 8, [12, 16, 20, 112, 116])
        self.stamp(29)
        a('s_waitcnt lgkmcnt(0)'); self.lg = []
        finish(4, 80, 96, 104, 112, 1)
        self.stamp(30)

    def conv_pro_flag(self, L, GA, XR, SM, SQ):
        a = self.a; o = self.o
        T = V_P
        K5, EP = 72, 74
        a(f'v_mov_b32 v{K5}, 0x3b000000'); a(f'v_mov_b32 v{K5+1}, 0x3b000000')
        a(f'v_mov_b32 v{EP}, 0x3727c5ac'); a(f'v_mov_b32 v{EP+1}, 0x3727c5ac')
        a('s_waitcnt lgkmcnt(0)')
        self.wait(4 * L + 2, None, 256, slp0=(0 if L == 0 else o.s3))
        self.stamp(11 + 16 * L)
        a(f'global_load_dwordx4 v[{SM}:{SM+3}], v{GA+2}, {WSB} sc1')
        a(f'global_load_dwordx4 v[{SQ}:{SQ+3}], v{GA+3}, {WSB} sc1')
        a(f'global_load_dwordx4 v[{SM+4}:{SM+7}], v{GA+2}, {WSB} offset:16 sc1')
        a(f'global_load_dwordx4 v[{SQ+4}:{SQ+7}], v{GA+3}, {WSB} offset:16 sc1')
        a(f'global_load_dwordx4 v[{XR}:{XR+3}], v{GA}, {WSB} sc1')
        a(f'global_load_dwordx4 v[{XR+4}:{XR+7}], v{GA+1}, {WSB} sc1')
        if L == 0: self.k_copies(T=96, W=100)
        if L == 0:
            l = self.lab('nonce')
            a(f's_add_u32 s{S_T0}, s{S_WG}, s{S_W}')
            a(f's_cmp_lg_u32 s{S_T0}, 0')
            a(f's_cbranch_scc1 {l}')
            a(f'v_mov_b32 v126, {WS_NONCE}')
            a(f'v_mov_b32 v127, s{S_NONCE}')
            a('s_mov_b64 exec, 1')
            a(f'global_store_dword v126, v127, {WSB} sc1')
            a('s_mov_b64 exec, -1')
            a.label(l)
        def rb2(r, u):
            a = self.a
            a(f'v_cvt_pk_bf16_f32 v{u}, v{r}, v{r+1}')
            a(f'v_lshlrev_b32 v{r}, 16, v{u}')
            a(f'v_and_b32 v{r+1}, 0xffff0000, v{u}')
        def fin(p, u):
            a = self.a
            m, q = SM + p, SQ + p
            a(f'v_pk_mul_f32 v[{m}:{m+1}], v[{m}:{m+1}], v[{K5}:{K5+1}]')
            a(f'v_pk_mul_f32 v[{q}:{q+1}], v[{q}:{q+1}], v[{K5}:{K5+1}]')
            a(f'v_pk_fma_f32 v[{q}:{q+1}], v[{m}:{m+1}], v[{m}:{m+1}], v[{q}:{q+1}] neg_lo:[1,0,0] neg_hi:[1,0,0]')
            a(f'v_max_f32 v{q}, 0, v{q}'); a(f'v_max_f32 v{q+1}, 0, v{q+1}')
            rb2(m, u); rb2(q, u)
            a(f'v_pk_add_f32 v[{q}:{q+1}], v[{q}:{q+1}], v[{EP}:{EP+1}]')
            rb2(q, u)
            a(f'v_sqrt_f32 v{q}, v{q}'); a(f'v_sqrt_f32 v{q+1}, v{q+1}')
            rb2(q, u)
            a(f'v_rcp_f32 v{q}, v{q}'); a(f'v_rcp_f32 v{q+1}, v{q+1}')
        a('s_waitcnt vmcnt(4)') if L == 1 else a('s_waitcnt vmcnt(4)')
        self.merge(self.cap(lambda: fin(0, 76)), self.cap(lambda: fin(2, 77)))
        a('s_waitcnt vmcnt(2)') if L == 1 else a('s_waitcnt vmcnt(0)')
        self.merge(self.cap(lambda: fin(4, 76)), self.cap(lambda: fin(6, 77)))
        a('s_waitcnt vmcnt(0)')
        UO, E = 80, 88
        def elem(ch, p, e, u):
            a = self.a
            x = XR + 4 * ch + p
            m, q = SM + 2 * p, SQ + 2 * p
            a(f'v_lshlrev_b32 v{e}, 16, v{x}')
            a(f'v_and_b32 v{e+1}, 0xffff0000, v{x}')
            a(f'v_pk_add_f32 v[{e}:{e+1}], v[{e}:{e+1}], v[{m}:{m+1}] neg_lo:[0,1] neg_hi:[0,1]')
            if not o.trim: rb2(e, u)
            a(f'v_pk_mul_f32 v[{e}:{e+1}], v[{e}:{e+1}], v[{q}:{q+1}]')
            if not o.trim: rb2(e, u)
            if o.trim:
                a(f'v_cvt_f16_f32 v{e}, v{e}')
                a(f'v_cvt_f16_f32 v{e+1}, v{e+1}')
                a(f'v_lshl_or_b32 v{UO+4*ch+p}, v{e+1}, 16, v{e}')
            else:
                a(f'v_cvt_pkrtz_f16_f32 v{UO+4*ch+p}, v{e}, v{e+1}')
        a(f'v_lshlrev_b32 v{GA}, 4, v{V_TID}')
        for ch in range(2):
            a(f'ds_write_b128 v{GA}, v[{XR+4*ch}:{XR+4*ch+3}] offset:{self.CV_X1 + ch*4096}')
        for ch in range(2):
            for p in range(0, 4, 2):
                self.merge(self.cap(lambda: elem(ch, p, E, 76)), self.cap(lambda: elem(ch, p + 1, E + 2, 77)))
            a(f'ds_write_b128 v{GA}, v[{UO+4*ch}:{UO+4*ch+3}] offset:{self.CV_U + ch*4608 + 512}')
        a('s_waitcnt lgkmcnt(0)')
        a('s_barrier')
        self.stamp(12 + 16 * L)

    def nonce_handover(self):
        a = self.a
        l = self.lab('nonce')
        a(f's_add_u32 s{S_T0}, s{S_WG}, s{S_W}')
        a(f's_cmp_lg_u32 s{S_T0}, 0')
        a(f's_cbranch_scc1 {l}')
        a(f'v_mov_b32 v126, {WS_NONCE}')
        a(f'v_mov_b32 v127, s{S_NONCE}')
        a('s_mov_b64 exec, 1')
        a(f'global_store_dword v126, v127, {WSB} sc1')
        a('s_mov_b64 exec, -1')
        a.label(l)
    def conv_pro_tagged(self, L):
        a = self.a; o = self.o
        XR, SR, GA = 48, 64, 112
        a(f's_lshl_b32 s{S_T0}, s{S_C0}, 13')
        a(f's_add_u32 s{S_T0}, s{S_T0}, {WS_X1G[L]}')
        a(f'v_lshlrev_b32 v{GA}, 5, v{V_TID}')
        a(f'v_add_u32 v{GA}, s{S_T0}, v{GA}')
        a(f'v_add_u32 v{GA+1}, 8192, v{GA}')
        a(f'v_lshlrev_b32 v{GA+2}, 6, v{V_TID}')
        a(f'v_add_u32 v{GA+2}, {WS_STATS + L * 0x4000}, v{GA+2}')
        a(f'v_lshlrev_b32 v{GA+3}, 4, v{V_TID}')
        a('s_waitcnt lgkmcnt(0)')
        l0, lq, lr = self.lab('s3w'), self.lab('s3q'), self.lab('s3r')
        a(f's_cmp_lg_u32 s{S_W}, 0')
        a(f's_cbranch_scc1 {l0}')
        a(f'v_lshlrev_b32 v126, 8, v{V_LANE}')
        a(f'v_add_u32 v126, {WS_STATS + L * 0x4000 + 31 * 8 + 4}, v126')
        a(f's_mov_b32 s{S_T0+2}, 0')
        a('s_waitcnt vmcnt(0)')
        if o.slp3 and L == 1: a(f's_sleep {o.slp3}')
        a.label(lq)
        a(f'global_load_dword v127, v126, {WSB} sc1')
        a(f's_add_u32 s{S_T0+2}, s{S_T0+2}, 1')
        a(f's_cmp_gt_u32 s{S_T0+2}, {o.spin}')
        a(f's_cbranch_scc1 {lr}')
        a('s_waitcnt vmcnt(0)')
        a(f'v_cmp_ne_u32 vcc, s{S_NONCE}, v127')
        a(f's_cbranch_vccz {lr}')
        if o.slp: a(f's_sleep {o.slp}')
        a(f's_branch {lq}')
        a.label(lr)
        a('s_waitcnt vmcnt(0)')
        a.label(l0)
        a('s_barrier')
        lp, ld = self.lab('s3p'), self.lab('s3d')
        a(f's_mov_b32 s{S_T0+2}, 0')
        a.label(lp)
        for i in range(4): a(f'global_load_dwordx4 v[{SR+4*i}:{SR+4*i+3}], v{GA+2}, {WSB} offset:{16*i} sc1')
        for ch in range(2):
            for i in range(2): a(f'global_load_dwordx4 v[{XR+8*ch+4*i}:{XR+8*ch+4*i+3}], v{GA+ch}, {WSB} offset:{16*i} sc1')
        a(f's_add_u32 s{S_T0+2}, s{S_T0+2}, 1')
        a(f's_cmp_gt_u32 s{S_T0+2}, {o.spin}')
        a(f's_cbranch_scc1 {ld}')
        a('s_waitcnt vmcnt(4)')
        a(f'v_sad_u32 v80, v{SR+1}, s{S_NONCE}, 0')
        for r in range(3, 16, 2): a(f'v_sad_u32 v80, v{SR+r}, s{S_NONCE}, v80')
        a('s_waitcnt vmcnt(0)')
        for r in range(1, 16, 2): a(f'v_sad_u32 v80, v{XR+r}, s{S_NONCE}, v80')
        a('v_cmp_ne_u32 vcc, 0, v80')
        a(f's_cbranch_vccz {ld}')
        if o.slp: a(f's_sleep {o.slp}')
        a(f's_branch {lp}')
        a.label(ld)
        a('s_waitcnt vmcnt(0)')
        self.stamp(11 + 16 * L)
        if L == 0: self.nonce_handover()
        for ch in range(2):
            b = XR + 8 * ch
            a(f'v_mov_b32 v{b+1}, v{b+2}'); a(f'v_mov_b32 v{b+2}, v{b+4}'); a(f'v_mov_b32 v{b+3}, v{b+6}')
            a(f'ds_write_b128 v{GA+3}, v[{b}:{b+3}] offset:{self.CV_X1 + ch*4096}')
        M0, R0 = 80, 88
        for p in range(8):
            a(f'v_and_b32 v{R0+p}, 0xffff0000, v{SR+2*p}')
            a(f'v_lshlrev_b32 v{M0+p}, 16, v{SR+2*p}')
        for p in range(8): a(f'v_rcp_f32 v{R0+p}, v{R0+p}')
        UO = 96
        def elem(ch, p, e):
            a = self.a
            x = XR + 8 * ch + p
            m, q = M0 + 2 * p, R0 + 2 * p
            a(f'v_lshlrev_b32 v{e}, 16, v{x}')
            a(f'v_and_b32 v{e+1}, 0xffff0000, v{x}')
            a(f'v_pk_add_f32 v[{e}:{e+1}], v[{e}:{e+1}], v[{m}:{m+1}] neg_lo:[0,1] neg_hi:[0,1]')
            a(f'v_pk_mul_f32 v[{e}:{e+1}], v[{e}:{e+1}], v[{q}:{q+1}]')
            a(f'v_cvt_f16_f32 v{e}, v{e}')
            a(f'v_cvt_f16_f32 v{e+1}, v{e+1}')
            a(f'v_lshl_or_b32 v{UO+4*ch+p}, v{e+1}, 16, v{e}')
        for ch in range(2):
            for p in range(0, 4, 2):
                self.merge(self.cap(lambda: elem(ch, p, 104)), self.cap(lambda: elem(ch, p + 1, 106)))
            a(f'ds_write_b128 v{GA+3}, v[{UO+4*ch}:{UO+4*ch+3}] offset:{self.CV_U + ch*4608 + 512}')
        a('s_waitcnt lgkmcnt(0)')
        a('s_barrier')
        self.stamp(12 + 16 * L)

    def kvt_zero(self, T):
        a = self.a
        for i in range(4): a(f'v_mov_b32 v{T+4+i}, 0')
        a(f'v_lshlrev_b32 v{T}, 4, v{V_TID}')
        a(f'v_add_u32 v{T}, {SC_KVT}, v{T}')
        a(f'ds_write_b128 v{T}, v[{T+4}:{T+7}]')
        a(f'ds_write_b128 v{T}, v[{T+4}:{T+7}] offset:4096')
        l = self.lab('kz')
        a(f's_cmp_gt_u32 s{S_W}, 1')
        a(f's_cbranch_scc1 {l}')
        a(f'ds_write_b128 v{T}, v[{T+4}:{T+7}] offset:8192')
        a.label(l)

    def stats_zero(self, T):
        a = self.a
        a(f'v_bfe_u32 v{T}, v{V_LANE}, 2, 1')
        a(f'v_lshlrev_b32 v{T}, 14, v{T}')
        a(f'v_bfe_u32 v{T+1}, v{V_LANE}, 1, 1')
        a(f'v_lshl_add_u32 v{T}, v{T+1}, 13, v{T}')
        a(f'v_and_b32 v{T+1}, 1, v{V_LANE}')
        a(f'v_lshl_add_u32 v{T}, v{T+1}, 2, v{T}')
        a(f's_lshl_b32 s{S_T0}, s{S_RB}, 8')
        a(f's_lshl_b32 s{S_T0+1}, s{S_HSEL}, 7')
        a(f's_add_u32 s{S_T0}, s{S_T0}, s{S_T0+1}')
        a(f's_lshl_b32 s{S_T0+1}, s{S_HB}, 4')
        a(f's_add_u32 s{S_T0}, s{S_T0}, s{S_T0+1}')
        a(f's_lshl_b32 s{S_T0+1}, s{S_RHALF}, 3')
        a(f's_add_u32 s{S_T0}, s{S_T0}, s{S_T0+1}')
        a(f's_add_u32 s{S_T0}, s{S_T0}, {WS_STATS}')
        a(f'v_add_u32 v{T}, s{S_T0}, v{T}')
        a(f'v_mov_b32 v{T+1}, 0')
        a('s_mov_b64 exec, 0xff')
        a(f'global_store_dword v{T}, v{T+1}, {WSB} sc1')
        a('s_mov_b64 exec, -1')

    def build(self):
        a = self.a; o = self.o
        self.trk_reset()
        self.prologue()
        stop = o.stop
        def chk(name):
            if stop == name:
                a('s_waitcnt vmcnt(0) lgkmcnt(0)')
                a('s_branch L_end')
                return True
            return False
        WB = 148
        KVA, QA = 44, 47
        self.w_dma_setup(WB)
        if o.rot: self.rot_setup()
        self.XD = 152
        self.x_dma_setup(0, self.XD)
        self.prologue2()
        self.stamp(0)
        self.vm = []
        self.kgen_loads(); self.vm += ['kg'] * 7
        self.x_slice_prefetch(0); self.vm.append('pf')
        self.w_dma(1, 0, WB, 'kva')
        for i in range(4): self.w_dma_one(2, 0, i, WB, 'kva')
        if o.pt:
            sh = o.pt
            a(f'v_lshlrev_b32 v122, {sh}, v{V_TID}')
            a(f'v_min_u32 v122, {0x1400000 - 4}, v122')
            a(f'v_cmp_gt_u32 vcc, {min((0x1400000 >> sh), 256)}, v{V_TID}')
            a(f's_and_saveexec_b64 s[{S_T0+2}:{S_T0+3}], vcc')
            l = self.lab('pt')
            a(f's_cbranch_execz {l}')
            a(f'global_load_dword a250, v122, {WSB}')
            a.label(l)
            a(f's_mov_b64 exec, s[{S_T0+2}:{S_T0+3}]')
            a(f'v_mov_b32 v122, 0')
            a(f's_mov_b64 exec, 1')
            a(f'global_load_dword a249, v122, s[{S_OUT}:{S_OUT+1}]')
            a(f'global_load_dword a248, v122, s[{S_WO}:{S_WO+1}]')
            a(f's_mov_b64 exec, -1')
        if not o.s3t:
            self.stats_zero(54); self.vm.append('sz')
        a('s_waitcnt lgkmcnt(0)')
        a(f's_add_u32 s{S_NONCE}, s{S_NONCE}, 0x9e3779b9')
        a(f's_getreg_b32 s{S_XCC}, hwreg(HW_REG_XCC_ID)')
        a(f's_and_b32 s{S_XCC}, s{S_XCC}, 15')
        a(f's_lshl_b32 s{S_T0}, s{S_RB}, 6')
        a(f's_lshl_b32 s{S_T0+1}, s{S_HB}, 3')
        a(f's_add_u32 s{S_T0}, s{S_T0}, s{S_T0+1}')
        a(f's_add_u32 s{S_T0}, s{S_T0}, {WS_XT}')
        a(f'v_mov_b32 v54, s{S_T0}')
        a(f'v_mov_b32 v126, s{S_XCC}')
        a(f'v_mov_b32 v127, s{S_NONCE}')
        a('s_mov_b64 exec, 1')
        self.vm_op(f'global_store_dwordx2 v54, v[126:127], {WSB} sc1', 'xt')
        a('s_mov_b64 exec, -1')
        self.wait_vm('kg')
        def rest():
            for i in range(4, 8): self.w_dma_one(2, 0, i, WB, 'kva')
            for c in range(4):
                for i in range(2): self.dma_x(0, c, i)
            self.w_dma(1, 1, WB, 'kvb')
            for c in range(4, 8):
                for i in range(2): self.dma_x(0, c, i)
        s_dma = self.cap(rest)
        def other():
            self.wfrag_addr(KVA, QA, 56)
            self.cs_sel(self.SELR)
            self.bfrag_setup(0, self.XB)
            self.st_setup(0)
            self.kv_addr_setup(0)
            self.kgen_a()
        s_kg = self.cap(other)
        grp, cur = [], []
        for l in s_dma:
            cur.append(l)
            if 'global_load_lds' in l: grp.append(cur); cur = []
        per = (len(s_kg) + len(grp) - 1) // len(grp)
        for i, t3 in enumerate(grp):
            a.lines += t3
            a.lines += s_kg[i * per:(i + 1) * per]
        self.wphi_load(156); self.vm += ['wphi'] * 16
        self.stamp(16)
        CSKV = 28
        for L in range(2):
            self.lg = []
            if L == 0:
                self.kv_pass0(WB, KVA, QA, self.SELR, CSKV)
            else:
                self.XD = 28
                self.x_dma_setup(1, self.XD)
                self.bfrag_setup(1, self.XB)
                self.st_setup(1)
                self.wait(3, None, 256, slp0=o.s4)
                self.stamp(15)
                self.vm = []
                self.x_slice_prefetch(1); self.vm.append('pf')
                for c in range(4):
                    for i in range(2): self.dma_x(1, c, i)
                self.kv_addr_setup(1)
                self.kv_pass1()
            self.kv_epilogue(L, cs_kv_reg=CSKV)
            self.q_pass(L)
            if chk(f'p1_{L}'): break
            self.o_stage(L)
            if chk(f'o_{L}'): break
            self.p2b(L)
            if chk(f'p2b_{L}'): break
            self.conv(L)
            if chk(f'conv_{L}'): break
        a.label('L_end')
        a('s_endpgm')

HEADER = open('cdna_kernels/' + KNAME + '.s.ref').read().split('; Override launch geometry')[0]

def main():
    ap = argparse.ArgumentParser()
    ap.add_argument('--out', default='cdna_kernels/' + KNAME + '.s')
    ap.add_argument('--stop', default='')
    ap.add_argument('--dump', default='')
    ap.add_argument('--stamps', action='store_true')
    ap.add_argument('--spin', type=int, default=40000)
    ap.add_argument('--pt', type=int, default=0)
    ap.add_argument('--fast2', action='store_true')
    ap.add_argument('--wpf', action='store_true')
    ap.add_argument('--split', action='store_true')
    ap.add_argument('--early1', action='store_true')
    ap.add_argument('--h1l0', action='store_true')
    ap.add_argument('--osc', default='')
    ap.add_argument('--lite', action='store_true')
    ap.add_argument('--s3', type=int, default=12)
    ap.add_argument('--s4', type=int, default=12)
    ap.add_argument('--h1k', type=int, default=32)
    ap.add_argument('--slp4', type=int, default=10)
    ap.add_argument('--x1', type=int, default=0)
    ap.add_argument('--s3t', action='store_true')
    ap.add_argument('--slp3', type=int, default=16)
    ap.add_argument('--pmode', type=int, default=0)
    ap.add_argument('--trim', action='store_true')
    ap.add_argument('--rot', action='store_true')
    ap.add_argument('--fsh', type=int, default=6)
    ap.add_argument('--slp', type=int, default=0)
    ap.add_argument('--slp0', type=int, default=0)
    ap.add_argument('--slph', type=int, default=0)
    o = ap.parse_args()
    g = Gen(o)
    g.build()
    g.a.lines = to_buffer(g.a.lines, WSB, f's[{S_WSRD}:{S_WSRD+3}]')
    g.a.lines = to_buffer(g.a.lines, f's[{S_OUT}:{S_OUT+1}]', f's[{S_OSRD}:{S_OSRD+3}]')
    body = g.a.text()
    txt = HEADER
    txt += '; Persistent fused kernel: 256 workgroups (one per CU), generated by gen/gen2.py\n'
    txt += '; @launch grid=(256,1,1) block=(256,1,1) lds=163840\n'
    txt += '.amdgcn_target "amdgcn-amd-amdhsa--gfx950"\n.text\n'
    txt += f'.globl {KNAME}_kernel\n.p2align 8\n.type {KNAME}_kernel,@function\n{KNAME}_kernel:\n'
    txt += body
    txt += f'''.section .rodata,"a"
.p2align 6
.amdhsa_kernel {KNAME}_kernel
  .amdhsa_next_free_vgpr 512
  .amdhsa_next_free_sgpr 100
  .amdhsa_accum_offset 256
  .amdhsa_group_segment_fixed_size 0
  .amdhsa_kernarg_size 112
  .amdhsa_user_sgpr_count 2
  .amdhsa_user_sgpr_kernarg_segment_ptr 1
  .amdhsa_system_sgpr_workgroup_id_x 1
  .amdhsa_float_denorm_mode_32 3
.end_amdhsa_kernel
'''
    open(o.out, 'w').write(txt)
    print('wrote', o.out, len(txt), 'bytes;', body.count('\n'), 'lines')

if __name__ == '__main__':
    main()
```
